```python
import torch

def _softmax(x, axis=-1):
    return torch.softmax(x, dim=axis)
def _gelu(x):
    return torch.nn.functional.gelu(x, approximate="tanh")
def _silu(x):
    return torch.nn.functional.silu(x)
def _sigmoid(x):
    return torch.sigmoid(x)
def _layernorm(x, axis=-1, eps=1e-5):
    m = x.mean(dim=axis, keepdim=True)
    v = x.var(dim=axis, keepdim=True, unbiased=False)
    return (x - m) / torch.sqrt(v + eps)
def _scatter_add(tgt, idx, src, axis=0):
    return tgt.clone().index_add_(axis, idx, src)
def _segment_sum(src, seg, n):
    out = torch.zeros((n,) + src.shape[1:], dtype=src.dtype)
    return out.index_add_(0, seg, src)
def _pad(x, pw):
    flat = tuple(v for pair in reversed(pw) for v in pair)
    return torch.nn.functional.pad(x, flat)

kernel_name = 'parallel_sum__ssm_conv_h3__glu_gated_bilinear__prompt'

def setup_inputs():

    _w = (lambda a: (lambda t: t.to(torch.bfloat16) if t.is_floating_point() else t)(torch.as_tensor(a)))
    def _A_setup():
        B, S, D = 1, 2048, 448
        ks = 4
        return {
            "q": _w((lambda *s: torch.randn(*s, dtype=torch.bfloat16) * 0.05)(B, S, D)),
            "k": _w((lambda *s: torch.randn(*s, dtype=torch.bfloat16) * 0.2)(B, S, D)),
            "v": _w((lambda *s: torch.randn(*s, dtype=torch.bfloat16) * 0.2)(B, S, D)),
            "shift_k": _w((lambda *s: torch.randn(*s, dtype=torch.bfloat16) * 0.2)(D, ks) * 0.5),
            "ssm_k": _w((lambda *s: torch.randn(*s, dtype=torch.bfloat16) * 0.4)(D, S) * (1.0 / S ** 0.5)),
            "ssm_D": _w((lambda *s: torch.randn(*s, dtype=torch.bfloat16) * 0.2)(D)),
        }
    _A_in = _A_setup()

    def _B_setup():
        B, S, D, F = 1, 2048, 448, 1792
        return {
            "x": _w((lambda *s: torch.randn(*s, dtype=torch.bfloat16) * 0.05)(B, S, D)),
            "w_gate": _w((lambda *s: torch.randn(*s, dtype=torch.bfloat16) * 0.2)(D, F) * (D ** -0.5)),
            "w_up": _w((lambda *s: torch.randn(*s, dtype=torch.bfloat16) * 0.2)(D, F) * (D ** -0.5)),
            "w_down": _w((lambda *s: torch.randn(*s, dtype=torch.bfloat16) * 0.2)(F, D) * (F ** -0.5)),
        }
    _B_in = _B_setup()

    return {
        "A_q": _A_in["q"],
        "A_k": _A_in["k"],
        "A_v": _A_in["v"],
        "A_shift_k": _A_in["shift_k"],
        "A_ssm_k": _A_in["ssm_k"],
        "A_ssm_D": _A_in["ssm_D"],
        "B_x": _B_in["x"],
        "B_w_gate": _B_in["w_gate"],
        "B_w_up": _B_in["w_up"],
        "B_w_down": _B_in["w_down"],
    }

def reference(A_q, A_k, A_v, A_shift_k, A_ssm_k, A_ssm_D, B_x, B_w_gate, B_w_up, B_w_down):
    def _A_ref(q, k, v, shift_k, ssm_k, ssm_D):
        B, S, D = q.shape
        ks = shift_k.shape[-1]
        k_pad = _pad(k, ((0, 0), (ks - 1, 0), (0, 0)))
        k_shift = torch.zeros_like(k)
        for t in range(ks):
            k_shift = k_shift + k_pad[:, t:t + S, :] * shift_k[:, ks - 1 - t][None, None, :]
        kv = k_shift * v
        L = 2 * S
        kv_pad = _pad(kv, ((0, 0), (0, S), (0, 0)))
        kf_pad = _pad(ssm_k, ((0, 0), (0, S)))
        kv_f = (lambda x, axes=(-2,-1): torch.fft.rfft2(x.float(), dim=axes))(kv_pad[:, None, :, :], axes=(1, 2))
        kf_f = (lambda x, axes=(-2,-1): torch.fft.rfft2(x.float(), dim=axes))(kf_pad[:, None, :], axes=(1, 2))
        kf_f = (lambda x, *d: x.permute(*d))(kf_f, 1, 2, 0)
        y_f = kv_f * kf_f[None, :, :, :]
        y = (lambda x, s, axes=(-2,-1): torch.fft.irfft2(x, s=s, dim=axes).to(torch.bfloat16))(y_f, (1, L), axes=(1, 2))[:, 0, :S, :]
        y = y + kv * ssm_D[None, None, :]
        return q * y

    def _B_ref(x, w_gate, w_up, w_down):
        g = torch.einsum("bsd,df->bsf", x, w_gate)
        u = torch.einsum("bsd,df->bsf", x, w_up)
        h = g * u
        return torch.einsum("bsf,fd->bsd", h, w_down)

    x = A_q
    xn = _layernorm(x, axis=-1)
    return x + _A_ref(xn, A_k, A_v, A_shift_k, A_ssm_k, A_ssm_D) + _B_ref(xn, B_w_gate, B_w_up, B_w_down)
```

```python
class Op:
    __slots__ = ("text", "kind", "tag")
    def __init__(self, text, kind="i", tag=None):
        self.text, self.kind, self.tag = text, kind, tag
def I(t): return Op(t)
def VM(t, tag=None): return Op(t, "vm", tag)
def DS(t, tag=None): return Op(t, "ds", tag)
def WVM(*tags): return Op(None, "wvm", tags)
def WDS(*tags): return Op(None, "wds", tags)
def WVM0(): return Op("s_waitcnt vmcnt(0)", "vm0")
def WDS0(): return Op("s_waitcnt lgkmcnt(0)", "ds0")
def RAW(t): return Op(t, "raw")

def flatten(x, out):
    if x is None: return
    if isinstance(x, Op): out.append(x)
    elif isinstance(x, str):
        for line in x.split("\n"):
            line = line.strip()
            if line: out.append(Op(line))
    else:
        for y in x: flatten(y, out)

def resolve(prog):
    ops = []
    flatten(prog, ops)
    out = []
    vmq, dsq = [], []
    seen_vm, seen_ds = set(), set()
    maxvm = 0
    for o in ops:
        if o.kind in ("i", "raw"):
            out.append(o.text)
        elif o.kind == "vm":
            vmq.append(o.tag); seen_vm.add(o.tag); out.append(o.text)
            maxvm = max(maxvm, len(vmq))
            assert len(vmq) <= 63, "too many outstanding VMEM ops: %d at %s" % (len(vmq), o.text)
        elif o.kind == "ds":
            dsq.append(o.tag); seen_ds.add(o.tag); out.append(o.text)
        elif o.kind == "vm0":
            vmq = []; out.append(o.text)
        elif o.kind == "ds0":
            dsq = []; out.append(o.text)
        elif o.kind == "wvm":
            for t in o.tag: assert t in seen_vm, "wait on never-issued vm tag %r" % (t,)
            idx = [i for i, t in enumerate(vmq) if t in o.tag]
            if idx:
                n = len(vmq) - 1 - idx[-1]
                out.append("s_waitcnt vmcnt(%d)" % n)
                vmq = vmq[idx[-1] + 1:]
        elif o.kind == "wds":
            for t in o.tag: assert t in seen_ds, "wait on never-issued ds tag %r" % (t,)
            idx = [i for i, t in enumerate(dsq) if t in o.tag]
            if idx:
                n = len(dsq) - 1 - idx[-1]
                if n > 15:
                    n = 15
                out.append("s_waitcnt lgkmcnt(%d)" % n)
                dsq = dsq[len(dsq) - n:] if n else []
        else:
            raise ValueError(o.kind)
    return out, maxvm

class Gaps:
    def __init__(self): self.g = {}
    def add(self, gap, atom): self.g.setdefault(gap, []).append(atom)
    def spread(self, atoms, gaps):
        n, m = len(atoms), len(gaps)
        for i, a in enumerate(atoms):
            self.add(gaps[(i * m) // n], a)
    def take(self, gap): return self.g.pop(gap, [])
    def check_empty(self): assert not self.g, "unplaced fillers: %r" % (list(self.g.keys()),)
```

```python
import sys
from dsl import *

NAME = "parallel_sum__ssm_conv_h3__glu_gated_bilinear__prompt"
S, D, F = 2048, 448, 1792

H_OFF   = 0x000000
KVT_OFF = 0x700000
Z_OFF   = 0x8C0000
ST_OFF  = 0xC40000
CS_OFF  = 0xC44000
HF_OFF  = 0xC60000
KF_OFF  = 0xC61000
ZF_OFF  = 0xC62000
SF_OFF  = 0xC63000
EP_OFF  = 0xC64000
DG_OFF  = 0xC80000
WS_SIZE = 0xD00000

WR = 0
XR = 98304
HC = 114688
KVR = 148480
PS = 155648
CEX = 0
RED = 16384
LDS_SIZE = 163840

SRD_X, SRD_K, SRD_V, SRD_SK, SRD_HK, SRD_DD, SRD_W1, SRD_WD, SRD_OUT, SRD_WS = [32 + 4 * i for i in range(10)]
def srd(b): return "s[%d:%d]" % (b, b + 3)
sWV, sMT, sFT, sT, sDT, sC2, sTAG = 72, 73, 74, 75, 76, 77, 78
sWL, sXL, sPL, sHL = 79, 80, 81, 82
sH0, sH1 = 83, 84
sZB, sSPIN = 85, 86
sHS = 87
sTMP = [90, 91, 92, 93]
sA, sB, sC, sD_ = 94, 95, 96, 97
_tmpi = [0]
def stmp():
    _tmpi[0] = (_tmpi[0] + 1) % len(sTMP)
    return sTMP[_tmpi[0]]

vL = 1
vA = [2, 3, 4, 5]; vA2 = [6, 7, 8, 9]
vB = [10, 11, 12, 13]
vWsrc, vXsrc0, vXsrc1, vWdsrc = 14, 15, 16, 17
vWdA = [18, 19]; vWdA2 = [20, 21]
vHsrc = 22
vL16 = 23
vFlag0 = 24
vTagV = 25
vT0, vT1, vT2, vT3, vT4, vT5 = 26, 27, 28, 29, 30, 31
BF = 80
AF = 96
ACC = 128
def vr(b, n): return "v[%d:%d]" % (b, b + n - 1)
def ar(b, n): return "a[%d:%d]" % (b, b + n - 1)
OOB = "0x80000000"

class Cfg:
    diag = False
    spin = 200000

def dma(ldsbase_s, ldsconst, soff, vsrc, srd_b, tag):
    t = stmp()
    return [I("s_add_u32 m0, s%d, %d" % (ldsbase_s, ldsconst)),
            I("s_mov_b32 s%d, %d" % (t, soff)),
            VM("buffer_load_dwordx4 v%d, %s, s%d offen lds" % (vsrc, srd(srd_b), t), tag)]

slow_paths = []
def poll_issue(vdst, voff, soff_const, tag):
    t = stmp()
    return [I("s_mov_b32 s%d, %d" % (t, soff_const)),
            VM("buffer_load_dword v%d, v%d, %s, s%d offen sc1" % (vdst, voff, srd(SRD_WS), t), tag)]
def poll_check(name, vdst, voff, soff_const, tag):
    slow_paths.append("\n".join([
        "L_slow_%s:" % name,
        "s_mov_b32 s%d, 0" % sSPIN,
        "L_spin_%s:" % name,
        "s_sleep 2",
        "s_mov_b32 s%d, %d" % (sA, soff_const),
        "buffer_load_dword v%d, v%d, %s, s%d offen sc1" % (vdst, voff, srd(SRD_WS), sA),
        "s_add_u32 s%d, s%d, 1" % (sSPIN, sSPIN),
        "s_waitcnt vmcnt(0)",
        "v_cmp_ne_u32 vcc, s%d, v%d" % (sTAG, vdst),
        "s_cmp_lt_u32 s%d, %d" % (sSPIN, Cfg.spin),
        "s_cbranch_scc0 L_res_%s" % name,
        "s_cbranch_vccnz L_spin_%s" % name,
        "s_branch L_res_%s" % name]))
    return [WVM(tag),
            I("v_cmp_ne_u32 vcc, s%d, v%d" % (sTAG, vdst)),
            I("s_cbranch_vccnz L_slow_%s" % name),
            RAW("L_res_%s:" % name)]
def flag_store(soff_s_or_const, wait_tags, is_reg=True):
    ops = [WVM(*wait_tags)]
    ops.append(VM("buffer_store_dword v%d, v%d, %s, s%d offen sc1" % (vTagV, vFlag0, srd(SRD_WS), soff_s_or_const), "flag"))
    return ops

stamp_n = [0]
def stamp():
    if not Cfg.diag: return []
    n = stamp_n[0]; stamp_n[0] += 1
    assert n < 14
    return [I("s_memtime s[98:99]"), WDS0(), I("s_mov_b32 s%d, s98" % (4 + n))]

def build_srd(b, ptr, size):
    return ["s_mov_b32 s%d, s%d" % (b, ptr), "s_mov_b32 s%d, s%d" % (b + 1, ptr + 1),
            "s_mov_b32 s%d, %d" % (b + 2, size), "s_mov_b32 s%d, 0x00020000" % (b + 3)]

def tag_from_epoch(vE):
    return [I("v_readfirstlane_b32 s%d, v%d" % (sTAG, vE)),
            I("s_nop 3"),
            I("s_mul_i32 s%d, s%d, 1664525" % (sTAG, sTAG)),
            I("s_add_u32 s%d, s%d, 1013904223" % (sTAG, sTAG)),
            I("v_mov_b32 v%d, s%d" % (vTagV, sTAG))]

def prologue_common():
    p = []
    p.append("s_cmp_ge_u32 s2, 256\ns_cbranch_scc1 L_exit")
    if Cfg.diag:
        p.append("s_memrealtime s[100:101]")
    p.append("s_load_dwordx16 s[4:19], s[0:1], 0\ns_load_dwordx8 s[20:27], s[0:1], 64\ns_load_dwordx2 s[28:29], s[0:1], 96")
    p.append("v_and_b32 v%d, 63, v0" % vL)
    p.append("v_lshrrev_b32 v%d, 6, v0" % vT0)
    p.append("v_lshlrev_b32 v%d, 4, v%d" % (vL16, vL))
    p.append("v_readfirstlane_b32 s%d, v%d" % (sWV, vT0))
    p.append("v_cmp_eq_u32 vcc, 0, v%d" % vL)
    p.append("v_mov_b32 v%d, %s" % (vT1, OOB))
    p.append("v_mov_b32 v%d, 0" % vT2)
    p.append("v_cndmask_b32 v%d, v%d, v%d, vcc" % (vFlag0, vT1, vT2))
    return p

def main_setup_idx():
    p = []
    p.append("s_sub_u32 s%d, s2, 32" % sC2)
    p.append("s_and_b32 s%d, s2, 7" % sA)
    p.append("s_lshr_b32 s%d, s%d, 3" % (sB, sC2))
    p.append("s_lshr_b32 s%d, s%d, 2" % (sDT, sB))
    p.append("s_and_b32 s%d, s%d, 3" % (sB, sB))
    p.append("s_lshl_b32 s%d, s%d, 2" % (sT, sA))
    p.append("s_add_u32 s%d, s%d, s%d" % (sT, sT, sB))
    p.append("s_lshr_b32 s%d, s%d, 1" % (sMT, sA))
    p.append("s_lshl_b32 s%d, s%d, 2" % (sMT, sMT))
    p.append("s_add_u32 s%d, s%d, s%d" % (sMT, sMT, sB))
    p.append("s_and_b32 s%d, s%d, 1" % (sA, sA))
    p.append("s_mul_i32 s%d, s%d, 7" % (sFT, sA))
    p.append("s_add_u32 s%d, s%d, s%d" % (sFT, sFT, sDT))
    p.append("s_lshl_b32 s%d, s%d, 12" % (sWL, sWV))
    p.append("s_add_u32 s%d, s%d, %d" % (sXL, sWL, XR))
    p.append("s_lshl_b32 s%d, s%d, 11" % (sPL, sWV))
    return p

def main_setup_addr1():
    p = []
    p.append("v_lshrrev_b32 v%d, 4, v%d" % (vT0, vL))
    p.append("s_and_b32 s%d, s%d, 1" % (sA, sWV))
    p.append("s_mul_i32 s%d, s%d, %d" % (sA, sA, 16 * 3584))
    p.append("s_lshl_b32 s%d, s%d, 8" % (sB, sFT))
    p.append("s_add_u32 s%d, s%d, s%d" % (sA, sA, sB))
    p.append("v_mul_u32_u24 v%d, 3584, v%d" % (vT1, vT0))
    p.append("s_lshr_b32 s%d, s%d, 1" % (sB, sWV))
    p.append("s_lshl_b32 s%d, s%d, 3" % (sB, sB))
    p.append("v_lshlrev_b32 v%d, 1, v%d" % (vT2, vT0))
    p.append("v_or_b32 v%d, s%d, v%d" % (vT2, sB, vT2))
    p.append("v_and_b32 v%d, 15, v%d" % (vT3, vL))
    p.append("v_xor_b32 v%d, v%d, v%d" % (vT2, vT2, vT3))
    p.append("v_lshlrev_b32 v%d, 4, v%d" % (vT2, vT2))
    p.append("v_add3_u32 v%d, v%d, v%d, s%d" % (vWsrc, vT1, vT2, sA))
    p.append("s_lshl_b32 s%d, s%d, 2" % (sA, sMT))
    p.append("s_add_u32 s%d, s%d, s%d" % (sA, sA, sWV))
    p.append("s_mul_i32 s%d, s%d, %d" % (sA, sA, 32 * 896))
    p.append("v_lshrrev_b32 v%d, 3, v%d" % (vT1, vL))
    p.append("v_mul_u32_u24 v%d, 896, v%d" % (vT1, vT1))
    p.append("v_and_b32 v%d, 7, v%d" % (vT3, vL))
    p.append("v_xor_b32 v%d, v%d, v%d" % (vT2, vT3, vT0))
    p.append("v_lshlrev_b32 v%d, 4, v%d" % (vT2, vT2))
    p.append("v_add3_u32 v%d, v%d, v%d, s%d" % (vXsrc0, vT1, vT2, sA))
    p.append("v_xor_b32 v%d, 64, v%d" % (vXsrc1, vXsrc0))
    p.append("s_mul_i32 s%d, s%d, %d" % (sA, sWV, 448 * 896))
    p.append("s_lshl_b32 s%d, s%d, 7" % (sB, sDT))
    p.append("s_add_u32 s%d, s%d, s%d" % (sA, sA, sB))
    p.append("v_and_b32 v%d, 1, v%d" % (vT2, vT0))
    p.append("v_lshlrev_b32 v%d, 2, v%d" % (vT2, vT2))
    p.append("v_xor_b32 v%d, v%d, v%d" % (vT2, vT2, vT3))
    p.append("v_lshlrev_b32 v%d, 4, v%d" % (vT2, vT2))
    p.append("v_add3_u32 v%d, v%d, v%d, s%d" % (vWdsrc, vT1, vT2, sA))
    return p

def main_setup_addr2():
    p = []
    p.append("v_bfe_u32 v%d, v%d, 2, 2" % (vT0, vL))
    p.append("v_bfe_u32 v%d, v%d, 4, 1" % (vT1, vL))
    p.append("v_lshrrev_b32 v%d, 5, v%d" % (vT2, vL))
    p.append("v_and_b32 v%d, 3, v%d" % (vT3, vL))
    p.append("v_lshlrev_b32 v%d, 3, v%d" % (vT3, vT3))
    p.append("v_lshl_add_u32 v%d, v%d, 3, v%d" % (vT4, vT2, vT0))
    p.append("v_lshlrev_b32 v%d, 8, v%d" % (vT4, vT4))
    p.append("v_lshl_add_u32 v%d, v%d, 13, v%d" % (vT4, vT1, vT4))
    p.append("v_add_u32 v%d, v%d, v%d" % (vT4, vT4, vT3))
    p.append("v_lshl_or_b32 v%d, v%d, 2, v%d" % (vT5, vT1, vT0))
    p.append("s_and_b32 s%d, s%d, 1" % (sA, sWV))
    p.append("s_lshl_b32 s%d, s%d, 2" % (sA, sA))
    p.append("v_xor_b32 v%d, s%d, v%d" % (vT5, sA, vT5))
    for jj in range(4):
        p.append("v_xor_b32 v%d, %d, v%d" % (vA[jj], jj, vT5))
        p.append("v_lshl_add_u32 v%d, v%d, 5, v%d" % (vA[jj], vA[jj], vT4))
        p.append("v_add_u32 v%d, %d, v%d" % (vA2[jj], 49152, vA[jj]))
    p.append("v_lshl_add_u32 v%d, v%d, 2, v%d" % (vT4, vT2, vT0))
    p.append("v_lshlrev_b32 v%d, 7, v%d" % (vT4, vT4))
    p.append("v_lshl_add_u32 v%d, v%d, 5, v%d" % (vT4, vT1, vT4))
    p.append("v_add3_u32 v%d, v%d, v%d, s%d" % (vT4, vT4, vT3, sPL))
    p.append("v_lshrrev_b32 v%d, 1, v%d" % (vT5, vT0))
    p.append("s_and_b32 s%d, s%d, 1" % (sA, sWV))
    p.append("v_xor_b32 v%d, s%d, v%d" % (vT5, sA, vT5))
    p.append("v_lshl_add_u32 v%d, v%d, 6, v%d" % (vWdA[0], vT5, vT4))
    p.append("v_xor_b32 v%d, 64, v%d" % (vWdA[1], vWdA[0]))
    p.append("v_add_u32 v%d, 0x10000, v%d" % (vWdA2[0], vWdA[0]))
    p.append("v_add_u32 v%d, 0x10000, v%d" % (vWdA2[1], vWdA[1]))
    p.append("v_and_b32 v%d, 31, v%d" % (vT0, vL))
    p.append("v_bfe_u32 v%d, v%d, 1, 3" % (vT1, vL))
    p.append("v_xor_b32 v%d, v%d, v%d" % (vT1, vT1, vT2))
    p.append("s_lshr_b32 s%d, s%d, 1" % (sA, sWV))
    p.append("s_lshl_b32 s%d, s%d, 13" % (sA, sA))
    p.append("s_add_u32 s%d, s%d, %d" % (sA, sA, XR))
    p.append("v_lshlrev_b32 v%d, 7, v%d" % (vT0, vT0))
    p.append("v_add_u32 v%d, s%d, v%d" % (vT0, sA, vT0))
    for sp in range(4):
        p.append("v_xor_b32 v%d, %d, v%d" % (vB[sp], 2 * sp, vT1))
        p.append("v_lshl_add_u32 v%d, v%d, 4, v%d" % (vB[sp], vB[sp], vT0))
    return p

def w_dmas(hc):
    return [dma(sWL, WR + (hc % 6) * 16384 + q * 1024, (32 * hc + 4 * q) * 3584, vWsrc, SRD_W1, ("W", hc)) for q in range(4)]
def x_dmas(c):
    return [dma(sXL, (c % 3) * 16384 + q * 1024, 8 * q * 896 + 128 * c, vXsrc1 if q & 1 else vXsrc0, SRD_X, ("X", c)) for q in range(4)]

def frag_reads(s):
    buf = s & 1
    hc, sp = s >> 1, s & 1
    slot = hc % 6
    c, s4 = s >> 2, s & 3
    at = []
    def bread(nt):
        return DS("ds_read_b128 %s, v%d offset:%d" % (vr(BF + buf * 8 + nt * 4, 4), vB[s4], (c % 3) * 16384 + nt * 4096), ("F", s))
    def aread(jj, p):
        base = vA[jj] if slot < 3 else vA2[jj]
        off = (slot % 3) * 16384 + sp * 4096 + p * 1024
        return DS("ds_read_b64_tr_b16 %s, v%d offset:%d" % (vr(AF + buf * 16 + jj * 4 + p * 2, 2), base, off), ("F", s))
    at += [bread(0), aread(0, 0), aread(0, 1), bread(1)]
    for jj in range(1, 4): at += [aread(jj, 0), aread(jj, 1)]
    return at

KR, VR_, SKR, TAP, KFv, R0, R1, VF, OLO, OHI = 32, 43, 52, 56, 60, 71, 72, 73, 76, 32
def prep_loads():
    p = []
    p.append("s_lshl_b32 s%d, s%d, 2" % (sA, sT))
    p.append("s_add_u32 s%d, s%d, s%d" % (sA, sA, sWV))
    p.append("s_mul_i32 s%d, s%d, %d" % (sA, sA, 16 * 896))
    p.append("s_lshl_b32 s%d, s%d, 7" % (sB, sDT))
    p.append("s_add_u32 s%d, s%d, s%d" % (sA, sA, sB))
    p.append("v_lshrrev_b32 v%d, 5, v%d" % (vT0, vL))
    p.append("v_mul_u32_u24 v%d, %d, v%d" % (vT0, 8 * 896, vT0))
    p.append("v_and_b32 v%d, 31, v%d" % (vT1, vL))
    p.append("v_lshl_add_u32 v%d, v%d, 2, v%d" % (vT0, vT1, vT0))
    p.append("v_add_u32 v%d, s%d, v%d" % (vT0, sA, vT0))
    p.append("v_subrev_u32 v%d, %d, v%d" % (vT2, 3 * 896, vT0))
    p.append("v_cmp_gt_u32 vcc, %d, v%d" % (3 * 896, vT0))
    p.append("v_mov_b32 v%d, %s" % (vT3, OOB))
    p.append("s_mov_b32 s%d, %d" % (sC, 4 * 896))
    p.append("v_cndmask_b32 v%d, v%d, v%d, vcc" % (vT2, vT2, vT3))
    for a in range(3):
        p.append(VM("buffer_load_dword v%d, v%d, %s, 0 offen offset:%d" % (KR + a, vT2, srd(SRD_K), a * 896), "prep"))
    for o in range(8):
        so = "0" if o < 4 else "s%d" % sC
        p.append(VM("buffer_load_dword v%d, v%d, %s, %s offen offset:%d" % (KR + 3 + o, vT0, srd(SRD_K), so, (o & 3) * 896), "prep"))
    for o in range(8):
        so = "0" if o < 4 else "s%d" % sC
        p.append(VM("buffer_load_dword v%d, v%d, %s, %s offen offset:%d" % (VR_ + o, vT0, srd(SRD_V), so, (o & 3) * 896), "prep"))
    p.append("s_lshl_b32 s%d, s%d, 9" % (sB, sDT))
    p.append("v_lshlrev_b32 v%d, 4, v%d" % (vT1, vT1))
    p.append(VM("buffer_load_dwordx4 %s, v%d, %s, s%d offen" % (vr(SKR, 4), vT1, srd(SRD_SK), sB), "prep"))
    return p

def prep_compute():
    at = [WVM("prep")]
    for b in range(2):
        def unp(dst, src, hi):
            return I("v_and_b32 v%d, 0xffff0000, v%d" % (dst, src)) if hi else I("v_lshlrev_b32 v%d, 16, v%d" % (dst, src))
        for i in range(4): at.append(unp(TAP + i, SKR + 2 * b + (i >> 1), i & 1))
        for a in range(11): at.append(unp(KFv + a, KR + a, b))
        out = OHI if b else OLO
        for w in range(4):
            for (o, R) in ((7 - 2 * w, R0), (6 - 2 * w, R1)):
                at.append(I("v_mul_f32 v%d, v%d, v%d" % (R, KFv + o, TAP + 3)))
                for i in (2, 1, 0):
                    at.append(I("v_fmac_f32 v%d, v%d, v%d" % (R, KFv + o + 3 - i, TAP + i)))
                at.append(unp(VF, VR_ + o, b))
                at.append(I("v_mul_f32 v%d, v%d, v%d" % (R, R, VF)))
            at.append(I("v_cvt_pk_bf16_f32 v%d, v%d, v%d" % (out + w, R0, R1)))
    at.append(I("s_lshl_b32 s%d, s%d, 1" % (sA, sWV)))
    at.append(I("s_sub_u32 s%d, 7, s%d" % (sA, sA)))
    at.append(I("v_lshrrev_b32 v%d, 5, v%d" % (R0, vL)))
    at.append(I("v_sub_u32 v%d, s%d, v%d" % (R0, sA, R0)))
    at.append(I("v_and_b32 v%d, 7, v%d" % (R1, vL)))
    at.append(I("v_xor_b32 v%d, v%d, v%d" % (R0, R0, R1)))
    at.append(I("v_lshlrev_b32 v%d, 4, v%d" % (R0, R0)))
    at.append(I("v_and_b32 v%d, 31, v%d" % (R1, vL)))
    at.append(I("v_lshl_add_u32 v%d, v%d, 8, v%d" % (R0, R1, R0)))
    at.append(I("v_add_u32 v%d, %d, v%d" % (R0, PS, R0)))
    at.append(DS("ds_write_b128 v%d, %s" % (R0, vr(OLO, 4)), "psw"))
    at.append(DS("ds_write_b128 v%d, %s offset:128" % (R0, vr(OHI, 4)), "psw"))
    return at

def prep_readback():
    at = []
    at.append(I("v_lshrrev_b32 v%d, 3, v0" % R0))
    at.append(I("v_bfe_u32 v%d, v0, 4, 3" % R1))
    at.append(I("v_and_b32 v%d, 7, v0" % VF))
    at.append(I("v_xor_b32 v%d, v%d, v%d" % (R1, R1, VF)))
    at.append(I("v_lshlrev_b32 v%d, 4, v%d" % (R1, R1)))
    at.append(I("v_lshl_add_u32 v%d, v%d, 7, v%d" % (R1, R0, R1)))
    at.append(I("v_add_u32 v%d, %d, v%d" % (R1, PS, R1)))
    at.append(DS("ds_read_b128 %s, v%d" % (vr(36, 4), R1), "psr"))
    at.append(DS("ds_read_b128 %s, v%d offset:4096" % (vr(40, 4), R1), "psr"))
    at.append(I("v_lshlrev_b32 v%d, 12, v%d" % (R0, R0)))
    at.append(I("v_lshl_add_u32 v%d, v%d, 4, v%d" % (R0, VF, R0)))
    at.append(I("s_lshl_b32 s%d, s%d, 18" % (sA, sDT)))
    at.append(I("s_lshl_b32 s%d, s%d, 7" % (sB, sT)))
    at.append(I("s_sub_u32 s%d, s%d, s%d" % (sA, sA, sB)))
    at.append(I("s_add_u32 s%d, s%d, %d" % (sA, sA, KVT_OFF + 3968)))
    at.append(I("s_add_u32 s%d, s%d, %d" % (sB, sA, 32 * 4096)))
    at.append([WDS("psr"),
               VM("buffer_store_dwordx4 %s, v%d, %s, s%d offen sc1" % (vr(36, 4), R0, srd(SRD_WS), sA), "kvst"),
               VM("buffer_store_dwordx4 %s, v%d, %s, s%d offen sc1" % (vr(40, 4), R0, srd(SRD_WS), sB), "kvst")])
    return at

def prep_flag():
    return [[I("s_lshl_b32 s%d, s%d, 2" % (sA, sDT)), I("s_add_u32 s%d, s%d, s%d" % (sA, sA, sWV)),
             I("s_lshl_b32 s%d, s%d, 5" % (sA, sA)), I("s_add_u32 s%d, s%d, s%d" % (sA, sA, sT)),
             I("s_lshl_b32 s%d, s%d, 2" % (sA, sA)), I("s_add_u32 s%d, s%d, %d" % (sA, sA, KF_OFF)),
             flag_store(sA, ["kvst"])]]

def wd_dmas(n, page):
    return [dma(sPL, page + q * 1024, (16 * n + 8 * q) * 896, vWdsrc, SRD_WD, ("WD", n)) for q in range(2)]
def wd_reads(n, page):
    at = []
    first = True
    for jd in range(2):
        for p in range(2):
            off = page + p * 1024
            base = vWdA[jd]
            if off >= 0x10000:
                base = vWdA2[jd]; off -= 0x10000
            op = DS("ds_read_b64_tr_b16 %s, v%d offset:%d" % (ar(8 * n + 4 * jd + 2 * p, 2), base, off), ("WR", n))
            at.append([WVM(("WD", n)), op] if first else op)
            first = False
    return at

def gen_main():
    P = []
    G = Gaps()
    P.append(RAW("L_main:"))
    P.append(main_setup_idx())
    P.append(main_setup_addr1())
    P.append(WDS0())
    P.append("s_cmp_ge_u32 s%d, 2" % sWV)
    P.append("s_cselect_b32 s%d, s20, s18" % SRD_W1)
    P.append("s_cselect_b32 s%d, s21, s19" % (SRD_W1 + 1))
    P.append("s_mov_b32 s%d, %d\ns_mov_b32 s%d, 0x00020000" % (SRD_W1 + 2, D * F * 2, SRD_W1 + 3))
    P.append(build_srd(SRD_X, 4, S * D * 2))
    P.append(w_dmas(0)); P.append(x_dmas(0))
    P.append("s_getpc_b64 s[%d:%d]" % (sC, sC + 1))
    P.append("v_lshlrev_b32 v%d, 7, v0" % vT4)
    P.append("v_min_u32 v%d, L_end_of_code-L_touch_base-4, v%d" % (vT4, vT4))
    P.append(RAW("L_touch_base:"))
    P.append(VM("global_load_dword v%d, v%d, s[%d:%d]" % (vT5, vT4, sC, sC + 1), "touch"))
    P.append(w_dmas(1))
    P.append(build_srd(SRD_K, 6, S * D * 2)); P.append(build_srd(SRD_V, 8, S * D * 2))
    P.append(build_srd(SRD_SK, 10, D * 4 * 2)); P.append(build_srd(SRD_WS, 28, WS_SIZE))
    P.append(prep_loads())
    P.append("s_mov_b32 s%d, %d" % (sA, EP_OFF))
    P.append("v_mov_b32 v%d, 0" % vT4)
    P.append(VM("buffer_load_dword v%d, v%d, %s, s%d offen sc1" % (51, vT4, srd(SRD_WS), sA), "prep"))
    P.append(w_dmas(2)); P.append(x_dmas(1)); P.append(w_dmas(3)); P.append(w_dmas(4)); P.append(x_dmas(2)); P.append(w_dmas(5))
    P.append(build_srd(SRD_HK, 12, D * S * 2 + 64)); P.append(build_srd(SRD_DD, 14, D * 2))
    P.append(build_srd(SRD_WD, 22, D * F * 2)); P.append(build_srd(SRD_OUT, 24, S * D * 2))
    P.append(main_setup_addr2())
    P.append(stamp())
    P.append([WVM(("W", 0), ("X", 0)), I("s_barrier")])
    P.append(frag_reads(0))
    P.append(stamp())

    def gaps(s0, s1, ms=range(8)): return [(s, m) for s in range(s0, s1) for m in ms]
    for s in range(27):
        G.spread(frag_reads(s + 1), [(s, m) for m in range(0, 5)])
    for i in range(1, 9):
        G.spread(w_dmas(i + 5), [(2 * i - 1, 5), (2 * i - 1, 7), (2 * i, 5), (2 * i, 7)])
    for c in range(4):
        s0 = 2 * (2 * c + 2) - 1
        G.spread(x_dmas(c + 3), [(s0, 6), (s0 + 1, 6), (s0 + 2, 6), (s0 + 3, 6)])
    pc = prep_compute()
    G.spread(pc[:1] + tag_from_epoch(51) + pc[1:], gaps(1, 7))
    G.spread(prep_readback(), gaps(7, 9))
    G.spread(prep_flag(), [(13, 3)])

    CSF, MB = 32, 48
    vSt = 56
    vPl, vPo = 58, 59
    at = []
    at.append(I("s_lshr_b32 s%d, s%d, 1" % (sA, sWV)))
    at.append(I("s_lshl_b32 s%d, s%d, 1" % (sB, sMT)))
    at.append(I("s_add_u32 s%d, s%d, s%d" % (sA, sA, sB)))
    at.append(I("v_mov_b32 v%d, s%d" % (vPo, sA)))
    at.append(I("v_writelane_b32 v%d, s%d, 1" % (vPo, sT)))
    at.append(I("s_add_u32 s%d, s%d, 32" % (sB, sFT)))
    at.append(I("v_writelane_b32 v%d, s%d, 2" % (vPo, sB)))
    at.append(I("s_add_u32 s%d, s%d, 46" % (sB, sFT)))
    at.append(I("v_writelane_b32 v%d, s%d, 3" % (vPo, sB)))
    at.append(I("v_lshlrev_b32 v%d, 2, v%d" % (vPo, vPo)))
    at.append(poll_issue(vPl, vPo, SF_OFF, "pollS"))
    G.spread(at, gaps(14, 16))
    at = []
    at.append(poll_check("S", vPl, vPo, SF_OFF, "pollS"))
    at.append(I("v_and_b32 v%d, 31, v%d" % (vPo, vL)))
    at.append(I("v_lshlrev_b32 v%d, 4, v%d" % (vPl, vPo)))
    at.append([I("s_and_b32 s%d, s%d, 1" % (sA, sWV)), I("s_lshl_b32 s%d, s%d, 11" % (sA, sA)),
               I("s_lshl_b32 s%d, s%d, 12" % (sB, sFT)), I("s_add_u32 s%d, s%d, s%d" % (sA, sA, sB)),
               I("s_add_u32 s%d, s%d, %d" % (sA, sA, CS_OFF))] +
              [VM("buffer_load_dwordx4 %s, v%d, %s, s%d offen offset:%d sc1" % (vr(CSF + 4 * jj, 4), vPl, srd(SRD_WS), sA, 512 * jj), "cs") for jj in range(4)])
    at.append(I("v_lshlrev_b32 v%d, 3, v%d" % (vPl, vPo)))
    at.append([I("s_lshr_b32 s%d, s%d, 1" % (sA, sWV)), I("s_lshl_b32 s%d, s%d, 1" % (sB, sMT)),
               I("s_add_u32 s%d, s%d, s%d" % (sB, sA, sB)), I("s_lshl_b32 s%d, s%d, 9" % (sB, sB)),
               I("s_add_u32 s%d, s%d, %d" % (sB, sB, ST_OFF)),
               VM("buffer_load_dword v%d, v%d, %s, s%d offen sc1" % (MB, vPl, srd(SRD_WS), sB), "cs"),
               VM("buffer_load_dword v%d, v%d, %s, s%d offen offset:256 sc1" % (MB + 4, vPl, srd(SRD_WS), sB), "cs"),
               I("s_lshl_b32 s%d, s%d, 1" % (sB, sT)), I("s_add_u32 s%d, s%d, s%d" % (sB, sA, sB)),
               I("s_lshl_b32 s%d, s%d, 8" % (sB, sB)), I("s_add_u32 s%d, s%d, %d" % (sB, sB, ST_OFF)),
               VM("buffer_load_dwordx2 %s, v%d, %s, s%d offen sc1" % (vr(vSt, 2), vPl, srd(SRD_WS), sB), "cs")])
    G.spread(at, gaps(19, 21))
    at = [WVM("cs")]
    at.append(I("v_cmp_gt_u32 vcc, 32, v%d" % vL))
    at.append(I("s_nop 0"))
    for nt in range(2):
        b = MB + 4 * nt
        at.append(I("v_xor_b32 v%d, 0x80000000, v%d" % (b, b)))
        at.append(I("v_cndmask_b32 v%d, 0, v%d, vcc" % (b, b)))
        at.append(I("v_lshrrev_b32 v%d, 16, v%d" % (b + 1, b)))
        at.append(I("v_or_b32 v%d, v%d, v%d" % (b, b, b + 1)))
        at.append(I("v_mov_b32 v%d, 0" % (b + 2)))
        at.append(I("v_mov_b32 v%d, 0" % (b + 3)))
    G.spread([at], [(25, 6)])

    vKp, vKo, KV = 60, 61, 64
    at = []
    at.append(I("v_and_b32 v%d, 31, v%d" % (vKo, vL)))
    at.append(I("v_lshlrev_b32 v%d, 2, v%d" % (vKo, vKo)))
    at.append([I("s_lshr_b32 s%d, s%d, 5" % (sA, sC2)), I("s_lshl_b32 s%d, s%d, 2" % (sA, sA)),
               I("s_bfe_u32 s%d, s%d, 0x20002" % (sB, sC2)), I("s_add_u32 s%d, s%d, s%d" % (sA, sA, sB)),
               I("s_lshl_b32 s%d, s%d, 7" % (sA, sA)), I("v_add_u32 v%d, s%d, v%d" % (vKo, sA, vKo))])
    at.append(poll_issue(vKp, vKo, KF_OFF, "pollK"))
    G.spread(at, gaps(17, 18))
    at = []
    at.append(poll_check("K", vKp, vKo, KF_OFF, "pollK"))
    at.append(I("v_lshlrev_b32 v%d, 4, v0" % vKo))
    at.append([I("s_lshl_b32 s%d, s%d, 13" % (sA, sC2)), I("s_add_u32 s%d, s%d, %d" % (sA, sA, KVT_OFF)),
               I("s_add_u32 s%d, s%d, 4096" % (sB, sA)),
               VM("buffer_load_dwordx4 %s, v%d, %s, s%d offen sc1" % (vr(KV, 4), vKo, srd(SRD_WS), sA), "kvld"),
               VM("buffer_load_dwordx4 %s, v%d, %s, s%d offen sc1" % (vr(KV + 4, 4), vKo, srd(SRD_WS), sB), "kvld")])
    G.spread(at, gaps(21, 22))
    at = []
    at.append(I("v_add_u32 v%d, %d, v%d" % (vKo, KVR, vKo)))
    at.append([WVM("kvld"), DS("ds_write_b128 v%d, %s" % (vKo, vr(KV, 4)), "kvw")])
    at.append(DS("ds_write_b128 v%d, %s offset:4608" % (vKo, vr(KV + 4, 4)), "kvw"))
    at.append(I("v_lshrrev_b32 v%d, 7, v0" % vKp))
    at.append(I("v_mul_u32_u24 v%d, 4608, v%d" % (vKp, vKp)))
    at.append(I("v_and_b32 v%d, 127, v0" % 62))
    at.append(I("v_lshl_add_u32 v%d, v%d, 2, v%d" % (vKp, 62, vKp)))
    at.append(I("v_add_u32 v%d, %d, v%d" % (vKp, KVR + 4096, vKp)))
    at.append(I("v_mov_b32 v%d, 0" % 62))
    at.append(DS("ds_write_b32 v%d, v%d" % (vKp, 62), "kvw"))
    G.spread(at, gaps(25, 27, range(5, 8)))

    at = []
    at.append(I("v_lshrrev_b32 v%d, 4, v%d" % (74, vL)))
    at.append(I("v_lshlrev_b32 v%d, 6, v%d" % (vHsrc, 74)))
    at.append(I("v_and_b32 v%d, 3, v%d" % (75, vL)))
    at.append(I("v_lshl_add_u32 v%d, v%d, 4, v%d" % (vHsrc, 75, vHsrc)))
    at.append(I("v_bfe_u32 v%d, v%d, 2, 2" % (75, vL)))
    at.append(I("v_lshl_add_u32 v%d, v%d, 1, v%d" % (vHsrc, 75, vHsrc)))
    at.append([I("s_lshl_b32 s%d, s%d, 2" % (sA, sC2)), I("s_add_u32 s%d, s%d, s%d" % (sA, sA, sWV)),
               I("s_lshl_b32 s%d, s%d, 11" % (sA, sA)), I("s_add_u32 s%d, s%d, 34" % (sB, sA)),
               I("v_add_u32 v%d, s%d, v%d" % (vHsrc, sB, vHsrc)),
               I("s_and_b32 s%d, s%d, 0xfffff000" % (sHS, sA))])
    at.append([I("s_lshr_b32 s%d, s%d, 1" % (sA, sWV)), I("s_mul_i32 s%d, s%d, 16640" % (sA, sA)),
               I("s_and_b32 s%d, s%d, 1" % (sB, sWV)), I("s_lshl_b32 s%d, s%d, 13" % (sB, sB)),
               I("s_add_u32 s%d, s%d, s%d" % (sHL, sA, sB)), I("s_add_u32 s%d, s%d, %d" % (sHL, sHL, HC + 256))])
    at.append(I("v_and_b32 v%d, 15, v%d" % (75, vL)))
    at.append(I("v_lshl_add_u32 v%d, v%d, 1, v%d" % (76, 75, 74)))
    at.append(I("v_subrev_u32 v%d, 15, v%d" % (76, 76)))
    at.append(I("v_lshlrev_b32 v%d, 1, v%d" % (76, 76)))
    at.append(I("v_add_u32 v%d, 2, v%d" % (77, 76)))
    at.append(VM("buffer_load_ushort v%d, v%d, %s, s%d offen" % (78, 76, srd(SRD_HK), sHS), "hb0"))
    at.append(VM("buffer_load_ushort v%d, v%d, %s, s%d offen" % (79, 77, srd(SRD_HK), sHS), "hb0"))
    G.spread(at, gaps(9, 12))
    at = [dma(sHL, 1024 * q, 256 * q, vHsrc, SRD_HK, "hdma") for q in range(8)]
    G.spread(at, [(23, 5), (23, 7), (24, 5), (24, 7), (25, 5), (25, 7), (26, 5), (26, 7)])
    at = []
    at.append([WVM("hb0"), I("v_lshl_or_b32 v%d, v%d, 16, v%d" % (78, 79, 78))])
    at.append([I("s_lshr_b32 s%d, s%d, 1" % (sA, sWV)), I("s_mul_i32 s%d, s%d, 16640" % (sA, sA)),
               I("s_add_u32 s%d, s%d, %d" % (sA, sA, HC)),
               I("v_lshlrev_b32 v%d, 2, v%d" % (77, vL)), I("v_add_u32 v%d, s%d, v%d" % (77, sA, 77))])
    at.append(DS("ds_write_b32 v%d, v%d" % (77, 78), "kvw"))
    G.spread(at, gaps(24, 25, range(0, 5)))

    wd_sched = []
    pages1 = [2 * 16384, 2 * 16384 + 8192, 3 * 16384, 3 * 16384 + 8192, 4 * 16384, 4 * 16384 + 8192,
              5 * 16384, 5 * 16384 + 8192]
    NW1 = 11
    for n in range(NW1):
        s = 17 + n
        page = pages1[n % 8]
        if s < 23: ig = [(s, 5), (s, 7)]
        else: ig = [(s, 6), (s, 6)]
        G.spread(wd_dmas(n, page), ig)
        wd_sched.append(page)
        if s + 4 <= 27:
            G.spread(wd_reads(n, page), [(s + 4, 5), (s + 4, 5), (s + 4, 6), (s + 4, 7)] if s + 4 < 27 else [(27, 1), (27, 2), (27, 3), (27, 4)])

    for s in range(28):
        buf = s & 1
        P.append(WDS(("F", s)))
        m = 0
        for jj in range(4):
            for nt in range(2):
                a = ACC + (jj * 2 + nt) * 16
                c = "0" if s == 0 else vr(a, 16)
                P.append("v_mfma_f32_32x32x16_bf16 %s, %s, %s, %s" % (vr(a, 16), vr(AF + buf * 16 + jj * 4, 4), vr(BF + buf * 8 + nt * 4, 4), c))
                if m == 0 and (s & 1):
                    i = (s + 1) // 2
                    w = []
                    if i < 14:
                        w.append(("W", i))
                        if i % 2 == 0: w.append(("X", i // 2))
                    if w: P.append(WVM(*w))
                    if i == 4: P.append(WDS("psw"))
                    P.append(I("s_barrier"))
                P.append(G.take((s, m)))
                m += 1
    G.check_empty()
    P.append(stamp())
    for jj in range(4):
        for nt in range(2):
            a = ACC + (jj * 2 + nt) * 16
            P.append("v_mfma_f32_32x32x16_bf16 %s, %s, %s, %s" % (vr(a, 16), vr(CSF + jj * 4, 4), vr(MB + nt * 4, 4), vr(a, 16)))
            if jj == 0 and nt == 0:
                P.append("s_lshr_b32 s%d, s%d, 1\ns_lshl_b32 s%d, s%d, 1\ns_add_u32 s%d, s%d, s%d" % (sA, sWV, sB, sMT, sA, sA, sB))
                P.append("s_mul_i32 s%d, s%d, 224" % (sH0, sA))
                P.append("s_lshl_b32 s%d, s%d, 1\ns_and_b32 s%d, s%d, 1\ns_add_u32 s%d, s%d, s%d" % (sB, sFT, sC, sWV, sB, sB, sC))
                P.append("s_lshl_b32 s%d, s%d, 2\ns_add_u32 s%d, s%d, s%d\ns_lshl_b32 s%d, s%d, 10" % (sC, sB, sH0, sH0, sC, sH0, sH0))
                P.append("s_add_u32 s%d, s%d, %d" % (sH1, sH0, 112 * 1024))
                P.append("s_lshl_b32 s%d, s%d, 7\ns_add_u32 s%d, s%d, s%d\ns_add_u32 s%d, s%d, %d" % (sD_, sA, sD_, sD_, sC, sD_, sD_, HF_OFF))
    vCA0, vCA1, vCB, vCD = 2, 3, 4, 5
    P.append("v_and_b32 v%d, 15, v%d\nv_lshrrev_b32 v%d, 4, v%d" % (vT0, vL, vT1, vL))
    P.append("v_lshrrev_b32 v%d, 2, v%d" % (vT2, vT0))
    P.append("v_lshl_add_u32 v%d, v%d, 1, v%d" % (vT2, vT1, vT2))
    P.append("v_and_b32 v%d, 3, v%d\nv_lshlrev_b32 v%d, 6, v%d" % (vT3, vT0, vT3, vT3))
    P.append("s_lshr_b32 s%d, s%d, 1\ns_mul_i32 s%d, s%d, 16640" % (sA, sWV, sB, sA))
    P.append("s_and_b32 s%d, s%d, 1\ns_lshl_b32 s%d, s%d, 10\ns_add_u32 s%d, s%d, s%d\ns_add_u32 s%d, s%d, %d" % (sC, sWV, sC, sC, sB, sB, sC, sB, sB, HC))
    for half, dst in ((0, vCA0), (1, vCA1)):
        if half: P.append("v_add_u32 v%d, 1, v%d" % (vT2, vT2))
        P.append("v_lshrrev_b32 v%d, 3, v%d\nv_lshlrev_b32 v%d, 8, v%d" % (vT4, vT2, vT4, vT4))
        P.append("v_and_b32 v%d, 7, v%d\nv_lshl_add_u32 v%d, v%d, 3, v%d" % (vT5, vT2, vT4, vT5, vT4))
        P.append("v_add3_u32 v%d, v%d, v%d, s%d" % (dst, vT4, vT3, sB))
    P.append("s_mul_i32 s%d, s%d, 4608\ns_add_u32 s%d, s%d, %d" % (sA, sA, sA, sA, KVR))
    P.append("s_lshr_b32 s%d, s%d, 2\ns_add_u32 s%d, s%d, s%d\ns_add_u32 s%d, s%d, 480" % (sC, sC, sB, sA, sC, sB, sB))
    P.append("v_lshlrev_b32 v%d, 5, v%d\nv_sub_u32 v%d, s%d, v%d" % (vT4, vT0, vT5, sB, vT4))
    P.append("v_lshl_add_u32 v%d, v%d, 4, v%d" % (vCB, vT1, vT5))
    P.append("s_lshl_b32 s%d, s%d, 3\ns_sub_u32 s%d, s%d, s%d\ns_add_u32 s%d, s%d, %d" % (sC, sC, sB, sA, sC, sB, sB, 4088 - 1536))
    P.append("v_sub_u32 v%d, s%d, v%d\nv_lshlrev_b32 v%d, 3, v%d\nv_sub_u32 v%d, v%d, v%d" % (vT5, sB, vT4, vT4, vT1, vCD, vT5, vT4))
    for jj in range(4):
        for nt in range(2):
            a = ACC + (jj * 2 + nt) * 16
            o = AF + (jj * 2 + nt) * 4
            for r in range(8): P.append("v_mul_f32 v%d, v%d, v%d" % (a + r, a + r, a + r + 8))
            for w in range(4): P.append("v_cvt_pk_bf16_f32 v%d, v%d, v%d" % (o + w, a + 2 * w, a + 2 * w + 1))
            P.append(VM("buffer_store_dwordx4 %s, v%d, %s, s%d offen offset:%d sc1" % (vr(o, 4), vL16, srd(SRD_WS), sH1 if nt else sH0, jj * 1024), "hst"))
    P.append(stamp())
    P.append([WVM("hdma"), WDS("kvw"), I("s_barrier")])

    CACC = 32
    vSt2 = 6
    P.append("v_mov_b32 v%d, v%d\nv_mov_b32 v%d, v%d" % (vSt2, vSt, vSt2 + 1, vSt + 1))
    CA, CB = 128, 192
    def conv_reads(dd):
        buf = dd & 1
        at = []
        for r in range(8):
            for half, base in ((0, vCA0), (1, vCA1)):
                at.append(DS("ds_read_b64 %s, v%d offset:%d" % (vr(CA + buf * 32 + r * 4 + half * 2, 2), base, 256 * dd + 2048 * r), ("C", dd)))
            m = r
            at.append(DS("ds_read_b128 %s, v%d offset:%d" % (vr(CB + buf * 32 + m * 4, 4), vCB, 3584 - 512 * m + 64 * dd), ("C", dd)))
        return at
    P.append(conv_reads(0))
    G = Gaps()
    def cg(d0, i0, d1, i1): return [(d, i) for d in range(4) for i in range(36) if (d, i) >= (d0, i0) and (d, i) < (d1, i1)]
    for dd in range(3): G.spread(conv_reads(dd + 1), cg(dd, 0, dd, 30))
    at = []
    for n in range(7, NW1): at += wd_reads(n, wd_sched[n])
    G.spread(at, cg(0, 0, 0, 24))
    pages2 = [16384, 16384 + 8192, XR, XR + 8192, 0, 8192, pages1[3], pages1[4], pages1[5], pages1[6],
              pages1[7], pages1[0], pages1[1], pages1[2], 16384, 16384 + 8192, XR]
    allg = cg(0, 0, 4, 0)
    for k, n in enumerate(range(NW1, 28)):
        page = pages2[k]
        g0 = 1 + 5 * k + (0 if k < 10 else 0)
        at = wd_dmas(n, page)
        if k >= 14: at[0] = [WDS(("WR", NW1 + k - 14))] + at[0]
        if 10 <= k < 14: at[0] = [WDS(("WR", 7 + k - 10))] + at[0]
        G.spread(at, [allg[g0], allg[g0 + 2]])
        r0 = g0 + 50
        G.spread(wd_reads(n, page), [allg[r0], allg[r0 + 1], allg[r0 + 2], allg[r0 + 3]])
    G.add(allg[44], flag_store(sD_, ["hst"]))
    XE, vDv, vOo = 8, 16, 22
    at = []
    at.append([I("s_lshl_b32 s%d, s%d, 1" % (sA, sT)), I("s_lshr_b32 s%d, s%d, 1" % (sB, sWV)), I("s_add_u32 s%d, s%d, s%d" % (sA, sA, sB)),
               I("s_mul_i32 s%d, s%d, %d" % (sA, sA, 32 * 896)), I("s_lshl_b32 s%d, s%d, 1" % (sB, sDT)), I("s_and_b32 s%d, s%d, 1" % (sC, sWV)),
               I("s_add_u32 s%d, s%d, s%d" % (sB, sB, sC)), I("s_lshl_b32 s%d, s%d, 6" % (sB, sB)), I("s_add_u32 s%d, s%d, s%d" % (sA, sA, sB)),
               I("v_and_b32 v%d, 31, v%d" % (vT0, vL)), I("v_mul_u32_u24 v%d, 896, v%d" % (vT0, vT0)),
               I("v_lshrrev_b32 v%d, 5, v%d" % (vT1, vL)), I("v_lshlrev_b32 v%d, 4, v%d" % (vT1, vT1)),
               I("v_add3_u32 v%d, v%d, v%d, s%d" % (vOo, vT0, vT1, sA))])
    at.append(VM("buffer_load_dwordx4 %s, v%d, %s, 0 offen" % (vr(XE, 4), vOo, srd(SRD_X)), "xe"))
    at.append(VM("buffer_load_dwordx4 %s, v%d, %s, 0 offen offset:32" % (vr(XE + 4, 4), vOo, srd(SRD_X)), "xe"))
    at.append([I("s_lshr_b32 s%d, s%d, 11" % (sA, sHS)), I("v_mov_b32 v%d, 0" % vT0),
               VM("buffer_load_ushort v%d, v%d, %s, s%d offen" % (vDv, vT0, srd(SRD_DD), sA), "xe")])
    G.spread(at, [allg[88], allg[90], allg[92], allg[94]])
    vHp, vHo = 28, 29
    at = []
    at.append([I("v_min_u32 v%d, 6, v%d" % (vHo, vL)), I("s_mul_i32 s%d, s%d, 7" % (sA, sWV)), I("s_lshl_b32 s%d, s%d, 5" % (sB, sT)),
               I("s_add_u32 s%d, s%d, s%d" % (sA, sA, sB)), I("v_add_lshl_u32 v%d, v%d, s%d, 2" % (vHo, vHo, sA))])
    at.append(poll_issue(vHp, vHo, HF_OFF, "pollH"))
    G.spread(at, [allg[100], allg[104]])
    G.add(allg[106], [I("s_lshr_b32 s%d, s%d, 1" % (sA, sWV)), I("s_lshl_b32 s%d, s%d, 1" % (sB, sT)), I("s_add_u32 s%d, s%d, s%d" % (sC, sA, sB)),
                      I("s_xor_b32 s%d, s%d, 1" % (sA, sC)), I("s_mul_i32 s%d, s%d, %d" % (sB, sWV, 28 * 1024)),
                      I("s_mul_i32 s%d, s%d, %d" % (sH0, sC, 112 * 1024)), I("s_add_u32 s%d, s%d, s%d" % (sH0, sH0, sB)),
                      I("s_mul_i32 s%d, s%d, %d" % (sH1, sA, 112 * 1024)), I("s_add_u32 s%d, s%d, s%d" % (sH1, sH1, sB))])
    for dd in range(4):
        buf = dd & 1
        P.append(WDS(("C", dd)))
        i = 0
        for r in range(8):
            for m in range(8 - r):
                a = CACC + (r + m) * 4
                c = "0" if (dd == 0 and r == 0) else vr(a, 4)
                P.append("v_mfma_f32_16x16x32_bf16 %s, %s, %s, %s" % (vr(a, 4), vr(CA + buf * 32 + r * 4, 4), vr(CB + buf * 32 + m * 4, 4), c))
                P.append(G.take((dd, i)))
                i += 1
    G.check_empty()
    P.append(stamp())

    ACC2 = 64
    pool = [("v", 128 + 4 * i) for i in range(32)] + [("a", 224 + 4 * i) for i in range(8)]
    NP = len(pool)
    def hreg(f):
        k, b = pool[f % NP]
        return vr(b, 4) if k == "v" else ar(b, 4)
    def hload(f):
        ks, jt = f >> 1, f & 1
        t = stmp()
        return [I("s_add_u32 s%d, s%d, %d" % (t, sH1 if jt else sH0, (ks >> 2) * 4096)),
                VM("buffer_load_dwordx4 %s, v%d, %s, s%d offen offset:%d sc1" % (hreg(f), vL16, srd(SRD_WS), t, (ks & 3) * 1024), ("H", f))]
    P.append(poll_check("H", vHp, vHo, HF_OFF, "pollH"))
    P.append(stamp())
    NFIRST = 24
    for f in range(NFIRST): P.append(hload(f))

    CM = 64
    P.append("s_and_b32 s%d, s%d, 1" % (sA, sWV))
    P.append("v_add_u32 v%d, s%d, v%d" % (vT0, sWL, vL16))
    P.append("v_xor_b32 v%d, 4096, v%d" % (vT1, vT0))
    P.append(WDS(("WR", 15), ("WR", 16)))
    P.append(I("s_barrier"))
    P.append("s_cmp_eq_u32 s%d, 0\ns_cbranch_scc0 L_cx1" % sA)
    for k in range(4): P.append(DS("ds_write_b128 v%d, %s offset:%d" % (vT0, vr(CACC + 16 + 4 * k, 4), CEX + 1024 * k), "cxw"))
    for k in range(16): P.append("v_mov_b32 v%d, v%d" % (CM + k, CACC + k))
    P.append(RAW("s_branch L_cx2\nL_cx1:"))
    for k in range(4): P.append(RAW("ds_write_b128 v%d, %s offset:%d" % (vT0, vr(CACC + 4 * k, 4), CEX + 1024 * k)))
    for k in range(16): P.append(RAW("v_mov_b32 v%d, v%d" % (CM + k, CACC + 16 + k)))
    P.append(RAW("L_cx2:"))
    for k in range(4): P.append(DS("ds_read_b64 %s, v%d offset:%d" % (vr(96 + 2 * k, 2), vCD, 512 * (3 - k)), "cxk"))
    P.append([WDS("cxw"), I("s_barrier")])
    for k in range(4): P.append(DS("ds_read_b128 %s, v%d offset:%d" % (vr(80 + 4 * k, 4), vT1, CEX + 1024 * k), "cxr"))
    P.append("v_and_b32 v%d, 15, v%d\nv_lshlrev_b32 v%d, 6, v%d\nv_lshrrev_b32 v%d, 4, v%d\nv_lshl_add_u32 v%d, v%d, 4, v%d" % (vT2, vL, vT2, vT2, vT3, vL, vT2, vT3, vT2))
    P.append("s_lshl_b32 s%d, s%d, 1\ns_lshl_b32 s%d, s%d, 12\ns_add_u32 s%d, s%d, s%d\ns_add_u32 s%d, s%d, %d" % (sB, sHS, sC, sA, sB, sB, sC, sB, sB, Z_OFF))
    P.append("s_mul_i32 s%d, s%d, 1792\ns_lshr_b32 s%d, s%d, 10\ns_add_u32 s%d, s%d, s%d\ns_add_u32 s%d, s%d, %d" % (sC, sA, sD_, sHS, sD_, sD_, sC, sD_, sD_, ZF_OFF))
    P.append([WVM("xe"), I("v_lshlrev_b32 v%d, 16, v%d" % (vDv, vDv)), WDS("cxk")])
    for k in range(4):
        lo, hi = 96 + 2 * k, 97 + 2 * k
        P.append("v_and_b32 v104, 0xffff0000, v%d\nv_fmac_f32 v%d, v104, v%d" % (hi, CM + 4 * k + 0, vDv))
        P.append("v_lshlrev_b32 v105, 16, v%d\nv_fmac_f32 v%d, v105, v%d" % (hi, CM + 4 * k + 1, vDv))
        P.append("v_and_b32 v104, 0xffff0000, v%d\nv_fmac_f32 v%d, v104, v%d" % (lo, CM + 4 * k + 2, vDv))
        P.append("v_lshlrev_b32 v105, 16, v%d\nv_fmac_f32 v%d, v105, v%d" % (lo, CM + 4 * k + 3, vDv))
    P.append(WDS("cxr"))
    for k in range(4):
        for r in range(4): P.append("v_add_f32 v%d, v%d, v%d" % (32 + 4 * k + r, CM + 4 * k + r, 80 + 4 * k + r))
        P.append(VM("buffer_store_dwordx4 %s, v%d, %s, s%d offen offset:%d sc1" % (vr(32 + 4 * k, 4), vT2, srd(SRD_WS), sB, 1024 * k), "zst"))
    P.append(stamp())

    G = Gaps()
    g2 = [(ks, m) for ks in range(28) for m in range(4)]
    for f in range(NFIRST, NP): G.add(g2[(f - NFIRST)], hload(f))
    for f in range(NP, 56):
        ks_free = (f - NP) >> 1
        G.add((max(ks_free + 1, 4 + (f - NP) // 2), (f & 1) * 2), hload(f))
    G.add((8, 1), flag_store(sD_, ["zst"]))
    vZp, vZo, ZV = 26, 27, 32
    G.add((13, 1), [I("s_lshr_b32 s%d, s%d, 4" % (sA, sT)), I("s_mul_i32 s%d, s%d, 448" % (sA, sA)), I("s_lshl_b32 s%d, s%d, 6" % (sB, sDT)),
                    I("s_add_u32 s%d, s%d, s%d" % (sA, sA, sB)), I("v_add_lshl_u32 v%d, v%d, s%d, 2" % (vZo, vL, sA))])
    G.add((13, 3), poll_issue(vZp, vZo, ZF_OFF, "pollZ"))
    G.add((17, 1), poll_check("Z", vZp, vZo, ZF_OFF, "pollZ"))
    G.add((17, 3), [I("s_lshl_b32 s%d, s%d, 1" % (sA, sDT)), I("s_and_b32 s%d, s%d, 1" % (sB, sWV)), I("s_add_u32 s%d, s%d, s%d" % (sA, sA, sB)),
                    I("s_lshl_b32 s%d, s%d, 18" % (sA, sA)), I("s_lshl_b32 s%d, s%d, 1" % (sB, sT)), I("s_lshr_b32 s%d, s%d, 1" % (sC, sWV)),
                    I("s_add_u32 s%d, s%d, s%d" % (sB, sB, sC)), I("s_lshl_b32 s%d, s%d, 7" % (sB, sB)), I("s_add_u32 s%d, s%d, s%d" % (sA, sA, sB)),
                    I("s_add_u32 s%d, s%d, %d" % (sZB, sA, Z_OFF)),
                    I("v_lshrrev_b32 v%d, 5, v%d" % (vZp, vL)), I("v_lshlrev_b32 v%d, 16, v%d" % (vZp, vZp)),
                    I("v_and_b32 v%d, 31, v%d" % (vZo, vL)), I("v_lshl_add_u32 v%d, v%d, 2, v%d" % (vZo, vZo, vZp))])
    at = []
    for kk in range(2):
        for e in range(8):
            t = stmp()
            at.append([I("s_add_u32 s%d, s%d, %d" % (t, sZB, (16 * kk + e) * 8192)),
                       VM("buffer_load_dword v%d, v%d, %s, s%d offen sc1" % (ZV + 8 * kk + e, vZo, srd(SRD_WS), t), "zld")])
    G.spread(at, [(ks, m) for ks in range(18, 22) for m in range(4)])
    at = [I("v_mul_f32 v%d, v%d, v%d" % (vSt2, vSt2, vSt2 + 1))]
    XF = 48
    for i in range(16):
        src = XE + (i >> 1)
        at.append(I("v_and_b32 v%d, 0xffff0000, v%d" % (XF + i, src)) if i & 1 else I("v_lshlrev_b32 v%d, 16, v%d" % (XF + i, src)))
    G.spread(at, [(ks, m) for ks in range(9, 13) for m in range(4)])
    at = []
    for i in range(16):
        op = [I("v_fma_f32 v%d, v%d, v%d, -v%d" % (vZp, XF + i, vSt2 + 1, vSt2)),
              I("v_fma_f32 v%d, v%d, v%d, v%d" % (ZV + i, vZp, ZV + i, XF + i))]
        if i == 0: op = [WVM("zld")] + op
        at.append(op)
    G.spread(at, [(ks, m) for ks in range(24, 28) for m in range(4)])
    P.append(WDS(*[("WR", n) for n in range(28)]))
    for ks in range(28):
        P.append(WVM(("H", 2 * ks), ("H", 2 * ks + 1)))
        m = 0
        for jt in range(2):
            for jd in range(2):
                a = ACC2 + (jt * 2 + jd) * 16
                c = "0" if ks == 0 else vr(a, 16)
                P.append("v_mfma_f32_32x32x16_bf16 %s, %s, %s, %s" % (vr(a, 16), ar(8 * ks + 4 * jd, 4), hreg(2 * ks + jt), c))
                P.append(G.take((ks, m)))
                m += 1
    G.check_empty()
    P.append(stamp())
    P.append("v_mul_f32 v%d, v%d, v%d" % (vSt2 + 1, vSt2 + 1, vSt2 + 1))
    for q in range(1, 4):
        P.append("s_xor_b32 s%d, s%d, %d\ns_mul_i32 s%d, s%d, 12288\ns_add_u32 s%d, s%d, %d" % (sA, sWV, q, sA, sA, sA, sA, RED + (q - 1) * 4096))
        P.append("v_add_u32 v%d, s%d, v%d" % (vT0 + q, sA, vL16))
    P.append("s_mul_i32 s%d, s%d, 12288\ns_add_u32 s%d, s%d, %d" % (sA, sWV, sA, sA, RED))
    P.append("v_lshrrev_b32 v%d, 5, v%d\nv_lshlrev_b32 v%d, 10, v%d\nv_and_b32 v%d, 31, v%d\nv_lshl_add_u32 v%d, v%d, 4, v%d\nv_add_u32 v%d, s%d, v%d" %
             (vT4, vL, vT4, vT4, vT5, vL, vT4, vT5, vT4, vT4, sA, vT4))
    P.append("s_nop 3")
    for q in range(1, 4):
        for rq in range(4):
            P.append(DS("ds_write_b128 v%d, %s offset:%d" % (vT0 + q, vr(ACC2 + q * 16 + rq * 4, 4), rq * 1024), "rw"))
    for kk in range(2):
        for i in range(4):
            P.append("v_permlane32_swap_b32 v%d, v%d" % (ACC2 + 8 * kk + i, ACC2 + 8 * kk + 4 + i))
    P.append([WDS("rw"), I("s_barrier")])
    RR = 128
    for q in range(3):
        for kk in range(2):
            for hs in range(2):
                P.append(DS("ds_read_b128 %s, v%d offset:%d" % (vr(RR + q * 16 + kk * 8 + hs * 4, 4), vT4, q * 4096 + kk * 2048 + hs * 512), ("rr", q)))
    for q in range(3):
        P.append(WDS(("rr", q)))
        for i in range(16): P.append("v_add_f32 v%d, v%d, v%d" % (ACC2 + i, ACC2 + i, RR + q * 16 + i))
    for i in range(16): P.append("v_fma_f32 v%d, v%d, v%d, v%d" % (ACC2 + i, ACC2 + i, vSt2 + 1, ZV + i))
    for w in range(8): P.append("v_cvt_pk_bf16_f32 v%d, v%d, v%d" % (80 + w, ACC2 + 2 * w, ACC2 + 2 * w + 1))
    P.append(VM("buffer_store_dwordx4 %s, v%d, %s, 0 offen" % (vr(80, 4), vOo, srd(SRD_OUT)), "out"))
    P.append(VM("buffer_store_dwordx4 %s, v%d, %s, 0 offen offset:32" % (vr(84, 4), vOo, srd(SRD_OUT)), "out"))
    P.append(diag_tail())
    P.append("s_endpgm")
    return P

def diag_tail():
    if not Cfg.diag: return []
    p = [WVM0(), stamp()]
    p.append("s_memrealtime s[98:99]")
    p.append(WDS0())
    p.append("s_mov_b32 s18, s100\ns_mov_b32 s19, s98")
    p.append("s_lshl_b32 s%d, s2, 2\ns_add_u32 s%d, s%d, s%d\ns_lshl_b32 s%d, s%d, 6\ns_add_u32 s%d, s%d, %d" % (sA, sA, sA, sWV, sA, sA, sA, sA, DG_OFF))
    for i in range(16): p.append("v_mov_b32 v%d, s%d" % (32 + i, 4 + i))
    for i in range(4): p.append(VM("buffer_store_dwordx4 %s, v%d, %s, s%d offen offset:%d" % (vr(32 + 4 * i, 4), vFlag0, srd(SRD_WS), sA, 16 * i)))
    p.append(WVM0())
    return p

def gen_helper():
    stamp_n[0] = 0
    P = []
    P.append(WDS0())
    P.append(build_srd(SRD_X, 4, S * D * 2)); P.append(build_srd(SRD_WS, 28, WS_SIZE))
    P.append("s_and_b32 s%d, s2, 7\ns_lshr_b32 s%d, s2, 3" % (sA, sB))
    P.append("s_lshl_b32 s%d, s%d, 2\ns_add_u32 s%d, s%d, s%d" % (sT, sA, sT, sT, sB))
    P.append("s_lshr_b32 s%d, s%d, 1\ns_lshl_b32 s%d, s%d, 2\ns_add_u32 s%d, s%d, s%d" % (sC2, sA, sC2, sC2, sC2, sC2, sB))
    P.append("s_and_b32 s%d, s%d, 1\ns_mul_i32 s%d, s%d, 7\ns_add_u32 s%d, s%d, s%d" % (sA, sA, sFT, sA, sFT, sFT, sC2))
    P.append("s_cmp_ge_u32 s%d, 7" % sC2)
    P.append("s_cselect_b32 s%d, s20, s18\ns_cselect_b32 s%d, s21, s19" % (SRD_W1, SRD_W1 + 1))
    P.append("s_cselect_b32 s%d, 1, 0\ns_cselect_b32 s%d, 7, 0" % (sMT, sA))
    P.append("s_sub_u32 s%d, s%d, s%d" % (sFT, sFT, sA))
    P.append("s_mov_b32 s%d, %d\ns_mov_b32 s%d, 0x00020000" % (SRD_W1 + 2, D * F * 2, SRD_W1 + 3))
    P.append("s_lshl_b32 s%d, s%d, 2\ns_add_u32 s%d, s%d, s%d\ns_mul_i32 s%d, s%d, %d" % (sA, sT, sA, sA, sWV, sA, sA, 16 * 896))
    P.append("s_add_u32 s%d, s%d, %d" % (sB, sA, 8 * 896))
    P.append("v_lshrrev_b32 v%d, 3, v%d\nv_mul_u32_u24 v%d, 896, v%d\nv_and_b32 v%d, 7, v%d\nv_lshl_add_u32 v%d, v%d, 4, v%d" % (vT0, vL, vT0, vT0, vT1, vL, vT0, vT1, vT0))
    for grp in range(2):
        for i in range(7):
            P.append(VM("buffer_load_dwordx4 %s, v%d, %s, s%d offen offset:%d" % (vr(32 + (grp * 7 + i) * 4, 4), vT0, srd(SRD_X), sB if grp else sA, 128 * i), ("hx", grp)))
    P.append("s_mov_b32 s%d, %d\nv_mov_b32 v%d, 0" % (sA, EP_OFF, vT4))
    P.append(VM("buffer_load_dword v%d, v%d, %s, s%d offen sc1" % (vT5, vT4, srd(SRD_WS), sA), "ep"))
    P.append("v_lshrrev_b32 v%d, 4, v0\nv_mul_u32_u24 v%d, 3584, v%d\nv_and_b32 v%d, 15, v0\nv_lshl_add_u32 v%d, v%d, 4, v%d" % (vT2, vT2, vT2, vT3, vT2, vT3, vT2))
    P.append("s_lshl_b32 s%d, s%d, 8" % (sA, sFT))
    P.append("s_cmp_ge_u32 s%d, 14\ns_cbranch_scc1 L_h_nocs1" % sC2)
    for i in range(28):
        P.append("s_add_u32 s%d, s%d, %d" % (sB, sA, 16 * i * 3584))
        P.append(RAW("buffer_load_dwordx4 %s, v%d, %s, s%d offen" % (vr(128 + 4 * i, 4), vT2, srd(SRD_W1), sB)))
    P.append(RAW("s_waitcnt vmcnt(28)\ns_branch L_h_st\nL_h_nocs1:"))
    P.append(WVM0())
    P.append(RAW("L_h_st:"))
    P.append(stamp())
    P.append(tag_from_epoch(vT5))
    U0, U1 = 88, 89
    def red8(v):
        return ["s_nop 1",
                "v_add_f32_dpp v%d, v%d, v%d quad_perm:[1,0,3,2] row_mask:0xf bank_mask:0xf" % (v, v, v), "s_nop 1",
                "v_add_f32_dpp v%d, v%d, v%d quad_perm:[2,3,0,1] row_mask:0xf bank_mask:0xf" % (v, v, v), "s_nop 1",
                "v_add_f32_dpp v%d, v%d, v%d row_half_mirror row_mask:0xf bank_mask:0xf" % (v, v, v)]
    INV448 = 0x3b124925
    for grp in range(2):
        SUM, SQ = 90 + 4 * grp, 91 + 4 * grp
        base = 32 + grp * 28
        P.append("v_mov_b32 v%d, 0\nv_mov_b32 v%d, 0" % (SUM, SQ))
        for r in range(28):
            P.append("v_lshlrev_b32 v%d, 16, v%d\nv_and_b32 v%d, 0xffff0000, v%d" % (U0, base + r, U1, base + r))
            P.append("v_add_f32 v%d, v%d, v%d\nv_add_f32 v%d, v%d, v%d" % (SUM, SUM, U0, SQ, SQ, U1))
        P.append("v_add_f32 v%d, v%d, v%d" % (SUM, SUM, SQ))
        P.append(red8(SUM))
        P.append("v_mul_f32 v%d, 0x%x, v%d" % (SUM, INV448, SUM))
        P.append("v_mov_b32 v%d, 0\nv_mov_b32 v%d, 0" % (SQ, SQ + 1))
        for r in range(28):
            P.append("v_lshlrev_b32 v%d, 16, v%d\nv_and_b32 v%d, 0xffff0000, v%d" % (U0, base + r, U1, base + r))
            P.append("v_sub_f32 v%d, v%d, v%d\nv_sub_f32 v%d, v%d, v%d" % (U0, U0, SUM, U1, U1, SUM))
            P.append("v_fmac_f32 v%d, v%d, v%d\nv_fmac_f32 v%d, v%d, v%d" % (SQ, U0, U0, SQ + 1, U1, U1))
        P.append("v_add_f32 v%d, v%d, v%d" % (SQ, SQ, SQ + 1))
        P.append(red8(SQ))
        P.append("v_mul_f32 v%d, 0x%x, v%d" % (SQ, INV448, SQ))
        P.append("v_cvt_pk_bf16_f32 v%d, v%d, v%d" % (U0, SUM, SQ))
        P.append("v_lshlrev_b32 v%d, 16, v%d\nv_and_b32 v%d, 0xffff0000, v%d" % (SUM, U0, SQ, U0))
        P.append("v_add_f32 v%d, 0x3727c5ac, v%d" % (SQ, SQ))
        P.append("v_cvt_pk_bf16_f32 v%d, v%d, v%d\nv_lshlrev_b32 v%d, 16, v%d" % (SQ, SQ, SQ, SQ, SQ))
        P.append("v_sqrt_f32 v%d, v%d\ns_nop 0" % (SQ, SQ))
        P.append("v_cvt_pk_bf16_f32 v%d, v%d, v%d\nv_lshlrev_b32 v%d, 16, v%d" % (SQ, SQ, SQ, SQ, SQ))
        P.append("v_rcp_f32 v%d, v%d\ns_nop 0" % (SQ, SQ))
    P.append("v_and_b32 v%d, 7, v%d\nv_cmp_eq_u32 vcc, 0, v%d\nv_mov_b32 v%d, %s\ns_nop 0\nv_cndmask_b32 v%d, v%d, v%d, vcc" % (vT0, vL, vT0, vT1, OOB, vT0, vT1, vL))
    P.append("s_lshl_b32 s%d, s%d, 2\ns_add_u32 s%d, s%d, s%d\ns_lshl_b32 s%d, s%d, 7\ns_add_u32 s%d, s%d, %d" % (sA, sT, sA, sA, sWV, sA, sA, sA, sA, ST_OFF))
    P.append(RAW("buffer_store_dwordx2 v[90:91], v%d, %s, s%d offen sc1" % (vT0, srd(SRD_WS), sA)))
    P.append(RAW("buffer_store_dwordx2 v[94:95], v%d, %s, s%d offen offset:64 sc1" % (vT0, srd(SRD_WS), sA)))
    P.append(WVM0())
    P.append("s_barrier")
    P.append("s_lshl_b32 s%d, s%d, 2\ns_add_u32 s%d, s%d, %d" % (sA, sT, sA, sA, SF_OFF))
    P.append(RAW("buffer_store_dword v%d, v%d, %s, s%d offen sc1" % (vTagV, vFlag0, srd(SRD_WS), sA)))
    P.append(stamp())
    P.append("s_cmp_ge_u32 s%d, 14\ns_cbranch_scc1 L_h_done" % sC2)
    CSUM = 32
    for e in range(8): P.append("v_mov_b32 v%d, 0" % (CSUM + e))
    for i in range(28):
        for w in range(4):
            src = 128 + 4 * i + w
            P.append("v_lshlrev_b32 v%d, 16, v%d\nv_and_b32 v%d, 0xffff0000, v%d" % (U0, src, U1, src))
            P.append("v_add_f32 v%d, v%d, v%d\nv_add_f32 v%d, v%d, v%d" % (CSUM + 2 * w, CSUM + 2 * w, U0, CSUM + 2 * w + 1, CSUM + 2 * w + 1, U1))
    P.append("v_lshlrev_b32 v%d, 5, v0" % vT0)
    P.append(RAW("ds_write_b128 v%d, v[32:35]\nds_write_b128 v%d, v[36:39] offset:16" % (vT0, vT0)))
    P.append(WDS0()); P.append("s_barrier")
    P.append("v_and_b32 v%d, 127, v0\nv_lshlrev_b32 v%d, 2, v%d" % (vT1, vT0, vT1))
    for rg in range(16): P.append(RAW("ds_read_b32 v%d, v%d offset:%d" % (48 + rg, vT0, rg * 512)))
    P.append(WDS0())
    for rg in range(1, 16): P.append("v_add_f32 v48, v48, v%d" % (48 + rg))
    P.append("v_cvt_pk_bf16_f32 v40, v48, v48\nv_lshlrev_b32 v41, 16, v40\nv_sub_f32 v48, v48, v41")
    P.append("v_cvt_pk_bf16_f32 v42, v48, v48\nv_lshlrev_b32 v41, 16, v42\nv_sub_f32 v48, v48, v41")
    P.append("v_and_b32 v40, 0xffff, v40\nv_or_b32 v40, v40, v41")
    P.append("v_cvt_pk_bf16_f32 v41, v48, v48\nv_and_b32 v41, 0xffff, v41\nv_mov_b32 v42, 0\nv_mov_b32 v43, 0")
    P.append("v_lshrrev_b32 v%d, 4, v%d\nv_lshlrev_b32 v%d, 9, v%d\nv_and_b32 v%d, 15, v%d\nv_lshl_add_u32 v%d, v%d, 4, v%d" % (vT2, vT1, vT2, vT2, vT3, vT1, vT2, vT3, vT2))
    P.append("v_cmp_gt_u32 vcc, 128, v0\nv_mov_b32 v%d, %s\ns_nop 0\nv_cndmask_b32 v%d, v%d, v%d, vcc" % (vT3, OOB, vT2, vT3, vT2))
    P.append("s_lshl_b32 s%d, s%d, 12\ns_lshl_b32 s%d, s%d, 8\ns_add_u32 s%d, s%d, s%d\ns_add_u32 s%d, s%d, %d" % (sA, sFT, sB, sMT, sA, sA, sB, sA, sA, CS_OFF))
    P.append(RAW("buffer_store_dwordx4 v[40:43], v%d, %s, s%d offen sc1" % (vT2, srd(SRD_WS), sA)))
    P.append(WVM0())
    P.append("s_barrier")
    P.append("s_mul_i32 s%d, s%d, 14\ns_add_u32 s%d, s%d, s%d\ns_lshl_b32 s%d, s%d, 2\ns_add_u32 s%d, s%d, %d" % (sA, sMT, sA, sA, sFT, sA, sA, sA, sA, SF_OFF + 128))
    P.append(RAW("buffer_store_dword v%d, v%d, %s, s%d offen sc1" % (vTagV, vFlag0, srd(SRD_WS), sA)))
    P.append(RAW("L_h_done:"))
    P.append(stamp())
    P.append("s_cmp_lg_u32 s2, 0\ns_cbranch_scc1 L_h_end\ns_cmp_lg_u32 s%d, 0\ns_cbranch_scc1 L_h_end" % sWV)
    P.append("v_lshlrev_b32 v%d, 2, v%d\nv_and_b32 v%d, 31, v%d\nv_lshlrev_b32 v%d, 2, v%d" % (vT0, vL, vT1, vL, vT1, vT1))
    P.append("s_mov_b32 s%d, 0\ns_mov_b32 s%d, %d\ns_mov_b32 s%d, %d" % (sSPIN, sA, KF_OFF, sB, SF_OFF))
    P.append(RAW("L_ep_spin:"))
    for i in range(14): P.append(RAW("buffer_load_dword v%d, v%d, %s, s%d offen offset:%d sc1" % (32 + i, vT0, srd(SRD_WS), sA, 256 * i)))
    P.append(RAW("buffer_load_dword v46, v%d, %s, s%d offen sc1" % (vT1, srd(SRD_WS), sB)))
    P.append(WVM0())
    for i in range(15): P.append("v_xor_b32 v%d, s%d, v%d" % (32 + i, sTAG, 32 + i))
    for i in range(1, 15): P.append("v_or_b32 v32, v32, v%d" % (32 + i))
    P.append("v_cmp_ne_u32 vcc, 0, v32")
    P.append("s_add_u32 s%d, s%d, 1\ns_cmp_lt_u32 s%d, %d\ns_cbranch_scc0 L_ep_go" % (sSPIN, sSPIN, sSPIN, Cfg.spin))
    P.append("s_cbranch_vccz L_ep_go\ns_sleep 8\ns_branch L_ep_spin")
    P.append(RAW("L_ep_go:"))
    P.append("s_mov_b32 s%d, %d" % (sA, EP_OFF))
    P.append(RAW("buffer_store_dword v%d, v%d, %s, s%d offen sc1" % (vTagV, vFlag0, srd(SRD_WS), sA)))
    P.append(RAW("L_h_end:"))
    P.append(diag_tail())
    P.append("s_endpgm")
    return P

def generate(diag=False):
    Cfg.diag = diag
    stamp_n[0] = 0
    del slow_paths[:]
    ref = open("cdna_kernels/%s.s.ref" % NAME).read().split("\n")
    head = [l for l in ref if l.startswith(";") and "@launch" not in l]
    out = head + ["; @launch grid=(256,1,1) block=(256,1,1) lds=%d" % LDS_SIZE]
    out += ['.amdgcn_target "amdgcn-amd-amdhsa--gfx950"', ".text", ".globl %s_kernel" % NAME, ".p2align 8",
            ".type %s_kernel,@function" % NAME, "%s_kernel:" % NAME]
    pro, _ = resolve([prologue_common(), "s_cmp_lt_u32 s2, 32", "s_cbranch_scc1 L_helper"])
    m, mx = resolve(gen_main())
    h, _ = resolve([RAW("L_helper:"), gen_helper()])
    body = pro + m + "\n".join(slow_paths).split("\n") + h + ["L_exit:", "s_endpgm", "L_end_of_code:"]
    for l in "\n".join(body).split("\n"):
        out.append(l if l.endswith(":") else "    " + l)
    out += ['.section .rodata,"a"', ".p2align 6", ".amdhsa_kernel %s_kernel" % NAME,
            "  .amdhsa_next_free_vgpr 512", "  .amdhsa_next_free_sgpr 102", "  .amdhsa_accum_offset 256",
            "  .amdhsa_group_segment_fixed_size 0", "  .amdhsa_kernarg_size 104", "  .amdhsa_user_sgpr_count 2",
            "  .amdhsa_user_sgpr_kernarg_segment_ptr 1", "  .amdhsa_system_sgpr_workgroup_id_x 1",
            "  .amdhsa_float_denorm_mode_32 3", ".end_amdhsa_kernel"]
    return "\n".join(out) + "\n", mx

if __name__ == "__main__":
    diag = "--diag" in sys.argv
    txt, mx = generate(diag)
    path = sys.argv[1] if len(sys.argv) > 1 and not sys.argv[1].startswith("--") else "cdna_kernels/%s.s" % NAME
    open(path, "w").write(txt)
    print("wrote", path, "lines", txt.count("\n"), "max outstanding vm", mx)
```

```python
class Op:
    __slots__ = ("text", "kind", "tag")
    def __init__(self, text, kind="i", tag=None):
        self.text, self.kind, self.tag = text, kind, tag
def I(t): return Op(t)
def VM(t, tag=None): return Op(t, "vm", tag)
def DS(t, tag=None): return Op(t, "ds", tag)
def WVM(*tags): return Op(None, "wvm", tags)
def WDS(*tags): return Op(None, "wds", tags)
def WVM0(): return Op("s_waitcnt vmcnt(0)", "vm0")
def WDS0(): return Op("s_waitcnt lgkmcnt(0)", "ds0")
def RAW(t): return Op(t, "raw")

def flatten(x, out):
    if x is None: return
    if isinstance(x, Op): out.append(x)
    elif isinstance(x, str):
        for line in x.split("\n"):
            line = line.strip()
            if line: out.append(Op(line))
    else:
        for y in x: flatten(y, out)

TRACE = dict(on=False, names=[], base=248)
def _tstamp(out, name):
    n = len(TRACE["names"]); TRACE["names"].append(name)
    assert n < 192
    lane = n % 64
    out.append("s_memtime s[98:99]"); out.append("s_waitcnt lgkmcnt(0)")
    out.append("s_mov_b64 exec, 0x%x" % (1 << lane) if lane < 31 else "s_lshl_b64 exec, 1, %d" % lane)
    out.append("v_accvgpr_write_b32 a%d, s98" % (TRACE["base"] + n // 64))
    out.append("s_mov_b64 exec, -1"); out.append("s_nop 3")

def resolve(prog, trace=False):
    ops = []
    flatten(prog, ops)
    out = []
    vmq, dsq = [], []
    seen_vm, seen_ds = set(), set()
    maxvm = 0
    for o in ops:
        if o.kind in ("i", "raw"):
            out.append(o.text)
            if trace and o.text == "s_barrier":
                _tstamp(out, "bar>"); dsq = []
            if trace and o.text.startswith("L_res_"):
                _tstamp(out, o.text); dsq = []
        elif o.kind == "vm":
            vmq.append(o.tag); seen_vm.add(o.tag); out.append(o.text)
            maxvm = max(maxvm, len(vmq))
            assert len(vmq) <= 63, "too many outstanding VMEM ops: %d at %s" % (len(vmq), o.text)
        elif o.kind == "ds":
            dsq.append(o.tag); seen_ds.add(o.tag); out.append(o.text)
        elif o.kind == "vm0":
            vmq = []; out.append(o.text)
        elif o.kind == "ds0":
            dsq = []; out.append(o.text)
        elif o.kind == "wvm":
            for t in o.tag: assert t in seen_vm, "wait on never-issued vm tag %r" % (t,)
            idx = [i for i, t in enumerate(vmq) if t in o.tag]
            if idx:
                n = len(vmq) - 1 - idx[-1]
                tr = trace and not (isinstance(o.tag[0], tuple) and o.tag[0][0] == "H" and o.tag[0][1] % 4)
                if tr: _tstamp(out, "<%s" % (o.tag[0],)); dsq = []
                out.append("s_waitcnt vmcnt(%d)" % n)
                if tr: _tstamp(out, ">")
                vmq = vmq[idx[-1] + 1:]
        elif o.kind == "wds":
            for t in o.tag: assert t in seen_ds, "wait on never-issued ds tag %r" % (t,)
            idx = [i for i, t in enumerate(dsq) if t in o.tag]
            if idx:
                n = len(dsq) - 1 - idx[-1]
                if n > 15:
                    n = 15
                out.append("s_waitcnt lgkmcnt(%d)" % n)
                dsq = dsq[len(dsq) - n:] if n else []
        else:
            raise ValueError(o.kind)
    return out, maxvm

class Gaps:
    def __init__(self): self.g = {}
    def add(self, gap, atom): self.g.setdefault(gap, []).append(atom)
    def spread(self, atoms, gaps):
        n, m = len(atoms), len(gaps)
        for i, a in enumerate(atoms):
            self.add(gaps[(i * m) // n], a)
    def take(self, gap): return self.g.pop(gap, [])
    def check_empty(self): assert not self.g, "unplaced fillers: %r" % (list(self.g.keys()),)

def cost_of(atom):
    ops = []
    flatten(atom, ops)
    c = 0.0
    for o in ops:
        if o.kind == "raw": continue
        if o.kind == "vm": c += 1.5
        elif o.kind in ("wvm", "wds"): c += 1.0
        elif o.text and o.text.startswith("s_nop"): c += 1 + int(o.text.split()[1]) * 0.25
        else: c += 1.0
    return c

class Stream:
    def __init__(self, name, cap=99):
        self.name = name; self.items = []; self.pos = 0; self.last = -10**9; self.cap = cap
    def add(self, atom, at=None, space=0, by=None, key=None, after=None):
        self.items.append(dict(atom=atom, at=at, space=space, by=by, key=key, after=after, cost=cost_of(atom)))
        return self
    def addall(self, atoms, at=None, space=0, by=None, key=None, after=None):
        for i, a in enumerate(atoms):
            self.add(a, at if i == 0 else None, space, by, key if i == len(atoms) - 1 else None, after if i == 0 else None)
        return self

class Sched:
    def __init__(self, streams): self.streams = streams; self.log = {}; self.placed = {}
    def fill(self, now, budget):
        out = []; used = 0.0; cnt = {}
        progress = True
        while progress:
            progress = False
            for s in self.streams:
                if s.pos >= len(s.items): continue
                it = s.items[s.pos]
                forced = any(x["by"] is not None and x["by"] <= now for x in s.items[s.pos:])
                if it["after"] is not None:
                    k, d = it["after"]
                    if k not in self.placed: continue
                    if now < self.placed[k] + d and not (forced and now > self.placed[k]): continue
                if it["at"] is not None and now < it["at"]: continue
                if not forced:
                    if now - s.last < it["space"]: continue
                    if cnt.get(s.name, 0) >= s.cap: continue
                c = it["cost"]
                if used + c <= budget + 1e-9 or forced or (used == 0 and c > budget):
                    out.append(it["atom"]); used += c; s.pos += 1; s.last = now; progress = True
                    cnt[s.name] = cnt.get(s.name, 0) + 1
                    if it["key"] is not None: self.placed[it["key"]] = now
                    self.log.setdefault(s.name, []).append(now)
                    break
        return out, used
    def done(self): return all(s.pos >= len(s.items) for s in self.streams)
    def left(self): return {s.name: len(s.items) - s.pos for s in self.streams if s.pos < len(s.items)}
```

```python
import re
REG = re.compile(r"\b([vas])(?:(\d+)|\[(\d+):(\d+)\])")
def regs(tok):
    out = set()
    for m in REG.finditer(tok):
        f = m.group(1)
        if m.group(2) is not None: out.add((f, int(m.group(2))))
        else:
            for i in range(int(m.group(3)), int(m.group(4)) + 1): out.add((f, i))
    if re.search(r"\bvcc\b", tok): out.add(("s", "vcc"))
    if re.search(r"\bm0\b", tok): out.add(("s", "m0"))
    return out
def parse(line):
    line = line.strip()
    if not line or line.endswith(":") or line.startswith(";") or line.startswith("."): return None
    parts = line.split(None, 1)
    mn = parts[0]; rest = parts[1] if len(parts) > 1 else ""
    ops = [o.strip() for o in re.split(r",(?![^\[]*\])", rest)]
    w, r = set(), set()
    if mn.startswith("v_mfma"):
        w = regs(ops[0]); r = regs(ops[1]) | regs(ops[2]); c = regs(ops[3])
        return dict(mn=mn, w=w, r=r, c=c, k="mfma", passes=8 if "32x32" in mn else 4)
    if mn.startswith("v_"):
        w = regs(ops[0]); r = set().union(*[regs(o) for o in ops[1:]]) if len(ops) > 1 else set()
        if mn.startswith(("v_fmac", "v_dot2c", "v_writelane")): r |= w
        if mn.startswith("v_permlane"): r |= w; w |= regs(ops[1])
        return dict(mn=mn, w=w, r=r, k="valu")
    if mn.startswith(("buffer_load", "global_load")):
        if " lds" in line: return dict(mn=mn, w=set(), r=regs(rest) | {("s", "m0")}, k="vmem")
        return dict(mn=mn, w=regs(ops[0]), r=set().union(*[regs(o) for o in ops[1:]]), k="vmem")
    if mn.startswith(("buffer_store", "global_store")):
        return dict(mn=mn, w=set(), r=regs(rest), data=regs(ops[0]), k="vmem")
    if mn.startswith("ds_read"): return dict(mn=mn, w=regs(ops[0]), r=regs(ops[1]), k="ds")
    if mn.startswith("ds_write"): return dict(mn=mn, w=set(), r=regs(rest), k="ds")
    if mn.startswith("s_"):
        w = regs(ops[0]) if ops and not mn.startswith(("s_cmp", "s_cbranch", "s_branch", "s_waitcnt", "s_nop", "s_barrier", "s_sleep", "s_endpgm")) else set()
        return dict(mn=mn, w=w, r=set().union(*[regs(o) for o in ops[1:]]) if len(ops) > 1 else set(), k="salu", nop=int(ops[0]) if mn == "s_nop" else None)
    return dict(mn=mn, w=set(), r=set(), k="other")
TRANS = ("v_exp", "v_log", "v_rcp", "v_rsq", "v_sqrt", "v_sin", "v_cos")
def lint(lines):
    ins = [(l, parse(l)) for l in lines]
    ins = [(l, p) for l, p in ins if p]
    bad = []
    for i, (l, p) in enumerate(ins):
        dist = 0; tdist = 0
        for j in range(i + 1, min(i + 24, len(ins))):
            l2, q = ins[j]
            need = 0; use_t = False
            if p["k"] == "mfma":
                n = 12 if p["passes"] == 8 else 8
                if q["k"] == "mfma":
                    if p["w"] & q["r"]: need = n; use_t = True
                    elif (p["w"] & q["c"]) and (p["w"] != q["c"] or p["passes"] != q["passes"]): need = n - 2; use_t = True
                elif p["w"] & (q["r"] | q["w"]): need = n; use_t = True
                elif q["k"] == "valu" and (p["c"] & q["w"]): need = 7 if p["passes"] == 8 else 3; use_t = True
            elif p["k"] == "valu":
                wv = {x for x in p["w"] if x[0] in "va"}; ws = {x for x in p["w"] if x[0] == "s"}
                if q["k"] == "mfma" and wv & (q["r"] | q["c"]): need = 2
                if q["mn"].startswith("v_permlane") and wv & q["r"]: need = 2
                if "dpp" in l2 and wv & q["r"]: need = 2
                if q["mn"].startswith(("v_readfirstlane", "v_readlane")) and wv & q["r"]: need = 1
                if p["mn"].startswith(TRANS) and q["k"] == "valu" and wv & q["r"]: need = max(need, 1)
                if p["mn"].startswith("v_dot") and q["mn"] != p["mn"] and wv & (q["r"] | q["w"]): need = 3
                if ws and q["k"] == "valu" and ws & q["r"]: need = max(need, 2)
                if ws and q["k"] == "vmem" and ws & q["r"]: need = 5
            elif p["k"] == "vmem" and "data" in p and len(p["data"]) >= 3:
                if q["k"] in ("valu", "mfma") and p["data"] & q["w"]: need = 2
            elif p["k"] == "salu" and ("s", "m0") in p["w"] and q["k"] == "vmem" and ("s", "m0") in q["r"]: need = 1
            have = tdist if use_t else dist
            if need > have: bad.append((need, have, l.strip(), l2.strip()))
            step = (q["nop"] + 1) if q.get("nop") is not None else 1
            dist += step
            tdist += (6 if q["passes"] == 8 else 3) if q["k"] == "mfma" else step
    return bad
if __name__ == "__main__":
    import sys
    b = lint(open(sys.argv[1]).read().split("\n"))
    for x in b: print(x)
    print(len(b), "potential hazards")
```

```python
import sys
from dsl import *
import lint as lintmod

NAME = "parallel_sum__ssm_conv_h3__glu_gated_bilinear__prompt"
S, D, F = 2048, 448, 1792

H_OFF   = 0x000000
KVT_OFF = 0x700000
Z_OFF   = 0x8C0000
ST_OFF  = 0xC40000
CS_OFF  = 0xC44000
ST2_OFF = 0xC54000
HF_OFF  = 0xC60000
KF_OFF  = 0xC80000
ZF_OFF  = 0xC90000
EP_OFF  = 0xCB8000
DG_OFF  = 0xCC0000
PX_OFF  = 0xD00000
TR_OFF  = 0x1100000
WS_SIZE = 0x1280000

WR = 0
XB = 98304
XS = 16640
KVR = 148224
CEX = XB + 256
REDA, REDB = 0, 16384
LDS_SIZE = 163840

SRD_X, SRD_K, SRD_V, SRD_SK, SRD_HK, SRD_DD, SRD_W1, SRD_WD, SRD_OUT, SRD_WS = [32 + 4 * i for i in range(10)]
def srd(b): return "s[%d:%d]" % (b, b + 3)
sWV, sMT, sFT, sT, sDT, sC2, sTAG, sWM, sWN = 72, 73, 74, 75, 76, 77, 78, 79, 80
sWL, sXL, sWo, sXo, sDo, sSPIN = 81, 82, 83, 84, 85, 86
sA, sB, sC, sD_ = 90, 91, 92, 93
sZt0, sZt1, sZt2 = 94, 95, 96
(sHst0, sHst1, sHfl, sKst0, sKst1, sKfl, sKld0, sKld1, sCs, sMn, sHL, sHS, sZst, sZfl, sZld, sSt2,
 sHcur, sHbase, sHlim, sPst, sPld, sHA, sHB, sKF, sHF, sZF) = range(4, 30)
sG = list(range(36, 43))
s4r = 30
sFG0 = 31

vL = 1
vA = [2, 3, 4, 5]; vA2 = [6, 7, 8, 9]; vB = [10, 11, 12, 13]
vW = [14, 15, 16, 17]; vX = [18, 19, 20, 21]; vWd = [22, 23, 24, 25]
vWdA = [26, 27]; vWdA2 = [28, 29]
vL16, vFlag0 = 30, 31
BF, AF, ACC = 80, 96, 128
T0, T1, T2, T3, T4, T5, T6, T7 = range(60, 68)
(aTag, aHsrc, aPsw, aPsr, aKst, aPollK, aCA0, aCA1, aCB, aCD, aOo, aPollH, aZst, aPollZ, aZld, aRr) = range(224, 240)
aStamp = 240
def vr(b, n): return "v[%d:%d]" % (b, b + n - 1)
def ar(b, n): return "a[%d:%d]" % (b, b + n - 1)
OOB = "0x80000000"
def stash(a, v): return "v_accvgpr_write_b32 a%d, v%d" % (a, v)
def unstash(v, a): return I("v_accvgpr_read_b32 v%d, a%d" % (v, a))

class Cfg:
    diag = False
    spin = 100000
    rot1 = "2"
    rot2 = True
    nt_kv = "nt"; nt_hk = "nt"; nt_w = ""; nt_x = ""; nt_wd = ""
    sleep = 4
    sp1 = 4; kx = 6; sp2 = 3
    prep_at = 16
    polls_at = 316
    polls_lag = 36
    kv_lag = 36
    wd_lag = 40
    nws = 4
    wd_after = {5: 1, 8: 1, 11: 1, 14: 1, 16: 1}
    hdma_u = 6
    hflag = 30
    hpoll = 76
    nfirst = 6
    zflag = 24; zpoll = 56; zlag = 20
    stamps_k = (2, 8, 16, 22)
    b32 = 5; b16 = 2

slow_paths = []
def check(name, loads, cmp_ops, tags):
    sl = ["L_slow_%s:" % name, "s_mov_b32 s%d, 0" % sSPIN, "L_spin_%s:" % name, "s_sleep %d" % Cfg.sleep]
    sl += loads + ["s_add_u32 s%d, s%d, 1" % (sSPIN, sSPIN), "s_waitcnt vmcnt(0)"] + cmp_ops
    sl += ["s_cmp_lt_u32 s%d, %d" % (sSPIN, Cfg.spin), "s_cbranch_scc0 L_res_%s" % name,
           "s_cbranch_vccnz L_spin_%s" % name, "s_branch L_res_%s" % name]
    slow_paths.append("\n".join(sl))
    return [WVM(*tags)] + [I(c) for c in cmp_ops[:-1]], [I(cmp_ops[-1]), I("s_cbranch_vccnz L_slow_%s" % name), RAW("L_res_%s:" % name)]
def flag_store(sreg, wait_tags):
    ops = [WVM(*wait_tags)] if wait_tags else []
    ops.append(VM("buffer_store_dword a%d, v%d, %s, s%d offen sc1" % (aTag, vFlag0, srd(SRD_WS), sreg), "flag"))
    return ops

stamp_n = [0]; stamp_names = []
def stamp(name=""):
    if not Cfg.diag or (Cfg.trace and name not in ("b0", "end", "mean", "cs", "rstd")): return []
    n = stamp_n[0]; stamp_n[0] += 1
    assert n < (6 if Cfg.trace else 14)
    stamp_names.append(name)
    return [I("s_memtime s[98:99]"), WDS0(), I("v_accvgpr_write_b32 a%d, s98" % (aStamp + 2 + n))]
def diag_tail():
    if not Cfg.diag: return []
    p = [WVM0(), stamp("end"), "s_memrealtime s[98:99]", WDS0()]
    p.append("v_accvgpr_write_b32 a%d, s88\nv_accvgpr_write_b32 a%d, s89" % (aStamp, aStamp + 1))
    p.append("v_mov_b32 v32, s100\nv_mov_b32 v33, s98")
    p.append("s_lshl_b32 s%d, s2, 2\ns_add_u32 s%d, s%d, s%d\ns_lshl_b32 s%d, s%d, 7\ns_add_u32 s%d, s%d, %d" % (sA, sA, sA, sWV, sA, sA, sA, sA, DG_OFF))
    for i in range(4): p.append(VM("buffer_store_dwordx4 %s, v%d, %s, s%d offen offset:%d" % (ar(aStamp + 4 * i, 4), vFlag0, srd(SRD_WS), sA, 16 * i)))
    p.append(VM("buffer_store_dwordx2 v[32:33], v%d, %s, s%d offen offset:%d" % (vFlag0, srd(SRD_WS), sA, 104)))
    if Cfg.trace:
        p.append("s_lshl_b32 s%d, s2, 2\ns_add_u32 s%d, s%d, s%d\ns_mul_i32 s%d, s%d, 768\ns_add_u32 s%d, s%d, %d" % (sA, sA, sA, sWV, sA, sA, sA, sA, TR_OFF))
        p.append("v_lshlrev_b32 v32, 2, v%d" % vL)
        for i in range(3): p.append(VM("buffer_store_dword a%d, v32, %s, s%d offen offset:%d" % (248 + i, srd(SRD_WS), sA, 256 * i)))
    p.append(WVM0())
    return p

def build_srd(b, ptr, size):
    return ["s_mov_b32 s%d, s%d" % (b, ptr), "s_mov_b32 s%d, s%d" % (b + 1, ptr + 1),
            "s_mov_b32 s%d, %d" % (b + 2, size), "s_mov_b32 s%d, 0x00020000" % (b + 3)]
def tag_from_epoch(vE):
    return [I("v_readfirstlane_b32 s%d, v%d" % (sTAG, vE)), I("s_nop 3"),
            I("s_mul_i32 s%d, s%d, 1664525" % (sTAG, sTAG)), I("s_add_u32 s%d, s%d, 1013904223" % (sTAG, sTAG)),
            I("v_accvgpr_write_b32 a%d, s%d" % (aTag, sTAG))]
def advance(sreg, step, limit):
    return [I("s_add_u32 s%d, s%d, %d" % (sreg, sreg, step)),
            [I("s_cmp_eq_u32 s%d, %d" % (sreg, limit)), I("s_cselect_b32 s%d, 0, s%d" % (sreg, sreg))]]

def L(fmt, *a): return fmt % a

def prologue_common():
    p = ["s_cmp_ge_u32 s2, 256\ns_cbranch_scc1 L_exit"]
    if Cfg.diag: p.append("s_memrealtime s[100:101]\ns_memtime s[88:89]")
    p.append("s_load_dwordx16 s[4:19], s[0:1], 0\ns_load_dwordx8 s[20:27], s[0:1], 64\ns_load_dwordx2 s[28:29], s[0:1], 96")
    p.append(L("v_and_b32 v%d, 63, v0\nv_lshrrev_b32 v%d, 6, v0\nv_lshlrev_b32 v%d, 4, v%d", vL, T0, vL16, vL))
    p.append(L("v_readfirstlane_b32 s%d, v%d", sWV, T0))
    p.append(L("v_cmp_eq_u32 vcc, 0, v%d\nv_mov_b32 v%d, %s\nv_mov_b32 v%d, 0\nv_cndmask_b32 v%d, v%d, v%d, vcc", vL, T1, OOB, T2, vFlag0, T1, T2))
    return p

def dma_group(sL, ldsconst, vs, srd_b, sOff, tag, pol, adv):
    at = [I("s_add_u32 m0, s%d, %d" % (sL, ldsconst))]
    for q in range(4):
        op = VM("buffer_load_dwordx4 v%d, %s, s%d offen offset:%d %s lds" % (vs[q], srd(srd_b), sOff, q * 1024, pol), tag)
        at.append([I("s_nop 0"), op] if q == 0 else op)
    return at, advance(sOff, *adv)
def w_group(hc): return dma_group(sWL, WR + (hc % Cfg.nws) * 16384, vW, SRD_W1, sWo, ("W", hc), Cfg.nt_w, (32 * 3584, 448 * 3584))
def x_group(c): return dma_group(sXL, (c % 3) * XS, vX, SRD_X, sXo, ("X", c), Cfg.nt_x, (128, 896))
WD_BASE = [32768, 49152, XB + 256, 65536, 81920, 0, 16384]
def wd_group(u): return dma_group(sWL, WD_BASE[u], vWd, SRD_WD, sDo, ("WD", u), Cfg.nt_wd, (64 * 896, 448 * 896))
def wd_reads(u):
    at = []
    for n4 in range(4):
        for jd in range(2):
            for p in range(2):
                off = WD_BASE[u] + (n4 >> 1) * 8192 + (n4 & 1) * 2048 + p * 1024
                base = vWdA[jd]
                if off >= 0x10000: base = vWdA2[jd]; off -= 0x10000
                at.append(DS("ds_read_b64_tr_b16 %s, v%d offset:%d" % (ar(8 * (4 * u + n4) + 4 * jd + 2 * p, 2), base, off), ("WR", u)))
    return at

def frag_reads(s):
    buf = s & 1; hc, sp = s >> 1, s & 1; slot = hc % Cfg.nws; c, s4 = s >> 2, s & 3
    def bread(nt): return DS("ds_read_b128 %s, v%d offset:%d" % (vr(BF + buf * 8 + nt * 4, 4), vB[s4], (c % 3) * XS + nt * 4096), ("F", s))
    def aread(jj, p):
        base = vA[jj] if slot < 3 else vA2[jj]
        return DS("ds_read_b64_tr_b16 %s, v%d offset:%d" % (vr(AF + buf * 16 + jj * 4 + p * 2, 2), base, (slot % 3) * 16384 + sp * 4096 + p * 1024), ("F", s))
    at = [bread(0), aread(0, 0), aread(0, 1), bread(1)]
    for jj in range(1, 4): at += [aread(jj, 0), aread(jj, 1)]
    return at

KR, VR_, vEp, SKR, TAP, KFv, R0, R1, VF, HB0, HB1, OLO, OHI = 32, 43, 51, 52, 56, 60, 71, 72, 73, 74, 75, 76, 32

def gen_main():
    P = [RAW("L_main:")]
    P.append(L("s_sub_u32 s%d, s2, 32\ns_and_b32 s%d, s2, 7\ns_lshr_b32 s%d, s%d, 3", sC2, sA, sB, sC2))
    P.append(L("s_lshr_b32 s%d, s%d, 2\ns_and_b32 s%d, s%d, 3", sDT, sB, sB, sB))
    P.append(L("s_lshl_b32 s%d, s%d, 2\ns_add_u32 s%d, s%d, s%d", sT, sA, sT, sT, sB))
    P.append(L("s_lshr_b32 s%d, s%d, 1\ns_lshl_b32 s%d, s%d, 2\ns_add_u32 s%d, s%d, s%d", sMT, sA, sMT, sMT, sMT, sMT, sB))
    P.append(L("s_and_b32 s%d, s%d, 1\ns_mul_i32 s%d, s%d, 7\ns_add_u32 s%d, s%d, s%d", sFG0, sA, sFT, sFG0, sFT, sFT, sDT))
    P.append(L("s_and_b32 s%d, s%d, 1\ns_lshr_b32 s%d, s%d, 1", sWM, sWV, sWN, sWV))
    P.append(L("s_lshl_b32 s%d, s%d, 12\ns_add_u32 s%d, s%d, %d", sWL, sWV, sXL, sWL, XB + 256))
    if Cfg.rot1 == "0": P.append(L("s_mov_b32 s%d, 0", sA))
    elif Cfg.rot1 == "2": P.append(L("s_xor_b32 s%d, s%d, s%d\ns_and_b32 s%d, s%d, 1\ns_lshl_b32 s%d, s%d, 2", sA, sMT, sFT, sA, sA, sA, sA))
    elif Cfg.rot1 == "3":
        P.append(L("s_add_u32 s%d, s%d, s%d\ns_mul_i32 s%d, s%d, 3\ns_mov_b32 s%d, 0x%x\ns_lshr_b32 s%d, s%d, s%d\ns_and_b32 s%d, s%d, 7",
                   sA, sB, sDT, sA, sA, sC, sum(((0, 2, 5)[i % 3]) << (3 * i) for i in range(10)), sA, sC, sA, sA, sA))
    else:
        P.append(L("s_lshl_b32 s%d, s%d, 1\ns_add_u32 s%d, s%d, s%d\ns_sub_u32 s%d, s%d, 7\ns_min_u32 s%d, s%d, s%d", sA, sB, sA, sA, sDT, sC, sA, sA, sA, sC))
    P.append(L("s_mul_i32 s%d, s%d, %d\ns_lshl_b32 s%d, s%d, 7", sWo, sA, 64 * 3584, sXo, sA))
    P.append(L("v_lshrrev_b32 v%d, 4, v%d", T0, vL))
    P.append(L("s_mul_i32 s%d, s%d, %d\ns_lshl_b32 s%d, s%d, 8\ns_add_u32 s%d, s%d, s%d", sA, sWM, 16 * 3584, sB, sFT, sA, sA, sB))
    P.append(L("v_mul_u32_u24 v%d, 3584, v%d\ns_lshl_b32 s%d, s%d, 3", T1, T0, sB, sWN))
    P.append(L("v_lshlrev_b32 v%d, 1, v%d\nv_or_b32 v%d, s%d, v%d\nv_and_b32 v%d, 15, v%d", T2, T0, T2, sB, T2, T3, vL))
    P.append(L("v_xor_b32 v%d, v%d, v%d\nv_lshlrev_b32 v%d, 4, v%d\nv_add3_u32 v%d, v%d, v%d, s%d", T2, T2, T3, T2, T2, vW[0], T1, T2, sA))
    for q in range(1, 4): P.append(L("v_add_u32 v%d, %d, v%d", vW[q], q * (4 * 3584 - 1024), vW[0]))
    P.append(L("s_lshl_b32 s%d, s%d, 2\ns_add_u32 s%d, s%d, s%d\ns_mul_i32 s%d, s%d, %d", sA, sMT, sA, sA, sWV, sA, sA, 32 * 896))
    P.append(L("v_lshrrev_b32 v%d, 3, v%d\nv_mul_u32_u24 v%d, 896, v%d\nv_and_b32 v%d, 7, v%d", T1, vL, T1, T1, T3, vL))
    P.append(L("v_xor_b32 v%d, v%d, v%d\nv_lshlrev_b32 v%d, 4, v%d\nv_add3_u32 v%d, v%d, v%d, s%d", T2, T3, T0, T2, T2, vX[0], T1, T2, sA))
    P.append(L("v_xor_b32 v%d, 64, v%d", T2, vX[0]))
    for q in range(1, 4): P.append(L("v_add_u32 v%d, %d, v%d", vX[q], q * (8 * 896 - 1024), T2 if q & 1 else vX[0]))
    P.append(WDS0())
    if Cfg.diag: P.append([I("s_memtime s[98:99]"), WDS0(), I("s_mov_b32 s89, s98")])
    P.append(L("s_cmp_ge_u32 s%d, 2\ns_cselect_b32 s%d, s20, s18\ns_cselect_b32 s%d, s21, s19", sWV, SRD_W1, SRD_W1 + 1))
    P.append(L("s_mov_b32 s%d, %d\ns_mov_b32 s%d, 0x00020000", SRD_W1 + 2, D * F * 2, SRD_W1 + 3))
    P.append(build_srd(SRD_X, 4, S * D * 2))
    P.append(w_group(0)); P.append(x_group(0))
    P.append(w_group(1))
    for b, ptr, size in ((SRD_K, 6, S * D * 2), (SRD_V, 8, S * D * 2), (SRD_SK, 10, D * 8), (SRD_HK, 12, D * S * 2 + 64), (SRD_DD, 14, D * 2),
                         (SRD_WD, 22, D * F * 2), (SRD_OUT, 24, S * D * 2), (SRD_WS, 28, WS_SIZE)):
        P.append(build_srd(b, ptr, size))
    P.append(L("s_mov_b32 s%d, %d\nv_mov_b32 v%d, 0", sA, EP_OFF, T4))
    P.append(VM("buffer_load_dword v%d, v%d, %s, s%d offen sc1" % (vEp, T4, srd(SRD_WS), sA), "prep"))
    P.append(L("s_lshl_b32 s%d, s%d, 1\ns_add_u32 s%d, s%d, s%d\ns_mul_i32 s%d, s%d, %d\ns_lshl_b32 s%d, s%d, 7\ns_add_u32 s%d, s%d, s%d", sA, sFG0, sA, sA, sWM, sA, sA, 448 * 896, sB, sDT, sA, sA, sB))
    P.append(L("s_mul_i32 s%d, s%d, %d\ns_add_u32 s%d, s%d, s%d", sB, sWN, 32 * 896, sA, sA, sB))
    P.append(L("v_and_b32 v%d, 1, v%d\nv_lshlrev_b32 v%d, 2, v%d\nv_xor_b32 v%d, v%d, v%d\nv_lshlrev_b32 v%d, 4, v%d", T2, T0, T2, T2, T2, T2, T3, T2, T2))
    P.append(L("v_add3_u32 v%d, v%d, v%d, s%d", vWd[0], T1, T2, sA))
    for q in range(1, 4): P.append(L("v_add_u32 v%d, %d, v%d", vWd[q], q * (8 * 896 - 1024), vWd[0]))
    P.append(L("v_bfe_u32 v%d, v%d, 2, 2\nv_bfe_u32 v%d, v%d, 4, 1\nv_lshrrev_b32 v%d, 5, v%d", T0, vL, T1, vL, T2, vL))
    P.append(L("v_and_b32 v%d, 3, v%d\nv_lshlrev_b32 v%d, 3, v%d", T3, vL, T3, T3))
    P.append(L("v_lshl_add_u32 v%d, v%d, 3, v%d\nv_lshlrev_b32 v%d, 8, v%d\nv_lshl_add_u32 v%d, v%d, 13, v%d\nv_add_u32 v%d, v%d, v%d", T4, T2, T0, T4, T4, T4, T1, T4, T4, T4, T3))
    P.append(L("v_lshl_or_b32 v%d, v%d, 2, v%d\ns_lshl_b32 s%d, s%d, 2\nv_xor_b32 v%d, s%d, v%d", T5, T1, T0, sA, sWM, T5, sA, T5))
    for jj in range(4):
        P.append(L("v_xor_b32 v%d, %d, v%d\nv_lshl_add_u32 v%d, v%d, 5, v%d\nv_add_u32 v%d, %d, v%d", vA[jj], jj, T5, vA[jj], vA[jj], T4, vA2[jj], 49152, vA[jj]))
    P.append(L("v_lshl_add_u32 v%d, v%d, 2, v%d\nv_lshlrev_b32 v%d, 7, v%d\ns_lshl_b32 s%d, s%d, 12", T4, T2, T0, T4, T4, sA, sWM))
    P.append(L("v_lshl_add_u32 v%d, v%d, 5, v%d\nv_add3_u32 v%d, v%d, v%d, s%d", T4, T1, T4, T4, T4, T3, sA))
    P.append(L("v_lshrrev_b32 v%d, 1, v%d\nv_xor_b32 v%d, s%d, v%d\nv_lshl_add_u32 v%d, v%d, 6, v%d", T5, T0, T5, sWM, T5, vWdA[0], T5, T4))
    P.append(L("v_xor_b32 v%d, 64, v%d\nv_add_u32 v%d, 0x10000, v%d\nv_add_u32 v%d, 0x10000, v%d", vWdA[1], vWdA[0], vWdA2[0], vWdA[0], vWdA2[1], vWdA[1]))
    P.append(L("v_and_b32 v%d, 31, v%d\nv_bfe_u32 v%d, v%d, 1, 3\nv_xor_b32 v%d, v%d, v%d", T6, vL, T1, vL, T1, T1, T2))
    P.append(L("s_lshl_b32 s%d, s%d, 13\ns_add_u32 s%d, s%d, %d\nv_lshlrev_b32 v%d, 7, v%d\nv_add_u32 v%d, s%d, v%d", sA, sWN, sA, sA, XB + 256, T0, T6, T0, sA, T0))
    for sp in range(4): P.append(L("v_xor_b32 v%d, %d, v%d\nv_lshl_add_u32 v%d, v%d, 4, v%d", vB[sp], 2 * sp, T1, vB[sp], vB[sp], T0))
    P.append(L("s_lshl_b32 s%d, s%d, 2\ns_add_u32 s%d, s%d, s%d\ns_mul_i32 s%d, s%d, %d\ns_lshl_b32 s%d, s%d, 7\ns_add_u32 s%d, s%d, s%d",
               sA, sT, sA, sA, sWV, sA, sA, 16 * 896, sB, sDT, sA, sA, sB))
    P.append(L("v_mul_u32_u24 v%d, %d, v%d\nv_lshl_add_u32 v%d, v%d, 2, v%d\nv_add_u32 v%d, s%d, v%d", R0, 8 * 896, T2, R0, T6, R0, R0, sA, R0))
    P.append(L("v_subrev_u32 v%d, %d, v%d\nv_cmp_gt_u32 vcc, %d, v%d\nv_mov_b32 v%d, %s\ns_mov_b32 s%d, %d\nv_cndmask_b32 v%d, v%d, v%d, vcc",
               VF, 3 * 896, R0, 3 * 896, R0, T0, OOB, s4r, 4 * 896, VF, VF, T0))
    P.append(L("s_lshl_b32 s%d, s%d, 9\nv_lshlrev_b32 v%d, 4, v%d", sD_, sDT, R1, T6))
    kvl = []
    for a in range(3): kvl.append(VM("buffer_load_dword v%d, v%d, %s, 0 offen offset:%d %s" % (KR + a, VF, srd(SRD_K), a * 896, Cfg.nt_kv), "prep"))
    for o in range(8): kvl.append(VM("buffer_load_dword v%d, v%d, %s, %s offen offset:%d %s" % (KR + 3 + o, R0, srd(SRD_K), "0" if o < 4 else "s%d" % s4r, (o & 3) * 896, Cfg.nt_kv), "prep"))
    for o in range(8): kvl.append(VM("buffer_load_dword v%d, v%d, %s, %s offen offset:%d %s" % (VR_ + o, R0, srd(SRD_V), "0" if o < 4 else "s%d" % s4r, (o & 3) * 896, Cfg.nt_kv), "prep"))
    kvl.append(VM("buffer_load_dwordx4 %s, v%d, %s, s%d offen" % (vr(SKR, 4), R1, srd(SRD_SK), sD_), "prep"))
    P.append(L("s_lshl_b32 s%d, s%d, 1\ns_add_u32 s%d, s%d, s%d\ns_lshl_b32 s%d, s%d, 12", sHS, sC2, sHS, sHS, sWN, sHS, sHS))
    P.append(L("v_and_b32 v%d, 15, v%d\nv_lshrrev_b32 v%d, 4, v%d", T7, vL, T5, vL))
    P.append(L("v_lshl_add_u32 v%d, v%d, 1, v%d\nv_subrev_u32 v%d, 15, v%d\nv_lshlrev_b32 v%d, 1, v%d\nv_add_u32 v%d, 2, v%d", T0, T7, T5, T0, T0, TAP, T0, TAP + 1, TAP))
    P.append(L("v_lshlrev_b32 v%d, 7, v%d", TAP + 2, T6))
    P.append(L("s_lshl_b32 s%d, s%d, 18\ns_lshl_b32 s%d, s%d, 7\ns_sub_u32 s%d, s%d, s%d\ns_add_u32 s%d, s%d, %d\ns_add_u32 s%d, s%d, %d",
               sKst0, sDT, sA, sT, sKst0, sKst0, sA, sKst0, sKst0, KVT_OFF + 3968, sKst1, sKst0, 32 * 4096))
    P.append(L("s_lshl_b32 s%d, s%d, 5\ns_add_u32 s%d, s%d, s%d\ns_lshl_b32 s%d, s%d, 7\ns_add_u32 s%d, s%d, %d\ns_cmp_eq_u32 s%d, 0\ns_cselect_b32 s%d, s%d, 0x40000000",
               sA, sDT, sA, sA, sT, sA, sA, sA, sA, KF_OFF, sWV, sKfl, sA))
    P.append(L("s_lshl_b32 s%d, s%d, 1\ns_sub_u32 s%d, 7, s%d\nv_sub_u32 v%d, s%d, v%d\nv_and_b32 v%d, 7, v%d\nv_xor_b32 v%d, v%d, v%d", sA, sWV, sA, sA, T0, sA, T2, T1, vL, T0, T0, T1))
    P.append(L("v_lshlrev_b32 v%d, 4, v%d\nv_lshl_add_u32 v%d, v%d, 8, v%d\nv_lshrrev_b32 v%d, 4, v%d\nv_mul_u32_u24 v%d, 4608, v%d", T0, T0, T0, T7, T0, T3, T6, T3, T3))
    P.append(L("v_add_u32 v%d, v%d, v%d\nv_add_u32 v%d, %d, v%d", T0, T0, T3, T0, KVR, T0) + "\n" + stash(aPsw, T0))
    P.append(L("v_lshrrev_b32 v%d, 3, v0\nv_bfe_u32 v%d, v0, 4, 3\nv_xor_b32 v%d, v%d, v%d\nv_lshlrev_b32 v%d, 4, v%d", T0, T3, T3, T3, T1, T3, T3))
    P.append(L("v_lshl_add_u32 v%d, v%d, 7, v%d\nv_add_u32 v%d, %d, v%d", T3, T0, T3, T3, KVR, T3) + "\n" + stash(aPsr, T3))
    P.append(L("v_lshlrev_b32 v%d, 12, v%d\nv_lshl_add_u32 v%d, v%d, 4, v%d", T0, T0, T0, T1, T0) + "\n" + stash(aKst, T0))
    P.append(L("s_mul_i32 s%d, s%d, %d\ns_add_u32 s%d, s%d, %d\nv_lshlrev_b32 v%d, 2, v%d\nv_add_u32 v%d, s%d, v%d", sA, sWN, XS, sA, sA, XB + XS, 78, vL, 78, sA, 78))
    U0, U1, U2, U3, U4, U5, U6, U7 = 73, 74, 75, 76, 77, 78, 79, 70
    Q = []
    Q.append(L("v_lshrrev_b32 v%d, 5, v%d\nv_lshrrev_b32 v%d, 4, v%d\nv_and_b32 v%d, 31, v%d\nv_and_b32 v%d, 15, v%d", U2, vL, U5, vL, U6, vL, U7, vL))
    if Cfg.rot2:
        Q.append(L("s_and_b32 s%d, s%d, 3\ns_lshl_b32 s%d, s%d, 1\ns_add_u32 s%d, s%d, s%d\ns_sub_u32 s%d, s%d, 7\ns_min_u32 s%d, s%d, s%d", sA, sMT, sA, sA, sA, sA, sDT, sC, sA, sA, sA, sC))
    else: Q.append(L("s_mov_b32 s%d, 0", sA))
    Q.append(L("s_mul_i32 s%d, s%d, %d\ns_lshl_b32 s%d, s%d, 12", sDo, sA, 64 * 896, sHcur, sA))
    Q.append(L("s_lshl_b32 s%d, s%d, 1\ns_add_u32 s%d, s%d, s%d", sA, sMT, sA, sA, sWN))
    Q.append(L("s_lshl_b32 s%d, s%d, 1\ns_add_u32 s%d, s%d, s%d", sB, sFT, sB, sB, sWM))
    Q.append(L("s_lshl_b32 s%d, s%d, 9\ns_add_u32 s%d, s%d, %d", sMn, sA, sMn, sMn, ST_OFF))
    Q.append(L("s_lshl_b32 s%d, s%d, 11\ns_add_u32 s%d, s%d, %d", sCs, sB, sCs, sCs, CS_OFF))
    Q.append(L("s_mul_i32 s%d, s%d, 224\ns_lshl_b32 s%d, s%d, 2\ns_add_u32 s%d, s%d, s%d\ns_lshl_b32 s%d, s%d, 10\ns_add_u32 s%d, s%d, %d",
               sHst0, sA, sC, sB, sHst0, sHst0, sC, sHst0, sHst0, sHst1, sHst0, 112 * 1024))
    Q.append(L("s_lshl_b32 s%d, s%d, 5\ns_add_u32 s%d, s%d, s%d\ns_lshl_b32 s%d, s%d, 7\ns_add_u32 s%d, s%d, %d", sHfl, sA, sHfl, sHfl, sB, sHfl, sHfl, sHfl, sHfl, HF_OFF))
    Q.append(L("s_mov_b32 s%d, %d\ns_and_b32 s%d, s%d, 0xffffffe0\nv_add_lshl_u32 v%d, v%d, s%d, 7", sKF, KF_OFF, sA, sC2, U0, U6, sA) + "\n" + stash(aPollK, U0))
    Q.append(L("s_lshl_b32 s%d, s%d, 13\ns_add_u32 s%d, s%d, %d\ns_add_u32 s%d, s%d, 4096", sKld0, sC2, sKld0, sKld0, KVT_OFF, sKld1, sKld0))
    Q.append(L("s_mul_i32 s%d, s%d, %d\ns_lshl_b32 s%d, s%d, 13\ns_add_u32 s%d, s%d, s%d\ns_add_u32 s%d, s%d, %d", sHL, sWN, XS, sA, sWM, sHL, sHL, sA, sHL, sHL, XB + XS + 256))
    Q.append(L("v_lshlrev_b32 v%d, 6, v%d\nv_and_b32 v%d, 3, v%d\nv_lshl_add_u32 v%d, v%d, 4, v%d\nv_bfe_u32 v%d, v%d, 2, 2\nv_lshl_add_u32 v%d, v%d, 1, v%d", U0, U5, U1, vL, U0, U1, U0, U1, vL, U0, U1, U0))
    Q.append(L("s_lshl_b32 s%d, s%d, 11\ns_add_u32 s%d, s%d, s%d\ns_add_u32 s%d, s%d, 34\nv_add_u32 v%d, s%d, v%d", sA, sWM, sA, sA, sHS, sA, sA, U0, sA, U0) + "\n" + stash(aHsrc, U0))
    Q.append(("mark", "q1"))
    Q.append(L("v_lshrrev_b32 v%d, 7, v0\nv_mul_u32_u24 v%d, 4608, v%d\nv_and_b32 v%d, 127, v0\nv_lshl_add_u32 v%d, v%d, 2, v%d\nv_add_u32 v%d, %d, v%d\nv_mov_b32 v%d, 0", U3, U3, U3, U4, U3, U4, U3, U3, KVR + 4096, U3, U4))
    Q.append(DS("ds_write_b32 v%d, v%d" % (U3, U4), "kvw"))
    Q.append(L("v_lshrrev_b32 v%d, 2, v%d\nv_lshl_add_u32 v%d, v%d, 1, v%d\nv_and_b32 v%d, 3, v%d\nv_lshlrev_b32 v%d, 6, v%d", U0, U7, U0, U5, U0, U3, U7, U3, U3))
    Q.append(L("s_mul_i32 s%d, s%d, %d\ns_lshl_b32 s%d, s%d, 10\ns_add_u32 s%d, s%d, s%d\ns_add_u32 s%d, s%d, %d", sA, sWN, XS, sC, sWM, sB, sA, sC, sB, sB, XB + XS))
    for half, dst in ((0, aCA0), (1, aCA1)):
        if half: Q.append(L("v_add_u32 v%d, 1, v%d", U0, U0))
        Q.append(L("v_lshrrev_b32 v%d, 3, v%d\nv_lshlrev_b32 v%d, 8, v%d\nv_and_b32 v%d, 7, v%d\nv_lshl_add_u32 v%d, v%d, 3, v%d", U4, U0, U4, U4, U1, U0, U4, U1, U4))
        Q.append(L("v_add3_u32 v%d, v%d, v%d, s%d", U4, U4, U3, sB) + "\n" + stash(dst, U4))
    Q.append(L("s_mul_i32 s%d, s%d, 4608\ns_add_u32 s%d, s%d, %d\ns_lshl_b32 s%d, s%d, 8\ns_add_u32 s%d, s%d, s%d\ns_add_u32 s%d, s%d, 480", sA, sWN, sA, sA, KVR, sC, sWM, sB, sA, sC, sB, sB))
    Q.append(L("v_lshlrev_b32 v%d, 5, v%d\nv_sub_u32 v%d, s%d, v%d\nv_lshl_add_u32 v%d, v%d, 4, v%d", U4, U7, U0, sB, U4, U0, U5, U0) + "\n" + stash(aCB, U0))
    Q.append(L("s_lshl_b32 s%d, s%d, 3\ns_sub_u32 s%d, s%d, s%d\ns_add_u32 s%d, s%d, %d", sC, sC, sB, sA, sC, sB, sB, 4088 - 1536))
    Q.append(L("v_sub_u32 v%d, s%d, v%d\nv_lshlrev_b32 v%d, 3, v%d\nv_sub_u32 v%d, v%d, v%d", U0, sB, U4, U4, U5, U0, U0, U4) + "\n" + stash(aCD, U0))
    Q.append(("mark", "q2"))
    Q.append(L("v_lshlrev_b32 v%d, 6, v%d\nv_lshl_add_u32 v%d, v%d, 4, v%d", U0, U7, U0, U5, U0) + "\n" + stash(aZst, U0))
    Q.append(L("s_lshl_b32 s%d, s%d, 11\ns_add_u32 s%d, s%d, s%d\ns_add_u32 s%d, s%d, %d", sA, sWM, sZst, sHS, sA, sZst, sZst, Z_OFF))
    Q.append(L("s_mul_i32 s%d, s%d, %d\ns_lshr_b32 s%d, s%d, 5\ns_add_u32 s%d, s%d, s%d\ns_add_u32 s%d, s%d, %d", sA, sWM, 448 * 128, sZfl, sHS, sZfl, sZfl, sA, sZfl, sZfl, ZF_OFF))
    Q.append(L("s_lshl_b32 s%d, s%d, 1\ns_add_u32 s%d, s%d, s%d\ns_lshl_b32 s%d, s%d, 1\ns_add_u32 s%d, s%d, s%d", sA, sMT, sA, sA, sWN, sA, sA, sA, sA, sFG0))
    Q.append(L("s_lshl_b32 s%d, s%d, 1\ns_add_u32 s%d, s%d, s%d", sB, sDT, sB, sB, sWM))
    Q.append(L("s_lshl_b32 s%d, s%d, 17\ns_lshr_b32 s%d, s%d, 4\ns_lshl_b32 s%d, s%d, 10\ns_add_u32 s%d, s%d, s%d", sZld, sB, sC, sA, sC, sC, sZld, sZld, sC))
    Q.append(L("s_and_b32 s%d, s%d, 7\ns_lshl_b32 s%d, s%d, 7\ns_add_u32 s%d, s%d, s%d\ns_and_b32 s%d, s%d, 8\ns_add_u32 s%d, s%d, s%d\ns_add_u32 s%d, s%d, %d",
               sC, sA, sC, sC, sZld, sZld, sC, sC, sA, sZld, sZld, sC, sZld, sZld, Z_OFF))
    Q.append(L("s_lshl_b32 s%d, s%d, 9\ns_add_u32 s%d, s%d, %d", sSt2, sA, sSt2, sSt2, ST2_OFF))
    Q.append(L("s_and_b32 s%d, s%d, 0xfffffffe\ns_mul_i32 s%d, s%d, %d\ns_mul_i32 s%d, s%d, %d\ns_sub_u32 s%d, %d, s%d", sC, sA, sHbase, sC, 112 * 1024, sHB, sFG0, 112 * 1024, sHA, 112 * 1024, sHB))
    Q.append(L("s_mul_i32 s%d, s%d, %d\ns_lshl_b32 s%d, s%d, 6\ns_add_u32 s%d, s%d, s%d", sA, sA, 32 * 896, sC, sB, sA, sA, sC))
    Q.append(L("v_mul_u32_u24 v%d, 896, v%d\nv_lshlrev_b32 v%d, 4, v%d\nv_add3_u32 v%d, v%d, v%d, s%d", U0, U6, U1, U2, U0, U0, U1, sA) + "\n" + stash(aOo, U0))
    Q.append(L("s_lshr_b32 s%d, s%d, 3\ns_mul_i32 s%d, s%d, 448\ns_lshl_b32 s%d, s%d, 5\ns_add_u32 s%d, s%d, s%d", sA, sMT, sA, sA, sC, sB, sA, sA, sC))
    Q.append(L("v_add_lshl_u32 v%d, v%d, s%d, 7", U0, U6, sA) + "\n" + stash(aPollZ, U0))
    Q.append(L("v_lshlrev_b32 v%d, 15, v%d\nv_lshrrev_b32 v%d, 2, v%d\nv_lshl_add_u32 v%d, v%d, 4, v%d\nv_and_b32 v%d, 3, v%d\nv_lshl_add_u32 v%d, v%d, 1, v%d", U0, U2, U1, U6, U0, U1, U0, U1, U6, U0, U1, U0) + "\n" + stash(aZld, U0))
    Q.append(L("v_lshlrev_b32 v%d, 10, v%d\nv_lshl_add_u32 v%d, v%d, 4, v%d\nv_add_u32 v%d, s%d, v%d", U0, U2, U0, U6, U0, U0, sWL, U0) + "\n" + stash(aRr, U0))
    Q.append(L("s_lshl_b32 s%d, s%d, 2\ns_add_u32 s%d, s%d, s%d\ns_mul_i32 s%d, s%d, 3072\ns_add_u32 s%d, s%d, %d", sA, sC2, sA, sA, sWV, sPld, sA, sPld, sPld, PX_OFF))
    Q.append(L("s_xor_b32 s%d, s%d, 4\ns_mul_i32 s%d, s%d, 3072\ns_add_u32 s%d, s%d, %d", sA, sA, sPst, sA, sPst, sPst, PX_OFF))
    Q.append(L("s_mov_b32 s%d, %d\ns_mov_b32 s%d, %d", sHF, HF_OFF, sZF, ZF_OFF))
    Q.append(L("s_lshl_b32 s%d, s%d, 1\ns_add_u32 s%d, s%d, s%d", sB, sFG0, sB, sB, sWM))
    Q.append(L("s_mul_i32 s%d, s%d, %d\ns_add_u32 s%d, s%d, s%d\ns_add_u32 s%d, s%d, %d\ns_add_u32 s%d, s%d, s%d",
               sC, sB, 28 * 1024, sHbase, sHbase, sC, sHlim, sHbase, 28 * 1024, sHcur, sHbase, sHcur))
    Q.append(L("s_mul_i32 s%d, s%d, 7\ns_lshl_b32 s%d, s%d, 1\ns_add_u32 s%d, s%d, s%d\ns_lshl_b32 s%d, s%d, 5\ns_add_u32 s%d, s%d, s%d", sA, sB, sC, sMT, sC, sC, sWN, sC, sC, sA, sA, sC))
    Q.append(L("v_min_u32 v%d, 6, v%d\nv_add_lshl_u32 v%d, v%d, s%d, 7", U0, vL, U0, U0, sA) + "\n" + stash(aPollH, U0))
    kvl.append(VM("buffer_load_ushort v%d, v%d, %s, s%d offen" % (HB0, TAP, srd(SRD_HK), sHS), "prep"))
    kvl.append(VM("buffer_load_ushort v%d, v%d, %s, s%d offen" % (HB1, TAP + 1, srd(SRD_HK), sHS), "prep"))
    kvl.append(VM("buffer_load_dword v%d, v%d, %s, s%d offen %s" % (77, TAP + 2, srd(SRD_HK), sHS, Cfg.nt_hk), "prep"))
    qparts = [[]]
    for it in Q:
        if isinstance(it, tuple): qparts.append([])
        else: flatten(it, qparts[-1])
    P.append([WVM(("W", 0), ("X", 0)), I("s_barrier")])
    P.append(frag_reads(0))
    P.append(stamp("b0"))

    KN = 20
    A_Q = 16 * KN
    A_CONV = 2 * 232
    def barr(i): return 16 * (2 * i - 1)
    def qa(q, i): return A_Q + 36 * q + 2 * i
    def conv_anchor(g): return A_CONV + g
    T_B11 = qa(0, Cfg.b11); T_BC = qa(3, Cfg.bc); T_BW = conv_anchor(Cfg.bw)
    aX = 160
    sS = Stream("setup")
    sS.addall(qparts[0], after=("prepdone", 2), by=barr(9) - 4)
    sS.addall(qparts[1], by=T_BC - 44)
    sS.addall(qparts[2], by=A_CONV - 10)
    cur = []
    for j in range(7):
        cur.append(I("s_mov_b32 s%d, s%d" % (sG[j], sHcur)))
        if j < 6: cur += [I("s_add_u32 s%d, s%d, 4096" % (sHcur, sHcur)), [I("s_cmp_eq_u32 s%d, s%d" % (sHcur, sHlim)), I("s_cselect_b32 s%d, s%d, s%d" % (sHcur, sHbase, sHcur))]]
    sS.addall(cur, by=A_CONV - 4)
    sF = Stream("frag", cap=2)
    for s in range(KN - 1):
        sF.addall(frag_reads(s + 1), at=16 * s, by=16 * s + 12)
    def xread(ks, nt): return DS("ds_read_b128 %s, v%d offset:%d" % (ar(aX + 8 * (ks - KN) + 4 * nt, 4), vB[ks & 3], ((ks >> 2) % 3) * XS + nt * 4096), ("FX", ks))
    def aread(i):
        q, ks = i >> 3, KN + (i & 7); slot = (ks >> 1) % 6
        base = vA[q] if slot < 3 else vA2[q]
        return [DS("ds_read_b64_tr_b16 %s, v%d offset:%d" % (vr(AF + 4 * (i & 7) + 2 * p, 2), base, (slot % 3) * 16384 + (ks & 1) * 4096 + p * 1024), ("FA", i)) for p in range(2)]
    def use_tick(i): return qa(i >> 3, 2 * (i & 7))
    for i in range(32):
        ea = barr(10) if i < 4 else (A_Q - 16 + 4 * (i - 4) + 4 if i < 8 else use_tick(i - 8) + 4)
        at = aread(i)
        if i < 8: at = [xread(KN + i, 0), xread(KN + i, 1)] + at
        by = use_tick(i) - 6
        if i < 8: by = min(by, T_B11 - 4)
        if i >= 24: by = min(by, T_BC - 4)
        sF.addall(at, at=ea, by=max(by, ea))
    sD = Stream("dma")
    def addgrp(g, at, sp, key=None, by=None):
        at_, adv = g
        sD.add(at_[0], at=at, space=max(sp - 2, 0)); sD.add(at_[1])
        for i, a in enumerate(at_[2:]): sD.add(a, space=sp, key=key if i == 2 else None, by=by)
        for a in adv: sD.add(a)
    sR = Stream("wdread", cap=2)
    vHs = vX[0]
    WD_AT = [barr(9), barr(10), T_B11, T_BC, T_BC, T_BC, T_BC]
    for n, (kind, i) in enumerate(Cfg.order):
        sp = 2 if n < 2 else (Cfg.sp1 if n < Cfg.kx else Cfg.sp2)
        if kind == "W": addgrp(w_group(i), barr(i - 5) if i >= 6 else 0, sp, key=("w", i), by=barr(min(i, 10)) - Cfg.minlead)
        elif kind == "X": addgrp(x_group(i), barr(2 * (i - 3) + 2) if i >= 3 else 0, sp, by=barr(min(2 * i, 10)) - Cfg.minlead)
        elif kind == "K": sD.addall(kvl, key="kvl")
        elif kind == "H":
            sD.add(unstash(vHs, aHsrc), at=T_B11 - 8)
            for q in range(8):
                sD.add([I("s_add_u32 m0, s%d, %d" % (sHL, 1024 * q)), I("s_mov_b32 s%d, %d" % (sZt0, 256 * q))], at=T_B11)
                sD.add(VM("buffer_load_dwordx4 v%d, %s, s%d offen lds" % (vHs, srd(SRD_HK), sZt0), "hdma"), space=0, by=qa(1, 2))
        else:
            addgrp(wd_group(i), WD_AT[i], sp, by=(T_BC if i < 3 else T_BW) - Cfg.minlead)
    for i in range(7):
        sR.addall(wd_reads(i), at=conv_anchor(0) if i < 3 else T_BW, by=T_BW - 2 if i < 3 else conv_anchor(143))
    sP = Stream("prep")
    def unp(dst, src, hi): return I("v_and_b32 v%d, 0xffff0000, v%d" % (dst, src)) if hi else I("v_lshlrev_b32 v%d, 16, v%d" % (dst, src))
    at = [WVM("prep")] + tag_from_epoch(vEp)
    at += [I("v_lshl_or_b32 v%d, v%d, 16, v%d" % (HB0, HB1, HB0)), DS("ds_write_b32 v78, v%d" % HB0, "kvw")]
    for b in range(2):
        for i in range(4): at.append(unp(TAP + i, SKR + 2 * b + (i >> 1), i & 1))
        for a in range(11): at.append(unp(KFv + a, KR + a, b))
        out = OHI if b else OLO
        for w in range(4):
            for (o, R) in ((7 - 2 * w, R0), (6 - 2 * w, R1)):
                at.append(I("v_mul_f32 v%d, v%d, v%d" % (R, KFv + o, TAP + 3)))
                for i in (2, 1, 0): at.append(I("v_fmac_f32 v%d, v%d, v%d" % (R, KFv + o + 3 - i, TAP + i)))
                at.append(unp(VF, VR_ + o, b))
                at.append(I("v_mul_f32 v%d, v%d, v%d" % (R, R, VF)))
            at.append(I("v_cvt_pk_bf16_f32 v%d, v%d, v%d" % (out + w, R0, R1)))
    at.append(unstash(R0, aPsw))
    at.append(DS("ds_write_b128 v%d, %s" % (R0, vr(OLO, 4)), "psw"))
    at.append(DS("ds_write_b128 v%d, %s offset:128" % (R0, vr(OHI, 4)), "psw"))
    B_psw = Cfg.b_psw
    sP.addall(at, after=("kvl", Cfg.prep_lag), by=barr(B_psw) - 2)
    at = [unstash(R1, aPsr), DS("ds_read_b128 %s, v%d" % (vr(36, 4), R1), "psr"), DS("ds_read_b128 %s, v%d offset:4608" % (vr(40, 4), R1), "psr"),
          unstash(R0, aKst)]
    sP.addall(at, at=barr(B_psw), by=barr(B_psw) + 4)
    sP.add([WDS("psr"), VM("buffer_store_dwordx4 %s, v%d, %s, s%d offen sc1" % (vr(36, 4), R0, srd(SRD_WS), sKst0), "kvst")], space=6, by=barr(B_psw) + 12)
    sP.add(VM("buffer_store_dwordx4 %s, v%d, %s, s%d offen sc1" % (vr(40, 4), R0, srd(SRD_WS), sKst1), "kvst"), by=barr(B_psw) + 14, key="prepdone")
    B_kvst = B_psw + Cfg.kv_ack
    assert B_kvst <= 10
    sP.add(flag_store(sKfl, []), at=barr(B_kvst), by=barr(B_kvst) + 2)
    CSF, MB, vPk, vPo, vCo, vMo, KV, vKw, vU0, vU1, vU2 = 32, 48, 56, 57, 58, 59, 62, 60, 71, 72, 61
    assert min(Cfg.cs_at, Cfg.polls_at) > barr(B_psw + 1) + 4
    sQ = Stream("cs")
    ldC = ["buffer_load_dwordx4 %s, v%d, %s, s%d offen offset:%d sc1" % (vr(CSF + 4 * jj, 4), vCo, srd(SRD_WS), sCs, 512 * jj) for jj in range(4)]
    ldM = ["buffer_load_dwordx2 %s, v%d, %s, s%d offen offset:%d sc1" % (vr(MB + 4 * nt, 2), vMo, srd(SRD_WS), sMn, 256 * nt) for nt in range(2)]
    sQ.addall([I("v_and_b32 v%d, 511, v%d" % (vCo, vL16)), I("v_lshrrev_b32 v%d, 1, v%d" % (vMo, vCo))] + [VM(x, "cs") for x in ldC + ldM], at=Cfg.cs_at - 2, by=Cfg.cs_at + 8)
    cmp_ops = ["v_xor_b32 v%d, s%d, v%d" % (vU0, sTAG, CSF + 3), "v_xor_b32 v%d, s%d, v%d" % (vU1, sTAG, CSF + 7), "v_xor_b32 v%d, s%d, v%d" % (vU2, sTAG, CSF + 11),
               "v_or3_b32 v%d, v%d, v%d, v%d" % (vU0, vU0, vU1, vU2), "v_xor_b32 v%d, s%d, v%d" % (vU1, sTAG, CSF + 15), "v_xor_b32 v%d, s%d, v%d" % (vU2, sTAG, MB + 1),
               "v_or3_b32 v%d, v%d, v%d, v%d" % (vU0, vU0, vU1, vU2), "v_xor_b32 v%d, s%d, v%d" % (vU1, sTAG, MB + 5), "v_or_b32 v%d, v%d, v%d" % (vU0, vU0, vU1),
               "v_cmp_ne_u32 vcc, 0, v%d" % vU0]
    c1, c2 = check("C", ldC + ldM, cmp_ops, ["cs"])
    T_CORR = qa(0, 16)
    sQ.addall(c1, at=T_CORR - 22, by=T_CORR - 14)
    sQ.add(c2, by=T_CORR - 14)
    at = [I("v_mov_b32 v%d, 0" % (CSF + 4 * jj + 3)) for jj in range(4)]
    for nt in range(2):
        b = MB + 4 * nt
        at.append(I("v_xor_b32 v%d, 0x80000000, v%d" % (b, b)))
        at.append([I("v_cmp_gt_u32 vcc, 32, v%d" % vL), I("v_mov_b32 v%d, 0" % (b + 2)), I("v_mov_b32 v%d, 0" % (b + 3)), I("v_cndmask_b32 v%d, 0, v%d, vcc" % (b, b))])
        at.append(I("v_lshrrev_b32 v%d, 16, v%d" % (b + 1, b)))
        at.append(I("v_or_b32 v%d, v%d, v%d" % (b, b, b + 1)))
    sQ.addall(at, by=T_CORR - 6)
    sK = Stream("kv")
    ldK = "buffer_load_dword v%d, v%d, %s, s%d offen sc1" % (vPk, vPo, srd(SRD_WS), sKF)
    sK.addall([unstash(vPo, aPollK), VM(ldK, "pollK")], at=Cfg.polls_at - 2, by=Cfg.polls_at + 2)
    c1, c2 = check("K", [ldK], ["v_cmp_ne_u32 vcc, s%d, v%d" % (sTAG, vPk)], ["pollK"])
    pc = Cfg.polls_at + Cfg.polls_lag
    sK.add([c1, c2], at=pc, by=pc)
    sK.add(I("v_lshlrev_b32 v%d, 4, v0" % vKw))
    sK.add(VM("buffer_load_dwordx4 %s, v%d, %s, s%d offen sc1" % (vr(KV, 4), vKw, srd(SRD_WS), sKld0), "kvld"))
    sK.add(VM("buffer_load_dwordx4 %s, v%d, %s, s%d offen sc1" % (vr(KV + 4, 4), vKw, srd(SRD_WS), sKld1), "kvld"), by=pc + 4)
    sK.add(I("v_add_u32 v%d, %d, v%d" % (vKw, KVR, vKw)))
    sK.add([WVM("kvld"), DS("ds_write_b128 v%d, %s" % (vKw, vr(KV, 4)), "kvw")], at=min(pc + Cfg.kv_lag, T_BC - 10), by=T_BC - 8)
    sK.add(DS("ds_write_b128 v%d, %s offset:4608" % (vKw, vr(KV + 4, 4)), "kvw"), by=T_BC - 8)
    sE = Stream("epi")
    vCA0, vCA1, vCB, vCD, vOo, vDv, vHo, vHp, vHt, vHA, vHB = 14, 15, 16, 17, 19, 20, 21, 13, 18, 10, 11
    for tl in range(8):
        jj, nt = tl >> 1, tl & 1
        a = ACC + tl * 16
        at = [I("v_mul_f32 v%d, v%d, v%d" % (a + r, a + r, a + r + 8)) for r in range(8)]
        at += [I("v_cvt_pk_bf16_f32 v%d, v%d, v%d" % (a + 8 + w, a + 2 * w, a + 2 * w + 1)) for w in range(4)]
        at.append(VM("buffer_store_dwordx4 %s, v%d, %s, s%d offen offset:%d sc1" % (vr(a + 8, 4), vL16, srd(SRD_WS), sHst1 if nt else sHst0, jj * 1024), ("hst", jj == 3)))
        ea = qa(jj, 16 + nt) + 4
        if ea >= A_CONV: ea += 1
        sE.addall(at, at=ea, by=ea + 16 if jj < 3 else conv_anchor(Cfg.epi_by), key=("epi", tl))
    def touch(first):
        at = [I("v_and_b32 v%d, 31, v%d" % (vHt, vL)), I("v_min_u32 v%d, 23, v%d" % (vHt, vHt))] if first else [I("v_and_b32 v%d, 7, v%d" % (vHt, vL)), I("v_add_u32 v%d, 24, v%d" % (vHt, vHt))]
        at += [I("v_lshlrev_b32 v%d, 7, v%d" % (vHt, vHt)), I("v_lshrrev_b32 v%d, 5, v%d" % (vDv, vL)),
               I("v_mul_u32_u24 v%d, %d, v%d" % (vDv, 112 * 1024, vDv)), I("v_add_u32 v%d, v%d, v%d" % (vHt, vHt, vDv))]
        return at, VM("buffer_load_dword v%d, v%d, %s, s%d offen sc1" % (12, vHt, srd(SRD_WS), sHst0), "htouch")
    def hflag(word, tags):
        return [WVM(*tags), VM("buffer_store_dword a%d, v%d, %s, s%d offen offset:%d sc1" % (aTag, vFlag0, srd(SRD_WS), sHfl, 4 * word), "flag")]
    for word, gap in ((0, Cfg.hflag0), (1, Cfg.hflag1)):
        ta, tb = touch(word == 0)
        if Cfg.htouch: sE.addall(ta)
        sE.add(hflag(word, [("hst", word == 1)]), at=conv_anchor(gap), by=conv_anchor(gap))
        if Cfg.htouch: sE.add(tb, by=conv_anchor(gap + 1), key=("touch", word))
        elif word: sE.add(I("s_nop 0"), key=("touch", 1))
    CACC = 32
    def cA(dd, r): return 128 + 64 * (dd & 1) + 8 * r
    def cB(dd, m): return 128 + 64 * (dd & 1) + 8 * m + 4
    def conv_reads(dd, r):
        at = [DS("ds_read_b64 %s, v%d offset:%d" % (vr(cA(dd, r) + half * 2, 2), base, 256 * dd + 2048 * r), ("C", dd, r)) for half, base in ((0, vCA0), (1, vCA1))]
        at.append(DS("ds_read_b128 %s, v%d offset:%d" % (vr(cB(dd, r), 4), vCB, 3584 - 512 * r + 64 * dd), ("C", dd, r)))
        return at
    pairs = sorted([(r, m) for r in range(8) for m in range(8 - r)], key=lambda p: (max(p), p))
    first_use = {}
    for i, p in enumerate(pairs): first_use.setdefault(max(p), i)
    sC_ = Stream("convrd", cap=3)
    sC_.addall([unstash(vCA0, aCA0), unstash(vCA1, aCA1), unstash(vCB, aCB), unstash(vCD, aCD)], at=T_BC - 40, by=T_BC - 2, after=(("w", 13), 1))
    for r in range(8): sC_.addall(conv_reads(0, r), at=T_BC, after=(("epi", r >> 1), 1), by=conv_anchor(first_use[r] - 6))
    for r in range(8): sC_.addall(conv_reads(1, r), after=(("epi", 4 + (r >> 1)), 1), by=conv_anchor(36 + first_use[r] - 8))
    for dd in (2, 3):
        for r in range(8): sC_.addall(conv_reads(dd, r), at=conv_anchor(36 * (dd - 1)), by=conv_anchor(36 * dd + first_use[r] - 8))
    XE = 2
    sM = Stream("misc")
    sM.add(unstash(vOo, aOo), at=conv_anchor(Cfg.xe_at))
    sM.add(VM("buffer_load_dwordx4 %s, v%d, %s, 0 offen" % (vr(XE, 4), vOo, srd(SRD_X)), "xe"))
    sM.add(VM("buffer_load_dwordx4 %s, v%d, %s, 0 offen offset:32" % (vr(XE + 4, 4), vOo, srd(SRD_X)), "xe"), space=2)
    sM.add([I("s_lshr_b32 s%d, s%d, 11" % (sZt1, sHS)), I("v_mov_b32 v%d, 0" % vHo)])
    sM.add(VM("buffer_load_ushort v%d, v%d, %s, s%d offen" % (0, vHo, srd(SRD_DD), sZt1), "xe"), space=2)
    sM.addall([unstash(vHo, aPollH), I("v_add_u32 v%d, s%d, v%d" % (vHA, sHA, vL16)), I("v_add_u32 v%d, s%d, v%d" % (vHB, sHB, vL16))])
    ldH = ["buffer_load_dword v%d, v%d, %s, s%d offen offset:%d sc1" % (vHp, vHo, srd(SRD_WS), sHF, 4 * w) for w in range(2)]
    sM.add(VM(ldH[0], "pollH"), at=conv_anchor(Cfg.hpoll), by=conv_anchor(Cfg.hpoll))
    NP = 32
    def hreg(f): return vr(64 + 4 * (f % NP), 4)
    def fidx(f): return f // 28, (f % 28) // 7, f % 7
    def hload(f):
        jt, jj, j = fidx(f)
        return VM("buffer_load_dwordx4 %s, v%d, %s, s%d offen offset:%d sc1" % (hreg(f), vHB if jt else vHA, srd(SRD_WS), sG[j], jj * 1024), ("H", f))
    hc1, hc2 = check("H", [ldH[0]], ["v_cmp_ne_u32 vcc, s%d, v%d" % (sTAG, vHp)], ["pollH"])
    nh = 0
    if Cfg.hcheck < 144:
        sM.add([hc1, hc2] + stamp("hok"), at=conv_anchor(Cfg.hcheck), by=conv_anchor(Cfg.hcheck))
        while nh < 16 and Cfg.hcheck + 1 + 3 * nh < 142:
            sM.add(hload(nh), space=3 if nh else 0, by=conv_anchor(143)); nh += 1

    SC = Sched([sF, sC_, sE, sD, sQ, sK, sM, sR, sS, sP])
    usage = []
    def emit_gap(now, budget, pre=0.0):
        o, u = SC.fill(now, budget - pre)
        P.append(o); usage.append(u + pre)
    def barrier(w, wd):
        o = [WVM(*w)] if w else []
        if wd: o.append(WDS(*wd))
        o.append(I("s_barrier"))
        return o
    def barrier_i(i):
        w = [("W", i)]; wd = []
        if i % 2 == 0: w.append(("X", i // 2))
        if i == 10: w += [("W", 11), ("W", 12), ("W", 13), ("X", 6)]
        if i == B_kvst: w.append("kvst")
        if i == B_psw: wd.append("psw")
        return barrier(w, wd)
    def mf32(a, A_, B_, first): return "v_mfma_f32_32x32x16_bf16 %s, %s, %s, %s" % (vr(a, 16), A_, B_, "0" if first else vr(a, 16))
    for s in range(KN):
        buf = s & 1
        P.append(WDS(("F", s)))
        if s in Cfg.stamps_k: P.append(stamp("k%d" % s))
        for m in range(8):
            jj, nt = m >> 1, m & 1
            P.append(mf32(ACC + m * 16, vr(AF + buf * 16 + jj * 4, 4), vr(BF + buf * 8 + nt * 4, 4), s == 0))
            pre = 1.0 if m == 7 else 0.0
            if m == 0 and (s & 1):
                P.append(barrier_i((s + 1) // 2)); pre = 2.0
            emit_gap(16 * s + 2 * m, Cfg.b32, pre)
    P.append(stamp("k20"))
    for q in range(4):
        for i in range(18):
            nt = i & 1; a = ACC + (2 * q + nt) * 16
            if i < 16:
                fi = 8 * q + (i >> 1)
                if nt == 0: P.append(WDS(("FA", fi), ("FX", KN + (i >> 1))))
                P.append(mf32(a, vr(AF + 4 * (fi & 7), 4), ar(aX + 8 * (i >> 1) + 4 * nt, 4), False))
            else: P.append(mf32(a, vr(CSF + q * 4, 4), vr(MB + nt * 4, 4), False))
            pre = 1.0 if nt else 0.0
            if qa(q, i) == T_B11: P.append(barrier([], [("FX", 27)])); pre += 2
            if qa(q, i) == T_BC: P.append(barrier(["hdma", ("WD", 0), ("WD", 1), ("WD", 2)], ["kvw", ("FA", 31)])); pre += 2
            emit_gap(qa(q, i), Cfg.b32, pre)
        if q == 0: P.append(stamp("q0"))
    P.append(stamp("g1end"))
    gi = 0
    for dd in range(4):
        seen = set()
        for i, (r, m) in enumerate(pairs):
            if first_use[max(r, m)] == i: P.append(WDS(("C", dd, max(r, m))))
            a = CACC + (r + m) * 4
            P.append("v_mfma_f32_16x16x32_bf16 %s, %s, %s, %s" % (vr(a, 4), vr(cA(dd, r), 4), vr(cB(dd, m), 4), "0" if (dd == 0 and (r + m) not in seen) else vr(a, 4)))
            seen.add(r + m)
            if conv_anchor(gi) == T_BW: P.append(barrier([("WD", u) for u in range(3, 7)], [("WR", 2)]))
            emit_gap(conv_anchor(gi), Cfg.b16)
            gi += 1
    assert SC.done(), SC.left()
    Cfg._usage1 = usage; Cfg._log1 = SC.log
    P.append(stamp("convend"))

    CM, CP, CK, vT0, vT1, vT2 = 192, 208, 224, 22, 23, 24
    P.append(L("v_add_u32 v%d, s%d, v%d\nv_xor_b32 v%d, 4096, v%d", vT0, sWL, vL16, vT1, vT0))
    P.append(L("v_add_u32 v%d, %d, v%d\nv_add_u32 v%d, %d, v%d", 234, CEX, vT0, 235, CEX, vT1))
    for k in range(4): P.append(DS("ds_read_b64 %s, v%d offset:%d" % (vr(CK + 2 * k, 2), vCD, 512 * (3 - k)), "cxk"))
    P.append(unstash(vT2, aZst))
    P.append(L("s_cmp_eq_u32 s%d, 0\ns_cbranch_scc0 L_cx1", sWM))
    for k in range(4): P.append(DS("ds_write_b128 v234, %s offset:%d" % (vr(CACC + 16 + 4 * k, 4), 1024 * k), "cxw"))
    for k in range(16): P.append("v_mov_b32 v%d, v%d" % (CM + k, CACC + k))
    P.append(RAW("s_branch L_cx2\nL_cx1:"))
    for k in range(4): P.append(RAW("ds_write_b128 v234, %s offset:%d" % (vr(CACC + 4 * k, 4), 1024 * k)))
    for k in range(16): P.append(RAW("v_mov_b32 v%d, v%d" % (CM + k, CACC + 16 + k)))
    P.append(RAW("L_cx2:"))
    if Cfg.hcheck >= 144:
        P.append([hc1, hc2]); P.append(stamp("hok"))
    n0 = nh
    while nh < min(n0 + Cfg.nfirst, 21): P.append(hload(nh)); nh += 1
    P.append([WDS("cxw"), I("s_barrier")])
    for k in range(4): P.append(DS("ds_read_b128 %s, v235 offset:%d" % (vr(CP + 4 * k, 4), 1024 * k), "cxr"))
    P.append([WVM("xe"), I("v_lshlrev_b32 v0, 16, v0")])
    for k in range(4):
        lo, hi = CK + 2 * k, CK + 1 + 2 * k
        P.append("v_and_b32 v232, 0xffff0000, v%d\nv_fmac_f32 v%d, v232, v0" % (hi, CM + 4 * k + 0))
        P.append("v_lshlrev_b32 v233, 16, v%d\nv_fmac_f32 v%d, v233, v0" % (hi, CM + 4 * k + 1))
        P.append("v_and_b32 v232, 0xffff0000, v%d\nv_fmac_f32 v%d, v232, v0" % (lo, CM + 4 * k + 2))
        P.append("v_lshlrev_b32 v233, 16, v%d\nv_fmac_f32 v%d, v233, v0" % (lo, CM + 4 * k + 3))
        if nh < 21: P.append(hload(nh)); nh += 1
    P.append(WDS("cxr"))
    ZO = 48
    for k in range(4):
        for r in range(4): P.append("v_add_f32 v%d, v%d, v%d" % (CM + 4 * k + r, CM + 4 * k + r, CP + 4 * k + r))
        for w in range(2): P.append("v_cvt_pk_bf16_f32 v%d, v%d, v%d" % (ZO + 2 * k + w, CM + 4 * k + 2 * w, CM + 4 * k + 2 * w + 1))
    if Cfg.h2_early: P.append(VM(ldH[1], "pollH2"))
    for j in range(2): P.append(VM("buffer_store_dwordx4 %s, v%d, %s, s%d offen offset:%d sc1" % (vr(ZO + 4 * j, 4), vT2, srd(SRD_WS), sZst, 1024 * j), "zst"))
    P.append(stamp("zst"))

    ACA, ACB, ZV, XF, ST = 192, 224, 32, 48, 26
    vZp, vZo, vSo, vRr = 14, 15, 16, 17
    RR, GR = 160, 176
    sH = Stream("hload")
    g1, g2_ = check("H2", [ldH[1]], ["v_cmp_ne_u32 vcc, s%d, v%d" % (sTAG, vHp)], ["pollH2"])
    if not Cfg.h2_early: sH.add(VM(ldH[1], "pollH2"), at=Cfg.h2poll)
    for f in range(nh, 56):
        if f == 21: sH.add([g1, g2_], at=Cfg.h2check, by=2 * f - 10)
        ea = 2 * (f - NP) + 2 if f >= NP else 0
        sH.add(hload(f), at=ea, space=Cfg.hsp, by=2 * f - 6)
    sZ = Stream("z")
    sZ.add(flag_store(sZfl, ["zst"]), at=Cfg.zflag, by=Cfg.zflag)
    ldZ = "buffer_load_dword v%d, v%d, %s, s%d offen sc1" % (vZp, vZo, srd(SRD_WS), sZF)
    ldS = "buffer_load_dwordx4 %s, v%d, %s, s%d offen sc1" % (vr(ST, 4), vSo, srd(SRD_WS), sSt2)
    sZ.addall([unstash(vZo, aPollZ), I("v_and_b32 v%d, 511, v%d" % (vSo, vL16))] + [I("v_mov_b32 v%d, 0" % (ZV + e)) for e in range(16)])
    sZ.add(VM(ldZ, "pollZ"), at=Cfg.zpoll)
    sZ.add(VM(ldS, "pollZ"))
    cmp_ops = ["v_xor_b32 v%d, s%d, v%d" % (vZp, sTAG, vZp), "v_xor_b32 v%d, s%d, v%d" % (ST + 3, sTAG, ST + 2),
               "v_or_b32 v%d, v%d, v%d" % (vZp, vZp, ST + 3), "v_cmp_ne_u32 vcc, 0, v%d" % vZp]
    c1, c2 = check("Z", [ldZ, ldS], cmp_ops, ["pollZ"])
    sZ.add([c1, c2], at=Cfg.zpoll + Cfg.zlag)
    sZ.add(unstash(vZo, aZld))
    for e in range(16):
        t = (sZt0, sZt1)[e & 1]
        sZ.add([I("s_add_u32 s%d, s%d, %d" % (t, sZld, (16 * (e >> 3) + (e & 7)) * 4096)),
                VM("buffer_load_short_d16_hi v%d, v%d, %s, s%d offen sc1" % (ZV + e, vZo, srd(SRD_WS), t), "zld")], by=108)
    sZ.add(I("v_mul_f32 v%d, v%d, v%d" % (ST, ST, ST + 1)))
    sZ.add(I("v_mul_f32 v%d, v%d, v%d" % (ST + 2, ST + 1, ST + 1)))
    sX = Stream("x")
    sX.addall([unp(XF + i, XE + (i >> 1), i & 1) for i in range(16)], at=8)
    sX.add(unstash(vRr, aRr))
    A_BAR = 56 + Cfg.bar_a
    assert A_BAR >= 64
    sX.addall([DS("ds_write_b128 v%d, %s offset:%d" % (vT1, vr(ACA + 16 + rq * 4, 4), REDA + rq * 1024), "rwa") for rq in range(4)], at=58, space=1, by=A_BAR - 3)
    sX.addall([DS("ds_read_b128 %s, v%d offset:%d" % (vr(ACA + 16 + rq * 4, 4), vT0, REDA + rq * 1024), "rra") for rq in range(4)], at=A_BAR, by=A_BAR + 1)
    def gpos(b, w): return b + (w // 3) * 4 + (w % 3)
    sX.addall([I("v_mov_b32 v%d, s%d" % (GR + 4 * k + 3, sTAG)) for k in range(3)])
    first = True
    for w in range(8):
        for i in (2 * w, 2 * w + 1):
            op = I("v_add_f32 v%d, v%d, v%d" % (ACA + i, ACA + i, ACA + 16 + i))
            if first: sX.add([WDS("rra"), op], space=2); first = False
            else: sX.add(op)
        sX.add(I("v_cvt_pk_bf16_f32 v%d, v%d, v%d" % (gpos(GR, w), ACA + 2 * w, ACA + 2 * w + 1)))
        if w % 3 == 2 or w == 7:
            k = w // 3
            sX.add(VM("buffer_store_dwordx4 %s, v%d, %s, s%d offen offset:%d sc1" % (vr(GR + 4 * k, 4), vL16, srd(SRD_WS), sPst, k * 1024), "pst"), by=A_BAR + 10)
    ldP = ["buffer_load_dwordx4 %s, v%d, %s, s%d offen offset:%d sc1" % (vr(ACA + 4 * k, 4), vL16, srd(SRD_WS), sPld, k * 1024) for k in range(3)]
    sX.addall([VM(x, "pld") for x in ldP], at=Cfg.pld, by=111)
    SC = Sched([sH, sX, sZ])
    usage = []
    for f in range(56):
        jt, jj, j = fidx(f)
        P.append(WVM(("H", f)))
        if f in Cfg.stamps_f: P.append(stamp("f%d" % f))
        for jd in range(2):
            a = (ACB if jt else ACA) + jd * 16
            P.append(mf32(a, ar(8 * (4 * j + jj) + 4 * jd, 4), hreg(f), f % 28 == 0))
            now = 2 * f + jd
            if now == A_BAR: P.append([WDS("rwa"), I("s_barrier")])
            emit_gap(now, Cfg.b32, 1.0 if jd else 0.0)
    assert SC.done(), SC.left()
    Cfg._usage2 = usage
    P.append(stamp("g2end"))
    fin = []
    for i in range(16):
        fin.append("v_fma_f32 v%d, v%d, v%d, -v%d" % (vZp, XF + i, ST + 1, ST))
        fin.append("v_fma_f32 v%d, v%d, v%d, v%d" % (ZV + i, vZp, ZV + i, XF + i))
    P.append(WVM("zld"))
    P.append(fin[:12])
    for rq in range(4): P.append(DS("ds_write_b128 v%d, %s offset:%d" % (vT1, vr(ACB + 16 + rq * 4, 4), REDB + rq * 1024), "rwb"))
    P.append(fin[12:])
    P.append([WDS("rwb"), I("s_barrier")])
    for kk in range(2):
        for hs in range(2):
            P.append(DS("ds_read_b128 %s, v%d offset:%d" % (vr(RR + kk * 8 + hs * 4, 4), vRr, REDB + kk * 2048 + hs * 512), "rrb"))
    cmp_ops = ["v_xor_b32 v%d, s%d, v%d" % (ACA + 4 * k + 3, sTAG, ACA + 4 * k + 3) for k in range(3)]
    cmp_ops += ["v_or3_b32 v%d, v%d, v%d, v%d" % (ACA + 3, ACA + 3, ACA + 7, ACA + 11), "v_cmp_ne_u32 vcc, 0, v%d" % (ACA + 3)]
    c1, c2 = check("P", ldP, cmp_ops, ["pld"])
    P.append([c1, c2])
    for i in range(16):
        P.append(unp(ACA + 16 + i, gpos(ACA, i >> 1), i & 1))
        P.append("v_add_f32 v%d, v%d, v%d" % (ACB + i, ACB + i, ACA + 16 + i))
    P.append("s_nop 1")
    for kk in range(2):
        for i in range(4): P.append("v_permlane32_swap_b32 v%d, v%d" % (ACB + 8 * kk + i, ACB + 8 * kk + 4 + i))
    P.append(WDS("rrb"))
    for kk in range(2):
        for i in range(8): P.append("v_add_f32 v%d, v%d, v%d" % (ACB + 8 * kk + i, ACB + 8 * kk + i, RR + 8 * kk + i))
        for i in range(8): P.append("v_fma_f32 v%d, v%d, v%d, v%d" % (ACB + 8 * kk + i, ACB + 8 * kk + i, ST + 2, ZV + 8 * kk + i))
        for w in range(4): P.append("v_cvt_pk_bf16_f32 v%d, v%d, v%d" % (64 + 4 * kk + w, ACB + 8 * kk + 2 * w, ACB + 8 * kk + 2 * w + 1))
        P.append(VM("buffer_store_dwordx4 %s, v%d, %s, 0 offen offset:%d" % (vr(64 + 4 * kk, 4), vOo, srd(SRD_OUT), 32 * kk), "out"))
    P.append(diag_tail())
    P.append("s_endpgm")
    return P
Cfg.order = [("W", 2), ("X", 1), ("K", 0), ("W", 3), ("W", 4), ("X", 2), ("W", 5), ("W", 6), ("X", 3), ("W", 7), ("W", 8), ("X", 4), ("W", 9),
             ("W", 10), ("X", 5), ("W", 11), ("W", 12), ("X", 6), ("W", 13), ("D", 0), ("D", 1), ("H", 0), ("D", 2), ("D", 3), ("D", 4), ("D", 5), ("D", 6)]
Cfg.minlead = 24; Cfg.prep_lag = 48; Cfg.htouch = True; Cfg.hcheck = 110; Cfg.pld = 104; Cfg.nws = 6
Cfg.q_pro = 0; Cfg.b11 = 8; Cfg.bc = 8; Cfg.bw = 96; Cfg.cs_at = 290; Cfg.hflag0 = 40; Cfg.hflag1 = 100; Cfg.xe_at = 44
Cfg.h2_early = True; Cfg.h2poll = 0; Cfg.h2check = 14
Cfg.epi_prio = True; Cfg.stamps_f = (); Cfg.b_psw = 6; Cfg.kv_ack = 2; Cfg.epi_by = 8; Cfg.hcheck_early = True; Cfg.hsp = 1; Cfg.bar_a = 10

def gen_helper():
    stamp_n[0] = 0
    P = [WDS0()]
    if Cfg.diag: P.append("s_mov_b32 s89, s88")
    P.append(build_srd(SRD_X, 4, S * D * 2)); P.append(build_srd(SRD_WS, 28, WS_SIZE))
    P.append(L("s_and_b32 s%d, s2, 7\ns_lshr_b32 s%d, s2, 3", sA, sB))
    P.append(L("s_lshl_b32 s%d, s%d, 2\ns_add_u32 s%d, s%d, s%d", sT, sA, sT, sT, sB))
    P.append(L("s_lshr_b32 s%d, s%d, 1\ns_lshl_b32 s%d, s%d, 2\ns_add_u32 s%d, s%d, s%d", sC2, sA, sC2, sC2, sC2, sC2, sB))
    P.append(L("s_and_b32 s%d, s%d, 1\ns_mul_i32 s%d, s%d, 7\ns_add_u32 s%d, s%d, s%d", sA, sA, sFT, sA, sFT, sFT, sC2))
    P.append(L("s_cmp_ge_u32 s%d, 7\ns_cselect_b32 s%d, s20, s18\ns_cselect_b32 s%d, s21, s19", sC2, SRD_W1, SRD_W1 + 1))
    P.append(L("s_cselect_b32 s%d, 1, 0\ns_cselect_b32 s%d, 7, 0\ns_sub_u32 s%d, s%d, s%d", sMT, sA, sFT, sFT, sA))
    P.append(L("s_mov_b32 s%d, %d\ns_mov_b32 s%d, 0x00020000", SRD_W1 + 2, D * F * 2, SRD_W1 + 3))
    sNO, sONE, sLO, sHI, sSTO = sWL, sXL, sWo, sXo, sDo
    P.append(L("s_cmp_ge_u32 s%d, 14\ns_cselect_b32 s%d, 0x40000000, 0", sC2, sNO))
    V0, V1, V2, V3, V4, V5 = 2, 3, 4, 5, 6, 7
    P.append(L("s_lshl_b32 s%d, s%d, 2\ns_add_u32 s%d, s%d, s%d\ns_mul_i32 s%d, s%d, %d\ns_add_u32 s%d, s%d, %d", sA, sT, sA, sA, sWV, sA, sA, 16 * 896, sB, sA, 8 * 896))
    P.append(L("v_lshrrev_b32 v%d, 3, v%d\nv_mul_u32_u24 v%d, 896, v%d\nv_and_b32 v%d, 7, v%d\nv_lshl_add_u32 v%d, v%d, 4, v%d", V0, vL, V0, V0, V1, vL, V0, V1, V0))
    P.append(L("s_getpc_b64 s[%d:%d]", sC, sC + 1))
    P.append(RAW("L_touch_base2:"))
    P.append(L("s_sub_u32 s%d, s%d, L_touch_base2-L_main\ns_subb_u32 s%d, s%d, 0", sC, sC, sC + 1, sC + 1))
    P.append(L("s_lshr_b32 s%d, s2, 3\ns_lshl_b32 s%d, s%d, 13\nv_lshrrev_b32 v%d, 2, v0\nv_lshlrev_b32 v%d, 7, v%d\nv_add_u32 v%d, s%d, v%d", sZt0, sZt0, sZt0, V4, V4, V4, V4, sZt0, V4))
    P.append(L("v_min_u32 v%d, L_end_of_code-L_main-4, v%d", V4, V4))
    P.append(VM("global_load_dword v%d, v%d, s[%d:%d]" % (8, V4, sC, sC + 1), "touch"))
    P.append(L("s_mov_b32 s%d, %d\nv_mov_b32 v%d, 0", sZt0, EP_OFF, V4))
    P.append(VM("buffer_load_dword v%d, v%d, %s, s%d offen sc1" % (V5, V4, srd(SRD_WS), sZt0), "ep"))
    for grp in range(2):
        for i in range(7):
            P.append(VM("buffer_load_dwordx4 %s, v%d, %s, s%d offen offset:%d %s" % (vr(32 + (grp * 7 + i) * 4, 4), V0, srd(SRD_X), sB if grp else sA, 128 * i, Cfg.nt_x), ("hx", grp)))
    P.append(L("v_lshrrev_b32 v%d, 4, v0\nv_mul_u32_u24 v%d, 3584, v%d\nv_and_b32 v%d, 15, v0\nv_lshl_add_u32 v%d, v%d, 4, v%d", V2, V2, V2, V3, V2, V3, V2))
    P.append(L("s_lshl_b32 s%d, s%d, 8\ns_add_u32 s%d, s%d, s%d", sD_, sFT, sD_, sD_, sNO))
    def wl(i):
        return ["s_add_u32 s%d, s%d, %d" % (sB, sD_, 16 * i * 3584),
                VM("buffer_load_dwordx4 %s, v%d, %s, s%d offen %s" % (vr(128 + 4 * i, 4), V2, srd(SRD_W1), sB, Cfg.nt_w), ("hw", i))]
    def red8(v):
        return ["s_nop 1", "v_add_f32_dpp v%d, v%d, v%d quad_perm:[1,0,3,2] row_mask:0xf bank_mask:0xf" % (v, v, v), "s_nop 1",
                "v_add_f32_dpp v%d, v%d, v%d quad_perm:[2,3,0,1] row_mask:0xf bank_mask:0xf" % (v, v, v), "s_nop 1",
                "v_add_f32_dpp v%d, v%d, v%d row_half_mirror row_mask:0xf bank_mask:0xf" % (v, v, v)]
    INV448 = 0x3b124925
    P.append(L("s_mov_b32 s%d, 0x3f803f80\ns_mov_b32 s%d, 0x00003f80\ns_mov_b32 s%d, 0x3f800000", sONE, sLO, sHI))
    U0, U1 = 88, 89
    MEAN = [90, 91]; G = [92, 96]
    vSo, vSo2 = 100, 101
    P.append(L("v_and_b32 v%d, 7, v%d\nv_cmp_eq_u32 vcc, 0, v%d\nv_mov_b32 v%d, %s\nv_lshlrev_b32 v%d, 1, v%d\nv_cndmask_b32 v%d, v%d, v%d, vcc\nv_cndmask_b32 v%d, v%d, v%d, vcc",
               V0, vL, V0, V1, OOB, V3, vL, vSo, V1, vL, vSo2, V1, V3))
    P.append(L("s_lshl_b32 s%d, s%d, 2\ns_add_u32 s%d, s%d, s%d\ns_lshl_b32 s%d, s%d, 7\ns_add_u32 s%d, s%d, %d", sA, sT, sA, sA, sWV, sA, sA, sSTO, sA, ST_OFF))
    P.append(L("s_lshl_b32 s%d, s%d, 1\ns_add_u32 s%d, s%d, %d", sA, sA, sZt1, sA, ST2_OFF))
    P.append(WVM("ep")); P.append(tag_from_epoch(V5))
    nw = 0
    for grp in range(2):
        base = 32 + grp * 28
        P.append(L("v_mov_b32 v%d, 0\nv_mov_b32 v%d, 0", U0, U1))
        P.append(WVM(("hx", grp)))
        for k in range(5): P.append(wl(nw)); nw += 1
        for r in range(28): P.append("v_dot2c_f32_bf16 v%d, s%d, v%d" % (U1 if r & 1 else U0, sONE, base + r))
        P.append(L("s_nop 2\nv_add_f32 v%d, v%d, v%d", MEAN[grp], U0, U1))
        P.append(red8(MEAN[grp]))
        P.append(L("v_mul_f32 v%d, 0x%x, v%d", MEAN[grp], INV448, MEAN[grp]))
        P.append(L("v_cvt_pk_bf16_f32 v%d, v%d, v%d\nv_lshlrev_b32 v%d, 16, v%d\nv_mov_b32 v%d, s%d", G[grp], MEAN[grp], MEAN[grp], G[grp], G[grp], G[grp] + 1, sTAG))
        P.append(VM("buffer_store_dwordx2 %s, v%d, %s, s%d offen offset:%d sc1" % (vr(G[grp], 2), vSo, srd(SRD_WS), sSTO, 64 * grp), "mst"))
    P.append(stamp("mean"))
    var = []
    for grp in range(2):
        SQ = 102 + 2 * grp; base = 32 + grp * 28
        var.append(L("v_mov_b32 v%d, 0\nv_mov_b32 v%d, 0", SQ, SQ + 1))
        for r in range(28):
            var.append(L("v_lshlrev_b32 v%d, 16, v%d\nv_and_b32 v%d, 0xffff0000, v%d\nv_sub_f32 v%d, v%d, v%d\nv_sub_f32 v%d, v%d, v%d\nv_fmac_f32 v%d, v%d, v%d\nv_fmac_f32 v%d, v%d, v%d",
                         U0, base + r, U1, base + r, U0, U0, MEAN[grp], U1, U1, MEAN[grp], SQ, U0, U0, SQ + 1, U1, U1))
    CSUM = 108
    for e in range(8): P.append("v_mov_b32 v%d, 0" % (CSUM + e))
    vi = 0
    for i in range(28):
        if nw < 28: P.append(wl(nw)); nw += 1
        for k in range(Cfg.h_var):
            if vi < len(var): P.append(var[vi]); vi += 1
        P.append(WVM(("hw", i)))
        for w in range(4):
            src = 128 + 4 * i + w
            P.append("v_dot2c_f32_bf16 v%d, s%d, v%d\nv_dot2c_f32_bf16 v%d, s%d, v%d" % (CSUM + 2 * w, sLO, src, CSUM + 2 * w + 1, sHI, src))
    P.append(L("v_lshlrev_b32 v%d, 5, v0\ns_nop 2", V0))
    P.append(RAW("ds_write_b128 v%d, v[108:111]\nds_write_b128 v%d, v[112:115] offset:16" % (V0, V0)))
    P.append(WDS0()); P.append("s_barrier")
    P.append(L("v_and_b32 v%d, 127, v0\nv_lshlrev_b32 v%d, 2, v%d", V1, V0, V1))
    for rg in range(16): P.append(RAW("ds_read_b32 v%d, v%d offset:%d" % (128 + rg, V0, rg * 512)))
    P.append(L("v_lshrrev_b32 v%d, 4, v%d\nv_lshlrev_b32 v%d, 9, v%d\nv_and_b32 v%d, 15, v%d\nv_lshl_add_u32 v%d, v%d, 4, v%d", V2, V1, V2, V2, V3, V1, V2, V3, V2))
    P.append(L("v_cmp_gt_u32 vcc, 128, v0\nv_mov_b32 v%d, %s\ns_nop 0\nv_cndmask_b32 v%d, v%d, v%d, vcc", V3, OOB, V2, V3, V2))
    P.append(L("s_lshl_b32 s%d, s%d, 12\ns_lshl_b32 s%d, s%d, 8\ns_add_u32 s%d, s%d, s%d\ns_add_u32 s%d, s%d, %d\ns_add_u32 s%d, s%d, s%d", sA, sFT, sB, sMT, sA, sA, sB, sA, sA, CS_OFF, sA, sA, sNO))
    P.append(WDS0())
    for st in (1, 2, 4, 8):
        for rg in range(0, 16, 2 * st): P.append("v_add_f32 v%d, v%d, v%d" % (128 + rg, 128 + rg, 128 + rg + st))
    P.append("v_cvt_pk_bf16_f32 v116, v128, v128\nv_lshlrev_b32 v117, 16, v116\nv_sub_f32 v128, v128, v117")
    P.append("v_cvt_pk_bf16_f32 v118, v128, v128\nv_lshlrev_b32 v117, 16, v118\nv_sub_f32 v128, v128, v117")
    P.append("v_and_b32 v116, 0xffff, v116\nv_or_b32 v116, v116, v117")
    P.append(L("v_cvt_pk_bf16_f32 v117, v128, v128\nv_and_b32 v117, 0xffff, v117\nv_mov_b32 v118, 0\nv_mov_b32 v119, s%d", sTAG))
    P.append(VM("buffer_store_dwordx4 v[116:119], v%d, %s, s%d offen sc1" % (V2, srd(SRD_WS), sA), "cst"))
    P.append(stamp("cs"))
    P.append(var[vi:])
    for grp in range(2):
        SQ = 102 + 2 * grp
        P.append(L("v_add_f32 v%d, v%d, v%d", SQ, SQ, SQ + 1))
        P.append(red8(SQ))
        P.append(L("v_mul_f32 v%d, 0x%x, v%d", SQ, INV448, SQ))
        P.append(L("v_cvt_pk_bf16_f32 v%d, v%d, v%d\nv_lshlrev_b32 v%d, 16, v%d", SQ, SQ, SQ, SQ, SQ))
        P.append(L("v_add_f32 v%d, 0x3727c5ac, v%d", SQ, SQ))
        P.append(L("v_cvt_pk_bf16_f32 v%d, v%d, v%d\nv_lshlrev_b32 v%d, 16, v%d", SQ, SQ, SQ, SQ, SQ))
        P.append(L("v_sqrt_f32 v%d, v%d\ns_nop 0", SQ, SQ))
        P.append(L("v_cvt_pk_bf16_f32 v%d, v%d, v%d\nv_lshlrev_b32 v%d, 16, v%d", SQ, SQ, SQ, SQ, SQ))
        P.append(L("v_rcp_f32 v%d, v%d\nv_mov_b32 v%d, s%d\nv_mov_b32 v%d, 0", G[grp] + 1, SQ, G[grp] + 2, sTAG, G[grp] + 3))
        P.append(VM("buffer_store_dwordx4 %s, v%d, %s, s%d offen offset:%d sc1" % (vr(G[grp], 4), vSo2, srd(SRD_WS), sZt1, 128 * grp), "rst"))
    P.append(stamp("rstd"))
    P.append(L("s_cmp_lg_u32 s2, 0\ns_cbranch_scc1 L_h_end\ns_cmp_lg_u32 s%d, 0\ns_cbranch_scc1 L_h_end", sWV))
    P.append(L("v_lshlrev_b32 v%d, 7, v%d\nv_and_b32 v%d, 31, v%d\nv_lshlrev_b32 v%d, 7, v%d\ns_mov_b32 s%d, 0", V0, vL, V1, vL, V1, V1, sSPIN))
    P.append(RAW("L_ep_spin:"))
    for i in range(3):
        P.append("s_mov_b32 s%d, %d" % (sA, KF_OFF + 8192 * i))
        P.append(RAW("buffer_load_dword v%d, v%d, %s, s%d offen sc1" % (32 + i, V0, srd(SRD_WS), sA)))
    P.append("s_mov_b32 s%d, %d" % (sA, KF_OFF + 8192 * 3))
    P.append(RAW("buffer_load_dword v35, v%d, %s, s%d offen sc1" % (V1, srd(SRD_WS), sA)))
    for i in range(2):
        P.append("s_mov_b32 s%d, %d" % (sA, ST_OFF + 8192 * i + 4))
        P.append(RAW("buffer_load_dword v%d, v%d, %s, s%d offen sc1" % (36 + i, V0, srd(SRD_WS), sA)))
    P.append(WVM0())
    for i in range(6): P.append("v_xor_b32 v%d, s%d, v%d" % (32 + i, sTAG, 32 + i))
    for i in range(1, 6): P.append("v_or_b32 v32, v32, v%d" % (32 + i))
    P.append("v_cmp_ne_u32 vcc, 0, v32")
    P.append(L("s_add_u32 s%d, s%d, 1\ns_cmp_lt_u32 s%d, %d\ns_cbranch_scc0 L_ep_go", sSPIN, sSPIN, sSPIN, Cfg.spin))
    P.append("s_cbranch_vccz L_ep_go\ns_sleep 32\ns_branch L_ep_spin")
    P.append(RAW("L_ep_go:"))
    P.append("s_mov_b32 s%d, %d" % (sA, EP_OFF))
    P.append(RAW("buffer_store_dword a%d, v%d, %s, s%d offen sc1" % (aTag, vFlag0, srd(SRD_WS), sA)))
    P.append(RAW("L_h_end:"))
    P.append(diag_tail())
    P.append("s_endpgm")
    return P
Cfg.h_var = 1; Cfg.trace = False

def generate(diag=False):
    Cfg.diag = diag
    stamp_n[0] = 0
    del slow_paths[:]; del stamp_names[:]
    ref = open("cdna_kernels/%s.s.ref" % NAME).read().split("\n")
    head = [l for l in ref if l.startswith(";") and "@launch" not in l]
    out = head + ["; @launch grid=(256,1,1) block=(256,1,1) lds=%d" % LDS_SIZE]
    out += ['.amdgcn_target "amdgcn-amd-amdhsa--gfx950"', ".text", ".globl %s_kernel" % NAME, ".p2align 8",
            ".type %s_kernel,@function" % NAME, "%s_kernel:" % NAME]
    pro, _ = resolve([prologue_common(), "s_cmp_lt_u32 s2, 32", "s_cbranch_scc1 L_helper"])
    del TRACE['names'][:]
    m, mx = resolve(gen_main(), trace=Cfg.trace)
    h, _ = resolve([RAW("L_helper:"), gen_helper()])
    body = pro + m + "\n".join(slow_paths).split("\n") + ["L_end_of_main:"] + h + ["L_exit:", "s_endpgm", "L_end_of_code:"]
    body = "\n".join(body).split("\n")
    bad = lintmod.lint(body)
    for b in bad: print("HAZARD", b)
    for l in body: out.append(l if l.endswith(":") else "    " + l)
    out += ['.section .rodata,"a"', ".p2align 6", ".amdhsa_kernel %s_kernel" % NAME,
            "  .amdhsa_next_free_vgpr 512", "  .amdhsa_next_free_sgpr 102", "  .amdhsa_accum_offset 256",
            "  .amdhsa_group_segment_fixed_size 0", "  .amdhsa_kernarg_size 104", "  .amdhsa_user_sgpr_count 2",
            "  .amdhsa_user_sgpr_kernarg_segment_ptr 1", "  .amdhsa_system_sgpr_workgroup_id_x 1",
            "  .amdhsa_float_denorm_mode_32 3", ".end_amdhsa_kernel"]
    return "\n".join(out) + "\n", mx

if __name__ == "__main__":
    diag = "--diag" in sys.argv
    for a in sys.argv[1:]:
        if a.startswith("--") and "=" in a:
            k, v = a[2:].split("=", 1)
            assert hasattr(Cfg, k), k
            setattr(Cfg, k, eval(v))
    txt, mx = generate(diag)
    path = sys.argv[1] if len(sys.argv) > 1 and not sys.argv[1].startswith("--") else "cdna_kernels/%s.s" % NAME
    open(path, "w").write(txt)
    if diag: print("stamps:", stamp_names)
    if Cfg.trace: open(path + ".names", "w").write("\n".join(TRACE["names"]))
    if "--usage" in sys.argv:
        import numpy as np
        np.set_printoptions(linewidth=200)
        u = np.array(Cfg._usage1)
        print(u[:232].reshape(29, 8)); print(u[232:].reshape(4, 36)); print(np.array(Cfg._usage2).reshape(14, 8))
        for k, v in Cfg._log1.items(): print(k, v[0], v[-1], len(v))
        print("dma", Cfg._log1["dma"])
    print("wrote", path, "lines", txt.count("\n"), "max outstanding vm", mx)
```

```python
import sys
from dsl import *
import lint as lintmod

NAME = "parallel_sum__ssm_conv_h3__glu_gated_bilinear__prompt"
S, D, F = 2048, 448, 1792

H_OFF   = 0x000000
KVT_OFF = 0x700000
Z_OFF   = 0x8C0000
ST_OFF  = 0xC40000
CS_OFF  = 0xC44000
ST2_OFF = 0xC54000
HF_OFF  = 0xC60000
KF_OFF  = 0xC80000
ZF_OFF  = 0xC90000
EP_OFF  = 0xCB8000
DG_OFF  = 0xCC0000
PX_OFF  = 0xD00000
TR_OFF  = 0x1100000
WS_SIZE = 0x1280000

WR = 0
XB = 98304
XS = 16640
KVR = 148224
CEX = XB + 256
REDA, REDB = 0, 16384
LDS_SIZE = 163840

SRD_X, SRD_K, SRD_V, SRD_SK, SRD_HK, SRD_DD, SRD_W1, SRD_WD, SRD_OUT, SRD_WS = [32 + 4 * i for i in range(10)]
def srd(b): return "s[%d:%d]" % (b, b + 3)
sWV, sMT, sFT, sT, sDT, sC2, sTAG, sWM, sWN = 72, 73, 74, 75, 76, 77, 78, 79, 80
sWL, sXL, sWo, sXo, sDo, sSPIN = 81, 82, 83, 84, 85, 86
sA, sB, sC, sD_ = 90, 91, 92, 93
sZt0, sZt1, sZt2 = 94, 95, 96
(sHst0, sHst1, sHfl, sKst0, sKst1, sKfl, sKld0, sKld1, sCs, sMn, sHL, sHS, sZst, sZfl, sZld, sSt2,
 sHcur, sHbase, sHlim, sPst, sPld, sHA, sHB, sKF, sHF, sZF) = range(4, 30)
sG = list(range(36, 43))
s4r = 30
sFG0 = 31

vL = 1
vA = [2, 3, 4, 5]; vA2 = [6, 7, 8, 9]; vB = [10, 11, 12, 13]
vW = [14, 15, 16, 17]; vX = [18, 19, 20, 21]; vWd = [22, 23, 24, 25]
vWdA = [26, 27]; vWdA2 = [28, 29]
vL16, vFlag0 = 30, 31
BF, AF, ACC = 80, 96, 128
T0, T1, T2, T3, T4, T5, T6, T7 = range(60, 68)
(aTag, aHsrc, aPsw, aPsr, aKst, aPollK, aCA0, aCA1, aCB, aCD, aOo, aPollH, aZst, aPollZ, aZld, aRr) = range(224, 240)
aStamp = 240
def vr(b, n): return "v[%d:%d]" % (b, b + n - 1)
def ar(b, n): return "a[%d:%d]" % (b, b + n - 1)
OOB = "0x80000000"
def stash(a, v): return "v_accvgpr_write_b32 a%d, v%d" % (a, v)
def unstash(v, a): return I("v_accvgpr_read_b32 v%d, a%d" % (v, a))

class Cfg:
    diag = False
    spin = 100000
    rot1 = "2"
    rot2 = True
    nt_kv = "nt"; nt_hk = "nt"; nt_w = ""; nt_x = ""; nt_wd = ""
    sleep = 4
    sp1 = 4; kx = 6; sp2 = 3
    prep_at = 16
    polls_at = 316
    polls_lag = 36
    kv_lag = 36
    wd_lag = 40
    nws = 4
    wd_after = {5: 1, 8: 1, 11: 1, 14: 1, 16: 1}
    hdma_u = 6
    hflag = 30
    hpoll = 76
    nfirst = 6
    zflag = 24; zpoll = 56; zlag = 20
    stamps_k = (2, 8, 16, 22)
    b32 = 5; b16 = 2

slow_paths = []
def check(name, loads, cmp_ops, tags):
    sl = ["L_slow_%s:" % name, "s_mov_b32 s%d, 0" % sSPIN, "L_spin_%s:" % name, "s_sleep %d" % Cfg.sleep]
    sl += loads + ["s_add_u32 s%d, s%d, 1" % (sSPIN, sSPIN), "s_waitcnt vmcnt(0)"] + cmp_ops
    sl += ["s_cmp_lt_u32 s%d, %d" % (sSPIN, Cfg.spin), "s_cbranch_scc0 L_res_%s" % name,
           "s_cbranch_vccnz L_spin_%s" % name, "s_branch L_res_%s" % name]
    slow_paths.append("\n".join(sl))
    return [WVM(*tags)] + [I(c) for c in cmp_ops[:-1]], [I(cmp_ops[-1]), I("s_cbranch_vccnz L_slow_%s" % name), RAW("L_res_%s:" % name)]
def flag_store(sreg, wait_tags):
    ops = [WVM(*wait_tags)] if wait_tags else []
    ops.append(VM("buffer_store_dword a%d, v%d, %s, s%d offen sc1" % (aTag, vFlag0, srd(SRD_WS), sreg), "flag"))
    return ops

stamp_n = [0]; stamp_names = []
def stamp(name=""):
    if not Cfg.diag or (Cfg.trace and name not in ("b0", "end", "mean", "cs", "rstd")): return []
    n = stamp_n[0]; stamp_n[0] += 1
    assert n < (6 if Cfg.trace else 14)
    stamp_names.append(name)
    return [I("s_memtime s[98:99]"), WDS0(), I("v_accvgpr_write_b32 a%d, s98" % (aStamp + 2 + n))]
def diag_tail():
    if not Cfg.diag: return []
    p = [WVM0(), stamp("end"), "s_memrealtime s[98:99]", WDS0()]
    p.append("v_accvgpr_write_b32 a%d, s88\nv_accvgpr_write_b32 a%d, s89" % (aStamp, aStamp + 1))
    p.append("v_mov_b32 v32, s100\nv_mov_b32 v33, s98")
    p.append("s_lshl_b32 s%d, s2, 2\ns_add_u32 s%d, s%d, s%d\ns_lshl_b32 s%d, s%d, 7\ns_add_u32 s%d, s%d, %d" % (sA, sA, sA, sWV, sA, sA, sA, sA, DG_OFF))
    for i in range(4): p.append(VM("buffer_store_dwordx4 %s, v%d, %s, s%d offen offset:%d" % (ar(aStamp + 4 * i, 4), vFlag0, srd(SRD_WS), sA, 16 * i)))
    p.append(VM("buffer_store_dwordx2 v[32:33], v%d, %s, s%d offen offset:%d" % (vFlag0, srd(SRD_WS), sA, 104)))
    if Cfg.trace:
        p.append("s_lshl_b32 s%d, s2, 2\ns_add_u32 s%d, s%d, s%d\ns_mul_i32 s%d, s%d, 768\ns_add_u32 s%d, s%d, %d" % (sA, sA, sA, sWV, sA, sA, sA, sA, TR_OFF))
        p.append("v_lshlrev_b32 v32, 2, v%d" % vL)
        for i in range(3): p.append(VM("buffer_store_dword a%d, v32, %s, s%d offen offset:%d" % (248 + i, srd(SRD_WS), sA, 256 * i)))
    p.append(WVM0())
    return p

def build_srd(b, ptr, size):
    return ["s_mov_b32 s%d, s%d" % (b, ptr), "s_mov_b32 s%d, s%d" % (b + 1, ptr + 1),
            "s_mov_b32 s%d, %d" % (b + 2, size), "s_mov_b32 s%d, 0x00020000" % (b + 3)]
def tag_from_epoch(vE):
    return [I("v_readfirstlane_b32 s%d, v%d" % (sTAG, vE)), I("s_nop 3"),
            I("s_mul_i32 s%d, s%d, 1664525" % (sTAG, sTAG)), I("s_add_u32 s%d, s%d, 1013904223" % (sTAG, sTAG)),
            I("v_accvgpr_write_b32 a%d, s%d" % (aTag, sTAG))]
def advance(sreg, step, limit):
    return [I("s_add_u32 s%d, s%d, %d" % (sreg, sreg, step)),
            [I("s_cmp_eq_u32 s%d, %d" % (sreg, limit)), I("s_cselect_b32 s%d, 0, s%d" % (sreg, sreg))]]

def L(fmt, *a): return fmt % a

def prologue_common():
    p = ["s_cmp_ge_u32 s2, 256\ns_cbranch_scc1 L_exit"]
    if Cfg.diag: p.append("s_memrealtime s[100:101]\ns_memtime s[88:89]")
    p.append("s_load_dwordx16 s[4:19], s[0:1], 0\ns_load_dwordx8 s[20:27], s[0:1], 64\ns_load_dwordx2 s[28:29], s[0:1], 96")
    p.append(L("v_and_b32 v%d, 63, v0\nv_lshrrev_b32 v%d, 6, v0\nv_lshlrev_b32 v%d, 4, v%d", vL, T0, vL16, vL))
    p.append(L("v_readfirstlane_b32 s%d, v%d", sWV, T0))
    p.append(L("v_cmp_eq_u32 vcc, 0, v%d\nv_mov_b32 v%d, %s\nv_mov_b32 v%d, 0\nv_cndmask_b32 v%d, v%d, v%d, vcc", vL, T1, OOB, T2, vFlag0, T1, T2))
    return p

def dma_group(sL, ldsconst, vs, srd_b, sOff, tag, pol, adv):
    at = [I("s_add_u32 m0, s%d, %d" % (sL, ldsconst))]
    for q in range(4):
        op = VM("buffer_load_dwordx4 v%d, %s, s%d offen offset:%d %s lds" % (vs[q], srd(srd_b), sOff, q * 1024, pol), tag)
        at.append([I("s_nop 0"), op] if q == 0 else op)
    return at, advance(sOff, *adv)
def w_group(hc): return dma_group(sWL, WR + (hc % Cfg.nws) * 16384, vW, SRD_W1, sWo, ("W", hc), Cfg.nt_w, (32 * 3584, 448 * 3584))
def x_group(c): return dma_group(sXL, (c % 3) * XS, vX, SRD_X, sXo, ("X", c), Cfg.nt_x, (128, 896))
WD_BASE = [32768, 49152, XB + 256, 65536, 81920, 0, 16384]
def wd_group(u): return dma_group(sWL, WD_BASE[u], vWd, SRD_WD, sDo, ("WD", u), Cfg.nt_wd, (64 * 896, 448 * 896))
def wd_reads(u):
    at = []
    for n4 in range(4):
        for jd in range(2):
            for p in range(2):
                off = WD_BASE[u] + (n4 >> 1) * 8192 + (n4 & 1) * 2048 + p * 1024
                base = vWdA[jd]
                if off >= 0x10000: base = vWdA2[jd]; off -= 0x10000
                at.append(DS("ds_read_b64_tr_b16 %s, v%d offset:%d" % (ar(8 * (4 * u + n4) + 4 * jd + 2 * p, 2), base, off), ("WR", u)))
    return at

def frag_reads(s):
    buf = s & 1; hc, sp = s >> 1, s & 1; slot = hc % Cfg.nws; c, s4 = s >> 2, s & 3
    def bread(nt): return DS("ds_read_b128 %s, v%d offset:%d" % (vr(BF + buf * 8 + nt * 4, 4), vB[s4], (c % 3) * XS + nt * 4096), ("F", s))
    def aread(jj, p):
        base = vA[jj] if slot < 3 else vA2[jj]
        return DS("ds_read_b64_tr_b16 %s, v%d offset:%d" % (vr(AF + buf * 16 + jj * 4 + p * 2, 2), base, (slot % 3) * 16384 + sp * 4096 + p * 1024), ("F", s))
    at = [bread(0), aread(0, 0), aread(0, 1), bread(1)]
    for jj in range(1, 4): at += [aread(jj, 0), aread(jj, 1)]
    return at

KR, VR_, vEp, SKR, TAP, KFv, R0, R1, VF, HB0, HB1, OLO, OHI = 32, 43, 51, 52, 56, 60, 71, 72, 73, 74, 75, 76, 32

def gen_main():
    P = [RAW("L_main:")]
    if Cfg.scramble:
        P.append(L("s_sub_u32 s%d, s2, 32\ns_mul_hi_u32 s%d, s%d, %d\ns_mul_i32 s%d, s%d, 28\ns_sub_u32 s%d, s%d, s%d\ns_lshl_b32 s%d, s%d, 3\ns_add_u32 s2, s%d, s%d\ns_add_u32 s2, s2, 32",
                   sA, sB, sA, (2**32 + 27) // 28, sC, sB, sA, sA, sC, sA, sA, sA, sB))
    P.append(L("s_sub_u32 s%d, s2, 32\ns_and_b32 s%d, s2, 7\ns_lshr_b32 s%d, s%d, 3", sC2, sA, sB, sC2))
    P.append(L("s_lshr_b32 s%d, s%d, 2\ns_and_b32 s%d, s%d, 3", sDT, sB, sB, sB))
    P.append(L("s_lshl_b32 s%d, s%d, 2\ns_add_u32 s%d, s%d, s%d", sT, sA, sT, sT, sB))
    P.append(L("s_lshr_b32 s%d, s%d, 1\ns_lshl_b32 s%d, s%d, 2\ns_add_u32 s%d, s%d, s%d", sMT, sA, sMT, sMT, sMT, sMT, sB))
    P.append(L("s_and_b32 s%d, s%d, 1\ns_mul_i32 s%d, s%d, 7\ns_add_u32 s%d, s%d, s%d", sFG0, sA, sFT, sFG0, sFT, sFT, sDT))
    P.append(L("s_and_b32 s%d, s%d, 1\ns_lshr_b32 s%d, s%d, 1", sWM, sWV, sWN, sWV))
    P.append(L("s_lshl_b32 s%d, s%d, 12\ns_add_u32 s%d, s%d, %d", sWL, sWV, sXL, sWL, XB + 256))
    if Cfg.rot1 == "0": P.append(L("s_mov_b32 s%d, 0", sA))
    elif Cfg.rot1 == "2": P.append(L("s_xor_b32 s%d, s%d, s%d\ns_and_b32 s%d, s%d, 1\ns_lshl_b32 s%d, s%d, 2", sA, sMT, sFT, sA, sA, sA, sA))
    elif Cfg.rot1 == "3":
        P.append(L("s_add_u32 s%d, s%d, s%d\ns_mul_i32 s%d, s%d, 3\ns_mov_b32 s%d, 0x%x\ns_lshr_b32 s%d, s%d, s%d\ns_and_b32 s%d, s%d, 7",
                   sA, sB, sDT, sA, sA, sC, sum(((0, 2, 5)[i % 3]) << (3 * i) for i in range(10)), sA, sC, sA, sA, sA))
    else:
        P.append(L("s_lshl_b32 s%d, s%d, 1\ns_add_u32 s%d, s%d, s%d\ns_sub_u32 s%d, s%d, 7\ns_min_u32 s%d, s%d, s%d", sA, sB, sA, sA, sDT, sC, sA, sA, sA, sC))
    P.append(L("s_mul_i32 s%d, s%d, %d\ns_lshl_b32 s%d, s%d, 7", sWo, sA, 64 * 3584, sXo, sA))
    P.append(L("v_lshrrev_b32 v%d, 4, v%d", T0, vL))
    P.append(L("s_mul_i32 s%d, s%d, %d\ns_lshl_b32 s%d, s%d, 8\ns_add_u32 s%d, s%d, s%d", sA, sWM, 16 * 3584, sB, sFT, sA, sA, sB))
    P.append(L("v_mul_u32_u24 v%d, 3584, v%d\ns_lshl_b32 s%d, s%d, 3", T1, T0, sB, sWN))
    P.append(L("v_lshlrev_b32 v%d, 1, v%d\nv_or_b32 v%d, s%d, v%d\nv_and_b32 v%d, 15, v%d", T2, T0, T2, sB, T2, T3, vL))
    P.append(L("v_xor_b32 v%d, v%d, v%d\nv_lshlrev_b32 v%d, 4, v%d\nv_add3_u32 v%d, v%d, v%d, s%d", T2, T2, T3, T2, T2, vW[0], T1, T2, sA))
    for q in range(1, 4): P.append(L("v_add_u32 v%d, %d, v%d", vW[q], q * (4 * 3584 - 1024), vW[0]))
    P.append(L("s_lshl_b32 s%d, s%d, 2\ns_add_u32 s%d, s%d, s%d\ns_mul_i32 s%d, s%d, %d", sA, sMT, sA, sA, sWV, sA, sA, 32 * 896))
    P.append(L("v_lshrrev_b32 v%d, 3, v%d\nv_mul_u32_u24 v%d, 896, v%d\nv_and_b32 v%d, 7, v%d", T1, vL, T1, T1, T3, vL))
    P.append(L("v_xor_b32 v%d, v%d, v%d\nv_lshlrev_b32 v%d, 4, v%d\nv_add3_u32 v%d, v%d, v%d, s%d", T2, T3, T0, T2, T2, vX[0], T1, T2, sA))
    P.append(L("v_xor_b32 v%d, 64, v%d", T2, vX[0]))
    for q in range(1, 4): P.append(L("v_add_u32 v%d, %d, v%d", vX[q], q * (8 * 896 - 1024), T2 if q & 1 else vX[0]))
    P.append(WDS0())
    if Cfg.diag: P.append([I("s_memtime s[98:99]"), WDS0(), I("s_mov_b32 s89, s98")])
    P.append(L("s_cmp_ge_u32 s%d, 2\ns_cselect_b32 s%d, s20, s18\ns_cselect_b32 s%d, s21, s19", sWV, SRD_W1, SRD_W1 + 1))
    P.append(L("s_mov_b32 s%d, %d\ns_mov_b32 s%d, 0x00020000", SRD_W1 + 2, D * F * 2, SRD_W1 + 3))
    P.append(build_srd(SRD_X, 4, S * D * 2))
    P.append(w_group(0)); P.append(x_group(0))
    P.append(w_group(1))
    for b, ptr, size in ((SRD_K, 6, S * D * 2), (SRD_V, 8, S * D * 2), (SRD_SK, 10, D * 8), (SRD_HK, 12, D * S * 2 + 64), (SRD_DD, 14, D * 2),
                         (SRD_WD, 22, D * F * 2), (SRD_OUT, 24, S * D * 2), (SRD_WS, 28, WS_SIZE)):
        P.append(build_srd(b, ptr, size))
    P.append(L("s_mov_b32 s%d, %d\nv_mov_b32 v%d, 0", sA, EP_OFF, T4))
    P.append(VM("buffer_load_dword v%d, v%d, %s, s%d offen sc1" % (vEp, T4, srd(SRD_WS), sA), "prep"))
    P.append(L("s_lshl_b32 s%d, s%d, 1\ns_add_u32 s%d, s%d, s%d\ns_mul_i32 s%d, s%d, %d\ns_lshl_b32 s%d, s%d, 7\ns_add_u32 s%d, s%d, s%d", sA, sFG0, sA, sA, sWM, sA, sA, 448 * 896, sB, sDT, sA, sA, sB))
    P.append(L("s_mul_i32 s%d, s%d, %d\ns_add_u32 s%d, s%d, s%d", sB, sWN, 32 * 896, sA, sA, sB))
    P.append(L("v_and_b32 v%d, 1, v%d\nv_lshlrev_b32 v%d, 2, v%d\nv_xor_b32 v%d, v%d, v%d\nv_lshlrev_b32 v%d, 4, v%d", T2, T0, T2, T2, T2, T2, T3, T2, T2))
    P.append(L("v_add3_u32 v%d, v%d, v%d, s%d", vWd[0], T1, T2, sA))
    for q in range(1, 4): P.append(L("v_add_u32 v%d, %d, v%d", vWd[q], q * (8 * 896 - 1024), vWd[0]))
    P.append(L("v_bfe_u32 v%d, v%d, 2, 2\nv_bfe_u32 v%d, v%d, 4, 1\nv_lshrrev_b32 v%d, 5, v%d", T0, vL, T1, vL, T2, vL))
    P.append(L("v_and_b32 v%d, 3, v%d\nv_lshlrev_b32 v%d, 3, v%d", T3, vL, T3, T3))
    P.append(L("v_lshl_add_u32 v%d, v%d, 3, v%d\nv_lshlrev_b32 v%d, 8, v%d\nv_lshl_add_u32 v%d, v%d, 13, v%d\nv_add_u32 v%d, v%d, v%d", T4, T2, T0, T4, T4, T4, T1, T4, T4, T4, T3))
    P.append(L("v_lshl_or_b32 v%d, v%d, 2, v%d\ns_lshl_b32 s%d, s%d, 2\nv_xor_b32 v%d, s%d, v%d", T5, T1, T0, sA, sWM, T5, sA, T5))
    for jj in range(4):
        P.append(L("v_xor_b32 v%d, %d, v%d\nv_lshl_add_u32 v%d, v%d, 5, v%d\nv_add_u32 v%d, %d, v%d", vA[jj], jj, T5, vA[jj], vA[jj], T4, vA2[jj], 49152, vA[jj]))
    P.append(L("v_lshl_add_u32 v%d, v%d, 2, v%d\nv_lshlrev_b32 v%d, 7, v%d\ns_lshl_b32 s%d, s%d, 12", T4, T2, T0, T4, T4, sA, sWM))
    P.append(L("v_lshl_add_u32 v%d, v%d, 5, v%d\nv_add3_u32 v%d, v%d, v%d, s%d", T4, T1, T4, T4, T4, T3, sA))
    P.append(L("v_lshrrev_b32 v%d, 1, v%d\nv_xor_b32 v%d, s%d, v%d\nv_lshl_add_u32 v%d, v%d, 6, v%d", T5, T0, T5, sWM, T5, vWdA[0], T5, T4))
    P.append(L("v_xor_b32 v%d, 64, v%d\nv_add_u32 v%d, 0x10000, v%d\nv_add_u32 v%d, 0x10000, v%d", vWdA[1], vWdA[0], vWdA2[0], vWdA[0], vWdA2[1], vWdA[1]))
    P.append(L("v_and_b32 v%d, 31, v%d\nv_bfe_u32 v%d, v%d, 1, 3\nv_xor_b32 v%d, v%d, v%d", T6, vL, T1, vL, T1, T1, T2))
    P.append(L("s_lshl_b32 s%d, s%d, 13\ns_add_u32 s%d, s%d, %d\nv_lshlrev_b32 v%d, 7, v%d\nv_add_u32 v%d, s%d, v%d", sA, sWN, sA, sA, XB + 256, T0, T6, T0, sA, T0))
    for sp in range(4): P.append(L("v_xor_b32 v%d, %d, v%d\nv_lshl_add_u32 v%d, v%d, 4, v%d", vB[sp], 2 * sp, T1, vB[sp], vB[sp], T0))
    P.append(L("s_lshl_b32 s%d, s%d, 2\ns_add_u32 s%d, s%d, s%d\ns_mul_i32 s%d, s%d, %d\ns_lshl_b32 s%d, s%d, 7\ns_add_u32 s%d, s%d, s%d",
               sA, sT, sA, sA, sWV, sA, sA, 16 * 896, sB, sDT, sA, sA, sB))
    P.append(L("v_mul_u32_u24 v%d, %d, v%d\nv_lshl_add_u32 v%d, v%d, 2, v%d\nv_add_u32 v%d, s%d, v%d", R0, 8 * 896, T2, R0, T6, R0, R0, sA, R0))
    P.append(L("v_subrev_u32 v%d, %d, v%d\nv_cmp_gt_u32 vcc, %d, v%d\nv_mov_b32 v%d, %s\ns_mov_b32 s%d, %d\nv_cndmask_b32 v%d, v%d, v%d, vcc",
               VF, 3 * 896, R0, 3 * 896, R0, T0, OOB, s4r, 4 * 896, VF, VF, T0))
    P.append(L("s_lshl_b32 s%d, s%d, 9\nv_lshlrev_b32 v%d, 4, v%d", sD_, sDT, R1, T6))
    kvl = []
    for a in range(3): kvl.append(VM("buffer_load_dword v%d, v%d, %s, 0 offen offset:%d %s" % (KR + a, VF, srd(SRD_K), a * 896, Cfg.nt_kv), "prep"))
    for o in range(8): kvl.append(VM("buffer_load_dword v%d, v%d, %s, %s offen offset:%d %s" % (KR + 3 + o, R0, srd(SRD_K), "0" if o < 4 else "s%d" % s4r, (o & 3) * 896, Cfg.nt_kv), "prep"))
    for o in range(8): kvl.append(VM("buffer_load_dword v%d, v%d, %s, %s offen offset:%d %s" % (VR_ + o, R0, srd(SRD_V), "0" if o < 4 else "s%d" % s4r, (o & 3) * 896, Cfg.nt_kv), "prep"))
    kvl.append(VM("buffer_load_dwordx4 %s, v%d, %s, s%d offen" % (vr(SKR, 4), R1, srd(SRD_SK), sD_), "prep"))
    P.append(L("s_lshl_b32 s%d, s%d, 1\ns_add_u32 s%d, s%d, s%d\ns_lshl_b32 s%d, s%d, 12", sHS, sC2, sHS, sHS, sWN, sHS, sHS))
    P.append(L("v_and_b32 v%d, 15, v%d\nv_lshrrev_b32 v%d, 4, v%d", T7, vL, T5, vL))
    P.append(L("v_lshl_add_u32 v%d, v%d, 1, v%d\nv_subrev_u32 v%d, 15, v%d\nv_lshlrev_b32 v%d, 1, v%d\nv_add_u32 v%d, 2, v%d", T0, T7, T5, T0, T0, TAP, T0, TAP + 1, TAP))
    P.append(L("v_lshlrev_b32 v%d, 7, v%d", TAP + 2, T6))
    P.append(L("s_lshl_b32 s%d, s%d, 18\ns_lshl_b32 s%d, s%d, 7\ns_sub_u32 s%d, s%d, s%d\ns_add_u32 s%d, s%d, %d\ns_add_u32 s%d, s%d, %d",
               sKst0, sDT, sA, sT, sKst0, sKst0, sA, sKst0, sKst0, KVT_OFF + 3968, sKst1, sKst0, 32 * 4096))
    P.append(L("s_lshl_b32 s%d, s%d, 5\ns_add_u32 s%d, s%d, s%d\ns_lshl_b32 s%d, s%d, 7\ns_add_u32 s%d, s%d, %d\ns_cmp_eq_u32 s%d, 0\ns_cselect_b32 s%d, s%d, 0x40000000",
               sA, sDT, sA, sA, sT, sA, sA, sA, sA, KF_OFF, sWV, sKfl, sA))
    P.append(L("s_lshl_b32 s%d, s%d, 1\ns_sub_u32 s%d, 7, s%d\nv_sub_u32 v%d, s%d, v%d\nv_and_b32 v%d, 7, v%d\nv_xor_b32 v%d, v%d, v%d", sA, sWV, sA, sA, T0, sA, T2, T1, vL, T0, T0, T1))
    P.append(L("v_lshlrev_b32 v%d, 4, v%d\nv_lshl_add_u32 v%d, v%d, 8, v%d\nv_lshrrev_b32 v%d, 4, v%d\nv_mul_u32_u24 v%d, 4608, v%d", T0, T0, T0, T7, T0, T3, T6, T3, T3))
    P.append(L("v_add_u32 v%d, v%d, v%d\nv_add_u32 v%d, %d, v%d", T0, T0, T3, T0, KVR, T0) + "\n" + stash(aPsw, T0))
    P.append(L("v_lshrrev_b32 v%d, 3, v0\nv_bfe_u32 v%d, v0, 4, 3\nv_xor_b32 v%d, v%d, v%d\nv_lshlrev_b32 v%d, 4, v%d", T0, T3, T3, T3, T1, T3, T3))
    P.append(L("v_lshl_add_u32 v%d, v%d, 7, v%d\nv_add_u32 v%d, %d, v%d", T3, T0, T3, T3, KVR, T3) + "\n" + stash(aPsr, T3))
    P.append(L("v_lshlrev_b32 v%d, 12, v%d\nv_lshl_add_u32 v%d, v%d, 4, v%d", T0, T0, T0, T1, T0) + "\n" + stash(aKst, T0))
    P.append(L("s_mul_i32 s%d, s%d, %d\ns_add_u32 s%d, s%d, %d\nv_lshlrev_b32 v%d, 2, v%d\nv_add_u32 v%d, s%d, v%d", sA, sWN, XS, sA, sA, XB + XS, 78, vL, 78, sA, 78))
    U0, U1, U2, U3, U4, U5, U6, U7 = 73, 74, 75, 76, 77, 78, 79, 70
    Q = []
    Q.append(L("v_lshrrev_b32 v%d, 5, v%d\nv_lshrrev_b32 v%d, 4, v%d\nv_and_b32 v%d, 31, v%d\nv_and_b32 v%d, 15, v%d", U2, vL, U5, vL, U6, vL, U7, vL))
    if Cfg.rot2:
        Q.append(L("s_and_b32 s%d, s%d, 3\ns_lshl_b32 s%d, s%d, 1\ns_add_u32 s%d, s%d, s%d\ns_sub_u32 s%d, s%d, 7\ns_min_u32 s%d, s%d, s%d", sA, sMT, sA, sA, sA, sA, sDT, sC, sA, sA, sA, sC))
    else: Q.append(L("s_mov_b32 s%d, 0", sA))
    Q.append(L("s_mul_i32 s%d, s%d, %d\ns_lshl_b32 s%d, s%d, 12", sDo, sA, 64 * 896, sHcur, sA))
    Q.append(L("s_lshl_b32 s%d, s%d, 1\ns_add_u32 s%d, s%d, s%d", sA, sMT, sA, sA, sWN))
    Q.append(L("s_lshl_b32 s%d, s%d, 1\ns_add_u32 s%d, s%d, s%d", sB, sFT, sB, sB, sWM))
    Q.append(L("s_lshl_b32 s%d, s%d, 9\ns_add_u32 s%d, s%d, %d", sMn, sA, sMn, sMn, ST_OFF))
    Q.append(L("s_lshl_b32 s%d, s%d, 11\ns_add_u32 s%d, s%d, %d", sCs, sB, sCs, sCs, CS_OFF))
    Q.append(L("s_mul_i32 s%d, s%d, 224\ns_lshl_b32 s%d, s%d, 2\ns_add_u32 s%d, s%d, s%d\ns_lshl_b32 s%d, s%d, 10\ns_add_u32 s%d, s%d, %d",
               sHst0, sA, sC, sB, sHst0, sHst0, sC, sHst0, sHst0, sHst1, sHst0, 112 * 1024))
    Q.append(L("s_lshl_b32 s%d, s%d, 5\ns_add_u32 s%d, s%d, s%d\ns_lshl_b32 s%d, s%d, 7\ns_add_u32 s%d, s%d, %d", sHfl, sA, sHfl, sHfl, sB, sHfl, sHfl, sHfl, sHfl, HF_OFF))
    Q.append(L("s_mov_b32 s%d, %d\ns_and_b32 s%d, s%d, 0xffffffe0\nv_add_lshl_u32 v%d, v%d, s%d, 7", sKF, KF_OFF, sA, sC2, U0, U6, sA) + "\n" + stash(aPollK, U0))
    Q.append(L("s_lshl_b32 s%d, s%d, 13\ns_add_u32 s%d, s%d, %d\ns_add_u32 s%d, s%d, 4096", sKld0, sC2, sKld0, sKld0, KVT_OFF, sKld1, sKld0))
    Q.append(L("s_mul_i32 s%d, s%d, %d\ns_lshl_b32 s%d, s%d, 13\ns_add_u32 s%d, s%d, s%d\ns_add_u32 s%d, s%d, %d", sHL, sWN, XS, sA, sWM, sHL, sHL, sA, sHL, sHL, XB + XS + 256))
    Q.append(L("v_lshlrev_b32 v%d, 6, v%d\nv_and_b32 v%d, 3, v%d\nv_lshl_add_u32 v%d, v%d, 4, v%d\nv_bfe_u32 v%d, v%d, 2, 2\nv_lshl_add_u32 v%d, v%d, 1, v%d", U0, U5, U1, vL, U0, U1, U0, U1, vL, U0, U1, U0))
    Q.append(L("s_lshl_b32 s%d, s%d, 11\ns_add_u32 s%d, s%d, s%d\ns_add_u32 s%d, s%d, 34\nv_add_u32 v%d, s%d, v%d", sA, sWM, sA, sA, sHS, sA, sA, U0, sA, U0) + "\n" + stash(aHsrc, U0))
    Q.append(("mark", "q1"))
    Q.append(L("v_lshrrev_b32 v%d, 7, v0\nv_mul_u32_u24 v%d, 4608, v%d\nv_and_b32 v%d, 127, v0\nv_lshl_add_u32 v%d, v%d, 2, v%d\nv_add_u32 v%d, %d, v%d\nv_mov_b32 v%d, 0", U3, U3, U3, U4, U3, U4, U3, U3, KVR + 4096, U3, U4))
    Q.append(DS("ds_write_b32 v%d, v%d" % (U3, U4), "kvw"))
    Q.append(L("v_lshrrev_b32 v%d, 2, v%d\nv_lshl_add_u32 v%d, v%d, 1, v%d\nv_and_b32 v%d, 3, v%d\nv_lshlrev_b32 v%d, 6, v%d", U0, U7, U0, U5, U0, U3, U7, U3, U3))
    Q.append(L("s_mul_i32 s%d, s%d, %d\ns_lshl_b32 s%d, s%d, 10\ns_add_u32 s%d, s%d, s%d\ns_add_u32 s%d, s%d, %d", sA, sWN, XS, sC, sWM, sB, sA, sC, sB, sB, XB + XS))
    for half, dst in ((0, aCA0), (1, aCA1)):
        if half: Q.append(L("v_add_u32 v%d, 1, v%d", U0, U0))
        Q.append(L("v_lshrrev_b32 v%d, 3, v%d\nv_lshlrev_b32 v%d, 8, v%d\nv_and_b32 v%d, 7, v%d\nv_lshl_add_u32 v%d, v%d, 3, v%d", U4, U0, U4, U4, U1, U0, U4, U1, U4))
        Q.append(L("v_add3_u32 v%d, v%d, v%d, s%d", U4, U4, U3, sB) + "\n" + stash(dst, U4))
    Q.append(L("s_mul_i32 s%d, s%d, 4608\ns_add_u32 s%d, s%d, %d\ns_lshl_b32 s%d, s%d, 8\ns_add_u32 s%d, s%d, s%d\ns_add_u32 s%d, s%d, 480", sA, sWN, sA, sA, KVR, sC, sWM, sB, sA, sC, sB, sB))
    Q.append(L("v_lshlrev_b32 v%d, 5, v%d\nv_sub_u32 v%d, s%d, v%d\nv_lshl_add_u32 v%d, v%d, 4, v%d", U4, U7, U0, sB, U4, U0, U5, U0) + "\n" + stash(aCB, U0))
    Q.append(L("s_lshl_b32 s%d, s%d, 3\ns_sub_u32 s%d, s%d, s%d\ns_add_u32 s%d, s%d, %d", sC, sC, sB, sA, sC, sB, sB, 4088 - 1536))
    Q.append(L("v_sub_u32 v%d, s%d, v%d\nv_lshlrev_b32 v%d, 3, v%d\nv_sub_u32 v%d, v%d, v%d", U0, sB, U4, U4, U5, U0, U0, U4) + "\n" + stash(aCD, U0))
    Q.append(("mark", "q2"))
    Q.append(L("v_lshlrev_b32 v%d, 6, v%d\nv_lshl_add_u32 v%d, v%d, 4, v%d", U0, U7, U0, U5, U0) + "\n" + stash(aZst, U0))
    Q.append(L("s_lshl_b32 s%d, s%d, 11\ns_add_u32 s%d, s%d, s%d\ns_add_u32 s%d, s%d, %d", sA, sWM, sZst, sHS, sA, sZst, sZst, Z_OFF))
    Q.append(L("s_mul_i32 s%d, s%d, %d\ns_lshr_b32 s%d, s%d, 5\ns_add_u32 s%d, s%d, s%d\ns_add_u32 s%d, s%d, %d", sA, sWM, 448 * 128, sZfl, sHS, sZfl, sZfl, sA, sZfl, sZfl, ZF_OFF))
    Q.append(L("s_lshl_b32 s%d, s%d, 1\ns_add_u32 s%d, s%d, s%d\ns_lshl_b32 s%d, s%d, 1\ns_add_u32 s%d, s%d, s%d", sA, sMT, sA, sA, sWN, sA, sA, sA, sA, sFG0))
    Q.append(L("s_lshl_b32 s%d, s%d, 1\ns_add_u32 s%d, s%d, s%d", sB, sDT, sB, sB, sWM))
    Q.append(L("s_lshl_b32 s%d, s%d, 17\ns_lshr_b32 s%d, s%d, 4\ns_lshl_b32 s%d, s%d, 10\ns_add_u32 s%d, s%d, s%d", sZld, sB, sC, sA, sC, sC, sZld, sZld, sC))
    Q.append(L("s_and_b32 s%d, s%d, 7\ns_lshl_b32 s%d, s%d, 7\ns_add_u32 s%d, s%d, s%d\ns_and_b32 s%d, s%d, 8\ns_add_u32 s%d, s%d, s%d\ns_add_u32 s%d, s%d, %d",
               sC, sA, sC, sC, sZld, sZld, sC, sC, sA, sZld, sZld, sC, sZld, sZld, Z_OFF))
    Q.append(L("s_lshl_b32 s%d, s%d, 9\ns_add_u32 s%d, s%d, %d", sSt2, sA, sSt2, sSt2, ST2_OFF))
    Q.append(L("s_and_b32 s%d, s%d, 0xfffffffe\ns_mul_i32 s%d, s%d, %d\ns_mul_i32 s%d, s%d, %d\ns_sub_u32 s%d, %d, s%d", sC, sA, sHbase, sC, 112 * 1024, sHB, sFG0, 112 * 1024, sHA, 112 * 1024, sHB))
    Q.append(L("s_mul_i32 s%d, s%d, %d\ns_lshl_b32 s%d, s%d, 6\ns_add_u32 s%d, s%d, s%d", sA, sA, 32 * 896, sC, sB, sA, sA, sC))
    Q.append(L("v_mul_u32_u24 v%d, 896, v%d\nv_lshlrev_b32 v%d, 4, v%d\nv_add3_u32 v%d, v%d, v%d, s%d", U0, U6, U1, U2, U0, U0, U1, sA) + "\n" + stash(aOo, U0))
    Q.append(L("s_lshr_b32 s%d, s%d, 3\ns_mul_i32 s%d, s%d, 448\ns_lshl_b32 s%d, s%d, 5\ns_add_u32 s%d, s%d, s%d", sA, sMT, sA, sA, sC, sB, sA, sA, sC))
    Q.append(L("v_add_lshl_u32 v%d, v%d, s%d, 7", U0, U6, sA) + "\n" + stash(aPollZ, U0))
    Q.append(L("v_lshlrev_b32 v%d, 15, v%d\nv_lshrrev_b32 v%d, 2, v%d\nv_lshl_add_u32 v%d, v%d, 4, v%d\nv_and_b32 v%d, 3, v%d\nv_lshl_add_u32 v%d, v%d, 1, v%d", U0, U2, U1, U6, U0, U1, U0, U1, U6, U0, U1, U0) + "\n" + stash(aZld, U0))
    Q.append(L("v_lshlrev_b32 v%d, 10, v%d\nv_lshl_add_u32 v%d, v%d, 4, v%d\nv_add_u32 v%d, s%d, v%d", U0, U2, U0, U6, U0, U0, sWL, U0) + "\n" + stash(aRr, U0))
    Q.append(L("s_lshl_b32 s%d, s%d, 2\ns_add_u32 s%d, s%d, s%d\ns_mul_i32 s%d, s%d, 3072\ns_add_u32 s%d, s%d, %d", sA, sC2, sA, sA, sWV, sPld, sA, sPld, sPld, PX_OFF))
    Q.append(L("s_xor_b32 s%d, s%d, 4\ns_mul_i32 s%d, s%d, 3072\ns_add_u32 s%d, s%d, %d", sA, sA, sPst, sA, sPst, sPst, PX_OFF))
    Q.append(L("s_mov_b32 s%d, %d\ns_mov_b32 s%d, %d", sHF, HF_OFF, sZF, ZF_OFF))
    Q.append(L("s_lshl_b32 s%d, s%d, 1\ns_add_u32 s%d, s%d, s%d", sB, sFG0, sB, sB, sWM))
    Q.append(L("s_mul_i32 s%d, s%d, %d\ns_add_u32 s%d, s%d, s%d\ns_add_u32 s%d, s%d, %d\ns_add_u32 s%d, s%d, s%d",
               sC, sB, 28 * 1024, sHbase, sHbase, sC, sHlim, sHbase, 28 * 1024, sHcur, sHbase, sHcur))
    Q.append(L("s_mul_i32 s%d, s%d, 7\ns_lshl_b32 s%d, s%d, 1\ns_add_u32 s%d, s%d, s%d\ns_lshl_b32 s%d, s%d, 5\ns_add_u32 s%d, s%d, s%d", sA, sB, sC, sMT, sC, sC, sWN, sC, sC, sA, sA, sC))
    Q.append(L("v_min_u32 v%d, 6, v%d\nv_add_lshl_u32 v%d, v%d, s%d, 7", U0, vL, U0, U0, sA) + "\n" + stash(aPollH, U0))
    kvl.append(VM("buffer_load_ushort v%d, v%d, %s, s%d offen" % (HB0, TAP, srd(SRD_HK), sHS), "prep"))
    kvl.append(VM("buffer_load_ushort v%d, v%d, %s, s%d offen" % (HB1, TAP + 1, srd(SRD_HK), sHS), "prep"))
    kvl.append(VM("buffer_load_dword v%d, v%d, %s, s%d offen %s" % (77, TAP + 2, srd(SRD_HK), sHS, Cfg.nt_hk), "prep"))
    qparts = [[]]
    for it in Q:
        if isinstance(it, tuple): qparts.append([])
        else: flatten(it, qparts[-1])
    P.append([WVM(("W", 0), ("X", 0)), I("s_barrier")])
    P.append(frag_reads(0))
    P.append(stamp("b0"))

    KN = 20
    A_Q = 16 * KN
    A_CONV = 2 * 232
    def barr(i): return 16 * (2 * i - 1)
    def qa(q, i): return A_Q + 36 * q + 2 * i
    def conv_anchor(g): return A_CONV + g
    T_B11 = qa(0, Cfg.b11); T_BC = qa(3, Cfg.bc); T_BW = conv_anchor(Cfg.bw)
    aX = 160
    sS = Stream("setup")
    sS.addall(qparts[0], after=("prepdone", 2), by=barr(9) - 4)
    sS.addall(qparts[1], by=T_BC - 44)
    sS.addall(qparts[2], by=A_CONV - 10)
    cur = []
    for j in range(7):
        cur.append(I("s_mov_b32 s%d, s%d" % (sG[j], sHcur)))
        if j < 6: cur += [I("s_add_u32 s%d, s%d, 4096" % (sHcur, sHcur)), [I("s_cmp_eq_u32 s%d, s%d" % (sHcur, sHlim)), I("s_cselect_b32 s%d, s%d, s%d" % (sHcur, sHbase, sHcur))]]
    sS.addall(cur, by=A_CONV - 4)
    sF = Stream("frag", cap=2)
    for s in range(KN - 1):
        sF.addall(frag_reads(s + 1), at=16 * s, by=16 * s + 12)
    def xread(ks, nt): return DS("ds_read_b128 %s, v%d offset:%d" % (ar(aX + 8 * (ks - KN) + 4 * nt, 4), vB[ks & 3], ((ks >> 2) % 3) * XS + nt * 4096), ("FX", ks))
    def aread(i):
        q, ks = i >> 3, KN + (i & 7); slot = (ks >> 1) % 6
        base = vA[q] if slot < 3 else vA2[q]
        return [DS("ds_read_b64_tr_b16 %s, v%d offset:%d" % (vr(AF + 4 * (i & 7) + 2 * p, 2), base, (slot % 3) * 16384 + (ks & 1) * 4096 + p * 1024), ("FA", i)) for p in range(2)]
    def use_tick(i): return qa(i >> 3, 2 * (i & 7))
    for i in range(32):
        ea = barr(10) if i < 4 else (A_Q - 16 + 4 * (i - 4) + 4 if i < 8 else use_tick(i - 8) + 4)
        at = aread(i)
        if i < 8: at = [xread(KN + i, 0), xread(KN + i, 1)] + at
        by = use_tick(i) - 6
        if i < 8: by = min(by, T_B11 - 4)
        if i >= 24: by = min(by, T_BC - 4)
        sF.addall(at, at=ea, by=max(by, ea))
    sD = Stream("dma")
    def addgrp(g, at, sp, key=None, by=None):
        at_, adv = g
        sD.add(at_[0], at=at, space=max(sp - 2, 0)); sD.add(at_[1])
        for i, a in enumerate(at_[2:]): sD.add(a, space=sp, key=key if i == 2 else None, by=by)
        for a in adv: sD.add(a)
    sR = Stream("wdread", cap=2)
    vHs = vX[0]
    WD_AT = [barr(9), barr(10), T_B11, T_BC, T_BC, T_BC, T_BC]
    for n, (kind, i) in enumerate(Cfg.order):
        sp = 2 if n < 2 else (Cfg.sp1 if n < Cfg.kx else Cfg.sp2)
        if kind == "W": addgrp(w_group(i), barr(i - 5) if i >= 6 else 0, sp, key=("w", i), by=barr(min(i, 10)) - Cfg.minlead)
        elif kind == "X": addgrp(x_group(i), barr(2 * (i - 3) + 2) if i >= 3 else 0, sp, by=barr(min(2 * i, 10)) - Cfg.minlead)
        elif kind == "K": sD.addall(kvl, key="kvl")
        elif kind == "H":
            sD.add(unstash(vHs, aHsrc), at=T_B11 - 8)
            for q in range(8):
                sD.add([I("s_add_u32 m0, s%d, %d" % (sHL, 1024 * q)), I("s_mov_b32 s%d, %d" % (sZt0, 256 * q))], at=T_B11)
                sD.add(VM("buffer_load_dwordx4 v%d, %s, s%d offen lds" % (vHs, srd(SRD_HK), sZt0), "hdma"), space=0, by=qa(1, 2))
        else:
            addgrp(wd_group(i), WD_AT[i], sp, by=(T_BC if i < 3 else T_BW) - Cfg.minlead)
    for i in range(7):
        sR.addall(wd_reads(i), at=conv_anchor(0) if i < 3 else T_BW, by=T_BW - 2 if i < 3 else conv_anchor(143))
    sP = Stream("prep")
    def unp(dst, src, hi): return I("v_and_b32 v%d, 0xffff0000, v%d" % (dst, src)) if hi else I("v_lshlrev_b32 v%d, 16, v%d" % (dst, src))
    at = [WVM("prep")] + tag_from_epoch(vEp)
    at += [I("v_lshl_or_b32 v%d, v%d, 16, v%d" % (HB0, HB1, HB0)), DS("ds_write_b32 v78, v%d" % HB0, "kvw")]
    for b in range(2):
        for i in range(4): at.append(unp(TAP + i, SKR + 2 * b + (i >> 1), i & 1))
        for a in range(11): at.append(unp(KFv + a, KR + a, b))
        out = OHI if b else OLO
        for w in range(4):
            for (o, R) in ((7 - 2 * w, R0), (6 - 2 * w, R1)):
                at.append(I("v_mul_f32 v%d, v%d, v%d" % (R, KFv + o, TAP + 3)))
                for i in (2, 1, 0): at.append(I("v_fmac_f32 v%d, v%d, v%d" % (R, KFv + o + 3 - i, TAP + i)))
                at.append(unp(VF, VR_ + o, b))
                at.append(I("v_mul_f32 v%d, v%d, v%d" % (R, R, VF)))
            at.append(I("v_cvt_pk_bf16_f32 v%d, v%d, v%d" % (out + w, R0, R1)))
    at.append(unstash(R0, aPsw))
    at.append(DS("ds_write_b128 v%d, %s" % (R0, vr(OLO, 4)), "psw"))
    at.append(DS("ds_write_b128 v%d, %s offset:128" % (R0, vr(OHI, 4)), "psw"))
    B_psw = Cfg.b_psw
    sP.addall(at, after=("kvl", Cfg.prep_lag), by=barr(B_psw) - 2)
    at = [unstash(R1, aPsr), DS("ds_read_b128 %s, v%d" % (vr(36, 4), R1), "psr"), DS("ds_read_b128 %s, v%d offset:4608" % (vr(40, 4), R1), "psr"),
          unstash(R0, aKst)]
    sP.addall(at, at=barr(B_psw), by=barr(B_psw) + 4)
    sP.add([WDS("psr"), VM("buffer_store_dwordx4 %s, v%d, %s, s%d offen sc1" % (vr(36, 4), R0, srd(SRD_WS), sKst0), "kvst")], space=6, by=barr(B_psw) + 12)
    sP.add(VM("buffer_store_dwordx4 %s, v%d, %s, s%d offen sc1" % (vr(40, 4), R0, srd(SRD_WS), sKst1), "kvst"), by=barr(B_psw) + 14, key="prepdone")
    B_kvst = B_psw + Cfg.kv_ack
    assert B_kvst <= 10
    sP.add(flag_store(sKfl, []), at=barr(B_kvst), by=barr(B_kvst) + 2)
    CSF, MB, vPk, vPo, vCo, vMo, KV, vKw, vU0, vU1, vU2 = 32, 48, 56, 57, 58, 59, 62, 60, 71, 72, 61
    assert min(Cfg.cs_at, Cfg.polls_at) > barr(B_psw + 1) + 4
    sQ = Stream("cs")
    ldC = ["buffer_load_dwordx4 %s, v%d, %s, s%d offen offset:%d sc1" % (vr(CSF + 4 * jj, 4), vCo, srd(SRD_WS), sCs, 512 * jj) for jj in range(4)]
    ldM = ["buffer_load_dwordx2 %s, v%d, %s, s%d offen offset:%d sc1" % (vr(MB + 4 * nt, 2), vMo, srd(SRD_WS), sMn, 256 * nt) for nt in range(2)]
    sQ.addall([I("v_and_b32 v%d, 511, v%d" % (vCo, vL16)), I("v_lshrrev_b32 v%d, 1, v%d" % (vMo, vCo))] + [VM(x, "cs") for x in ldC + ldM], at=Cfg.cs_at - 2, by=Cfg.cs_at + 8)
    cmp_ops = ["v_xor_b32 v%d, s%d, v%d" % (vU0, sTAG, CSF + 3), "v_xor_b32 v%d, s%d, v%d" % (vU1, sTAG, CSF + 7), "v_xor_b32 v%d, s%d, v%d" % (vU2, sTAG, CSF + 11),
               "v_or3_b32 v%d, v%d, v%d, v%d" % (vU0, vU0, vU1, vU2), "v_xor_b32 v%d, s%d, v%d" % (vU1, sTAG, CSF + 15), "v_xor_b32 v%d, s%d, v%d" % (vU2, sTAG, MB + 1),
               "v_or3_b32 v%d, v%d, v%d, v%d" % (vU0, vU0, vU1, vU2), "v_xor_b32 v%d, s%d, v%d" % (vU1, sTAG, MB + 5), "v_or_b32 v%d, v%d, v%d" % (vU0, vU0, vU1),
               "v_cmp_ne_u32 vcc, 0, v%d" % vU0]
    c1, c2 = check("C", ldC + ldM, cmp_ops, ["cs"])
    T_CORR = qa(0, 16)
    sQ.addall(c1, at=T_CORR - 22, by=T_CORR - 14)
    sQ.add(c2, by=T_CORR - 14)
    at = [I("v_mov_b32 v%d, 0" % (CSF + 4 * jj + 3)) for jj in range(4)]
    for nt in range(2):
        b = MB + 4 * nt
        at.append(I("v_xor_b32 v%d, 0x80000000, v%d" % (b, b)))
        at.append([I("v_cmp_gt_u32 vcc, 32, v%d" % vL), I("v_mov_b32 v%d, 0" % (b + 2)), I("v_mov_b32 v%d, 0" % (b + 3)), I("v_cndmask_b32 v%d, 0, v%d, vcc" % (b, b))])
        at.append(I("v_lshrrev_b32 v%d, 16, v%d" % (b + 1, b)))
        at.append(I("v_or_b32 v%d, v%d, v%d" % (b, b, b + 1)))
    sQ.addall(at, by=T_CORR - 6)
    sK = Stream("kv")
    ldK = "buffer_load_dword v%d, v%d, %s, s%d offen sc1" % (vPk, vPo, srd(SRD_WS), sKF)
    sK.addall([unstash(vPo, aPollK), VM(ldK, "pollK")], at=Cfg.polls_at - 2, by=Cfg.polls_at + 2)
    c1, c2 = check("K", [ldK], ["v_cmp_ne_u32 vcc, s%d, v%d" % (sTAG, vPk)], ["pollK"])
    pc = Cfg.polls_at + Cfg.polls_lag
    sK.add([c1, c2], at=pc, by=pc)
    sK.add(I("v_lshlrev_b32 v%d, 4, v0" % vKw))
    sK.add(VM("buffer_load_dwordx4 %s, v%d, %s, s%d offen sc1" % (vr(KV, 4), vKw, srd(SRD_WS), sKld0), "kvld"))
    sK.add(VM("buffer_load_dwordx4 %s, v%d, %s, s%d offen sc1" % (vr(KV + 4, 4), vKw, srd(SRD_WS), sKld1), "kvld"), by=pc + 4)
    sK.add(I("v_add_u32 v%d, %d, v%d" % (vKw, KVR, vKw)))
    sK.add([WVM("kvld"), DS("ds_write_b128 v%d, %s" % (vKw, vr(KV, 4)), "kvw")], at=min(pc + Cfg.kv_lag, T_BC - 10), by=T_BC - 8)
    sK.add(DS("ds_write_b128 v%d, %s offset:4608" % (vKw, vr(KV + 4, 4)), "kvw"), by=T_BC - 8)
    sE = Stream("epi")
    vCA0, vCA1, vCB, vCD, vOo, vDv, vHo, vHp, vHt, vHA, vHB = 14, 15, 16, 17, 19, 20, 21, 13, 18, 10, 11
    for tl in range(8):
        jj, nt = tl >> 1, tl & 1
        a = ACC + tl * 16
        at = [I("v_mul_f32 v%d, v%d, v%d" % (a + r, a + r, a + r + 8)) for r in range(8)]
        at += [I("v_cvt_pk_bf16_f32 v%d, v%d, v%d" % (a + 8 + w, a + 2 * w, a + 2 * w + 1)) for w in range(4)]
        at.append(VM("buffer_store_dwordx4 %s, v%d, %s, s%d offen offset:%d sc1" % (vr(a + 8, 4), vL16, srd(SRD_WS), sHst1 if nt else sHst0, jj * 1024), ("hst", jj == 3)))
        ea = qa(jj, 16 + nt) + 4
        if ea >= A_CONV: ea += 1
        sE.addall(at, at=ea, by=ea + 16 if jj < 3 else conv_anchor(Cfg.epi_by), key=("epi", tl))
    def touch(first):
        at = [I("v_and_b32 v%d, 31, v%d" % (vHt, vL)), I("v_min_u32 v%d, 23, v%d" % (vHt, vHt))] if first else [I("v_and_b32 v%d, 7, v%d" % (vHt, vL)), I("v_add_u32 v%d, 24, v%d" % (vHt, vHt))]
        at += [I("v_lshlrev_b32 v%d, 7, v%d" % (vHt, vHt)), I("v_lshrrev_b32 v%d, 5, v%d" % (vDv, vL)),
               I("v_mul_u32_u24 v%d, %d, v%d" % (vDv, 112 * 1024, vDv)), I("v_add_u32 v%d, v%d, v%d" % (vHt, vHt, vDv))]
        return at, VM("buffer_load_dword v%d, v%d, %s, s%d offen sc1" % (12, vHt, srd(SRD_WS), sHst0), "htouch")
    def hflag(word, tags):
        return [WVM(*tags), VM("buffer_store_dword a%d, v%d, %s, s%d offen offset:%d sc1" % (aTag, vFlag0, srd(SRD_WS), sHfl, 4 * word), "flag")]
    for word, gap in ((0, Cfg.hflag0), (1, Cfg.hflag1)):
        ta, tb = touch(word == 0)
        if Cfg.htouch: sE.addall(ta)
        sE.add(hflag(word, [("hst", word == 1)]), at=conv_anchor(gap), by=conv_anchor(gap))
        if Cfg.htouch: sE.add(tb, by=conv_anchor(gap + 1), key=("touch", word))
        elif word: sE.add(I("s_nop 0"), key=("touch", 1))
    CACC = 32
    def cA(dd, r): return 128 + 64 * (dd & 1) + 8 * r
    def cB(dd, m): return 128 + 64 * (dd & 1) + 8 * m + 4
    def conv_reads(dd, r):
        at = [DS("ds_read_b64 %s, v%d offset:%d" % (vr(cA(dd, r) + half * 2, 2), base, 256 * dd + 2048 * r), ("C", dd, r)) for half, base in ((0, vCA0), (1, vCA1))]
        at.append(DS("ds_read_b128 %s, v%d offset:%d" % (vr(cB(dd, r), 4), vCB, 3584 - 512 * r + 64 * dd), ("C", dd, r)))
        return at
    pairs = sorted([(r, m) for r in range(8) for m in range(8 - r)], key=lambda p: (max(p), p))
    first_use = {}
    for i, p in enumerate(pairs): first_use.setdefault(max(p), i)
    sC_ = Stream("convrd", cap=3)
    sC_.addall([unstash(vCA0, aCA0), unstash(vCA1, aCA1), unstash(vCB, aCB), unstash(vCD, aCD)], at=T_BC - 40, by=T_BC - 2, after=(("w", 13), 1))
    for r in range(8): sC_.addall(conv_reads(0, r), at=T_BC, after=(("epi", r >> 1), 1), by=conv_anchor(first_use[r] - 6))
    for r in range(8): sC_.addall(conv_reads(1, r), after=(("epi", 4 + (r >> 1)), 1), by=conv_anchor(36 + first_use[r] - 8))
    for dd in (2, 3):
        for r in range(8): sC_.addall(conv_reads(dd, r), at=conv_anchor(36 * (dd - 1)), by=conv_anchor(36 * dd + first_use[r] - 8))
    XE = 2
    sM = Stream("misc")
    sM.add(unstash(vOo, aOo), at=conv_anchor(Cfg.xe_at))
    sM.add(VM("buffer_load_dwordx4 %s, v%d, %s, 0 offen" % (vr(XE, 4), vOo, srd(SRD_X)), "xe"))
    sM.add(VM("buffer_load_dwordx4 %s, v%d, %s, 0 offen offset:32" % (vr(XE + 4, 4), vOo, srd(SRD_X)), "xe"), space=2)
    sM.add([I("s_lshr_b32 s%d, s%d, 11" % (sZt1, sHS)), I("v_mov_b32 v%d, 0" % vHo)])
    sM.add(VM("buffer_load_ushort v%d, v%d, %s, s%d offen" % (0, vHo, srd(SRD_DD), sZt1), "xe"), space=2)
    sM.addall([unstash(vHo, aPollH), I("v_add_u32 v%d, s%d, v%d" % (vHA, sHA, vL16)), I("v_add_u32 v%d, s%d, v%d" % (vHB, sHB, vL16))])
    ldH = ["buffer_load_dword v%d, v%d, %s, s%d offen offset:%d sc1" % (vHp, vHo, srd(SRD_WS), sHF, 4 * w) for w in range(2)]
    sM.add(VM(ldH[0], "pollH"), at=conv_anchor(Cfg.hpoll), by=conv_anchor(Cfg.hpoll))
    NP = 32
    def hreg(f): return vr(64 + 4 * (f % NP), 4)
    def fidx(f): return f // 28, (f % 28) // 7, f % 7
    def hload(f):
        jt, jj, j = fidx(f)
        return VM("buffer_load_dwordx4 %s, v%d, %s, s%d offen offset:%d sc1" % (hreg(f), vHB if jt else vHA, srd(SRD_WS), sG[j], jj * 1024), ("H", f))
    hc1, hc2 = check("H", [ldH[0]], ["v_cmp_ne_u32 vcc, s%d, v%d" % (sTAG, vHp)], ["pollH"])
    nh = 0
    if Cfg.hcheck < 144:
        sM.add([hc1, hc2] + stamp("hok"), at=conv_anchor(Cfg.hcheck), by=conv_anchor(Cfg.hcheck))
        while nh < 16 and Cfg.hcheck + 1 + 3 * nh < 142:
            sM.add(hload(nh), space=3 if nh else 0, by=conv_anchor(143)); nh += 1

    SC = Sched([sF, sC_, sE, sD, sQ, sK, sM, sR, sS, sP])
    usage = []
    def emit_gap(now, budget, pre=0.0):
        o, u = SC.fill(now, budget - pre)
        P.append(o); usage.append(u + pre)
    def barrier(w, wd):
        o = [WVM(*w)] if w else []
        if wd: o.append(WDS(*wd))
        o.append(I("s_barrier"))
        return o
    def barrier_i(i):
        w = [("W", i)]; wd = []
        if i % 2 == 0: w.append(("X", i // 2))
        if i == 10: w += [("W", 11), ("W", 12), ("W", 13), ("X", 6)]
        if i == B_kvst: w.append("kvst")
        if i == B_psw: wd.append("psw")
        return barrier(w, wd)
    def mf32(a, A_, B_, first): return "v_mfma_f32_32x32x16_bf16 %s, %s, %s, %s" % (vr(a, 16), A_, B_, "0" if first else vr(a, 16))
    for s in range(KN):
        buf = s & 1
        P.append(WDS(("F", s)))
        if s in Cfg.stamps_k: P.append(stamp("k%d" % s))
        for m in range(8):
            jj, nt = m >> 1, m & 1
            P.append(mf32(ACC + m * 16, vr(AF + buf * 16 + jj * 4, 4), vr(BF + buf * 8 + nt * 4, 4), s == 0))
            pre = 1.0 if m == 7 else 0.0
            if m == 0 and (s & 1):
                P.append(barrier_i((s + 1) // 2)); pre = 2.0
            emit_gap(16 * s + 2 * m, Cfg.b32, pre)
    P.append(stamp("k20"))
    for q in range(4):
        for i in range(18):
            nt = i & 1; a = ACC + (2 * q + nt) * 16
            if i < 16:
                fi = 8 * q + (i >> 1)
                if nt == 0: P.append(WDS(("FA", fi), ("FX", KN + (i >> 1))))
                P.append(mf32(a, vr(AF + 4 * (fi & 7), 4), ar(aX + 8 * (i >> 1) + 4 * nt, 4), False))
            else: P.append(mf32(a, vr(CSF + q * 4, 4), vr(MB + nt * 4, 4), False))
            pre = 1.0 if nt else 0.0
            if qa(q, i) == T_B11: P.append(barrier([], [("FX", 27)])); pre += 2
            if qa(q, i) == T_BC: P.append(barrier(["hdma", ("WD", 0), ("WD", 1), ("WD", 2)], ["kvw", ("FA", 31)])); pre += 2
            emit_gap(qa(q, i), Cfg.b32, pre)
        if q == 0: P.append(stamp("q0"))
    P.append(stamp("g1end"))
    gi = 0
    for dd in range(4):
        seen = set()
        for i, (r, m) in enumerate(pairs):
            if first_use[max(r, m)] == i: P.append(WDS(("C", dd, max(r, m))))
            a = CACC + (r + m) * 4
            P.append("v_mfma_f32_16x16x32_bf16 %s, %s, %s, %s" % (vr(a, 4), vr(cA(dd, r), 4), vr(cB(dd, m), 4), "0" if (dd == 0 and (r + m) not in seen) else vr(a, 4)))
            seen.add(r + m)
            if conv_anchor(gi) == T_BW: P.append(barrier([("WD", u) for u in range(3, 7)], [("WR", 2)]))
            emit_gap(conv_anchor(gi), Cfg.b16)
            gi += 1
    assert SC.done(), SC.left()
    Cfg._usage1 = usage; Cfg._log1 = SC.log
    P.append(stamp("convend"))

    CM, CP, CK, vT0, vT1, vT2 = 192, 208, 224, 22, 23, 24
    P.append(L("v_add_u32 v%d, s%d, v%d\nv_xor_b32 v%d, 4096, v%d", vT0, sWL, vL16, vT1, vT0))
    P.append(L("v_add_u32 v%d, %d, v%d\nv_add_u32 v%d, %d, v%d", 234, CEX, vT0, 235, CEX, vT1))
    for k in range(4): P.append(DS("ds_read_b64 %s, v%d offset:%d" % (vr(CK + 2 * k, 2), vCD, 512 * (3 - k)), "cxk"))
    P.append(unstash(vT2, aZst))
    P.append(L("s_cmp_eq_u32 s%d, 0\ns_cbranch_scc0 L_cx1", sWM))
    for k in range(4): P.append(DS("ds_write_b128 v234, %s offset:%d" % (vr(CACC + 16 + 4 * k, 4), 1024 * k), "cxw"))
    for k in range(16): P.append("v_mov_b32 v%d, v%d" % (CM + k, CACC + k))
    P.append(RAW("s_branch L_cx2\nL_cx1:"))
    for k in range(4): P.append(RAW("ds_write_b128 v234, %s offset:%d" % (vr(CACC + 4 * k, 4), 1024 * k)))
    for k in range(16): P.append(RAW("v_mov_b32 v%d, v%d" % (CM + k, CACC + 16 + k)))
    P.append(RAW("L_cx2:"))
    if Cfg.hcheck >= 144:
        P.append([hc1, hc2]); P.append(stamp("hok"))
    n0 = nh
    while nh < min(n0 + Cfg.nfirst, 21): P.append(hload(nh)); nh += 1
    P.append([WDS("cxw"), I("s_barrier")])
    for k in range(4): P.append(DS("ds_read_b128 %s, v235 offset:%d" % (vr(CP + 4 * k, 4), 1024 * k), "cxr"))
    P.append([WVM("xe"), I("v_lshlrev_b32 v0, 16, v0")])
    for k in range(4):
        lo, hi = CK + 2 * k, CK + 1 + 2 * k
        P.append("v_and_b32 v232, 0xffff0000, v%d\nv_fmac_f32 v%d, v232, v0" % (hi, CM + 4 * k + 0))
        P.append("v_lshlrev_b32 v233, 16, v%d\nv_fmac_f32 v%d, v233, v0" % (hi, CM + 4 * k + 1))
        P.append("v_and_b32 v232, 0xffff0000, v%d\nv_fmac_f32 v%d, v232, v0" % (lo, CM + 4 * k + 2))
        P.append("v_lshlrev_b32 v233, 16, v%d\nv_fmac_f32 v%d, v233, v0" % (lo, CM + 4 * k + 3))
        if nh < 21: P.append(hload(nh)); nh += 1
    P.append(WDS("cxr"))
    ZO = 48
    for k in range(4):
        for r in range(4): P.append("v_add_f32 v%d, v%d, v%d" % (CM + 4 * k + r, CM + 4 * k + r, CP + 4 * k + r))
        for w in range(2): P.append("v_cvt_pk_bf16_f32 v%d, v%d, v%d" % (ZO + 2 * k + w, CM + 4 * k + 2 * w, CM + 4 * k + 2 * w + 1))
    if Cfg.h2_early: P.append(VM(ldH[1], "pollH2"))
    for j in range(2): P.append(VM("buffer_store_dwordx4 %s, v%d, %s, s%d offen offset:%d sc1" % (vr(ZO + 4 * j, 4), vT2, srd(SRD_WS), sZst, 1024 * j), "zst"))
    P.append(stamp("zst"))

    ACA, ACB, ZV, XF, ST = 192, 224, 32, 48, 26
    vZp, vZo, vSo, vRr = 14, 15, 16, 17
    RR, GR = 160, 176
    sH = Stream("hload")
    g1, g2_ = check("H2", [ldH[1]], ["v_cmp_ne_u32 vcc, s%d, v%d" % (sTAG, vHp)], ["pollH2"])
    if not Cfg.h2_early: sH.add(VM(ldH[1], "pollH2"), at=Cfg.h2poll)
    for f in range(nh, 56):
        if f == 21: sH.add([g1, g2_], at=Cfg.h2check, by=2 * f - 10)
        ea = 2 * (f - NP) + 2 if f >= NP else 0
        sH.add(hload(f), at=ea, space=Cfg.hsp, by=2 * f - 6)
    sZ = Stream("z")
    sZ.add(flag_store(sZfl, ["zst"]), at=Cfg.zflag, by=Cfg.zflag)
    ldZ = "buffer_load_dword v%d, v%d, %s, s%d offen sc1" % (vZp, vZo, srd(SRD_WS), sZF)
    ldS = "buffer_load_dwordx4 %s, v%d, %s, s%d offen sc1" % (vr(ST, 4), vSo, srd(SRD_WS), sSt2)
    sZ.addall([unstash(vZo, aPollZ), I("v_and_b32 v%d, 511, v%d" % (vSo, vL16))] + [I("v_mov_b32 v%d, 0" % (ZV + e)) for e in range(16)])
    sZ.add(VM(ldZ, "pollZ"), at=Cfg.zpoll)
    sZ.add(VM(ldS, "pollZ"))
    cmp_ops = ["v_xor_b32 v%d, s%d, v%d" % (vZp, sTAG, vZp), "v_xor_b32 v%d, s%d, v%d" % (ST + 3, sTAG, ST + 2),
               "v_or_b32 v%d, v%d, v%d" % (vZp, vZp, ST + 3), "v_cmp_ne_u32 vcc, 0, v%d" % vZp]
    c1, c2 = check("Z", [ldZ, ldS], cmp_ops, ["pollZ"])
    sZ.add([c1, c2], at=Cfg.zpoll + Cfg.zlag)
    sZ.add(unstash(vZo, aZld))
    for e in range(16):
        t = (sZt0, sZt1)[e & 1]
        sZ.add([I("s_add_u32 s%d, s%d, %d" % (t, sZld, (16 * (e >> 3) + (e & 7)) * 4096)),
                VM("buffer_load_short_d16_hi v%d, v%d, %s, s%d offen sc1" % (ZV + e, vZo, srd(SRD_WS), t), "zld")], by=108)
    sZ.add(I("v_mul_f32 v%d, v%d, v%d" % (ST, ST, ST + 1)))
    sZ.add(I("v_mul_f32 v%d, v%d, v%d" % (ST + 2, ST + 1, ST + 1)))
    sX = Stream("x")
    sX.addall([unp(XF + i, XE + (i >> 1), i & 1) for i in range(16)], at=8)
    sX.add(unstash(vRr, aRr))
    A_BAR = 56 + Cfg.bar_a
    assert A_BAR >= 64
    sX.addall([DS("ds_write_b128 v%d, %s offset:%d" % (vT1, vr(ACA + 16 + rq * 4, 4), REDA + rq * 1024), "rwa") for rq in range(4)], at=58, space=1, by=A_BAR - 3)
    sX.addall([DS("ds_read_b128 %s, v%d offset:%d" % (vr(ACA + 16 + rq * 4, 4), vT0, REDA + rq * 1024), "rra") for rq in range(4)], at=A_BAR, by=A_BAR + 1)
    def gpos(b, w): return b + (w // 3) * 4 + (w % 3)
    sX.addall([I("v_mov_b32 v%d, s%d" % (GR + 4 * k + 3, sTAG)) for k in range(3)])
    first = True
    for w in range(8):
        for i in (2 * w, 2 * w + 1):
            op = I("v_add_f32 v%d, v%d, v%d" % (ACA + i, ACA + i, ACA + 16 + i))
            if first: sX.add([WDS("rra"), op], space=2); first = False
            else: sX.add(op)
        sX.add(I("v_cvt_pk_bf16_f32 v%d, v%d, v%d" % (gpos(GR, w), ACA + 2 * w, ACA + 2 * w + 1)))
        if w % 3 == 2 or w == 7:
            k = w // 3
            sX.add(VM("buffer_store_dwordx4 %s, v%d, %s, s%d offen offset:%d sc1" % (vr(GR + 4 * k, 4), vL16, srd(SRD_WS), sPst, k * 1024), "pst"), by=A_BAR + 10)
    ldP = ["buffer_load_dwordx4 %s, v%d, %s, s%d offen offset:%d sc1" % (vr(ACA + 4 * k, 4), vL16, srd(SRD_WS), sPld, k * 1024) for k in range(3)]
    sX.addall([VM(x, "pld") for x in ldP], at=Cfg.pld, by=111)
    SC = Sched([sH, sX, sZ])
    usage = []
    for f in range(56):
        jt, jj, j = fidx(f)
        P.append(WVM(("H", f)))
        if f in Cfg.stamps_f: P.append(stamp("f%d" % f))
        for jd in range(2):
            a = (ACB if jt else ACA) + jd * 16
            P.append(mf32(a, ar(8 * (4 * j + jj) + 4 * jd, 4), hreg(f), f % 28 == 0))
            now = 2 * f + jd
            if now == A_BAR: P.append([WDS("rwa"), I("s_barrier")])
            emit_gap(now, Cfg.b32, 1.0 if jd else 0.0)
    assert SC.done(), SC.left()
    Cfg._usage2 = usage
    P.append(stamp("g2end"))
    fin = []
    for i in range(16):
        fin.append("v_fma_f32 v%d, v%d, v%d, -v%d" % (vZp, XF + i, ST + 1, ST))
        fin.append("v_fma_f32 v%d, v%d, v%d, v%d" % (ZV + i, vZp, ZV + i, XF + i))
    P.append(WVM("zld"))
    P.append(fin[:12])
    for rq in range(4): P.append(DS("ds_write_b128 v%d, %s offset:%d" % (vT1, vr(ACB + 16 + rq * 4, 4), REDB + rq * 1024), "rwb"))
    P.append(fin[12:])
    P.append([WDS("rwb"), I("s_barrier")])
    for kk in range(2):
        for hs in range(2):
            P.append(DS("ds_read_b128 %s, v%d offset:%d" % (vr(RR + kk * 8 + hs * 4, 4), vRr, REDB + kk * 2048 + hs * 512), "rrb"))
    cmp_ops = ["v_xor_b32 v%d, s%d, v%d" % (ACA + 4 * k + 3, sTAG, ACA + 4 * k + 3) for k in range(3)]
    cmp_ops += ["v_or3_b32 v%d, v%d, v%d, v%d" % (ACA + 3, ACA + 3, ACA + 7, ACA + 11), "v_cmp_ne_u32 vcc, 0, v%d" % (ACA + 3)]
    c1, c2 = check("P", ldP, cmp_ops, ["pld"])
    P.append([c1, c2])
    for i in range(16):
        P.append(unp(ACA + 16 + i, gpos(ACA, i >> 1), i & 1))
        P.append("v_add_f32 v%d, v%d, v%d" % (ACB + i, ACB + i, ACA + 16 + i))
    P.append("s_nop 1")
    for kk in range(2):
        for i in range(4): P.append("v_permlane32_swap_b32 v%d, v%d" % (ACB + 8 * kk + i, ACB + 8 * kk + 4 + i))
    P.append(WDS("rrb"))
    for kk in range(2):
        for i in range(8): P.append("v_add_f32 v%d, v%d, v%d" % (ACB + 8 * kk + i, ACB + 8 * kk + i, RR + 8 * kk + i))
        for i in range(8): P.append("v_fma_f32 v%d, v%d, v%d, v%d" % (ACB + 8 * kk + i, ACB + 8 * kk + i, ST + 2, ZV + 8 * kk + i))
        for w in range(4): P.append("v_cvt_pk_bf16_f32 v%d, v%d, v%d" % (64 + 4 * kk + w, ACB + 8 * kk + 2 * w, ACB + 8 * kk + 2 * w + 1))
        P.append(VM("buffer_store_dwordx4 %s, v%d, %s, 0 offen offset:%d" % (vr(64 + 4 * kk, 4), vOo, srd(SRD_OUT), 32 * kk), "out"))
    P.append(diag_tail())
    P.append("s_endpgm")
    return P
Cfg.order = [("W", 2), ("X", 1), ("K", 0), ("W", 3), ("W", 4), ("X", 2), ("W", 5), ("W", 6), ("X", 3), ("W", 7), ("W", 8), ("X", 4), ("W", 9),
             ("W", 10), ("X", 5), ("W", 11), ("W", 12), ("X", 6), ("W", 13), ("D", 0), ("D", 1), ("H", 0), ("D", 2), ("D", 3), ("D", 4), ("D", 5), ("D", 6)]
Cfg.minlead = 24; Cfg.prep_lag = 48; Cfg.htouch = True; Cfg.hcheck = 110; Cfg.pld = 104; Cfg.nws = 6
Cfg.q_pro = 0; Cfg.b11 = 8; Cfg.bc = 8; Cfg.bw = 96; Cfg.cs_at = 290; Cfg.hflag0 = 40; Cfg.hflag1 = 100; Cfg.xe_at = 44
Cfg.h2_early = True; Cfg.h2poll = 0; Cfg.h2check = 14
Cfg.epi_prio = True; Cfg.stamps_f = (); Cfg.b_psw = 6; Cfg.kv_ack = 2; Cfg.epi_by = 8; Cfg.hcheck_early = True; Cfg.hsp = 1; Cfg.bar_a = 10

def gen_helper():
    stamp_n[0] = 0
    P = [WDS0()]
    if Cfg.diag: P.append("s_mov_b32 s89, s88")
    P.append(build_srd(SRD_X, 4, S * D * 2)); P.append(build_srd(SRD_WS, 28, WS_SIZE))
    P.append(L("s_and_b32 s%d, s2, 7\ns_lshr_b32 s%d, s2, 3", sA, sB))
    P.append(L("s_lshl_b32 s%d, s%d, 2\ns_add_u32 s%d, s%d, s%d", sT, sA, sT, sT, sB))
    P.append(L("s_lshr_b32 s%d, s%d, 1\ns_lshl_b32 s%d, s%d, 2\ns_add_u32 s%d, s%d, s%d", sC2, sA, sC2, sC2, sC2, sC2, sB))
    P.append(L("s_and_b32 s%d, s%d, 1\ns_mul_i32 s%d, s%d, 7\ns_add_u32 s%d, s%d, s%d", sA, sA, sFT, sA, sFT, sFT, sC2))
    P.append(L("s_cmp_ge_u32 s%d, 7\ns_cselect_b32 s%d, s20, s18\ns_cselect_b32 s%d, s21, s19", sC2, SRD_W1, SRD_W1 + 1))
    P.append(L("s_cselect_b32 s%d, 1, 0\ns_cselect_b32 s%d, 7, 0\ns_sub_u32 s%d, s%d, s%d", sMT, sA, sFT, sFT, sA))
    P.append(L("s_mov_b32 s%d, %d\ns_mov_b32 s%d, 0x00020000", SRD_W1 + 2, D * F * 2, SRD_W1 + 3))
    sNO, sONE, sLO, sHI, sSTO = sWL, sXL, sWo, sXo, sDo
    P.append(L("s_cmp_ge_u32 s%d, 14\ns_cselect_b32 s%d, 0x40000000, 0", sC2, sNO))
    V0, V1, V2, V3, V4, V5 = 2, 3, 4, 5, 6, 7
    P.append(L("s_lshl_b32 s%d, s%d, 2\ns_add_u32 s%d, s%d, s%d\ns_mul_i32 s%d, s%d, %d\ns_add_u32 s%d, s%d, %d", sA, sT, sA, sA, sWV, sA, sA, 16 * 896, sB, sA, 8 * 896))
    P.append(L("v_lshrrev_b32 v%d, 3, v%d\nv_mul_u32_u24 v%d, 896, v%d\nv_and_b32 v%d, 7, v%d\nv_lshl_add_u32 v%d, v%d, 4, v%d", V0, vL, V0, V0, V1, vL, V0, V1, V0))
    P.append(L("s_getpc_b64 s[%d:%d]", sC, sC + 1))
    P.append(RAW("L_touch_base2:"))
    P.append(L("s_sub_u32 s%d, s%d, L_touch_base2-L_main\ns_subb_u32 s%d, s%d, 0", sC, sC, sC + 1, sC + 1))
    P.append(L("s_lshr_b32 s%d, s2, 3\ns_lshl_b32 s%d, s%d, 13\nv_lshrrev_b32 v%d, 2, v0\nv_lshlrev_b32 v%d, 7, v%d\nv_add_u32 v%d, s%d, v%d", sZt0, sZt0, sZt0, V4, V4, V4, V4, sZt0, V4))
    P.append(L("v_min_u32 v%d, L_end_of_code-L_main-4, v%d", V4, V4))
    P.append(VM("global_load_dword v%d, v%d, s[%d:%d]" % (8, V4, sC, sC + 1), "touch"))
    P.append(L("s_mov_b32 s%d, %d\nv_mov_b32 v%d, 0", sZt0, EP_OFF, V4))
    P.append(VM("buffer_load_dword v%d, v%d, %s, s%d offen sc1" % (V5, V4, srd(SRD_WS), sZt0), "ep"))
    for grp in range(2):
        for i in range(7):
            P.append(VM("buffer_load_dwordx4 %s, v%d, %s, s%d offen offset:%d %s" % (vr(32 + (grp * 7 + i) * 4, 4), V0, srd(SRD_X), sB if grp else sA, 128 * i, Cfg.nt_x), ("hx", grp)))
    P.append(L("v_lshrrev_b32 v%d, 4, v0\nv_mul_u32_u24 v%d, 3584, v%d\nv_and_b32 v%d, 15, v0\nv_lshl_add_u32 v%d, v%d, 4, v%d", V2, V2, V2, V3, V2, V3, V2))
    P.append(L("s_lshl_b32 s%d, s%d, 8\ns_add_u32 s%d, s%d, s%d", sD_, sFT, sD_, sD_, sNO))
    def wl(i):
        return ["s_add_u32 s%d, s%d, %d" % (sB, sD_, 16 * i * 3584),
                VM("buffer_load_dwordx4 %s, v%d, %s, s%d offen %s" % (vr(128 + 4 * i, 4), V2, srd(SRD_W1), sB, Cfg.nt_w), ("hw", i))]
    def red8(v):
        return ["s_nop 1", "v_add_f32_dpp v%d, v%d, v%d quad_perm:[1,0,3,2] row_mask:0xf bank_mask:0xf" % (v, v, v), "s_nop 1",
                "v_add_f32_dpp v%d, v%d, v%d quad_perm:[2,3,0,1] row_mask:0xf bank_mask:0xf" % (v, v, v), "s_nop 1",
                "v_add_f32_dpp v%d, v%d, v%d row_half_mirror row_mask:0xf bank_mask:0xf" % (v, v, v)]
    INV448 = 0x3b124925
    P.append(L("s_mov_b32 s%d, 0x3f803f80\ns_mov_b32 s%d, 0x00003f80\ns_mov_b32 s%d, 0x3f800000", sONE, sLO, sHI))
    U0, U1 = 88, 89
    MEAN = [90, 91]; G = [92, 96]
    vSo, vSo2 = 100, 101
    P.append(L("v_and_b32 v%d, 7, v%d\nv_cmp_eq_u32 vcc, 0, v%d\nv_mov_b32 v%d, %s\nv_lshlrev_b32 v%d, 1, v%d\nv_cndmask_b32 v%d, v%d, v%d, vcc\nv_cndmask_b32 v%d, v%d, v%d, vcc",
               V0, vL, V0, V1, OOB, V3, vL, vSo, V1, vL, vSo2, V1, V3))
    P.append(L("s_lshl_b32 s%d, s%d, 2\ns_add_u32 s%d, s%d, s%d\ns_lshl_b32 s%d, s%d, 7\ns_add_u32 s%d, s%d, %d", sA, sT, sA, sA, sWV, sA, sA, sSTO, sA, ST_OFF))
    P.append(L("s_lshl_b32 s%d, s%d, 1\ns_add_u32 s%d, s%d, %d", sA, sA, sZt1, sA, ST2_OFF))
    P.append(WVM("ep")); P.append(tag_from_epoch(V5))
    nw = 0
    for grp in range(2):
        base = 32 + grp * 28
        P.append(L("v_mov_b32 v%d, 0\nv_mov_b32 v%d, 0", U0, U1))
        P.append(WVM(("hx", grp)))
        for k in range(5): P.append(wl(nw)); nw += 1
        for r in range(28): P.append("v_dot2c_f32_bf16 v%d, s%d, v%d" % (U1 if r & 1 else U0, sONE, base + r))
        P.append(L("s_nop 2\nv_add_f32 v%d, v%d, v%d", MEAN[grp], U0, U1))
        P.append(red8(MEAN[grp]))
        P.append(L("v_mul_f32 v%d, 0x%x, v%d", MEAN[grp], INV448, MEAN[grp]))
        P.append(L("v_cvt_pk_bf16_f32 v%d, v%d, v%d\nv_lshlrev_b32 v%d, 16, v%d\nv_mov_b32 v%d, s%d", G[grp], MEAN[grp], MEAN[grp], G[grp], G[grp], G[grp] + 1, sTAG))
        P.append(VM("buffer_store_dwordx2 %s, v%d, %s, s%d offen offset:%d sc1" % (vr(G[grp], 2), vSo, srd(SRD_WS), sSTO, 64 * grp), "mst"))
    P.append(stamp("mean"))
    var = []
    for grp in range(2):
        SQ = 102 + 2 * grp; base = 32 + grp * 28
        var.append(L("v_mov_b32 v%d, 0\nv_mov_b32 v%d, 0", SQ, SQ + 1))
        for r in range(28):
            var.append(L("v_lshlrev_b32 v%d, 16, v%d\nv_and_b32 v%d, 0xffff0000, v%d\nv_sub_f32 v%d, v%d, v%d\nv_sub_f32 v%d, v%d, v%d\nv_fmac_f32 v%d, v%d, v%d\nv_fmac_f32 v%d, v%d, v%d",
                         U0, base + r, U1, base + r, U0, U0, MEAN[grp], U1, U1, MEAN[grp], SQ, U0, U0, SQ + 1, U1, U1))
    CSUM = 108
    for e in range(8): P.append("v_mov_b32 v%d, 0" % (CSUM + e))
    vi = 0
    for i in range(28):
        if nw < 28: P.append(wl(nw)); nw += 1
        for k in range(Cfg.h_var):
            if vi < len(var): P.append(var[vi]); vi += 1
        P.append(WVM(("hw", i)))
        for w in range(4):
            src = 128 + 4 * i + w
            P.append("v_dot2c_f32_bf16 v%d, s%d, v%d\nv_dot2c_f32_bf16 v%d, s%d, v%d" % (CSUM + 2 * w, sLO, src, CSUM + 2 * w + 1, sHI, src))
    P.append(L("v_lshlrev_b32 v%d, 5, v0\ns_nop 2", V0))
    P.append(RAW("ds_write_b128 v%d, v[108:111]\nds_write_b128 v%d, v[112:115] offset:16" % (V0, V0)))
    P.append(WDS0()); P.append("s_barrier")
    P.append(L("v_and_b32 v%d, 127, v0\nv_lshlrev_b32 v%d, 2, v%d", V1, V0, V1))
    for rg in range(16): P.append(RAW("ds_read_b32 v%d, v%d offset:%d" % (128 + rg, V0, rg * 512)))
    P.append(L("v_lshrrev_b32 v%d, 4, v%d\nv_lshlrev_b32 v%d, 9, v%d\nv_and_b32 v%d, 15, v%d\nv_lshl_add_u32 v%d, v%d, 4, v%d", V2, V1, V2, V2, V3, V1, V2, V3, V2))
    P.append(L("v_cmp_gt_u32 vcc, 128, v0\nv_mov_b32 v%d, %s\ns_nop 0\nv_cndmask_b32 v%d, v%d, v%d, vcc", V3, OOB, V2, V3, V2))
    P.append(L("s_lshl_b32 s%d, s%d, 12\ns_lshl_b32 s%d, s%d, 8\ns_add_u32 s%d, s%d, s%d\ns_add_u32 s%d, s%d, %d\ns_add_u32 s%d, s%d, s%d", sA, sFT, sB, sMT, sA, sA, sB, sA, sA, CS_OFF, sA, sA, sNO))
    P.append(WDS0())
    for st in (1, 2, 4, 8):
        for rg in range(0, 16, 2 * st): P.append("v_add_f32 v%d, v%d, v%d" % (128 + rg, 128 + rg, 128 + rg + st))
    P.append("v_cvt_pk_bf16_f32 v116, v128, v128\nv_lshlrev_b32 v117, 16, v116\nv_sub_f32 v128, v128, v117")
    P.append("v_cvt_pk_bf16_f32 v118, v128, v128\nv_lshlrev_b32 v117, 16, v118\nv_sub_f32 v128, v128, v117")
    P.append("v_and_b32 v116, 0xffff, v116\nv_or_b32 v116, v116, v117")
    P.append(L("v_cvt_pk_bf16_f32 v117, v128, v128\nv_and_b32 v117, 0xffff, v117\nv_mov_b32 v118, 0\nv_mov_b32 v119, s%d", sTAG))
    P.append(VM("buffer_store_dwordx4 v[116:119], v%d, %s, s%d offen sc1" % (V2, srd(SRD_WS), sA), "cst"))
    P.append(stamp("cs"))
    P.append(var[vi:])
    for grp in range(2):
        SQ = 102 + 2 * grp
        P.append(L("v_add_f32 v%d, v%d, v%d", SQ, SQ, SQ + 1))
        P.append(red8(SQ))
        P.append(L("v_mul_f32 v%d, 0x%x, v%d", SQ, INV448, SQ))
        P.append(L("v_cvt_pk_bf16_f32 v%d, v%d, v%d\nv_lshlrev_b32 v%d, 16, v%d", SQ, SQ, SQ, SQ, SQ))
        P.append(L("v_add_f32 v%d, 0x3727c5ac, v%d", SQ, SQ))
        P.append(L("v_cvt_pk_bf16_f32 v%d, v%d, v%d\nv_lshlrev_b32 v%d, 16, v%d", SQ, SQ, SQ, SQ, SQ))
        P.append(L("v_sqrt_f32 v%d, v%d\ns_nop 0", SQ, SQ))
        P.append(L("v_cvt_pk_bf16_f32 v%d, v%d, v%d\nv_lshlrev_b32 v%d, 16, v%d", SQ, SQ, SQ, SQ, SQ))
        P.append(L("v_rcp_f32 v%d, v%d\nv_mov_b32 v%d, s%d\nv_mov_b32 v%d, 0", G[grp] + 1, SQ, G[grp] + 2, sTAG, G[grp] + 3))
        P.append(VM("buffer_store_dwordx4 %s, v%d, %s, s%d offen offset:%d sc1" % (vr(G[grp], 4), vSo2, srd(SRD_WS), sZt1, 128 * grp), "rst"))
    P.append(stamp("rstd"))
    P.append(L("s_cmp_lg_u32 s2, 0\ns_cbranch_scc1 L_h_end\ns_cmp_lg_u32 s%d, 0\ns_cbranch_scc1 L_h_end", sWV))
    P.append(L("v_lshlrev_b32 v%d, 7, v%d\nv_and_b32 v%d, 31, v%d\nv_lshlrev_b32 v%d, 7, v%d\ns_mov_b32 s%d, 0", V0, vL, V1, vL, V1, V1, sSPIN))
    P.append(RAW("L_ep_spin:"))
    for i in range(3):
        P.append("s_mov_b32 s%d, %d" % (sA, KF_OFF + 8192 * i))
        P.append(RAW("buffer_load_dword v%d, v%d, %s, s%d offen sc1" % (32 + i, V0, srd(SRD_WS), sA)))
    P.append("s_mov_b32 s%d, %d" % (sA, KF_OFF + 8192 * 3))
    P.append(RAW("buffer_load_dword v35, v%d, %s, s%d offen sc1" % (V1, srd(SRD_WS), sA)))
    for i in range(2):
        P.append("s_mov_b32 s%d, %d" % (sA, ST_OFF + 8192 * i + 4))
        P.append(RAW("buffer_load_dword v%d, v%d, %s, s%d offen sc1" % (36 + i, V0, srd(SRD_WS), sA)))
    P.append(WVM0())
    for i in range(6): P.append("v_xor_b32 v%d, s%d, v%d" % (32 + i, sTAG, 32 + i))
    for i in range(1, 6): P.append("v_or_b32 v32, v32, v%d" % (32 + i))
    P.append("v_cmp_ne_u32 vcc, 0, v32")
    P.append(L("s_add_u32 s%d, s%d, 1\ns_cmp_lt_u32 s%d, %d\ns_cbranch_scc0 L_ep_go", sSPIN, sSPIN, sSPIN, Cfg.spin))
    P.append("s_cbranch_vccz L_ep_go\ns_sleep 32\ns_branch L_ep_spin")
    P.append(RAW("L_ep_go:"))
    P.append("s_mov_b32 s%d, %d" % (sA, EP_OFF))
    P.append(RAW("buffer_store_dword a%d, v%d, %s, s%d offen sc1" % (aTag, vFlag0, srd(SRD_WS), sA)))
    P.append(RAW("L_h_end:"))
    P.append(diag_tail())
    P.append("s_endpgm")
    return P
Cfg.scramble = False; Cfg.h_var = 1; Cfg.trace = False

def generate(diag=False):
    Cfg.diag = diag
    stamp_n[0] = 0
    del slow_paths[:]; del stamp_names[:]
    ref = open("cdna_kernels/%s.s.ref" % NAME).read().split("\n")
    head = [l for l in ref if l.startswith(";") and "@launch" not in l]
    out = head + ["; @launch grid=(256,1,1) block=(256,1,1) lds=%d" % LDS_SIZE]
    out += ['.amdgcn_target "amdgcn-amd-amdhsa--gfx950"', ".text", ".globl %s_kernel" % NAME, ".p2align 8",
            ".type %s_kernel,@function" % NAME, "%s_kernel:" % NAME]
    pro, _ = resolve([prologue_common(), "s_cmp_lt_u32 s2, 32", "s_cbranch_scc1 L_helper"])
    del TRACE['names'][:]
    m, mx = resolve(gen_main(), trace=Cfg.trace)
    h, _ = resolve([RAW("L_helper:"), gen_helper()])
    body = pro + m + "\n".join(slow_paths).split("\n") + ["L_end_of_main:"] + h + ["L_exit:", "s_endpgm", "L_end_of_code:"]
    body = "\n".join(body).split("\n")
    bad = lintmod.lint(body)
    for b in bad: print("HAZARD", b)
    for l in body: out.append(l if l.endswith(":") else "    " + l)
    out += ['.section .rodata,"a"', ".p2align 6", ".amdhsa_kernel %s_kernel" % NAME,
            "  .amdhsa_next_free_vgpr 512", "  .amdhsa_next_free_sgpr 102", "  .amdhsa_accum_offset 256",
            "  .amdhsa_group_segment_fixed_size 0", "  .amdhsa_kernarg_size 104", "  .amdhsa_user_sgpr_count 2",
            "  .amdhsa_user_sgpr_kernarg_segment_ptr 1", "  .amdhsa_system_sgpr_workgroup_id_x 1",
            "  .amdhsa_float_denorm_mode_32 3", ".end_amdhsa_kernel"]
    return "\n".join(out) + "\n", mx

if __name__ == "__main__":
    diag = "--diag" in sys.argv
    for a in sys.argv[1:]:
        if a.startswith("--") and "=" in a:
            k, v = a[2:].split("=", 1)
            assert hasattr(Cfg, k), k
            setattr(Cfg, k, eval(v))
    txt, mx = generate(diag)
    path = sys.argv[1] if len(sys.argv) > 1 and not sys.argv[1].startswith("--") else "cdna_kernels/%s.s" % NAME
    open(path, "w").write(txt)
    if diag: print("stamps:", stamp_names)
    if Cfg.trace: open(path + ".names", "w").write("\n".join(TRACE["names"]))
    if "--usage" in sys.argv:
        import numpy as np
        np.set_printoptions(linewidth=200)
        u = np.array(Cfg._usage1)
        print(u[:232].reshape(29, 8)); print(u[232:].reshape(4, 36)); print(np.array(Cfg._usage2).reshape(14, 8))
        for k, v in Cfg._log1.items(): print(k, v[0], v[-1], len(v))
        print("dma", Cfg._log1["dma"])
    print("wrote", path, "lines", txt.count("\n"), "max outstanding vm", mx)
```

```python
import sys
from dsl import *
import lint as lintmod

NAME = "parallel_sum__ssm_conv_h3__glu_gated_bilinear__prompt"
S, D, F = 2048, 448, 1792

H_OFF   = 0x000000
KVT_OFF = 0x700000
Z_OFF   = 0x8C0000
ST_OFF  = 0xC40000
CS_OFF  = 0xC44000
ST2_OFF = 0xC54000
HF_OFF  = 0xC60000
KF_OFF  = 0xC80000
ZF_OFF  = 0xC90000
EP_OFF  = 0xCB8000
DG_OFF  = 0xCC0000
PX_OFF  = 0xD00000
TR_OFF  = 0x1100000
WS_SIZE = 0x1280000

WR = 0
XB = 98304
XS = 16640
KVR = 148224
CEX = XB + 256
REDA, REDB = 0, 16384
LDS_SIZE = 163840

SRD_X, SRD_K, SRD_V, SRD_SK, SRD_HK, SRD_DD, SRD_W1, SRD_WD, SRD_OUT, SRD_WS = [32 + 4 * i for i in range(10)]
def srd(b): return "s[%d:%d]" % (b, b + 3)
sWV, sMT, sFT, sT, sDT, sC2, sTAG, sWM, sWN = 72, 73, 74, 75, 76, 77, 78, 79, 80
sWL, sXL, sWo, sXo, sDo, sSPIN = 81, 82, 83, 84, 85, 86
sA, sB, sC, sD_ = 90, 91, 92, 93
sZt0, sZt1, sZt2 = 94, 95, 96
(sHst0, sHst1, sHfl, sKst0, sKst1, sKfl, sKld0, sKld1, sCs, sMn, sHL, sHS, sZst, sZfl, sZld, sSt2,
 sHcur, sHbase, sHlim, sPst, sPld, sHA, sHB, sKF, sHF, sZF) = range(4, 30)
sG = list(range(36, 43))
s4r = 30
sFG0 = 31

vL = 1
vA = [2, 3, 4, 5]; vA2 = [6, 7, 8, 9]; vB = [10, 11, 12, 13]
vW = [14, 15, 16, 17]; vX = [18, 19, 20, 21]; vWd = [22, 23, 24, 25]
vWdA = [26, 27]; vWdA2 = [28, 29]
vL16, vFlag0 = 30, 31
BF, AF, ACC = 80, 96, 128
T0, T1, T2, T3, T4, T5, T6, T7 = range(60, 68)
(aTag, aHsrc, aPsw, aPsr, aKst, aPollK, aCA0, aCA1, aCB, aCD, aOo, aPollH, aZst, aPollZ, aZld, aRr) = range(224, 240)
aStamp = 240
def vr(b, n): return "v[%d:%d]" % (b, b + n - 1)
def ar(b, n): return "a[%d:%d]" % (b, b + n - 1)
OOB = "0x80000000"
def stash(a, v): return "v_accvgpr_write_b32 a%d, v%d" % (a, v)
def unstash(v, a): return I("v_accvgpr_read_b32 v%d, a%d" % (v, a))

class Cfg:
    diag = False
    spin = 100000
    rot1 = "0"
    rot2 = True
    nt_kv = "nt"; nt_hk = "nt"; nt_w = ""; nt_x = ""; nt_wd = ""
    sleep = 4
    sp1 = 4; kx = 6; sp2 = 3
    prep_at = 16
    polls_at = 316
    polls_lag = 36
    kv_lag = 36
    wd_lag = 40
    nws = 4
    wd_after = {5: 1, 8: 1, 11: 1, 14: 1, 16: 1}
    hdma_u = 6
    hflag = 30
    hpoll = 110
    nfirst = 8
    zflag = 16; zpoll = 64; zlag = 20
    stamps_k = (2, 8, 16, 22)
    b32 = 5; b16 = 2

slow_paths = []
def check(name, loads, cmp_ops, tags):
    sl = ["L_slow_%s:" % name, "s_mov_b32 s%d, 0" % sSPIN, "L_spin_%s:" % name, "s_sleep %d" % Cfg.sleep]
    sl += loads + ["s_add_u32 s%d, s%d, 1" % (sSPIN, sSPIN), "s_waitcnt vmcnt(0)"] + cmp_ops
    sl += ["s_cmp_lt_u32 s%d, %d" % (sSPIN, Cfg.spin), "s_cbranch_scc0 L_res_%s" % name,
           "s_cbranch_vccnz L_spin_%s" % name, "s_branch L_res_%s" % name]
    slow_paths.append("\n".join(sl))
    return [WVM(*tags)] + [I(c) for c in cmp_ops[:-1]], [I(cmp_ops[-1]), I("s_cbranch_vccnz L_slow_%s" % name), RAW("L_res_%s:" % name)]
def flag_store(sreg, wait_tags):
    ops = [WVM(*wait_tags)] if wait_tags else []
    ops.append(VM("buffer_store_dword a%d, v%d, %s, s%d offen sc1" % (aTag, vFlag0, srd(SRD_WS), sreg), "flag"))
    return ops

stamp_n = [0]; stamp_names = []
def stamp(name=""):
    if not Cfg.diag or (Cfg.trace and name not in ("b0", "end", "mean", "cs", "rstd")): return []
    n = stamp_n[0]; stamp_n[0] += 1
    assert n < (6 if Cfg.trace else 14)
    stamp_names.append(name)
    return [I("s_memtime s[98:99]"), WDS0(), I("v_accvgpr_write_b32 a%d, s98" % (aStamp + 2 + n))]
def diag_tail():
    if not Cfg.diag: return []
    p = [WVM0(), stamp("end"), "s_memrealtime s[98:99]", WDS0()]
    p.append("v_accvgpr_write_b32 a%d, s88\nv_accvgpr_write_b32 a%d, s89" % (aStamp, aStamp + 1))
    p.append("v_mov_b32 v32, s100\nv_mov_b32 v33, s98")
    p.append("s_lshl_b32 s%d, s2, 2\ns_add_u32 s%d, s%d, s%d\ns_lshl_b32 s%d, s%d, 7\ns_add_u32 s%d, s%d, %d" % (sA, sA, sA, sWV, sA, sA, sA, sA, DG_OFF))
    for i in range(4): p.append(VM("buffer_store_dwordx4 %s, v%d, %s, s%d offen offset:%d" % (ar(aStamp + 4 * i, 4), vFlag0, srd(SRD_WS), sA, 16 * i)))
    p.append(VM("buffer_store_dwordx2 v[32:33], v%d, %s, s%d offen offset:%d" % (vFlag0, srd(SRD_WS), sA, 104)))
    if Cfg.dbg:
        p.append("s_load_dwordx2 s[44:45], s[0:1], 88\ns_waitcnt lgkmcnt(0)\ns_mov_b32 s46, 256\ns_mov_b32 s47, 0x00020000")
        p.append("s_lshl_b32 s%d, s2, 2\ns_add_u32 s%d, s%d, s%d\ns_cmp_eq_u32 s%d, %d\ns_cselect_b32 s%d, 0, 0x40000000" % (sA, sA, sA, sWV, sA, Cfg.dbg * 4, sA))
        p.append("s_sub_u32 s%d, s98, s100\nv_accvgpr_write_b32 a%d, s%d\ns_nop 1" % (sB, aStamp + 1, sB))
        for i in range(4): p.append(VM("buffer_store_dwordx4 %s, v%d, s[44:47], s%d offen offset:%d" % (ar(aStamp + 4 * i, 4), vFlag0, sA, 16 * i)))
    if Cfg.trace:
        p.append("s_lshl_b32 s%d, s2, 2\ns_add_u32 s%d, s%d, s%d\ns_mul_i32 s%d, s%d, 768\ns_add_u32 s%d, s%d, %d" % (sA, sA, sA, sWV, sA, sA, sA, sA, TR_OFF))
        p.append("v_lshlrev_b32 v32, 2, v%d" % vL)
        for i in range(3): p.append(VM("buffer_store_dword a%d, v32, %s, s%d offen offset:%d" % (248 + i, srd(SRD_WS), sA, 256 * i)))
    p.append(WVM0())
    return p

def build_srd(b, ptr, size):
    return ["s_mov_b32 s%d, s%d" % (b, ptr), "s_mov_b32 s%d, s%d" % (b + 1, ptr + 1),
            "s_mov_b32 s%d, %d" % (b + 2, size), "s_mov_b32 s%d, 0x00020000" % (b + 3)]
def tag_from_epoch(vE):
    return [I("v_readfirstlane_b32 s%d, v%d" % (sTAG, vE)), I("s_nop 3"),
            I("s_mul_i32 s%d, s%d, 1664525" % (sTAG, sTAG)), I("s_add_u32 s%d, s%d, 1013904223" % (sTAG, sTAG)),
            I("v_accvgpr_write_b32 a%d, s%d" % (aTag, sTAG))]
def advance(sreg, step, limit):
    return [I("s_add_u32 s%d, s%d, %d" % (sreg, sreg, step)),
            [I("s_cmp_eq_u32 s%d, %d" % (sreg, limit)), I("s_cselect_b32 s%d, 0, s%d" % (sreg, sreg))]]

def L(fmt, *a): return fmt % a

def prologue_common():
    p = ["s_cmp_ge_u32 s2, 256\ns_cbranch_scc1 L_exit"]
    if Cfg.diag: p.append("s_memrealtime s[100:101]\ns_memtime s[88:89]")
    p.append("s_load_dwordx16 s[4:19], s[0:1], 0\ns_load_dwordx8 s[20:27], s[0:1], 64\ns_load_dwordx2 s[28:29], s[0:1], 96")
    p.append(L("v_and_b32 v%d, 63, v0\nv_lshrrev_b32 v%d, 6, v0\nv_lshlrev_b32 v%d, 4, v%d", vL, T0, vL16, vL))
    p.append(L("v_readfirstlane_b32 s%d, v%d", sWV, T0))
    p.append(L("v_cmp_eq_u32 vcc, 0, v%d\nv_mov_b32 v%d, %s\nv_mov_b32 v%d, 0\nv_cndmask_b32 v%d, v%d, v%d, vcc", vL, T1, OOB, T2, vFlag0, T1, T2))
    return p

def dma_group(sL, ldsconst, vs, srd_b, sOff, tag, pol, adv):
    at = [I("s_add_u32 m0, s%d, %d" % (sL, ldsconst))]
    for q in range(4):
        op = VM("buffer_load_dwordx4 v%d, %s, s%d offen offset:%d %s lds" % (vs[q], srd(srd_b), sOff, q * 1024, pol), tag)
        at.append([I("s_nop 0"), op] if q == 0 else op)
    return at, advance(sOff, *adv)
def w_group(hc): return dma_group(sWL, WR + (hc % Cfg.nws) * 16384, vW, SRD_W1, sWo, ("W", hc), Cfg.nt_w, (32 * 3584, 448 * 3584))
def x_group(c): return dma_group(sXL, (c % 3) * XS, vX, SRD_X, sXo, ("X", c), Cfg.nt_x, (128, 896))
WD_BASE = [32768, 49152, XB + 256, 65536, 81920, 0, 16384]
def wd_group(u): return dma_group(sWL, WD_BASE[u], vWd, SRD_WD, sDo, ("WD", u), Cfg.nt_wd, (64 * 896, 448 * 896))
def wd_reads(u):
    at = []
    for n4 in range(4):
        for jd in range(2):
            for p in range(2):
                off = WD_BASE[u] + (n4 >> 1) * 8192 + (n4 & 1) * 2048 + p * 1024
                base = vWdA[jd]
                if off >= 0x10000: base = vWdA2[jd]; off -= 0x10000
                at.append(DS("ds_read_b64_tr_b16 %s, v%d offset:%d" % (ar(8 * (4 * u + n4) + 4 * jd + 2 * p, 2), base, off), ("WR", u)))
    return at

def frag_reads(s):
    buf = s & 1; hc, sp = s >> 1, s & 1; slot = hc % Cfg.nws; c, s4 = s >> 2, s & 3
    def bread(nt): return DS("ds_read_b128 %s, v%d offset:%d" % (vr(BF + buf * 8 + nt * 4, 4), vB[s4], (c % 3) * XS + nt * 4096), ("F", s))
    def aread(jj, p):
        base = vA[jj] if slot < 3 else vA2[jj]
        return DS("ds_read_b64_tr_b16 %s, v%d offset:%d" % (vr(AF + buf * 16 + jj * 4 + p * 2, 2), base, (slot % 3) * 16384 + sp * 4096 + p * 1024), ("F", s))
    at = [bread(0), aread(0, 0), aread(0, 1), bread(1)]
    for jj in range(1, 4): at += [aread(jj, 0), aread(jj, 1)]
    return at

KR, VR_, vEp, SKR, TAP, KFv, R0, R1, VF, HB0, HB1, OLO, OHI = 32, 43, 51, 52, 56, 60, 71, 72, 73, 74, 75, 76, 32

def gen_main():
    P = [RAW("L_main:")]
    if Cfg.scramble:
        P.append(L("s_lshr_b32 s%d, s2, 3\ns_lshr_b32 s%d, s2, 5\ns_lshl_b32 s%d, s%d, 1\ns_xor_b32 s%d, s%d, s%d\ns_and_b32 s%d, s%d, 7\ns_xor_b32 s2, s2, s%d", sA, sB, sA, sA, sA, sA, sB, sA, sA, sA))
    P.append(L("s_sub_u32 s%d, s2, 32\ns_and_b32 s%d, s2, 7\ns_lshr_b32 s%d, s%d, 3", sC2, sA, sB, sC2))
    P.append(L("s_lshr_b32 s%d, s%d, 2\ns_and_b32 s%d, s%d, 3", sDT, sB, sB, sB))
    P.append(L("s_lshl_b32 s%d, s%d, 2\ns_add_u32 s%d, s%d, s%d", sT, sA, sT, sT, sB))
    P.append(L("s_lshr_b32 s%d, s%d, 1\ns_lshl_b32 s%d, s%d, 2\ns_add_u32 s%d, s%d, s%d", sMT, sA, sMT, sMT, sMT, sMT, sB))
    P.append(L("s_and_b32 s%d, s%d, 1\ns_mul_i32 s%d, s%d, 7\ns_add_u32 s%d, s%d, s%d", sFG0, sA, sFT, sFG0, sFT, sFT, sDT))
    P.append(L("s_and_b32 s%d, s%d, 1\ns_lshr_b32 s%d, s%d, 1", sWM, sWV, sWN, sWV))
    P.append(L("s_lshl_b32 s%d, s%d, 12\ns_add_u32 s%d, s%d, %d", sWL, sWV, sXL, sWL, XB + 256))
    if Cfg.rot1 == "0": P.append(L("s_mov_b32 s%d, 0", sA))
    elif Cfg.rot1 == "2": P.append(L("s_xor_b32 s%d, s%d, s%d\ns_and_b32 s%d, s%d, 1\ns_lshl_b32 s%d, s%d, 2", sA, sMT, sFT, sA, sA, sA, sA))
    elif Cfg.rot1 == "3":
        P.append(L("s_add_u32 s%d, s%d, s%d\ns_mul_i32 s%d, s%d, 3\ns_mov_b32 s%d, 0x%x\ns_lshr_b32 s%d, s%d, s%d\ns_and_b32 s%d, s%d, 7",
                   sA, sB, sDT, sA, sA, sC, sum(((0, 2, 5)[i % 3]) << (3 * i) for i in range(10)), sA, sC, sA, sA, sA))
    else:
        P.append(L("s_lshl_b32 s%d, s%d, 1\ns_add_u32 s%d, s%d, s%d\ns_sub_u32 s%d, s%d, 7\ns_min_u32 s%d, s%d, s%d", sA, sB, sA, sA, sDT, sC, sA, sA, sA, sC))
    P.append(L("s_mul_i32 s%d, s%d, %d\ns_lshl_b32 s%d, s%d, 7", sWo, sA, 64 * 3584, sXo, sA))
    P.append(L("v_lshrrev_b32 v%d, 4, v%d", T0, vL))
    P.append(L("s_mul_i32 s%d, s%d, %d\ns_lshl_b32 s%d, s%d, 8\ns_add_u32 s%d, s%d, s%d", sA, sWM, 16 * 3584, sB, sFT, sA, sA, sB))
    P.append(L("v_mul_u32_u24 v%d, 3584, v%d\ns_lshl_b32 s%d, s%d, 3", T1, T0, sB, sWN))
    P.append(L("v_lshlrev_b32 v%d, 1, v%d\nv_or_b32 v%d, s%d, v%d\nv_and_b32 v%d, 15, v%d", T2, T0, T2, sB, T2, T3, vL))
    P.append(L("v_xor_b32 v%d, v%d, v%d\nv_lshlrev_b32 v%d, 4, v%d\nv_add3_u32 v%d, v%d, v%d, s%d", T2, T2, T3, T2, T2, vW[0], T1, T2, sA))
    for q in range(1, 4): P.append(L("v_add_u32 v%d, %d, v%d", vW[q], q * (4 * 3584 - 1024), vW[0]))
    P.append(L("s_lshl_b32 s%d, s%d, 2\ns_add_u32 s%d, s%d, s%d\ns_mul_i32 s%d, s%d, %d", sA, sMT, sA, sA, sWV, sA, sA, 32 * 896))
    P.append(L("v_lshrrev_b32 v%d, 3, v%d\nv_mul_u32_u24 v%d, 896, v%d\nv_and_b32 v%d, 7, v%d", T1, vL, T1, T1, T3, vL))
    P.append(L("v_xor_b32 v%d, v%d, v%d\nv_lshlrev_b32 v%d, 4, v%d\nv_add3_u32 v%d, v%d, v%d, s%d", T2, T3, T0, T2, T2, vX[0], T1, T2, sA))
    P.append(L("v_xor_b32 v%d, 64, v%d", T2, vX[0]))
    for q in range(1, 4): P.append(L("v_add_u32 v%d, %d, v%d", vX[q], q * (8 * 896 - 1024), T2 if q & 1 else vX[0]))
    P.append(WDS0())
    if Cfg.diag: P.append([I("s_memtime s[98:99]"), WDS0(), I("s_mov_b32 s89, s98")])
    P.append(L("s_cmp_ge_u32 s%d, 2\ns_cselect_b32 s%d, s20, s18\ns_cselect_b32 s%d, s21, s19", sWV, SRD_W1, SRD_W1 + 1))
    P.append(L("s_mov_b32 s%d, %d\ns_mov_b32 s%d, 0x00020000", SRD_W1 + 2, D * F * 2, SRD_W1 + 3))
    P.append(build_srd(SRD_X, 4, S * D * 2))
    P.append(w_group(0)); P.append(x_group(0))
    P.append(w_group(1))
    for b, ptr, size in ((SRD_K, 6, S * D * 2), (SRD_V, 8, S * D * 2), (SRD_SK, 10, D * 8), (SRD_HK, 12, D * S * 2 + 64), (SRD_DD, 14, D * 2),
                         (SRD_WD, 22, D * F * 2), (SRD_OUT, 24, S * D * 2), (SRD_WS, 28, WS_SIZE)):
        P.append(build_srd(b, ptr, size))
    P.append(L("s_mov_b32 s%d, %d\nv_mov_b32 v%d, 0", sA, EP_OFF, T4))
    P.append(VM("buffer_load_dword v%d, v%d, %s, s%d offen sc1" % (vEp, T4, srd(SRD_WS), sA), "prep"))
    P.append(L("s_lshl_b32 s%d, s%d, 1\ns_add_u32 s%d, s%d, s%d\ns_mul_i32 s%d, s%d, %d\ns_lshl_b32 s%d, s%d, 7\ns_add_u32 s%d, s%d, s%d", sA, sFG0, sA, sA, sWM, sA, sA, 448 * 896, sB, sDT, sA, sA, sB))
    P.append(L("s_mul_i32 s%d, s%d, %d\ns_add_u32 s%d, s%d, s%d", sB, sWN, 32 * 896, sA, sA, sB))
    P.append(L("v_and_b32 v%d, 1, v%d\nv_lshlrev_b32 v%d, 2, v%d\nv_xor_b32 v%d, v%d, v%d\nv_lshlrev_b32 v%d, 4, v%d", T2, T0, T2, T2, T2, T2, T3, T2, T2))
    P.append(L("v_add3_u32 v%d, v%d, v%d, s%d", vWd[0], T1, T2, sA))
    for q in range(1, 4): P.append(L("v_add_u32 v%d, %d, v%d", vWd[q], q * (8 * 896 - 1024), vWd[0]))
    P.append(L("v_bfe_u32 v%d, v%d, 2, 2\nv_bfe_u32 v%d, v%d, 4, 1\nv_lshrrev_b32 v%d, 5, v%d", T0, vL, T1, vL, T2, vL))
    P.append(L("v_and_b32 v%d, 3, v%d\nv_lshlrev_b32 v%d, 3, v%d", T3, vL, T3, T3))
    P.append(L("v_lshl_add_u32 v%d, v%d, 3, v%d\nv_lshlrev_b32 v%d, 8, v%d\nv_lshl_add_u32 v%d, v%d, 13, v%d\nv_add_u32 v%d, v%d, v%d", T4, T2, T0, T4, T4, T4, T1, T4, T4, T4, T3))
    P.append(L("v_lshl_or_b32 v%d, v%d, 2, v%d\ns_lshl_b32 s%d, s%d, 2\nv_xor_b32 v%d, s%d, v%d", T5, T1, T0, sA, sWM, T5, sA, T5))
    for jj in range(4):
        P.append(L("v_xor_b32 v%d, %d, v%d\nv_lshl_add_u32 v%d, v%d, 5, v%d\nv_add_u32 v%d, %d, v%d", vA[jj], jj, T5, vA[jj], vA[jj], T4, vA2[jj], 49152, vA[jj]))
    P.append(L("v_lshl_add_u32 v%d, v%d, 2, v%d\nv_lshlrev_b32 v%d, 7, v%d\ns_lshl_b32 s%d, s%d, 12", T4, T2, T0, T4, T4, sA, sWM))
    P.append(L("v_lshl_add_u32 v%d, v%d, 5, v%d\nv_add3_u32 v%d, v%d, v%d, s%d", T4, T1, T4, T4, T4, T3, sA))
    P.append(L("v_lshrrev_b32 v%d, 1, v%d\nv_xor_b32 v%d, s%d, v%d\nv_lshl_add_u32 v%d, v%d, 6, v%d", T5, T0, T5, sWM, T5, vWdA[0], T5, T4))
    P.append(L("v_xor_b32 v%d, 64, v%d\nv_add_u32 v%d, 0x10000, v%d\nv_add_u32 v%d, 0x10000, v%d", vWdA[1], vWdA[0], vWdA2[0], vWdA[0], vWdA2[1], vWdA[1]))
    P.append(L("v_and_b32 v%d, 31, v%d\nv_bfe_u32 v%d, v%d, 1, 3\nv_xor_b32 v%d, v%d, v%d", T6, vL, T1, vL, T1, T1, T2))
    P.append(L("s_lshl_b32 s%d, s%d, 13\ns_add_u32 s%d, s%d, %d\nv_lshlrev_b32 v%d, 7, v%d\nv_add_u32 v%d, s%d, v%d", sA, sWN, sA, sA, XB + 256, T0, T6, T0, sA, T0))
    for sp in range(4): P.append(L("v_xor_b32 v%d, %d, v%d\nv_lshl_add_u32 v%d, v%d, 4, v%d", vB[sp], 2 * sp, T1, vB[sp], vB[sp], T0))
    P.append(L("s_lshl_b32 s%d, s%d, 2\ns_add_u32 s%d, s%d, s%d\ns_mul_i32 s%d, s%d, %d\ns_lshl_b32 s%d, s%d, 7\ns_add_u32 s%d, s%d, s%d",
               sA, sT, sA, sA, sWV, sA, sA, 16 * 896, sB, sDT, sA, sA, sB))
    P.append(L("v_mul_u32_u24 v%d, %d, v%d\nv_lshl_add_u32 v%d, v%d, 2, v%d\nv_add_u32 v%d, s%d, v%d", R0, 8 * 896, T2, R0, T6, R0, R0, sA, R0))
    P.append(L("v_subrev_u32 v%d, %d, v%d\nv_cmp_gt_u32 vcc, %d, v%d\nv_mov_b32 v%d, %s\ns_mov_b32 s%d, %d\nv_cndmask_b32 v%d, v%d, v%d, vcc",
               VF, 3 * 896, R0, 3 * 896, R0, T0, OOB, s4r, 4 * 896, VF, VF, T0))
    P.append(L("s_lshl_b32 s%d, s%d, 9\nv_lshlrev_b32 v%d, 4, v%d", sD_, sDT, R1, T6))
    kvl = []
    for a in range(3): kvl.append(VM("buffer_load_dword v%d, v%d, %s, 0 offen offset:%d %s" % (KR + a, VF, srd(SRD_K), a * 896, Cfg.nt_kv), "prep"))
    for o in range(8): kvl.append(VM("buffer_load_dword v%d, v%d, %s, %s offen offset:%d %s" % (KR + 3 + o, R0, srd(SRD_K), "0" if o < 4 else "s%d" % s4r, (o & 3) * 896, Cfg.nt_kv), "prep"))
    for o in range(8): kvl.append(VM("buffer_load_dword v%d, v%d, %s, %s offen offset:%d %s" % (VR_ + o, R0, srd(SRD_V), "0" if o < 4 else "s%d" % s4r, (o & 3) * 896, Cfg.nt_kv), "prep"))
    kvl.append(VM("buffer_load_dwordx4 %s, v%d, %s, s%d offen" % (vr(SKR, 4), R1, srd(SRD_SK), sD_), "prep"))
    P.append(L("s_lshl_b32 s%d, s%d, 1\ns_add_u32 s%d, s%d, s%d\ns_lshl_b32 s%d, s%d, 12", sHS, sC2, sHS, sHS, sWN, sHS, sHS))
    P.append(L("v_and_b32 v%d, 15, v%d\nv_lshrrev_b32 v%d, 4, v%d", T7, vL, T5, vL))
    P.append(L("v_lshl_add_u32 v%d, v%d, 1, v%d\nv_subrev_u32 v%d, 15, v%d\nv_lshlrev_b32 v%d, 1, v%d\nv_add_u32 v%d, 2, v%d", T0, T7, T5, T0, T0, TAP, T0, TAP + 1, TAP))
    P.append(L("v_lshlrev_b32 v%d, 7, v%d", TAP + 2, T6))
    P.append(L("s_lshl_b32 s%d, s%d, 18\ns_lshl_b32 s%d, s%d, 7\ns_sub_u32 s%d, s%d, s%d\ns_add_u32 s%d, s%d, %d\ns_add_u32 s%d, s%d, %d",
               sKst0, sDT, sA, sT, sKst0, sKst0, sA, sKst0, sKst0, KVT_OFF + 3968, sKst1, sKst0, 32 * 4096))
    P.append(L("s_lshl_b32 s%d, s%d, 5\ns_add_u32 s%d, s%d, s%d\ns_lshl_b32 s%d, s%d, 7\ns_add_u32 s%d, s%d, %d\ns_cmp_eq_u32 s%d, 0\ns_cselect_b32 s%d, s%d, 0x40000000",
               sA, sDT, sA, sA, sT, sA, sA, sA, sA, KF_OFF, sWV, sKfl, sA))
    P.append(L("s_lshl_b32 s%d, s%d, 1\ns_sub_u32 s%d, 7, s%d\nv_sub_u32 v%d, s%d, v%d\nv_and_b32 v%d, 7, v%d\nv_xor_b32 v%d, v%d, v%d", sA, sWV, sA, sA, T0, sA, T2, T1, vL, T0, T0, T1))
    P.append(L("v_lshlrev_b32 v%d, 4, v%d\nv_lshl_add_u32 v%d, v%d, 8, v%d\nv_lshrrev_b32 v%d, 4, v%d\nv_mul_u32_u24 v%d, 4608, v%d", T0, T0, T0, T7, T0, T3, T6, T3, T3))
    P.append(L("v_add_u32 v%d, v%d, v%d\nv_add_u32 v%d, %d, v%d", T0, T0, T3, T0, KVR, T0) + "\n" + stash(aPsw, T0))
    P.append(L("v_lshrrev_b32 v%d, 3, v0\nv_bfe_u32 v%d, v0, 4, 3\nv_xor_b32 v%d, v%d, v%d\nv_lshlrev_b32 v%d, 4, v%d", T0, T3, T3, T3, T1, T3, T3))
    P.append(L("v_lshl_add_u32 v%d, v%d, 7, v%d\nv_add_u32 v%d, %d, v%d", T3, T0, T3, T3, KVR, T3) + "\n" + stash(aPsr, T3))
    P.append(L("v_lshlrev_b32 v%d, 12, v%d\nv_lshl_add_u32 v%d, v%d, 4, v%d", T0, T0, T0, T1, T0) + "\n" + stash(aKst, T0))
    P.append(L("s_mul_i32 s%d, s%d, %d\ns_add_u32 s%d, s%d, %d\nv_lshlrev_b32 v%d, 2, v%d\nv_add_u32 v%d, s%d, v%d", sA, sWN, XS, sA, sA, XB + XS, 78, vL, 78, sA, 78))
    U0, U1, U2, U3, U4, U5, U6, U7 = 73, 74, 75, 76, 77, 78, 79, 70
    Q = []
    Q.append(L("v_lshrrev_b32 v%d, 5, v%d\nv_lshrrev_b32 v%d, 4, v%d\nv_and_b32 v%d, 31, v%d\nv_and_b32 v%d, 15, v%d", U2, vL, U5, vL, U6, vL, U7, vL))
    if Cfg.rot2:
        Q.append(L("s_and_b32 s%d, s%d, 3\ns_lshl_b32 s%d, s%d, 1\ns_add_u32 s%d, s%d, s%d\ns_sub_u32 s%d, s%d, 7\ns_min_u32 s%d, s%d, s%d", sA, sMT, sA, sA, sA, sA, sDT, sC, sA, sA, sA, sC))
    else: Q.append(L("s_mov_b32 s%d, 0", sA))
    Q.append(L("s_mul_i32 s%d, s%d, %d\ns_lshl_b32 s%d, s%d, 12", sDo, sA, 64 * 896, sHcur, sA))
    Q.append(L("s_lshl_b32 s%d, s%d, 1\ns_add_u32 s%d, s%d, s%d", sA, sMT, sA, sA, sWN))
    Q.append(L("s_lshl_b32 s%d, s%d, 1\ns_add_u32 s%d, s%d, s%d", sB, sFT, sB, sB, sWM))
    Q.append(L("s_lshl_b32 s%d, s%d, 9\ns_add_u32 s%d, s%d, %d", sMn, sA, sMn, sMn, ST_OFF))
    Q.append(L("s_lshl_b32 s%d, s%d, 11\ns_add_u32 s%d, s%d, %d", sCs, sB, sCs, sCs, CS_OFF))
    Q.append(L("s_mul_i32 s%d, s%d, 224\ns_lshl_b32 s%d, s%d, 2\ns_add_u32 s%d, s%d, s%d\ns_lshl_b32 s%d, s%d, 10\ns_add_u32 s%d, s%d, %d",
               sHst0, sA, sC, sB, sHst0, sHst0, sC, sHst0, sHst0, sHst1, sHst0, 112 * 1024))
    Q.append(L("s_lshl_b32 s%d, s%d, 5\ns_add_u32 s%d, s%d, s%d\ns_lshl_b32 s%d, s%d, 7\ns_add_u32 s%d, s%d, %d", sHfl, sA, sHfl, sHfl, sB, sHfl, sHfl, sHfl, sHfl, HF_OFF))
    Q.append(L("s_mov_b32 s%d, %d\ns_and_b32 s%d, s%d, 0xffffffe0\nv_add_lshl_u32 v%d, v%d, s%d, 7", sKF, KF_OFF, sA, sC2, U0, U6, sA) + "\n" + stash(aPollK, U0))
    Q.append(L("s_lshl_b32 s%d, s%d, 13\ns_add_u32 s%d, s%d, %d\ns_add_u32 s%d, s%d, 4096", sKld0, sC2, sKld0, sKld0, KVT_OFF, sKld1, sKld0))
    Q.append(L("s_mul_i32 s%d, s%d, %d\ns_lshl_b32 s%d, s%d, 13\ns_add_u32 s%d, s%d, s%d\ns_add_u32 s%d, s%d, %d", sHL, sWN, XS, sA, sWM, sHL, sHL, sA, sHL, sHL, XB + XS + 256))
    Q.append(L("v_lshlrev_b32 v%d, 6, v%d\nv_and_b32 v%d, 3, v%d\nv_lshl_add_u32 v%d, v%d, 4, v%d\nv_bfe_u32 v%d, v%d, 2, 2\nv_lshl_add_u32 v%d, v%d, 1, v%d", U0, U5, U1, vL, U0, U1, U0, U1, vL, U0, U1, U0))
    Q.append(L("s_lshl_b32 s%d, s%d, 11\ns_add_u32 s%d, s%d, s%d\ns_add_u32 s%d, s%d, 34\nv_add_u32 v%d, s%d, v%d", sA, sWM, sA, sA, sHS, sA, sA, U0, sA, U0) + "\n" + stash(aHsrc, U0))
    Q.append(("mark", "q1"))
    Q.append(L("v_lshrrev_b32 v%d, 7, v0\nv_mul_u32_u24 v%d, 4608, v%d\nv_and_b32 v%d, 127, v0\nv_lshl_add_u32 v%d, v%d, 2, v%d\nv_add_u32 v%d, %d, v%d\nv_mov_b32 v%d, 0", U3, U3, U3, U4, U3, U4, U3, U3, KVR + 4096, U3, U4))
    Q.append(DS("ds_write_b32 v%d, v%d" % (U3, U4), "kvw"))
    Q.append(L("v_lshrrev_b32 v%d, 2, v%d\nv_lshl_add_u32 v%d, v%d, 1, v%d\nv_and_b32 v%d, 3, v%d\nv_lshlrev_b32 v%d, 6, v%d", U0, U7, U0, U5, U0, U3, U7, U3, U3))
    Q.append(L("s_mul_i32 s%d, s%d, %d\ns_lshl_b32 s%d, s%d, 10\ns_add_u32 s%d, s%d, s%d\ns_add_u32 s%d, s%d, %d", sA, sWN, XS, sC, sWM, sB, sA, sC, sB, sB, XB + XS))
    for half, dst in ((0, aCA0), (1, aCA1)):
        if half: Q.append(L("v_add_u32 v%d, 1, v%d", U0, U0))
        Q.append(L("v_lshrrev_b32 v%d, 3, v%d\nv_lshlrev_b32 v%d, 8, v%d\nv_and_b32 v%d, 7, v%d\nv_lshl_add_u32 v%d, v%d, 3, v%d", U4, U0, U4, U4, U1, U0, U4, U1, U4))
        Q.append(L("v_add3_u32 v%d, v%d, v%d, s%d", U4, U4, U3, sB) + "\n" + stash(dst, U4))
    Q.append(L("s_mul_i32 s%d, s%d, 4608\ns_add_u32 s%d, s%d, %d\ns_lshl_b32 s%d, s%d, 8\ns_add_u32 s%d, s%d, s%d\ns_add_u32 s%d, s%d, 480", sA, sWN, sA, sA, KVR, sC, sWM, sB, sA, sC, sB, sB))
    Q.append(L("v_lshlrev_b32 v%d, 5, v%d\nv_sub_u32 v%d, s%d, v%d\nv_lshl_add_u32 v%d, v%d, 4, v%d", U4, U7, U0, sB, U4, U0, U5, U0) + "\n" + stash(aCB, U0))
    Q.append(L("s_lshl_b32 s%d, s%d, 3\ns_sub_u32 s%d, s%d, s%d\ns_add_u32 s%d, s%d, %d", sC, sC, sB, sA, sC, sB, sB, 4088 - 1536))
    Q.append(L("v_sub_u32 v%d, s%d, v%d\nv_lshlrev_b32 v%d, 3, v%d\nv_sub_u32 v%d, v%d, v%d", U0, sB, U4, U4, U5, U0, U0, U4) + "\n" + stash(aCD, U0))
    Q.append(("mark", "q2"))
    Q.append(L("v_lshlrev_b32 v%d, 6, v%d\nv_lshl_add_u32 v%d, v%d, 4, v%d", U0, U7, U0, U5, U0) + "\n" + stash(aZst, U0))
    Q.append(L("s_lshl_b32 s%d, s%d, 11\ns_add_u32 s%d, s%d, s%d\ns_add_u32 s%d, s%d, %d", sA, sWM, sZst, sHS, sA, sZst, sZst, Z_OFF))
    Q.append(L("s_mul_i32 s%d, s%d, %d\ns_lshr_b32 s%d, s%d, 5\ns_add_u32 s%d, s%d, s%d\ns_add_u32 s%d, s%d, %d", sA, sWM, 448 * 128, sZfl, sHS, sZfl, sZfl, sA, sZfl, sZfl, ZF_OFF))
    Q.append(L("s_lshl_b32 s%d, s%d, 1\ns_add_u32 s%d, s%d, s%d\ns_lshl_b32 s%d, s%d, 1\ns_add_u32 s%d, s%d, s%d", sA, sMT, sA, sA, sWN, sA, sA, sA, sA, sFG0))
    Q.append(L("s_lshl_b32 s%d, s%d, 1\ns_add_u32 s%d, s%d, s%d", sB, sDT, sB, sB, sWM))
    Q.append(L("s_lshl_b32 s%d, s%d, 17\ns_lshr_b32 s%d, s%d, 4\ns_lshl_b32 s%d, s%d, 10\ns_add_u32 s%d, s%d, s%d", sZld, sB, sC, sA, sC, sC, sZld, sZld, sC))
    Q.append(L("s_and_b32 s%d, s%d, 7\ns_lshl_b32 s%d, s%d, 7\ns_add_u32 s%d, s%d, s%d\ns_and_b32 s%d, s%d, 8\ns_add_u32 s%d, s%d, s%d\ns_add_u32 s%d, s%d, %d",
               sC, sA, sC, sC, sZld, sZld, sC, sC, sA, sZld, sZld, sC, sZld, sZld, Z_OFF))
    Q.append(L("s_lshl_b32 s%d, s%d, 9\ns_add_u32 s%d, s%d, %d", sSt2, sA, sSt2, sSt2, ST2_OFF))
    Q.append(L("s_and_b32 s%d, s%d, 0xfffffffe\ns_mul_i32 s%d, s%d, %d\ns_mul_i32 s%d, s%d, %d\ns_sub_u32 s%d, %d, s%d", sC, sA, sHbase, sC, 112 * 1024, sHB, sFG0, 112 * 1024, sHA, 112 * 1024, sHB))
    Q.append(L("s_mul_i32 s%d, s%d, %d\ns_lshl_b32 s%d, s%d, 6\ns_add_u32 s%d, s%d, s%d", sA, sA, 32 * 896, sC, sB, sA, sA, sC))
    Q.append(L("v_mul_u32_u24 v%d, 896, v%d\nv_lshlrev_b32 v%d, 4, v%d\nv_add3_u32 v%d, v%d, v%d, s%d", U0, U6, U1, U2, U0, U0, U1, sA) + "\n" + stash(aOo, U0))
    Q.append(L("s_lshr_b32 s%d, s%d, 3\ns_mul_i32 s%d, s%d, 448\ns_lshl_b32 s%d, s%d, 5\ns_add_u32 s%d, s%d, s%d", sA, sMT, sA, sA, sC, sB, sA, sA, sC))
    Q.append(L("v_add_lshl_u32 v%d, v%d, s%d, 7", U0, U6, sA) + "\n" + stash(aPollZ, U0))
    Q.append(L("v_lshlrev_b32 v%d, 15, v%d\nv_lshrrev_b32 v%d, 2, v%d\nv_lshl_add_u32 v%d, v%d, 4, v%d\nv_and_b32 v%d, 3, v%d\nv_lshl_add_u32 v%d, v%d, 1, v%d", U0, U2, U1, U6, U0, U1, U0, U1, U6, U0, U1, U0) + "\n" + stash(aZld, U0))
    Q.append(L("v_lshlrev_b32 v%d, 10, v%d\nv_lshl_add_u32 v%d, v%d, 4, v%d\nv_add_u32 v%d, s%d, v%d", U0, U2, U0, U6, U0, U0, sWL, U0) + "\n" + stash(aRr, U0))
    Q.append(L("s_lshl_b32 s%d, s%d, 2\ns_add_u32 s%d, s%d, s%d\ns_mul_i32 s%d, s%d, 3072\ns_add_u32 s%d, s%d, %d", sA, sC2, sA, sA, sWV, sPld, sA, sPld, sPld, PX_OFF))
    Q.append(L("s_xor_b32 s%d, s%d, 4\ns_mul_i32 s%d, s%d, 3072\ns_add_u32 s%d, s%d, %d", sA, sA, sPst, sA, sPst, sPst, PX_OFF))
    Q.append(L("s_mov_b32 s%d, %d\ns_mov_b32 s%d, %d", sHF, HF_OFF, sZF, ZF_OFF))
    Q.append(L("s_lshl_b32 s%d, s%d, 1\ns_add_u32 s%d, s%d, s%d", sB, sFG0, sB, sB, sWM))
    Q.append(L("s_mul_i32 s%d, s%d, %d\ns_add_u32 s%d, s%d, s%d\ns_add_u32 s%d, s%d, %d\ns_add_u32 s%d, s%d, s%d",
               sC, sB, 28 * 1024, sHbase, sHbase, sC, sHlim, sHbase, 28 * 1024, sHcur, sHbase, sHcur))
    Q.append(L("s_mul_i32 s%d, s%d, 7\ns_lshl_b32 s%d, s%d, 1\ns_add_u32 s%d, s%d, s%d\ns_lshl_b32 s%d, s%d, 5\ns_add_u32 s%d, s%d, s%d", sA, sB, sC, sMT, sC, sC, sWN, sC, sC, sA, sA, sC))
    Q.append(L("v_min_u32 v%d, 6, v%d\nv_add_lshl_u32 v%d, v%d, s%d, 7", U0, vL, U0, U0, sA) + "\n" + stash(aPollH, U0))
    kvl.append(VM("buffer_load_ushort v%d, v%d, %s, s%d offen" % (HB0, TAP, srd(SRD_HK), sHS), "prep"))
    kvl.append(VM("buffer_load_ushort v%d, v%d, %s, s%d offen" % (HB1, TAP + 1, srd(SRD_HK), sHS), "prep"))
    kvl.append(VM("buffer_load_dword v%d, v%d, %s, s%d offen %s" % (77, TAP + 2, srd(SRD_HK), sHS, Cfg.nt_hk), "prep"))
    qparts = [[]]
    for it in Q:
        if isinstance(it, tuple): qparts.append([])
        else: flatten(it, qparts[-1])
    P.append([WVM(("W", 0), ("X", 0)), I("s_barrier")])
    P.append(frag_reads(0))
    P.append(stamp("b0"))

    KN = 20
    A_Q = 16 * KN
    A_CONV = 2 * 232
    def barr(i): return 16 * (2 * i - 1)
    def qa(q, i): return A_Q + 36 * q + 2 * i
    def conv_anchor(g): return A_CONV + g
    T_B11 = qa(0, Cfg.b11); T_BC = qa(3, Cfg.bc); T_BW = conv_anchor(Cfg.bw)
    aX = 160
    sS = Stream("setup")
    sS.addall(qparts[0], after=("prepdone", 2), by=barr(9) - 4)
    sS.addall(qparts[1], by=T_BC - 44)
    sS.addall(qparts[2], by=A_CONV - 10)
    cur = []
    for j in range(7):
        cur.append(I("s_mov_b32 s%d, s%d" % (sG[j], sHcur)))
        if j < 6: cur += [I("s_add_u32 s%d, s%d, 4096" % (sHcur, sHcur)), [I("s_cmp_eq_u32 s%d, s%d" % (sHcur, sHlim)), I("s_cselect_b32 s%d, s%d, s%d" % (sHcur, sHbase, sHcur))]]
    sS.addall(cur, by=A_CONV - 4)
    sF = Stream("frag", cap=2)
    for s in range(KN - 1):
        sF.addall(frag_reads(s + 1), at=16 * s, by=16 * s + 12)
    def xread(ks, nt): return DS("ds_read_b128 %s, v%d offset:%d" % (ar(aX + 8 * (ks - KN) + 4 * nt, 4), vB[ks & 3], ((ks >> 2) % 3) * XS + nt * 4096), ("FX", ks))
    def aread(i):
        q, ks = i >> 3, KN + (i & 7); slot = (ks >> 1) % 6
        base = vA[q] if slot < 3 else vA2[q]
        return [DS("ds_read_b64_tr_b16 %s, v%d offset:%d" % (vr(AF + 4 * (i & 7) + 2 * p, 2), base, (slot % 3) * 16384 + (ks & 1) * 4096 + p * 1024), ("FA", i)) for p in range(2)]
    def use_tick(i): return qa(i >> 3, 2 * (i & 7))
    for i in range(32):
        ea = barr(10) if i < 4 else (A_Q - 16 + 4 * (i - 4) + 4 if i < 8 else use_tick(i - 8) + 4)
        at = aread(i)
        if i < 8: at = [xread(KN + i, 0), xread(KN + i, 1)] + at
        by = use_tick(i) - 6
        if i < 8: by = min(by, T_B11 - 4)
        if i >= 24: by = min(by, T_BC - 4)
        sF.addall(at, at=ea, by=max(by, ea))
    sD = Stream("dma")
    def addgrp(g, at, sp, key=None, by=None):
        at_, adv = g
        sD.add(at_[0], at=at, space=max(sp - 2, 0)); sD.add(at_[1])
        for i, a in enumerate(at_[2:]): sD.add(a, space=sp, key=key if i == 2 else None, by=by)
        for a in adv: sD.add(a)
    sR = Stream("wdread", cap=2)
    vHs = vX[0]
    WD_AT = [barr(9), barr(10), T_B11, T_BC, T_BC, T_BC, T_BC]
    for n, (kind, i) in enumerate(Cfg.order):
        sp = 2 if n < 2 else (Cfg.sp1 if n < Cfg.kx else Cfg.sp2)
        if kind == "W": addgrp(w_group(i), barr(i - 5) if i >= 6 else 0, sp, key=("w", i), by=barr(min(i, 10)) - Cfg.minlead)
        elif kind == "X": addgrp(x_group(i), barr(2 * (i - 3) + 2) if i >= 3 else 0, sp, by=barr(min(2 * i, 10)) - Cfg.minlead)
        elif kind == "K": sD.addall(kvl, key="kvl")
        elif kind == "H":
            sD.add(unstash(vHs, aHsrc), at=T_B11 - 8)
            for q in range(8):
                sD.add([I("s_add_u32 m0, s%d, %d" % (sHL, 1024 * q)), I("s_mov_b32 s%d, %d" % (sZt0, 256 * q))], at=T_B11)
                sD.add(VM("buffer_load_dwordx4 v%d, %s, s%d offen lds" % (vHs, srd(SRD_HK), sZt0), "hdma"), space=0, by=qa(1, 2))
        else:
            addgrp(wd_group(i), WD_AT[i], sp, by=(T_BC if i < 3 else T_BW) - Cfg.minlead)
    for i in range(7):
        sR.addall(wd_reads(i), at=conv_anchor(0) if i < 3 else T_BW, by=T_BW - 2 if i < 3 else conv_anchor(143))
    sP = Stream("prep")
    def unp(dst, src, hi): return I("v_and_b32 v%d, 0xffff0000, v%d" % (dst, src)) if hi else I("v_lshlrev_b32 v%d, 16, v%d" % (dst, src))
    at = [WVM("prep")] + tag_from_epoch(vEp)
    at += [I("v_lshl_or_b32 v%d, v%d, 16, v%d" % (HB0, HB1, HB0)), DS("ds_write_b32 v78, v%d" % HB0, "kvw")]
    for b in range(2):
        for i in range(4): at.append(unp(TAP + i, SKR + 2 * b + (i >> 1), i & 1))
        for a in range(11): at.append(unp(KFv + a, KR + a, b))
        out = OHI if b else OLO
        for w in range(4):
            for (o, R) in ((7 - 2 * w, R0), (6 - 2 * w, R1)):
                at.append(I("v_mul_f32 v%d, v%d, v%d" % (R, KFv + o, TAP + 3)))
                for i in (2, 1, 0): at.append(I("v_fmac_f32 v%d, v%d, v%d" % (R, KFv + o + 3 - i, TAP + i)))
                at.append(unp(VF, VR_ + o, b))
                at.append(I("v_mul_f32 v%d, v%d, v%d" % (R, R, VF)))
            at.append(I("v_cvt_pk_bf16_f32 v%d, v%d, v%d" % (out + w, R0, R1)))
    at.append(unstash(R0, aPsw))
    at.append(DS("ds_write_b128 v%d, %s" % (R0, vr(OLO, 4)), "psw"))
    at.append(DS("ds_write_b128 v%d, %s offset:128" % (R0, vr(OHI, 4)), "psw"))
    B_psw = Cfg.b_psw
    sP.addall(at, after=("kvl", Cfg.prep_lag), by=barr(B_psw) - 2)
    at = [unstash(R1, aPsr), DS("ds_read_b128 %s, v%d" % (vr(36, 4), R1), "psr"), DS("ds_read_b128 %s, v%d offset:4608" % (vr(40, 4), R1), "psr"),
          unstash(R0, aKst)]
    sP.addall(at, at=barr(B_psw), by=barr(B_psw) + 4)
    sP.add([WDS("psr"), VM("buffer_store_dwordx4 %s, v%d, %s, s%d offen sc1" % (vr(36, 4), R0, srd(SRD_WS), sKst0), "kvst")], space=6, by=barr(B_psw) + 12)
    sP.add(VM("buffer_store_dwordx4 %s, v%d, %s, s%d offen sc1" % (vr(40, 4), R0, srd(SRD_WS), sKst1), "kvst"), by=barr(B_psw) + 14, key="prepdone")
    B_kvst = B_psw + Cfg.kv_ack
    assert B_kvst <= 10
    sP.add(flag_store(sKfl, []), at=barr(B_kvst), by=barr(B_kvst) + 2)
    CSF, MB, vPk, vPo, vCo, vMo, KV, vKw, vU0, vU1, vU2 = 32, 48, 56, 57, 58, 59, 62, 60, 71, 72, 61
    assert min(Cfg.cs_at, Cfg.polls_at) > barr(B_psw + 1) + 4
    sQ = Stream("cs")
    ldC = ["buffer_load_dwordx4 %s, v%d, %s, s%d offen offset:%d sc1" % (vr(CSF + 4 * jj, 4), vCo, srd(SRD_WS), sCs, 512 * jj) for jj in range(4)]
    ldM = ["buffer_load_dwordx2 %s, v%d, %s, s%d offen offset:%d sc1" % (vr(MB + 4 * nt, 2), vMo, srd(SRD_WS), sMn, 256 * nt) for nt in range(2)]
    sQ.addall([I("v_and_b32 v%d, 511, v%d" % (vCo, vL16)), I("v_lshrrev_b32 v%d, 1, v%d" % (vMo, vCo))] + [VM(x, "cs") for x in ldC + ldM], at=Cfg.cs_at - 2, by=Cfg.cs_at + 8)
    cmp_ops = ["v_xor_b32 v%d, s%d, v%d" % (vU0, sTAG, CSF + 3), "v_xor_b32 v%d, s%d, v%d" % (vU1, sTAG, CSF + 7), "v_xor_b32 v%d, s%d, v%d" % (vU2, sTAG, CSF + 11),
               "v_or3_b32 v%d, v%d, v%d, v%d" % (vU0, vU0, vU1, vU2), "v_xor_b32 v%d, s%d, v%d" % (vU1, sTAG, CSF + 15), "v_xor_b32 v%d, s%d, v%d" % (vU2, sTAG, MB + 1),
               "v_or3_b32 v%d, v%d, v%d, v%d" % (vU0, vU0, vU1, vU2), "v_xor_b32 v%d, s%d, v%d" % (vU1, sTAG, MB + 5), "v_or_b32 v%d, v%d, v%d" % (vU0, vU0, vU1),
               "v_cmp_ne_u32 vcc, 0, v%d" % vU0]
    c1, c2 = check("C", ldC + ldM, cmp_ops, ["cs"])
    T_CORR = qa(0, 16)
    sQ.addall(c1, at=T_CORR - 22, by=T_CORR - 14)
    sQ.add(c2, by=T_CORR - 14)
    at = [I("v_mov_b32 v%d, 0" % (CSF + 4 * jj + 3)) for jj in range(4)]
    for nt in range(2):
        b = MB + 4 * nt
        at.append(I("v_xor_b32 v%d, 0x80000000, v%d" % (b, b)))
        at.append([I("v_cmp_gt_u32 vcc, 32, v%d" % vL), I("v_mov_b32 v%d, 0" % (b + 2)), I("v_mov_b32 v%d, 0" % (b + 3)), I("v_cndmask_b32 v%d, 0, v%d, vcc" % (b, b))])
        at.append(I("v_lshrrev_b32 v%d, 16, v%d" % (b + 1, b)))
        at.append(I("v_or_b32 v%d, v%d, v%d" % (b, b, b + 1)))
    sQ.addall(at, by=T_CORR - 6)
    sK = Stream("kv")
    ldK = "buffer_load_dword v%d, v%d, %s, s%d offen sc1" % (vPk, vPo, srd(SRD_WS), sKF)
    sK.addall([unstash(vPo, aPollK), VM(ldK, "pollK")], at=Cfg.polls_at - 2, by=Cfg.polls_at + 2)
    c1, c2 = check("K", [ldK], ["v_cmp_ne_u32 vcc, s%d, v%d" % (sTAG, vPk)], ["pollK"])
    pc = Cfg.polls_at + Cfg.polls_lag
    sK.add([c1, c2], at=pc, by=pc)
    sK.add(I("v_lshlrev_b32 v%d, 4, v0" % vKw))
    sK.add(VM("buffer_load_dwordx4 %s, v%d, %s, s%d offen sc1" % (vr(KV, 4), vKw, srd(SRD_WS), sKld0), "kvld"))
    sK.add(VM("buffer_load_dwordx4 %s, v%d, %s, s%d offen sc1" % (vr(KV + 4, 4), vKw, srd(SRD_WS), sKld1), "kvld"), by=pc + 4)
    sK.add(I("v_add_u32 v%d, %d, v%d" % (vKw, KVR, vKw)))
    sK.add([WVM("kvld"), DS("ds_write_b128 v%d, %s" % (vKw, vr(KV, 4)), "kvw")], at=min(pc + Cfg.kv_lag, T_BC - 10), by=T_BC - 8)
    sK.add(DS("ds_write_b128 v%d, %s offset:4608" % (vKw, vr(KV + 4, 4)), "kvw"), by=T_BC - 8)
    sE = Stream("epi")
    vCA0, vCA1, vCB, vCD, vOo, vDv, vHo, vHp, vHt, vHA, vHB = 14, 15, 16, 17, 19, 20, 21, 13, 18, 10, 11
    for tl in range(8):
        jj, nt = tl >> 1, tl & 1
        a = ACC + tl * 16
        at = [I("v_mul_f32 v%d, v%d, v%d" % (a + r, a + r, a + r + 8)) for r in range(8)]
        at += [I("v_cvt_pk_bf16_f32 v%d, v%d, v%d" % (a + 8 + w, a + 2 * w, a + 2 * w + 1)) for w in range(4)]
        at.append(VM("buffer_store_dwordx4 %s, v%d, %s, s%d offen offset:%d sc1" % (vr(a + 8, 4), vL16, srd(SRD_WS), sHst1 if nt else sHst0, jj * 1024), ("hst", jj == 3)))
        ea = qa(jj, 16 + nt) + 4
        if ea >= A_CONV: ea += 1
        sE.addall(at, at=ea, by=ea + 16 if jj < 3 else conv_anchor(Cfg.epi_by), key=("epi", tl))
    def touch(first):
        at = [I("v_and_b32 v%d, 31, v%d" % (vHt, vL)), I("v_min_u32 v%d, 23, v%d" % (vHt, vHt))] if first else [I("v_and_b32 v%d, 7, v%d" % (vHt, vL)), I("v_add_u32 v%d, 24, v%d" % (vHt, vHt))]
        at += [I("v_lshlrev_b32 v%d, 7, v%d" % (vHt, vHt)), I("v_lshrrev_b32 v%d, 5, v%d" % (vDv, vL)),
               I("v_mul_u32_u24 v%d, %d, v%d" % (vDv, 112 * 1024, vDv)), I("v_add_u32 v%d, v%d, v%d" % (vHt, vHt, vDv))]
        return at, VM("buffer_load_dword v%d, v%d, %s, s%d offen sc1" % (12, vHt, srd(SRD_WS), sHst0), "htouch")
    def hflag(word, tags):
        return [WVM(*tags), VM("buffer_store_dword a%d, v%d, %s, s%d offen offset:%d sc1" % (aTag, vFlag0, srd(SRD_WS), sHfl, 4 * word), "flag")]
    for word, gap in ((0, Cfg.hflag0), (1, Cfg.hflag1)):
        ta, tb = touch(word == 0)
        if Cfg.htouch: sE.addall(ta)
        sE.add(hflag(word, [("hst", word == 1)]), at=conv_anchor(gap), by=conv_anchor(gap))
        if Cfg.htouch: sE.add(tb, by=conv_anchor(gap + 1), key=("touch", word))
        elif word: sE.add(I("s_nop 0"), key=("touch", 1))
    CACC = 32
    def cA(dd, r): return 128 + 64 * (dd & 1) + 8 * r
    def cB(dd, m): return 128 + 64 * (dd & 1) + 8 * m + 4
    def conv_reads(dd, r):
        at = [DS("ds_read_b64 %s, v%d offset:%d" % (vr(cA(dd, r) + half * 2, 2), base, 256 * dd + 2048 * r), ("C", dd, r)) for half, base in ((0, vCA0), (1, vCA1))]
        at.append(DS("ds_read_b128 %s, v%d offset:%d" % (vr(cB(dd, r), 4), vCB, 3584 - 512 * r + 64 * dd), ("C", dd, r)))
        return at
    pairs = sorted([(r, m) for r in range(8) for m in range(8 - r)], key=lambda p: (max(p), p))
    first_use = {}
    for i, p in enumerate(pairs): first_use.setdefault(max(p), i)
    sC_ = Stream("convrd", cap=3)
    sC_.addall([unstash(vCA0, aCA0), unstash(vCA1, aCA1), unstash(vCB, aCB), unstash(vCD, aCD)], at=T_BC - 40, by=T_BC - 2, after=(("w", 13), 1))
    for r in range(8): sC_.addall(conv_reads(0, r), at=T_BC, after=(("epi", r >> 1), 1), by=conv_anchor(first_use[r] - 6))
    for r in range(8): sC_.addall(conv_reads(1, r), after=(("epi", 4 + (r >> 1)), 1), by=conv_anchor(36 + first_use[r] - 8))
    for dd in (2, 3):
        for r in range(8): sC_.addall(conv_reads(dd, r), at=conv_anchor(36 * (dd - 1)), by=conv_anchor(36 * dd + first_use[r] - 8))
    XE = 2
    sM = Stream("misc")
    sM.add(unstash(vOo, aOo), at=conv_anchor(Cfg.xe_at))
    sM.add(VM("buffer_load_dwordx4 %s, v%d, %s, 0 offen" % (vr(XE, 4), vOo, srd(SRD_X)), "xe"))
    sM.add(VM("buffer_load_dwordx4 %s, v%d, %s, 0 offen offset:32" % (vr(XE + 4, 4), vOo, srd(SRD_X)), "xe"), space=2)
    sM.add([I("s_lshr_b32 s%d, s%d, 11" % (sZt1, sHS)), I("v_mov_b32 v%d, 0" % vHo)])
    sM.add(VM("buffer_load_ushort v%d, v%d, %s, s%d offen" % (0, vHo, srd(SRD_DD), sZt1), "xe"), space=2)
    sM.addall([unstash(vHo, aPollH), I("v_add_u32 v%d, s%d, v%d" % (vHA, sHA, vL16)), I("v_add_u32 v%d, s%d, v%d" % (vHB, sHB, vL16))])
    ldH = ["buffer_load_dword v%d, v%d, %s, s%d offen offset:%d sc1" % (vHp, vHo, srd(SRD_WS), sHF, 4 * w) for w in range(2)]
    sM.add(VM(ldH[0], "pollH"), at=conv_anchor(Cfg.hpoll), by=conv_anchor(Cfg.hpoll))
    NP = 32
    def hreg(f): return vr(64 + 4 * (f % NP), 4)
    def fidx(f): return f // 28, (f % 28) // 7, f % 7
    def hload(f):
        jt, jj, j = fidx(f)
        return VM("buffer_load_dwordx4 %s, v%d, %s, s%d offen offset:%d sc1" % (hreg(f), vHB if jt else vHA, srd(SRD_WS), sG[j], jj * 1024), ("H", f))
    hc1, hc2 = check("H", [ldH[0]], ["v_cmp_ne_u32 vcc, s%d, v%d" % (sTAG, vHp)], ["pollH"])
    nh = 0
    if Cfg.hcheck < 144:
        sM.add([hc1, hc2] + stamp("hok"), at=conv_anchor(Cfg.hcheck), by=conv_anchor(Cfg.hcheck))
        while nh < 16 and Cfg.hcheck + 1 + 3 * nh < 142:
            sM.add(hload(nh), space=3 if nh else 0, by=conv_anchor(143)); nh += 1

    SC = Sched([sF, sC_, sE, sD, sQ, sK, sM, sR, sS, sP])
    usage = []
    def emit_gap(now, budget, pre=0.0):
        o, u = SC.fill(now, budget - pre)
        P.append(o); usage.append(u + pre)
    def barrier(w, wd):
        o = [WVM(*w)] if w else []
        if wd: o.append(WDS(*wd))
        o.append(I("s_barrier"))
        return o
    def barrier_i(i):
        w = [("W", i)]; wd = []
        if i % 2 == 0: w.append(("X", i // 2))
        if i == 10: w += [("W", 11), ("W", 12), ("W", 13), ("X", 6)]
        if i == B_kvst: w.append("kvst")
        if i == B_psw: wd.append("psw")
        return barrier(w, wd)
    def mf32(a, A_, B_, first): return "v_mfma_f32_32x32x16_bf16 %s, %s, %s, %s" % (vr(a, 16), A_, B_, "0" if first else vr(a, 16))
    for s in range(KN):
        buf = s & 1
        P.append(WDS(("F", s)))
        if s in Cfg.stamps_k: P.append(stamp("k%d" % s))
        for m in range(8):
            jj, nt = m >> 1, m & 1
            P.append(mf32(ACC + m * 16, vr(AF + buf * 16 + jj * 4, 4), vr(BF + buf * 8 + nt * 4, 4), s == 0))
            pre = 1.0 if m == 7 else 0.0
            if m == 0 and (s & 1):
                P.append(barrier_i((s + 1) // 2)); pre = 2.0
            emit_gap(16 * s + 2 * m, Cfg.b32, pre)
    P.append(stamp("k20"))
    for q in range(4):
        for i in range(18):
            nt = i & 1; a = ACC + (2 * q + nt) * 16
            if i < 16:
                fi = 8 * q + (i >> 1)
                if nt == 0: P.append(WDS(("FA", fi), ("FX", KN + (i >> 1))))
                P.append(mf32(a, vr(AF + 4 * (fi & 7), 4), ar(aX + 8 * (i >> 1) + 4 * nt, 4), False))
            else: P.append(mf32(a, vr(CSF + q * 4, 4), vr(MB + nt * 4, 4), False))
            pre = 1.0 if nt else 0.0
            if qa(q, i) == T_B11: P.append(barrier([], [("FX", 27)])); pre += 2
            if qa(q, i) == T_BC: P.append(barrier(["hdma", ("WD", 0), ("WD", 1), ("WD", 2)], ["kvw", ("FA", 31)])); pre += 2
            emit_gap(qa(q, i), Cfg.b32, pre)
        if q == 0: P.append(stamp("q0"))
    P.append(stamp("g1end"))
    gi = 0
    for dd in range(4):
        seen = set()
        for i, (r, m) in enumerate(pairs):
            if first_use[max(r, m)] == i: P.append(WDS(("C", dd, max(r, m))))
            a = CACC + (r + m) * 4
            P.append("v_mfma_f32_16x16x32_bf16 %s, %s, %s, %s" % (vr(a, 4), vr(cA(dd, r), 4), vr(cB(dd, m), 4), "0" if (dd == 0 and (r + m) not in seen) else vr(a, 4)))
            seen.add(r + m)
            if conv_anchor(gi) == T_BW: P.append(barrier([("WD", u) for u in range(3, 7)], [("WR", 2)]))
            emit_gap(conv_anchor(gi), Cfg.b16)
            gi += 1
    assert SC.done(), SC.left()
    Cfg._usage1 = usage; Cfg._log1 = SC.log
    P.append(stamp("convend"))

    CM, CP, CK, vT0, vT1, vT2 = 192, 208, 224, 22, 23, 24
    P.append(L("v_add_u32 v%d, s%d, v%d\nv_xor_b32 v%d, 4096, v%d", vT0, sWL, vL16, vT1, vT0))
    P.append(L("v_add_u32 v%d, %d, v%d\nv_add_u32 v%d, %d, v%d", 234, CEX, vT0, 235, CEX, vT1))
    for k in range(4): P.append(DS("ds_read_b64 %s, v%d offset:%d" % (vr(CK + 2 * k, 2), vCD, 512 * (3 - k)), "cxk"))
    P.append(unstash(vT2, aZst))
    P.append(L("s_cmp_eq_u32 s%d, 0\ns_cbranch_scc0 L_cx1", sWM))
    for k in range(4): P.append(DS("ds_write_b128 v234, %s offset:%d" % (vr(CACC + 16 + 4 * k, 4), 1024 * k), "cxw"))
    for k in range(16): P.append("v_mov_b32 v%d, v%d" % (CM + k, CACC + k))
    P.append(RAW("s_branch L_cx2\nL_cx1:"))
    for k in range(4): P.append(RAW("ds_write_b128 v234, %s offset:%d" % (vr(CACC + 4 * k, 4), 1024 * k)))
    for k in range(16): P.append(RAW("v_mov_b32 v%d, v%d" % (CM + k, CACC + 16 + k)))
    P.append(RAW("L_cx2:"))
    if Cfg.hcheck >= 144:
        P.append([hc1, hc2]); P.append(stamp("hok"))
    n0 = nh
    while nh < min(n0 + Cfg.nfirst, 21): P.append(hload(nh)); nh += 1
    P.append([WDS("cxw"), I("s_barrier")])
    for k in range(4): P.append(DS("ds_read_b128 %s, v235 offset:%d" % (vr(CP + 4 * k, 4), 1024 * k), "cxr"))
    P.append([WVM("xe"), I("v_lshlrev_b32 v0, 16, v0")])
    for k in range(4):
        lo, hi = CK + 2 * k, CK + 1 + 2 * k
        P.append("v_and_b32 v232, 0xffff0000, v%d\nv_fmac_f32 v%d, v232, v0" % (hi, CM + 4 * k + 0))
        P.append("v_lshlrev_b32 v233, 16, v%d\nv_fmac_f32 v%d, v233, v0" % (hi, CM + 4 * k + 1))
        P.append("v_and_b32 v232, 0xffff0000, v%d\nv_fmac_f32 v%d, v232, v0" % (lo, CM + 4 * k + 2))
        P.append("v_lshlrev_b32 v233, 16, v%d\nv_fmac_f32 v%d, v233, v0" % (lo, CM + 4 * k + 3))
        if nh < 21: P.append(hload(nh)); nh += 1
    P.append(WDS("cxr"))
    ZO = 48
    for k in range(4):
        for r in range(4): P.append("v_add_f32 v%d, v%d, v%d" % (CM + 4 * k + r, CM + 4 * k + r, CP + 4 * k + r))
        for w in range(2): P.append("v_cvt_pk_bf16_f32 v%d, v%d, v%d" % (ZO + 2 * k + w, CM + 4 * k + 2 * w, CM + 4 * k + 2 * w + 1))
    if Cfg.h2_early: P.append(VM(ldH[1], "pollH2"))
    for j in range(2): P.append(VM("buffer_store_dwordx4 %s, v%d, %s, s%d offen offset:%d sc1" % (vr(ZO + 4 * j, 4), vT2, srd(SRD_WS), sZst, 1024 * j), "zst"))
    P.append(stamp("zst"))

    ACA, ACB, ZV, XF, ST = 192, 224, 32, 48, 26
    vZp, vZo, vSo, vRr = 14, 15, 16, 17
    RR, GR = 160, 176
    sH = Stream("hload")
    g1, g2_ = check("H2", [ldH[1]], ["v_cmp_ne_u32 vcc, s%d, v%d" % (sTAG, vHp)], ["pollH2"])
    if not Cfg.h2_early: sH.add(VM(ldH[1], "pollH2"), at=Cfg.h2poll)
    for f in range(nh, 56):
        if f == 21: sH.add([g1, g2_], at=Cfg.h2check, by=2 * f - 10)
        ea = 2 * (f - NP) + 2 if f >= NP else 0
        sH.add(hload(f), at=ea, space=Cfg.hsp, by=2 * f - 6)
    sZ = Stream("z")
    sZ.add(flag_store(sZfl, ["zst"]), at=Cfg.zflag, by=Cfg.zflag)
    ldZ = "buffer_load_dword v%d, v%d, %s, s%d offen sc1" % (vZp, vZo, srd(SRD_WS), sZF)
    ldS = "buffer_load_dwordx4 %s, v%d, %s, s%d offen sc1" % (vr(ST, 4), vSo, srd(SRD_WS), sSt2)
    sZ.addall([unstash(vZo, aPollZ), I("v_and_b32 v%d, 511, v%d" % (vSo, vL16))] + [I("v_mov_b32 v%d, 0" % (ZV + e)) for e in range(16)])
    sZ.add(VM(ldZ, "pollZ"), at=Cfg.zpoll)
    sZ.add(VM(ldS, "pollZ"))
    cmp_ops = ["v_xor_b32 v%d, s%d, v%d" % (vZp, sTAG, vZp), "v_xor_b32 v%d, s%d, v%d" % (ST + 3, sTAG, ST + 2),
               "v_or_b32 v%d, v%d, v%d" % (vZp, vZp, ST + 3), "v_cmp_ne_u32 vcc, 0, v%d" % vZp]
    c1, c2 = check("Z", [ldZ, ldS], cmp_ops, ["pollZ"])
    sZ.add([c1, c2], at=Cfg.zpoll + Cfg.zlag)
    sZ.add(unstash(vZo, aZld))
    for e in range(16):
        t = (sZt0, sZt1)[e & 1]
        sZ.add([I("s_add_u32 s%d, s%d, %d" % (t, sZld, (16 * (e >> 3) + (e & 7)) * 4096)),
                VM("buffer_load_short_d16_hi v%d, v%d, %s, s%d offen sc1" % (ZV + e, vZo, srd(SRD_WS), t), "zld")], by=108)
    sZ.add(I("v_mul_f32 v%d, v%d, v%d" % (ST, ST, ST + 1)))
    sZ.add(I("v_mul_f32 v%d, v%d, v%d" % (ST + 2, ST + 1, ST + 1)))
    sX = Stream("x")
    sX.addall([unp(XF + i, XE + (i >> 1), i & 1) for i in range(16)], at=8)
    sX.add(unstash(vRr, aRr))
    A_BAR = 56 + Cfg.bar_a
    assert A_BAR >= 64
    sX.addall([DS("ds_write_b128 v%d, %s offset:%d" % (vT1, vr(ACA + 16 + rq * 4, 4), REDA + rq * 1024), "rwa") for rq in range(4)], at=58, space=1, by=A_BAR - 3)
    sX.addall([DS("ds_read_b128 %s, v%d offset:%d" % (vr(ACA + 16 + rq * 4, 4), vT0, REDA + rq * 1024), "rra") for rq in range(4)], at=A_BAR, by=A_BAR + 1)
    def gpos(b, w): return b + (w // 3) * 4 + (w % 3)
    sX.addall([I("v_mov_b32 v%d, s%d" % (GR + 4 * k + 3, sTAG)) for k in range(3)])
    first = True
    for w in range(8):
        for i in (2 * w, 2 * w + 1):
            op = I("v_add_f32 v%d, v%d, v%d" % (ACA + i, ACA + i, ACA + 16 + i))
            if first: sX.add([WDS("rra"), op], space=2); first = False
            else: sX.add(op)
        sX.add(I("v_cvt_pk_bf16_f32 v%d, v%d, v%d" % (gpos(GR, w), ACA + 2 * w, ACA + 2 * w + 1)))
        if w % 3 == 2 or w == 7:
            k = w // 3
            sX.add(VM("buffer_store_dwordx4 %s, v%d, %s, s%d offen offset:%d sc1" % (vr(GR + 4 * k, 4), vL16, srd(SRD_WS), sPst, k * 1024), "pst"), by=A_BAR + 10)
    ldP = ["buffer_load_dwordx4 %s, v%d, %s, s%d offen offset:%d sc1" % (vr(ACA + 4 * k, 4), vL16, srd(SRD_WS), sPld, k * 1024) for k in range(3)]
    sX.addall([VM(x, "pld") for x in ldP], at=Cfg.pld, by=111)
    SC = Sched([sH, sX, sZ])
    usage = []
    for f in range(56):
        jt, jj, j = fidx(f)
        P.append(WVM(("H", f)))
        if f in Cfg.stamps_f: P.append(stamp("f%d" % f))
        for jd in range(2):
            a = (ACB if jt else ACA) + jd * 16
            P.append(mf32(a, ar(8 * (4 * j + jj) + 4 * jd, 4), hreg(f), f % 28 == 0))
            now = 2 * f + jd
            if now == A_BAR: P.append([WDS("rwa"), I("s_barrier")])
            emit_gap(now, Cfg.b32, 1.0 if jd else 0.0)
    assert SC.done(), SC.left()
    Cfg._usage2 = usage
    P.append(stamp("g2end"))
    fin = []
    for i in range(16):
        fin.append("v_fma_f32 v%d, v%d, v%d, -v%d" % (vZp, XF + i, ST + 1, ST))
        fin.append("v_fma_f32 v%d, v%d, v%d, v%d" % (ZV + i, vZp, ZV + i, XF + i))
    P.append(WVM("zld"))
    P.append(fin[:12])
    for rq in range(4): P.append(DS("ds_write_b128 v%d, %s offset:%d" % (vT1, vr(ACB + 16 + rq * 4, 4), REDB + rq * 1024), "rwb"))
    P.append(fin[12:])
    P.append([WDS("rwb"), I("s_barrier")])
    for kk in range(2):
        for hs in range(2):
            P.append(DS("ds_read_b128 %s, v%d offset:%d" % (vr(RR + kk * 8 + hs * 4, 4), vRr, REDB + kk * 2048 + hs * 512), "rrb"))
    cmp_ops = ["v_xor_b32 v%d, s%d, v%d" % (ACA + 4 * k + 3, sTAG, ACA + 4 * k + 3) for k in range(3)]
    cmp_ops += ["v_or3_b32 v%d, v%d, v%d, v%d" % (ACA + 3, ACA + 3, ACA + 7, ACA + 11), "v_cmp_ne_u32 vcc, 0, v%d" % (ACA + 3)]
    c1, c2 = check("P", ldP, cmp_ops, ["pld"])
    P.append([c1, c2])
    for i in range(16):
        P.append(unp(ACA + 16 + i, gpos(ACA, i >> 1), i & 1))
        P.append("v_add_f32 v%d, v%d, v%d" % (ACB + i, ACB + i, ACA + 16 + i))
    P.append("s_nop 1")
    for kk in range(2):
        for i in range(4): P.append("v_permlane32_swap_b32 v%d, v%d" % (ACB + 8 * kk + i, ACB + 8 * kk + 4 + i))
    P.append(WDS("rrb"))
    for kk in range(2):
        for i in range(8): P.append("v_add_f32 v%d, v%d, v%d" % (ACB + 8 * kk + i, ACB + 8 * kk + i, RR + 8 * kk + i))
        for i in range(8): P.append("v_fma_f32 v%d, v%d, v%d, v%d" % (ACB + 8 * kk + i, ACB + 8 * kk + i, ST + 2, ZV + 8 * kk + i))
        for w in range(4): P.append("v_cvt_pk_bf16_f32 v%d, v%d, v%d" % (64 + 4 * kk + w, ACB + 8 * kk + 2 * w, ACB + 8 * kk + 2 * w + 1))
        P.append(VM("buffer_store_dwordx4 %s, v%d, %s, 0 offen offset:%d" % (vr(64 + 4 * kk, 4), vOo, srd(SRD_OUT), 32 * kk), "out"))
    P.append(diag_tail())
    P.append("s_endpgm")
    return P
Cfg.order = [("W", 2), ("X", 1), ("K", 0), ("W", 3), ("W", 4), ("X", 2), ("W", 5), ("W", 6), ("X", 3), ("W", 7), ("W", 8), ("X", 4), ("W", 9),
             ("W", 10), ("X", 5), ("W", 11), ("W", 12), ("X", 6), ("W", 13), ("D", 0), ("D", 1), ("H", 0), ("D", 2), ("D", 3), ("D", 4), ("D", 5), ("D", 6)]
Cfg.minlead = 24; Cfg.prep_lag = 48; Cfg.htouch = False; Cfg.hcheck = 144; Cfg.pld = 104; Cfg.nws = 6
Cfg.q_pro = 0; Cfg.b11 = 8; Cfg.bc = 8; Cfg.bw = 110; Cfg.cs_at = 290; Cfg.hflag0 = 40; Cfg.hflag1 = 100; Cfg.xe_at = 44
Cfg.h2_early = True; Cfg.h2poll = 0; Cfg.h2check = 14
Cfg.epi_prio = True; Cfg.stamps_f = (); Cfg.b_psw = 7; Cfg.kv_ack = 2; Cfg.epi_by = 8; Cfg.hcheck_early = True; Cfg.hsp = 2; Cfg.bar_a = 10

def gen_helper():
    stamp_n[0] = 0
    P = [WDS0()]
    if Cfg.diag: P.append("s_mov_b32 s89, s88")
    P.append(build_srd(SRD_X, 4, S * D * 2)); P.append(build_srd(SRD_WS, 28, WS_SIZE))
    P.append(L("s_and_b32 s%d, s2, 7\ns_lshr_b32 s%d, s2, 3", sA, sB))
    P.append(L("s_lshl_b32 s%d, s%d, 2\ns_add_u32 s%d, s%d, s%d", sT, sA, sT, sT, sB))
    P.append(L("s_lshr_b32 s%d, s%d, 1\ns_lshl_b32 s%d, s%d, 2\ns_add_u32 s%d, s%d, s%d", sC2, sA, sC2, sC2, sC2, sC2, sB))
    P.append(L("s_and_b32 s%d, s%d, 1\ns_mul_i32 s%d, s%d, 7\ns_add_u32 s%d, s%d, s%d", sA, sA, sFT, sA, sFT, sFT, sC2))
    P.append(L("s_cmp_ge_u32 s%d, 7\ns_cselect_b32 s%d, s20, s18\ns_cselect_b32 s%d, s21, s19", sC2, SRD_W1, SRD_W1 + 1))
    P.append(L("s_cselect_b32 s%d, 1, 0\ns_cselect_b32 s%d, 7, 0\ns_sub_u32 s%d, s%d, s%d", sMT, sA, sFT, sFT, sA))
    P.append(L("s_mov_b32 s%d, %d\ns_mov_b32 s%d, 0x00020000", SRD_W1 + 2, D * F * 2, SRD_W1 + 3))
    sNO, sONE, sLO, sHI, sSTO = sWL, sXL, sWo, sXo, sDo
    P.append(L("s_cmp_ge_u32 s%d, 14\ns_cselect_b32 s%d, 0x40000000, 0", sC2, sNO))
    V0, V1, V2, V3, V4, V5 = 2, 3, 4, 5, 6, 7
    P.append(L("s_lshl_b32 s%d, s%d, 2\ns_add_u32 s%d, s%d, s%d\ns_mul_i32 s%d, s%d, %d\ns_add_u32 s%d, s%d, %d", sA, sT, sA, sA, sWV, sA, sA, 16 * 896, sB, sA, 8 * 896))
    P.append(L("v_lshrrev_b32 v%d, 3, v%d\nv_mul_u32_u24 v%d, 896, v%d\nv_and_b32 v%d, 7, v%d\nv_lshl_add_u32 v%d, v%d, 4, v%d", V0, vL, V0, V0, V1, vL, V0, V1, V0))
    P.append(L("s_getpc_b64 s[%d:%d]", sC, sC + 1))
    P.append(RAW("L_touch_base2:"))
    P.append(L("s_sub_u32 s%d, s%d, L_touch_base2-L_main\ns_subb_u32 s%d, s%d, 0", sC, sC, sC + 1, sC + 1))
    P.append(L("s_lshr_b32 s%d, s2, 3\ns_lshl_b32 s%d, s%d, 13\nv_lshrrev_b32 v%d, 2, v0\nv_lshlrev_b32 v%d, 7, v%d\nv_add_u32 v%d, s%d, v%d", sZt0, sZt0, sZt0, V4, V4, V4, V4, sZt0, V4))
    P.append(L("v_min_u32 v%d, L_end_of_code-L_main-4, v%d", V4, V4))
    P.append(VM("global_load_dword v%d, v%d, s[%d:%d]" % (8, V4, sC, sC + 1), "touch"))
    P.append(L("s_mov_b32 s%d, %d\nv_mov_b32 v%d, 0", sZt0, EP_OFF, V4))
    P.append(VM("buffer_load_dword v%d, v%d, %s, s%d offen sc1" % (V5, V4, srd(SRD_WS), sZt0), "ep"))
    for grp in range(2):
        for i in range(7):
            P.append(VM("buffer_load_dwordx4 %s, v%d, %s, s%d offen offset:%d %s" % (vr(32 + (grp * 7 + i) * 4, 4), V0, srd(SRD_X), sB if grp else sA, 128 * i, Cfg.nt_x), ("hx", grp)))
    P.append(L("v_lshrrev_b32 v%d, 4, v0\nv_mul_u32_u24 v%d, 3584, v%d\nv_and_b32 v%d, 15, v0\nv_lshl_add_u32 v%d, v%d, 4, v%d", V2, V2, V2, V3, V2, V3, V2))
    P.append(L("s_lshl_b32 s%d, s%d, 8\ns_add_u32 s%d, s%d, s%d", sD_, sFT, sD_, sD_, sNO))
    def wl(i):
        return ["s_add_u32 s%d, s%d, %d" % (sB, sD_, 16 * i * 3584),
                VM("buffer_load_dwordx4 %s, v%d, %s, s%d offen %s" % (vr(128 + 4 * i, 4), V2, srd(SRD_W1), sB, Cfg.nt_w), ("hw", i))]
    def red8(v):
        return ["s_nop 1", "v_add_f32_dpp v%d, v%d, v%d quad_perm:[1,0,3,2] row_mask:0xf bank_mask:0xf" % (v, v, v), "s_nop 1",
                "v_add_f32_dpp v%d, v%d, v%d quad_perm:[2,3,0,1] row_mask:0xf bank_mask:0xf" % (v, v, v), "s_nop 1",
                "v_add_f32_dpp v%d, v%d, v%d row_half_mirror row_mask:0xf bank_mask:0xf" % (v, v, v)]
    INV448 = 0x3b124925
    P.append(L("s_mov_b32 s%d, 0x3f803f80\ns_mov_b32 s%d, 0x00003f80\ns_mov_b32 s%d, 0x3f800000", sONE, sLO, sHI))
    U0, U1 = 88, 89
    MEAN = [90, 91]; G = [92, 96]
    vSo, vSo2 = 100, 101
    P.append(L("v_and_b32 v%d, 7, v%d\nv_cmp_eq_u32 vcc, 0, v%d\nv_mov_b32 v%d, %s\nv_lshlrev_b32 v%d, 1, v%d\nv_cndmask_b32 v%d, v%d, v%d, vcc\nv_cndmask_b32 v%d, v%d, v%d, vcc",
               V0, vL, V0, V1, OOB, V3, vL, vSo, V1, vL, vSo2, V1, V3))
    P.append(L("s_lshl_b32 s%d, s%d, 2\ns_add_u32 s%d, s%d, s%d\ns_lshl_b32 s%d, s%d, 7\ns_add_u32 s%d, s%d, %d", sA, sT, sA, sA, sWV, sA, sA, sSTO, sA, ST_OFF))
    P.append(L("s_lshl_b32 s%d, s%d, 1\ns_add_u32 s%d, s%d, %d", sA, sA, sZt1, sA, ST2_OFF))
    P.append(WVM("ep")); P.append(tag_from_epoch(V5))
    nw = 0
    for grp in range(2):
        base = 32 + grp * 28
        P.append(L("v_mov_b32 v%d, 0\nv_mov_b32 v%d, 0", U0, U1))
        P.append(WVM(("hx", grp)))
        for k in range(5): P.append(wl(nw)); nw += 1
        for r in range(28): P.append("v_dot2c_f32_bf16 v%d, s%d, v%d" % (U1 if r & 1 else U0, sONE, base + r))
        P.append(L("s_nop 2\nv_add_f32 v%d, v%d, v%d", MEAN[grp], U0, U1))
        P.append(red8(MEAN[grp]))
        P.append(L("v_mul_f32 v%d, 0x%x, v%d", MEAN[grp], INV448, MEAN[grp]))
        P.append(L("v_cvt_pk_bf16_f32 v%d, v%d, v%d\nv_lshlrev_b32 v%d, 16, v%d\nv_mov_b32 v%d, s%d", G[grp], MEAN[grp], MEAN[grp], G[grp], G[grp], G[grp] + 1, sTAG))
        P.append(VM("buffer_store_dwordx2 %s, v%d, %s, s%d offen offset:%d sc1" % (vr(G[grp], 2), vSo, srd(SRD_WS), sSTO, 64 * grp), "mst"))
    P.append(stamp("mean"))
    var = []
    for grp in range(2):
        SQ = 102 + 2 * grp; base = 32 + grp * 28
        var.append(L("v_mov_b32 v%d, 0\nv_mov_b32 v%d, 0", SQ, SQ + 1))
        for r in range(28):
            var.append(L("v_lshlrev_b32 v%d, 16, v%d\nv_and_b32 v%d, 0xffff0000, v%d\nv_sub_f32 v%d, v%d, v%d\nv_sub_f32 v%d, v%d, v%d\nv_fmac_f32 v%d, v%d, v%d\nv_fmac_f32 v%d, v%d, v%d",
                         U0, base + r, U1, base + r, U0, U0, MEAN[grp], U1, U1, MEAN[grp], SQ, U0, U0, SQ + 1, U1, U1))
    CSUM = 108
    for e in range(8): P.append("v_mov_b32 v%d, 0" % (CSUM + e))
    vi = 0
    for i in range(28):
        if nw < 28: P.append(wl(nw)); nw += 1
        for k in range(Cfg.h_var):
            if vi < len(var): P.append(var[vi]); vi += 1
        P.append(WVM(("hw", i)))
        for w in range(4):
            src = 128 + 4 * i + w
            P.append("v_dot2c_f32_bf16 v%d, s%d, v%d\nv_dot2c_f32_bf16 v%d, s%d, v%d" % (CSUM + 2 * w, sLO, src, CSUM + 2 * w + 1, sHI, src))
    P.append(L("v_lshlrev_b32 v%d, 5, v0\ns_nop 2", V0))
    P.append(RAW("ds_write_b128 v%d, v[108:111]\nds_write_b128 v%d, v[112:115] offset:16" % (V0, V0)))
    P.append(WDS0()); P.append("s_barrier")
    P.append(L("v_and_b32 v%d, 127, v0\nv_lshlrev_b32 v%d, 2, v%d", V1, V0, V1))
    for rg in range(16): P.append(RAW("ds_read_b32 v%d, v%d offset:%d" % (128 + rg, V0, rg * 512)))
    P.append(L("v_lshrrev_b32 v%d, 4, v%d\nv_lshlrev_b32 v%d, 9, v%d\nv_and_b32 v%d, 15, v%d\nv_lshl_add_u32 v%d, v%d, 4, v%d", V2, V1, V2, V2, V3, V1, V2, V3, V2))
    P.append(L("v_cmp_gt_u32 vcc, 128, v0\nv_mov_b32 v%d, %s\ns_nop 0\nv_cndmask_b32 v%d, v%d, v%d, vcc", V3, OOB, V2, V3, V2))
    P.append(L("s_lshl_b32 s%d, s%d, 12\ns_lshl_b32 s%d, s%d, 8\ns_add_u32 s%d, s%d, s%d\ns_add_u32 s%d, s%d, %d\ns_add_u32 s%d, s%d, s%d", sA, sFT, sB, sMT, sA, sA, sB, sA, sA, CS_OFF, sA, sA, sNO))
    P.append(WDS0())
    for st in (1, 2, 4, 8):
        for rg in range(0, 16, 2 * st): P.append("v_add_f32 v%d, v%d, v%d" % (128 + rg, 128 + rg, 128 + rg + st))
    P.append("v_cvt_pk_bf16_f32 v116, v128, v128\nv_lshlrev_b32 v117, 16, v116\nv_sub_f32 v128, v128, v117")
    P.append("v_cvt_pk_bf16_f32 v118, v128, v128\nv_lshlrev_b32 v117, 16, v118\nv_sub_f32 v128, v128, v117")
    P.append("v_and_b32 v116, 0xffff, v116\nv_or_b32 v116, v116, v117")
    P.append(L("v_cvt_pk_bf16_f32 v117, v128, v128\nv_and_b32 v117, 0xffff, v117\nv_mov_b32 v118, 0\nv_mov_b32 v119, s%d", sTAG))
    P.append(VM("buffer_store_dwordx4 v[116:119], v%d, %s, s%d offen sc1" % (V2, srd(SRD_WS), sA), "cst"))
    P.append(stamp("cs"))
    P.append(var[vi:])
    for grp in range(2):
        SQ = 102 + 2 * grp
        P.append(L("v_add_f32 v%d, v%d, v%d", SQ, SQ, SQ + 1))
        P.append(red8(SQ))
        P.append(L("v_mul_f32 v%d, 0x%x, v%d", SQ, INV448, SQ))
        P.append(L("v_cvt_pk_bf16_f32 v%d, v%d, v%d\nv_lshlrev_b32 v%d, 16, v%d", SQ, SQ, SQ, SQ, SQ))
        P.append(L("v_add_f32 v%d, 0x3727c5ac, v%d", SQ, SQ))
        P.append(L("v_cvt_pk_bf16_f32 v%d, v%d, v%d\nv_lshlrev_b32 v%d, 16, v%d", SQ, SQ, SQ, SQ, SQ))
        P.append(L("v_sqrt_f32 v%d, v%d\ns_nop 0", SQ, SQ))
        P.append(L("v_cvt_pk_bf16_f32 v%d, v%d, v%d\nv_lshlrev_b32 v%d, 16, v%d", SQ, SQ, SQ, SQ, SQ))
        P.append(L("v_rcp_f32 v%d, v%d\nv_mov_b32 v%d, s%d\nv_mov_b32 v%d, 0", G[grp] + 1, SQ, G[grp] + 2, sTAG, G[grp] + 3))
        P.append(VM("buffer_store_dwordx4 %s, v%d, %s, s%d offen offset:%d sc1" % (vr(G[grp], 4), vSo2, srd(SRD_WS), sZt1, 128 * grp), "rst"))
    P.append(stamp("rstd"))
    P.append(L("s_cmp_lg_u32 s2, 0\ns_cbranch_scc1 L_h_end\ns_cmp_lg_u32 s%d, 0\ns_cbranch_scc1 L_h_end", sWV))
    P.append(L("v_lshlrev_b32 v%d, 7, v%d\nv_and_b32 v%d, 31, v%d\nv_lshlrev_b32 v%d, 7, v%d\ns_mov_b32 s%d, 0", V0, vL, V1, vL, V1, V1, sSPIN))
    P.append(RAW("L_ep_spin:"))
    for i in range(3):
        P.append("s_mov_b32 s%d, %d" % (sA, KF_OFF + 8192 * i))
        P.append(RAW("buffer_load_dword v%d, v%d, %s, s%d offen sc1" % (32 + i, V0, srd(SRD_WS), sA)))
    P.append("s_mov_b32 s%d, %d" % (sA, KF_OFF + 8192 * 3))
    P.append(RAW("buffer_load_dword v35, v%d, %s, s%d offen sc1" % (V1, srd(SRD_WS), sA)))
    for i in range(2):
        P.append("s_mov_b32 s%d, %d" % (sA, ST_OFF + 8192 * i + 4))
        P.append(RAW("buffer_load_dword v%d, v%d, %s, s%d offen sc1" % (36 + i, V0, srd(SRD_WS), sA)))
    P.append(WVM0())
    for i in range(6): P.append("v_xor_b32 v%d, s%d, v%d" % (32 + i, sTAG, 32 + i))
    for i in range(1, 6): P.append("v_or_b32 v32, v32, v%d" % (32 + i))
    P.append("v_cmp_ne_u32 vcc, 0, v32")
    P.append(L("s_add_u32 s%d, s%d, 1\ns_cmp_lt_u32 s%d, %d\ns_cbranch_scc0 L_ep_go", sSPIN, sSPIN, sSPIN, Cfg.spin))
    P.append("s_cbranch_vccz L_ep_go\ns_sleep 32\ns_branch L_ep_spin")
    P.append(RAW("L_ep_go:"))
    P.append("s_mov_b32 s%d, %d" % (sA, EP_OFF))
    P.append(RAW("buffer_store_dword a%d, v%d, %s, s%d offen sc1" % (aTag, vFlag0, srd(SRD_WS), sA)))
    P.append(RAW("L_h_end:"))
    P.append(diag_tail())
    P.append("s_endpgm")
    return P
Cfg.dbg = 0; Cfg.scramble = False; Cfg.h_var = 1; Cfg.trace = False

def generate(diag=False):
    Cfg.diag = diag
    stamp_n[0] = 0
    del slow_paths[:]; del stamp_names[:]
    ref = open("cdna_kernels/%s.s.ref" % NAME).read().split("\n")
    head = [l for l in ref if l.startswith(";") and "@launch" not in l]
    out = head + ["; @launch grid=(256,1,1) block=(256,1,1) lds=%d" % LDS_SIZE]
    out += ['.amdgcn_target "amdgcn-amd-amdhsa--gfx950"', ".text", ".globl %s_kernel" % NAME, ".p2align 8",
            ".type %s_kernel,@function" % NAME, "%s_kernel:" % NAME]
    pro, _ = resolve([prologue_common(), "s_cmp_lt_u32 s2, 32", "s_cbranch_scc1 L_helper"])
    del TRACE['names'][:]
    m, mx = resolve(gen_main(), trace=Cfg.trace)
    h, _ = resolve([RAW("L_helper:"), gen_helper()])
    body = pro + m + "\n".join(slow_paths).split("\n") + ["L_end_of_main:"] + h + ["L_exit:", "s_endpgm", "L_end_of_code:"]
    body = "\n".join(body).split("\n")
    bad = lintmod.lint(body)
    for b in bad: print("HAZARD", b)
    for l in body: out.append(l if l.endswith(":") else "    " + l)
    out += ['.section .rodata,"a"', ".p2align 6", ".amdhsa_kernel %s_kernel" % NAME,
            "  .amdhsa_next_free_vgpr 512", "  .amdhsa_next_free_sgpr 102", "  .amdhsa_accum_offset 256",
            "  .amdhsa_group_segment_fixed_size 0", "  .amdhsa_kernarg_size 104", "  .amdhsa_user_sgpr_count 2",
            "  .amdhsa_user_sgpr_kernarg_segment_ptr 1", "  .amdhsa_system_sgpr_workgroup_id_x 1",
            "  .amdhsa_float_denorm_mode_32 3", ".end_amdhsa_kernel"]
    return "\n".join(out) + "\n", mx

if __name__ == "__main__":
    diag = "--diag" in sys.argv
    for a in sys.argv[1:]:
        if a.startswith("--") and "=" in a:
            k, v = a[2:].split("=", 1)
            assert hasattr(Cfg, k), k
            setattr(Cfg, k, eval(v))
    txt, mx = generate(diag)
    path = sys.argv[1] if len(sys.argv) > 1 and not sys.argv[1].startswith("--") else "cdna_kernels/%s.s" % NAME
    open(path, "w").write(txt)
    if diag: print("stamps:", stamp_names)
    if Cfg.trace: open(path + ".names", "w").write("\n".join(TRACE["names"]))
    if "--usage" in sys.argv:
        import numpy as np
        np.set_printoptions(linewidth=200)
        u = np.array(Cfg._usage1)
        print(u[:232].reshape(29, 8)); print(u[232:].reshape(4, 36)); print(np.array(Cfg._usage2).reshape(14, 8))
        for k, v in Cfg._log1.items(): print(k, v[0], v[-1], len(v))
        print("dma", Cfg._log1["dma"])
    print("wrote", path, "lines", txt.count("\n"), "max outstanding vm", mx)
```

```python
class Op:
    __slots__ = ("text", "kind", "tag")
    def __init__(self, text, kind="i", tag=None):
        self.text, self.kind, self.tag = text, kind, tag
def I(t): return Op(t)
def VM(t, tag=None): return Op(t, "vm", tag)
def DS(t, tag=None): return Op(t, "ds", tag)
def WVM(*tags): return Op(None, "wvm", tags)
def WDS(*tags): return Op(None, "wds", tags)
def WVM0(): return Op("s_waitcnt vmcnt(0)", "vm0")
def WDS0(): return Op("s_waitcnt lgkmcnt(0)", "ds0")
def RAW(t): return Op(t, "raw")

def flatten(x, out):
    if x is None: return
    if isinstance(x, Op): out.append(x)
    elif isinstance(x, str):
        for line in x.split("\n"):
            line = line.strip()
            if line: out.append(Op(line))
    else:
        for y in x: flatten(y, out)

TRACE = dict(on=False, names=[], base=248)
def _tstamp(out, name):
    n = len(TRACE["names"]); TRACE["names"].append(name)
    assert n < 192
    lane = n % 64
    out.append("s_memtime s[98:99]"); out.append("s_waitcnt lgkmcnt(0)")
    out.append("s_mov_b64 exec, 0x%x" % (1 << lane) if lane < 31 else "s_lshl_b64 exec, 1, %d" % lane)
    out.append("v_accvgpr_write_b32 a%d, s98" % (TRACE["base"] + n // 64))
    out.append("s_mov_b64 exec, -1"); out.append("s_nop 3")

def resolve(prog, trace=False):
    ops = []
    flatten(prog, ops)
    out = []
    vmq, dsq = [], []
    seen_vm, seen_ds = set(), set()
    maxvm = 0
    for o in ops:
        if o.kind == "raw" and o.text.startswith("TSTAMP"):
            if trace: _tstamp(out, o.text[7:]); dsq = []
        elif o.kind in ("i", "raw"):
            out.append(o.text)
            if trace and o.text == "s_barrier":
                _tstamp(out, "bar>"); dsq = []
            if trace and o.text.startswith("L_res_"):
                _tstamp(out, o.text); dsq = []
        elif o.kind == "vm":
            vmq.append(o.tag); seen_vm.add(o.tag); out.append(o.text)
            maxvm = max(maxvm, len(vmq))
            assert len(vmq) <= 63, "too many outstanding VMEM ops: %d at %s" % (len(vmq), o.text)
        elif o.kind == "ds":
            dsq.append(o.tag); seen_ds.add(o.tag); out.append(o.text)
        elif o.kind == "vm0":
            vmq = []; out.append(o.text)
        elif o.kind == "ds0":
            dsq = []; out.append(o.text)
        elif o.kind == "wvm":
            for t in o.tag: assert t in seen_vm, "wait on never-issued vm tag %r" % (t,)
            idx = [i for i, t in enumerate(vmq) if t in o.tag]
            if idx:
                n = len(vmq) - 1 - idx[-1]
                tr = trace and not (isinstance(o.tag[0], tuple) and o.tag[0][0] == "H" and o.tag[0][1] % 4)
                if trace == 2: tr = any(str(o.tag[0]).replace(" ", "") == x for x in TRACE.get("only", []))
                if tr: _tstamp(out, "<%s" % (o.tag[0],)); dsq = []
                out.append("s_waitcnt vmcnt(%d)" % n)
                if tr: _tstamp(out, ">")
                vmq = vmq[idx[-1] + 1:]
        elif o.kind == "wds":
            for t in o.tag: assert t in seen_ds, "wait on never-issued ds tag %r" % (t,)
            idx = [i for i, t in enumerate(dsq) if t in o.tag]
            if idx:
                n = len(dsq) - 1 - idx[-1]
                if n > 15:
                    n = 15
                out.append("s_waitcnt lgkmcnt(%d)" % n)
                dsq = dsq[len(dsq) - n:] if n else []
        else:
            raise ValueError(o.kind)
    return out, maxvm

class Gaps:
    def __init__(self): self.g = {}
    def add(self, gap, atom): self.g.setdefault(gap, []).append(atom)
    def spread(self, atoms, gaps):
        n, m = len(atoms), len(gaps)
        for i, a in enumerate(atoms):
            self.add(gaps[(i * m) // n], a)
    def take(self, gap): return self.g.pop(gap, [])
    def check_empty(self): assert not self.g, "unplaced fillers: %r" % (list(self.g.keys()),)

def cost_of(atom):
    ops = []
    flatten(atom, ops)
    c = 0.0
    for o in ops:
        if o.kind == "raw": continue
        if o.kind == "vm": c += 1.5
        elif o.kind == "ds" and o.text.startswith("ds_write_b128"): c += 3.0
        elif o.kind == "ds" and o.text.startswith("ds_write_b64"): c += 2.0
        elif o.text and o.text.startswith("v_permlane"): c += 2.0
        elif o.kind in ("wvm", "wds"): c += 1.0
        elif o.text and o.text.startswith("s_nop"): c += 1 + int(o.text.split()[1]) * 0.25
        else: c += 1.0
    return c

def vm_weight(atom):
    ops = []
    flatten(atom, ops)
    w = 0
    for o in ops:
        if o.kind == "vm": w += 4 if "x4" in o.text else (2 if "x2" in o.text else 1)
    return w

class Stream:
    def __init__(self, name, cap=99):
        self.name = name; self.items = []; self.pos = 0; self.last = -10**9; self.cap = cap
    def add(self, atom, at=None, space=0, by=None, key=None, after=None):
        self.items.append(dict(atom=atom, at=at, space=space, by=by, key=key, after=after, cost=cost_of(atom), vm=vm_weight(atom)))
        return self
    def addall(self, atoms, at=None, space=0, by=None, key=None, after=None):
        for i, a in enumerate(atoms):
            self.add(a, at if i == 0 else None, space, by, key if i == len(atoms) - 1 else None, after if i == 0 else None)
        return self

class Sched:
    def __init__(self, streams, vmscale=0.0): self.streams = streams; self.log = {}; self.placed = {}; self.vmfree = -99; self.vmscale = vmscale
    def fill(self, now, budget):
        out = []; used = 0.0; cnt = {}
        progress = True
        while progress:
            progress = False
            for s in self.streams:
                if s.pos >= len(s.items): continue
                it = s.items[s.pos]
                forced = any(x["by"] is not None and x["by"] <= now for x in s.items[s.pos:])
                if it["after"] is not None:
                    k, d = it["after"]
                    if k not in self.placed: continue
                    if now < self.placed[k] + d and not (forced and now > self.placed[k]): continue
                if it["at"] is not None and now < it["at"]: continue
                if not forced:
                    if now - s.last < it["space"]: continue
                    if cnt.get(s.name, 0) >= s.cap: continue
                    if it["vm"] and now < self.vmfree: continue
                c = it["cost"]
                if used + c <= budget + 1e-9 or forced or (used == 0 and c > budget):
                    out.append(it["atom"]); used += c; s.pos += 1; s.last = now; progress = True
                    cnt[s.name] = cnt.get(s.name, 0) + 1
                    if it["vm"]: self.vmfree = max(self.vmfree, now) + it["vm"] * self.vmscale
                    if it["key"] is not None: self.placed[it["key"]] = now
                    self.log.setdefault(s.name, []).append(now)
                    break
        return out, used
    def done(self): return all(s.pos >= len(s.items) for s in self.streams)
    def left(self): return {s.name: len(s.items) - s.pos for s in self.streams if s.pos < len(s.items)}

def plan_vm(streams, ticks, t0, scale, lead_div=4, lead_mul=2):
    heads = []
    booked = {}
    for s in streams:
        lst = []; ea = 0; lead = 0
        for it in s.items:
            if it["at"] is not None and it["at"] > ea: ea = it["at"]; lead = 0
            if it["vm"]:
                ea = ea + lead_mul * int(lead // lead_div)
                if it.get("plan", True): lst.append((it, ea))
                if it["by"] is not None and it["by"] == it["at"]: booked[it["at"]] = it["vm"]
                lead = 0
            else: lead += it["cost"]
        heads.append(lst)
    free = t0
    table = []
    for t in ticks:
        if t < t0: continue
        for lst in heads:
            while lst and lst[0][0]["by"] is not None and lst[0][0]["by"] == lst[0][0]["at"] and lst[0][0]["at"] <= t:
                it, _ = lst.pop(0); free = max(free, it["at"] + it["vm"] * scale); table.append(it["at"])
        if t < free or any(t <= b < t + 2 * scale for b in booked): continue
        for lst in heads:
            if lst and lst[0][1] <= t and not (lst[0][0]["by"] is not None and lst[0][0]["by"] == lst[0][0]["at"]):
                it, _ = lst.pop(0)
                assert it["by"] is None or t <= it["by"], ("vm plan misses deadline", t, it["by"], [o.text for o in (lambda l: (flatten(it["atom"], l), l)[1])([])])
                it["at"] = t; it["by"] = t; it["space"] = 0
                free = t + max(it["vm"] * scale, 1); table.append(t)
                break
    assert not any(heads), [len(h) for h in heads]
    return table
```

```python
import sys
from dsl import *
import lint as lintmod

NAME = "parallel_sum__ssm_conv_h3__glu_gated_bilinear__prompt"
S, D, F = 2048, 448, 1792

H_OFF   = 0x000000
KVT_OFF = 0x700000
Z_OFF   = 0x8C0000
ST_OFF  = 0xC40000
CS_OFF  = 0xC44000
ST2_OFF = 0xC54000
HF_OFF  = 0xC60000
KF_OFF  = 0xC80000
ZF_OFF  = 0xC90000
EP_OFF  = 0xCB8000
DG_OFF  = 0xCC0000
PX_OFF  = 0xD00000
TR_OFF  = 0x1100000
WS_SIZE = 0x1280000

WR = 0
XB = 98304
XS = 16640
KVR = 148224
CEX = XB + XS
REDA, REDB = XB + 2 * XS, 0
ZL = 16384
LDS_SIZE = 163840

SRD_X, SRD_K, SRD_V, SRD_SK, SRD_HK, SRD_DD, SRD_W1, SRD_WD, SRD_OUT, SRD_WS = [32 + 4 * i for i in range(10)]
def srd(b): return "s[%d:%d]" % (b, b + 3)
sWV, sMT, sFT, sT, sDT, sC2, sTAG, sWM, sWN = 72, 73, 74, 75, 76, 77, 78, 79, 80
sWL, sXL, sWo, sXo, sDo, sSPIN = 81, 82, 83, 84, 85, 86
sA, sB, sC, sD_ = 90, 91, 92, 93
sZt0, sZt1, sZt2 = 94, 95, 96
(sHst0, sHst1, sHfl, sKst0, sKst1, sKfl, sKld0, sKld1, sCs, sMn, sHL, sHS, sZst, sZfl, sZld, sSt2,
 sHcur, sHbase, sHlim, sPst, sPld, sHA, sHB, sKF, sHF, sZF) = range(4, 30)
sG = list(range(36, 43))
s4r = 30
sFG0 = 31

vL = 1
vA = [2, 3, 4, 5]; vA2 = [6, 7, 8, 9]; vB = [10, 11, 12, 13]
vW = [14, 15, 16, 17]; vX = [18, 19, 20, 21]; vWd = [22, 23, 24, 25]
vWdA = [26, 27]; vWdA2 = [28, 29]
vL16, vFlag0 = 30, 31
BF, AF, ACC = 80, 96, 128
T0, T1, T2, T3, T4, T5, T6, T7 = range(60, 68)
(aTag, aHsrc, aPsw, aPsr, aKst, aPollK, aCA0, aCA1, aCB, aCD, aOo, aPollH, aZst, aPollZ, aZld, aRr) = range(224, 240)
aStamp = 240
def vr(b, n): return "v[%d:%d]" % (b, b + n - 1)
def ar(b, n): return "a[%d:%d]" % (b, b + n - 1)
OOB = "0x80000000"
def stash(a, v): return "v_accvgpr_write_b32 a%d, v%d" % (a, v)
def unstash(v, a): return I("v_accvgpr_read_b32 v%d, a%d" % (v, a))

class Cfg:
    diag = False
    spin = 100000
    rot1 = "d"
    rot2 = True
    nt_kv = "nt"; nt_hk = ""; nt_w = ""; nt_x = ""; nt_wd = ""
    sleep = 4
    sp1 = 2; kx = 12; sp2 = 4
    prep_at = 16
    polls_at = 330
    polls_lag = 36
    kv_lag = 60
    wd_lag = 40
    nws = 4
    wd_after = {5: 1, 8: 1, 11: 1, 14: 1, 16: 1}
    hdma_u = 6
    hflag = 30
    hpoll = 56
    nfirst = 8
    zflag = 16; zpoll = 60; zlag = 30
    stamps_k = (2, 4, 7, 9, 12)
    b32 = 5; b16 = 1.5

slow_paths = []
def check(name, loads, cmp_ops, tags):
    sl = ["L_slow_%s:" % name, "s_mov_b32 s%d, 0" % sSPIN, "L_spin_%s:" % name, "s_sleep %d" % Cfg.sleep]
    sl += loads + ["s_add_u32 s%d, s%d, 1" % (sSPIN, sSPIN), "s_waitcnt vmcnt(0)"] + cmp_ops
    sl += ["s_cmp_lt_u32 s%d, %d" % (sSPIN, Cfg.spin), "s_cbranch_scc0 L_res_%s" % name,
           "s_cbranch_vccnz L_spin_%s" % name, "s_branch L_res_%s" % name]
    slow_paths.append("\n".join(sl))
    return [WVM(*tags)] + [I(c) for c in cmp_ops[:-1]], [I(cmp_ops[-1]), I("s_cbranch_vccnz L_slow_%s" % name), RAW("L_res_%s:" % name)]
def flag_store(sreg, wait_tags):
    ops = [WVM(*wait_tags)] if wait_tags else []
    ops.append(VM("buffer_store_dword a%d, v%d, %s, s%d offen sc1" % (aTag, vFlag0, srd(SRD_WS), sreg), "flag"))
    return ops

stamp_n = [0]; stamp_names = []
def stamp(name=""):
    if Cfg.amp and name == Cfg.amp[0]: return [I("s_memrealtime s[88:89]"), WDS0()]
    if not Cfg.diag or (Cfg.trace and name not in ("b0", "end", "mean", "cs", "rstd")): return []
    n = stamp_n[0]; stamp_n[0] += 1
    assert n < (6 if Cfg.trace else 14)
    stamp_names.append(name)
    return [I("s_memtime s[98:99]"), WDS0(), I("v_accvgpr_write_b32 a%d, s98" % (aStamp + 2 + n))]
def diag_tail(main=False):
    if Cfg.amp and main:
        p = [WVM0(), stamp("end"), "s_memrealtime s[98:99]", WDS0()]
        p.append("s_sub_u32 s%d, s88, s100\ns_mul_i32 s%d, s%d, %d\ns_min_u32 s%d, s%d, 20000" % (sA, sA, sA, Cfg.amp[1], sA, sA))
        p.append(RAW("L_amp:"))
        p.append("s_memrealtime s[88:89]\ns_waitcnt lgkmcnt(0)\ns_sub_u32 s%d, s88, s98\ns_cmp_lt_u32 s%d, s%d\ns_cbranch_scc1 L_amp" % (sB, sB, sA))
        return p
    if not Cfg.diag: return []
    p = [WVM0(), stamp("end"), "s_memrealtime s[98:99]", WDS0()]
    p.append("v_accvgpr_write_b32 a%d, s88\nv_accvgpr_write_b32 a%d, s89" % (aStamp, aStamp + 1))
    p.append("v_mov_b32 v32, s100\nv_mov_b32 v33, s98")
    p.append("s_lshl_b32 s%d, s2, 2\ns_add_u32 s%d, s%d, s%d\ns_lshl_b32 s%d, s%d, 7\ns_add_u32 s%d, s%d, %d" % (sA, sA, sA, sWV, sA, sA, sA, sA, DG_OFF))
    for i in range(4): p.append(VM("buffer_store_dwordx4 %s, v%d, %s, s%d offen offset:%d" % (ar(aStamp + 4 * i, 4), vFlag0, srd(SRD_WS), sA, 16 * i)))
    p.append(VM("buffer_store_dwordx2 v[32:33], v%d, %s, s%d offen offset:%d" % (vFlag0, srd(SRD_WS), sA, 104)))
    if Cfg.dbg:
        p.append("s_load_dwordx2 s[44:45], s[0:1], 88\ns_waitcnt lgkmcnt(0)\ns_mov_b32 s46, 256\ns_mov_b32 s47, 0x00020000")
        p.append("s_lshl_b32 s%d, s2, 2\ns_add_u32 s%d, s%d, s%d\ns_cmp_eq_u32 s%d, %d\ns_cselect_b32 s%d, 0, 0x40000000" % (sA, sA, sA, sWV, sA, Cfg.dbg * 4, sA))
        p.append("s_sub_u32 s%d, s98, s100\nv_accvgpr_write_b32 a%d, s%d\ns_nop 1" % (sB, aStamp + 1, sB))
        for i in range(4): p.append(VM("buffer_store_dwordx4 %s, v%d, s[44:47], s%d offen offset:%d" % (ar(aStamp + 4 * i, 4), vFlag0, sA, 16 * i)))
    if Cfg.trace:
        p.append("s_lshl_b32 s%d, s2, 2\ns_add_u32 s%d, s%d, s%d\ns_mul_i32 s%d, s%d, 768\ns_add_u32 s%d, s%d, %d" % (sA, sA, sA, sWV, sA, sA, sA, sA, TR_OFF))
        p.append("v_lshlrev_b32 v32, 2, v%d" % vL)
        for i in range(3): p.append(VM("buffer_store_dword a%d, v32, %s, s%d offen offset:%d" % (248 + i, srd(SRD_WS), sA, 256 * i)))
    p.append(WVM0())
    return p

def build_srd(b, ptr, size):
    return ["s_mov_b32 s%d, s%d" % (b, ptr), "s_mov_b32 s%d, s%d" % (b + 1, ptr + 1),
            "s_mov_b32 s%d, %d" % (b + 2, size), "s_mov_b32 s%d, 0x00020000" % (b + 3)]
def tag_from_epoch(vE):
    return [I("v_readfirstlane_b32 s%d, v%d" % (sTAG, vE)), I("s_nop 3"),
            I("s_mul_i32 s%d, s%d, 1664525" % (sTAG, sTAG)), I("s_add_u32 s%d, s%d, 1013904223" % (sTAG, sTAG)),
            I("v_accvgpr_write_b32 a%d, s%d" % (aTag, sTAG))]
def advance(sreg, step, limit):
    return [I("s_add_u32 s%d, s%d, %d" % (sreg, sreg, step)),
            [I("s_cmp_eq_u32 s%d, %d" % (sreg, limit)), I("s_cselect_b32 s%d, 0, s%d" % (sreg, sreg))]]

def L(fmt, *a): return fmt % a

def gpref(tmpv, dst, pol=""):
    p = [L("s_cmp_eq_u32 s%d, 1\ns_cselect_b32 s%d, s20, s18\ns_cselect_b32 s%d, s21, s19", sWV, sC, sC + 1),
         L("s_cmp_eq_u32 s%d, 3\ns_cselect_b32 s%d, s22, s%d\ns_cselect_b32 s%d, s23, s%d", sWV, sC, sC, sC + 1, sC + 1),
         L("s_cmp_eq_u32 s%d, 2\ns_cselect_b32 s%d, s4, s%d\ns_cselect_b32 s%d, s5, s%d\ns_cselect_b32 s%d, 56, 49", sWV, sC, sC, sC + 1, sC + 1, sA),
         L("s_mul_i32 s%d, s2, s%d\ns_sub_u32 s%d, s%d, 1\nv_min_u32 v%d, s%d, v%d\nv_add_lshl_u32 v%d, v%d, s%d, 7", sB, sA, sA, sA, tmpv, sA, vL, tmpv, tmpv, sB),
         VM("global_load_dword v%d, v%d, s[%d:%d] %s" % (dst, tmpv, sC, sC + 1, pol), "prep")]
    return p

def prologue_common():
    p = ["s_cmp_ge_u32 s2, 256\ns_cbranch_scc1 L_exit"]
    if Cfg.diag: p.append("s_memrealtime s[100:101]\ns_memtime s[88:89]")
    elif Cfg.amp: p.append("s_memrealtime s[100:101]")
    p.append("s_load_dwordx16 s[4:19], s[0:1], 0\ns_load_dwordx8 s[20:27], s[0:1], 64\ns_load_dwordx2 s[28:29], s[0:1], 96")
    p.append(L("v_and_b32 v%d, 63, v0\nv_lshrrev_b32 v%d, 6, v0\nv_lshlrev_b32 v%d, 4, v%d", vL, T0, vL16, vL))
    p.append(L("v_readfirstlane_b32 s%d, v%d", sWV, T0))
    p.append(L("v_cmp_eq_u32 vcc, 0, v%d\nv_mov_b32 v%d, %s\nv_mov_b32 v%d, 0\nv_cndmask_b32 v%d, v%d, v%d, vcc", vL, T1, OOB, T2, vFlag0, T1, T2))
    return p

def dma_group(sL, ldsconst, vs, srd_b, sOff, tag, pol, adv):
    at = [I("s_add_u32 m0, s%d, %d" % (sL, ldsconst))]
    for q in range(4):
        op = VM("buffer_load_dwordx4 v%d, %s, s%d offen offset:%d %s lds" % (vs[q], srd(srd_b), sOff, q * 1024, pol), tag)
        at.append([I("s_nop 0"), op] if q == 0 else op)
    return at, advance(sOff, *adv)
def w_group(c):
    at, adv = dma_group(sWL, WR + (c % 6) * 16384, vW, SRD_W1, sWo, ("W", c), Cfg.nt_w, (64 * 3584, 448 * 3584))
    if c == 6: adv = adv + [I("v_add_u32 v%d, 128, v%d" % (vW[q], vW[q])) for q in range(4)]
    return at, adv
def x_group(c): return dma_group(sXL, (c % 3) * XS, vX, SRD_X, sXo, ("X", c), Cfg.nt_x, (128, 896))
WD_BASE = [XB + 256, 32768, 49152, 65536, 81920, 0, 16384]
def wd_group(u): return dma_group(sWL, WD_BASE[u], vWd, SRD_WD, sDo, ("WD", u), Cfg.nt_wd, (128 * 896, 896 * 896))
def wd_reads(u, n4):
    at = []
    for jd in range(2):
        for p in range(2):
            off = WD_BASE[u] + (n4 >> 1) * 8192 + (n4 & 1) * 2048 + p * 1024
            base = vWdA[jd]
            if off >= 0x10000: base = vWdA2[jd]; off -= 0x10000
            at.append(DS("ds_read_b64_tr_b16 %s, v%d offset:%d" % (ar(8 * (4 * u + n4) + 4 * jd + 2 * p, 2), base, off), ("WR", u, n4)))
    return at

KR, VR_, vEp, SKR, TAP, KFv, R0, R1, VF, HB0, HB1, OLO, OHI = 32, 43, 51, 52, 56, 60, 71, 72, 73, 74, 75, 76, 32

def gen_main():
    P = [RAW("L_main:")]
    if Cfg.scramble:
        P.append(L("s_lshr_b32 s%d, s2, 3\ns_lshr_b32 s%d, s2, 5\ns_lshl_b32 s%d, s%d, 1\ns_xor_b32 s%d, s%d, s%d\ns_and_b32 s%d, s%d, 7\ns_xor_b32 s2, s2, s%d", sA, sB, sA, sA, sA, sA, sB, sA, sA, sA))
    P.append(L("s_sub_u32 s%d, s2, 32\ns_and_b32 s%d, s2, 7\ns_lshr_b32 s%d, s%d, 3", sC2, sA, sB, sC2))
    P.append(L("s_lshr_b32 s%d, s%d, 2\ns_and_b32 s%d, s%d, 3", sDT, sB, sB, sB))
    P.append(L("s_lshl_b32 s%d, s%d, 2\ns_add_u32 s%d, s%d, s%d", sT, sA, sT, sT, sB))
    P.append(L("s_lshr_b32 s%d, s%d, 1\ns_lshl_b32 s%d, s%d, 2\ns_add_u32 s%d, s%d, s%d", sMT, sA, sMT, sMT, sMT, sMT, sB))
    P.append(L("s_and_b32 s%d, s%d, 1\ns_mul_i32 s%d, s%d, 7\ns_add_u32 s%d, s%d, s%d", sFG0, sA, sFT, sFG0, sFT, sFT, sDT))
    P.append(L("s_and_b32 s%d, s%d, 1\ns_lshr_b32 s%d, s%d, 1", sWM, sWV, sWN, sWV))
    P.append(L("s_lshl_b32 s%d, s%d, 12\ns_add_u32 s%d, s%d, %d", sWL, sWV, sXL, sWL, XB + 256))
    if Cfg.rot1 == "0": P.append(L("s_mov_b32 s%d, 0", sA))
    elif Cfg.rot1 == "2": P.append(L("s_xor_b32 s%d, s%d, s%d\ns_and_b32 s%d, s%d, 1\ns_lshl_b32 s%d, s%d, 2", sA, sMT, sFT, sA, sA, sA, sA))
    elif Cfg.rot1 == "d": P.append(L("s_add_u32 s%d, s%d, 1\ns_sub_u32 s%d, s%d, 7\ns_min_u32 s%d, s%d, s%d", sA, sDT, sC, sA, sA, sA, sC))
    elif Cfg.rot1 == "3":
        P.append(L("s_add_u32 s%d, s%d, s%d\ns_mul_i32 s%d, s%d, 3\ns_mov_b32 s%d, 0x%x\ns_lshr_b32 s%d, s%d, s%d\ns_and_b32 s%d, s%d, 7",
                   sA, sB, sDT, sA, sA, sC, sum(((0, 2, 5)[i % 3]) << (3 * i) for i in range(10)), sA, sC, sA, sA, sA))
    else:
        P.append(L("s_lshl_b32 s%d, s%d, 1\ns_add_u32 s%d, s%d, s%d\ns_sub_u32 s%d, s%d, 7\ns_min_u32 s%d, s%d, s%d", sA, sB, sA, sA, sDT, sC, sA, sA, sA, sC))
    P.append(L("s_mul_i32 s%d, s%d, %d\ns_lshl_b32 s%d, s%d, 7", sWo, sA, 64 * 3584, sXo, sA))
    P.append(L("v_lshrrev_b32 v%d, 4, v%d", T0, vL))
    P.append(L("s_mul_i32 s%d, s%d, %d\ns_lshl_b32 s%d, s%d, 8\ns_add_u32 s%d, s%d, s%d", sA, sWM, 32 * 3584, sB, sFT, sA, sA, sB))
    P.append(L("v_lshrrev_b32 v%d, 3, v%d\nv_mul_u32_u24 v%d, 3584, v%d\ns_lshl_b32 s%d, s%d, 2", T1, vL, T1, T1, sB, sWN))
    P.append(L("v_and_b32 v%d, 1, v%d\nv_lshlrev_b32 v%d, 1, v%d\nv_or_b32 v%d, s%d, v%d\nv_and_b32 v%d, 7, v%d", T2, T0, T2, T2, T2, sB, T2, T3, vL))
    P.append(L("v_xor_b32 v%d, v%d, v%d\nv_lshlrev_b32 v%d, 4, v%d\nv_add3_u32 v%d, v%d, v%d, s%d", T2, T2, T3, T2, T2, vW[0], T1, T2, sA))
    for q in range(1, 4): P.append(L("v_add_u32 v%d, %d, v%d", vW[q], q * (8 * 3584 - 1024), vW[0]))
    P.append(L("s_lshl_b32 s%d, s%d, 2\ns_add_u32 s%d, s%d, s%d\ns_mul_i32 s%d, s%d, %d", sA, sMT, sA, sA, sWV, sA, sA, 32 * 896))
    P.append(L("v_lshrrev_b32 v%d, 3, v%d\nv_mul_u32_u24 v%d, 896, v%d\nv_and_b32 v%d, 7, v%d", T1, vL, T1, T1, T3, vL))
    P.append(L("v_xor_b32 v%d, v%d, v%d\nv_lshlrev_b32 v%d, 4, v%d\nv_add3_u32 v%d, v%d, v%d, s%d", T2, T3, T0, T2, T2, vX[0], T1, T2, sA))
    P.append(L("v_xor_b32 v%d, 64, v%d", T2, vX[0]))
    for q in range(1, 4): P.append(L("v_add_u32 v%d, %d, v%d", vX[q], q * (8 * 896 - 1024), T2 if q & 1 else vX[0]))
    P.append(WDS0())
    if Cfg.diag: P.append([I("s_memtime s[98:99]"), WDS0(), I("s_mov_b32 s89, s98")])
    P.append(L("s_cmp_ge_u32 s%d, 2\ns_cselect_b32 s%d, s20, s18\ns_cselect_b32 s%d, s21, s19", sWV, SRD_W1, SRD_W1 + 1))
    P.append(L("s_mov_b32 s%d, %d\ns_mov_b32 s%d, 0x00020000", SRD_W1 + 2, D * F * 2, SRD_W1 + 3))
    P.append(build_srd(SRD_X, 4, S * D * 2))
    if Cfg.gpref == 2: P.append(gpref(T4, 79))
    P.append(w_group(0)); P.append(x_group(0))
    if Cfg.gpref == 1: P.append(gpref(T4, 79))
    P.append(w_group(1))
    for b, ptr, size in ((SRD_K, 6, S * D * 2), (SRD_V, 8, S * D * 2), (SRD_SK, 10, D * 8), (SRD_HK, 12, D * S * 2 + 64), (SRD_DD, 14, D * 2),
                         (SRD_WD, 22, D * F * 2), (SRD_OUT, 24, S * D * 2), (SRD_WS, 28, WS_SIZE)):
        P.append(build_srd(b, ptr, size))
    P.append(L("s_mov_b32 s%d, %d\nv_mov_b32 v%d, 0", sA, EP_OFF, T4))
    P.append(VM("buffer_load_dword v%d, v%d, %s, s%d offen sc1" % (vEp, T4, srd(SRD_WS), sA), "prep"))
    if Cfg.ctouch:
        P.append(L("s_getpc_b64 s[%d:%d]\nv_lshlrev_b32 v%d, 7, v0\nv_min_u32 v%d, L_end_of_main-L_touch_base-4, v%d", sC, sC + 1, T4, T4, T4))
        P.append(RAW("L_touch_base:"))
        P.append(VM("global_load_dword v%d, v%d, s[%d:%d]" % (79, T4, sC, sC + 1), "prep"))
    if Cfg.ptouch:
        P.append(L("v_mul_u32_u24 v%d, %d, v0\nv_lshlrev_b32 v%d, 8, v%d", T4, Cfg.ptouch >> 8, T4, T4))
        P.append(VM("buffer_load_dword v%d, v%d, %s, 0 offen" % (79, T4, srd(SRD_WS)), "prep"))
        for sd in (SRD_OUT, SRD_WD, SRD_HK, SRD_DD, SRD_K, SRD_V):
            P.append(VM("buffer_load_dword v%d, v%d, %s, 0 offen" % (79, T4, srd(sd)), "prep"))
    P.append(L("s_mul_i32 s%d, s%d, %d\ns_lshl_b32 s%d, s%d, 7\ns_add_u32 s%d, s%d, s%d", sA, sFG0, 896 * 896, sB, sDT, sA, sA, sB))
    P.append(L("s_mul_i32 s%d, s%d, %d\ns_add_u32 s%d, s%d, s%d", sB, sWV, 32 * 896, sA, sA, sB))
    P.append(L("v_and_b32 v%d, 1, v%d\nv_lshlrev_b32 v%d, 2, v%d\nv_xor_b32 v%d, v%d, v%d\nv_lshlrev_b32 v%d, 4, v%d", T2, T0, T2, T2, T2, T2, T3, T2, T2))
    P.append(L("v_add3_u32 v%d, v%d, v%d, s%d", vWd[0], T1, T2, sA))
    for q in range(1, 4): P.append(L("v_add_u32 v%d, %d, v%d", vWd[q], q * (8 * 896 - 1024), vWd[0]))
    P.append(L("v_bfe_u32 v%d, v%d, 2, 2\nv_bfe_u32 v%d, v%d, 4, 1\nv_lshrrev_b32 v%d, 5, v%d", T0, vL, T1, vL, T2, vL))
    P.append(L("v_and_b32 v%d, 3, v%d\nv_lshlrev_b32 v%d, 3, v%d", T3, vL, T3, T3))
    P.append(L("v_lshl_add_u32 v%d, v%d, 3, v%d\nv_lshlrev_b32 v%d, 7, v%d\nv_lshl_add_u32 v%d, v%d, 13, v%d\nv_add_u32 v%d, v%d, v%d", T4, T2, T0, T4, T4, T4, T1, T4, T4, T4, T3))
    P.append(L("v_lshrrev_b32 v%d, 1, v%d\nv_lshl_or_b32 v%d, v%d, 1, v%d\ns_lshl_b32 s%d, s%d, 1\nv_xor_b32 v%d, s%d, v%d", T5, T0, T5, T1, T5, sA, sWM, T5, sA, T5))
    for jj in range(2):
        P.append(L("v_xor_b32 v%d, %d, v%d\nv_lshl_add_u32 v%d, v%d, 5, v%d\nv_add_u32 v%d, %d, v%d", vA[jj], jj, T5, vA[jj], vA[jj], T4, vA2[jj], 49152, vA[jj]))
    P.append(L("v_lshl_add_u32 v%d, v%d, 2, v%d\nv_lshlrev_b32 v%d, 7, v%d\ns_lshl_b32 s%d, s%d, 12", T4, T2, T0, T4, T4, sA, sWM))
    P.append(L("v_lshl_add_u32 v%d, v%d, 5, v%d\nv_add3_u32 v%d, v%d, v%d, s%d", T4, T1, T4, T4, T4, T3, sA))
    P.append(L("v_lshrrev_b32 v%d, 1, v%d\nv_xor_b32 v%d, s%d, v%d\nv_lshl_add_u32 v%d, v%d, 6, v%d", T5, T0, T5, sWM, T5, vWdA[0], T5, T4))
    P.append(L("v_xor_b32 v%d, 64, v%d\nv_add_u32 v%d, 0x10000, v%d\nv_add_u32 v%d, 0x10000, v%d", vWdA[1], vWdA[0], vWdA2[0], vWdA[0], vWdA2[1], vWdA[1]))
    P.append(L("v_and_b32 v%d, 31, v%d\nv_bfe_u32 v%d, v%d, 1, 3\nv_xor_b32 v%d, v%d, v%d", T6, vL, T1, vL, T1, T1, T2))
    P.append(L("s_lshl_b32 s%d, s%d, 13\ns_add_u32 s%d, s%d, %d\nv_lshlrev_b32 v%d, 7, v%d\nv_add_u32 v%d, s%d, v%d", sA, sWN, sA, sA, XB + 256, T0, T6, T0, sA, T0))
    for sp in range(4): P.append(L("v_xor_b32 v%d, %d, v%d\nv_lshl_add_u32 v%d, v%d, 4, v%d", vB[sp], 2 * sp, T1, vB[sp], vB[sp], T0))
    P.append(L("s_lshl_b32 s%d, s%d, 2\ns_add_u32 s%d, s%d, s%d\ns_mul_i32 s%d, s%d, %d\ns_lshl_b32 s%d, s%d, 7\ns_add_u32 s%d, s%d, s%d",
               sA, sT, sA, sA, sWV, sA, sA, 16 * 896, sB, sDT, sA, sA, sB))
    P.append(L("v_mul_u32_u24 v%d, %d, v%d\nv_lshl_add_u32 v%d, v%d, 2, v%d\nv_add_u32 v%d, s%d, v%d", R0, 8 * 896, T2, R0, T6, R0, R0, sA, R0))
    P.append(L("v_subrev_u32 v%d, %d, v%d\nv_cmp_gt_u32 vcc, %d, v%d\nv_mov_b32 v%d, %s\ns_mov_b32 s%d, %d\nv_cndmask_b32 v%d, v%d, v%d, vcc",
               VF, 3 * 896, R0, 3 * 896, R0, T0, OOB, s4r, 4 * 896, VF, VF, T0))
    P.append(L("s_lshl_b32 s%d, s%d, 9\nv_lshlrev_b32 v%d, 4, v%d", sD_, sDT, R1, T6))
    kvl = []
    for a in range(3): kvl.append(VM("buffer_load_dword v%d, v%d, %s, 0 offen offset:%d %s" % (KR + a, VF, srd(SRD_K), a * 896, Cfg.nt_kv), "prep"))
    for o in range(8): kvl.append(VM("buffer_load_dword v%d, v%d, %s, %s offen offset:%d %s" % (KR + 3 + o, R0, srd(SRD_K), "0" if o < 4 else "s%d" % s4r, (o & 3) * 896, Cfg.nt_kv), "prep"))
    for o in range(8): kvl.append(VM("buffer_load_dword v%d, v%d, %s, %s offen offset:%d %s" % (VR_ + o, R0, srd(SRD_V), "0" if o < 4 else "s%d" % s4r, (o & 3) * 896, Cfg.nt_kv), "prep"))
    kvl.append(VM("buffer_load_dwordx4 %s, v%d, %s, s%d offen" % (vr(SKR, 4), R1, srd(SRD_SK), sD_), "prep"))
    P.append(L("s_lshl_b32 s%d, s%d, 1\ns_add_u32 s%d, s%d, s%d\ns_lshl_b32 s%d, s%d, 12", sHS, sC2, sHS, sHS, sWN, sHS, sHS))
    P.append(L("v_and_b32 v%d, 15, v%d\nv_lshrrev_b32 v%d, 4, v%d", T7, vL, T5, vL))
    P.append(L("v_lshl_add_u32 v%d, v%d, 1, v%d\nv_subrev_u32 v%d, 15, v%d\nv_lshlrev_b32 v%d, 1, v%d\nv_add_u32 v%d, 2, v%d", T0, T7, T5, T0, T0, TAP, T0, TAP + 1, TAP))
    P.append(L("v_lshlrev_b32 v%d, 7, v%d", TAP + 2, T6))
    P.append(L("s_lshl_b32 s%d, s%d, 18\ns_lshl_b32 s%d, s%d, 7\ns_sub_u32 s%d, s%d, s%d\ns_add_u32 s%d, s%d, %d\ns_add_u32 s%d, s%d, %d",
               sKst0, sDT, sA, sT, sKst0, sKst0, sA, sKst0, sKst0, KVT_OFF + 3968, sKst1, sKst0, 32 * 4096))
    P.append(L("s_lshl_b32 s%d, s%d, 5\ns_add_u32 s%d, s%d, s%d\ns_lshl_b32 s%d, s%d, 7\ns_add_u32 s%d, s%d, %d\ns_cmp_eq_u32 s%d, 0\ns_cselect_b32 s%d, s%d, 0x40000000",
               sA, sDT, sA, sA, sT, sA, sA, sA, sA, KF_OFF, sWV, sKfl, sA))
    P.append(L("s_lshl_b32 s%d, s%d, 1\ns_sub_u32 s%d, 7, s%d\nv_sub_u32 v%d, s%d, v%d\nv_and_b32 v%d, 7, v%d\nv_xor_b32 v%d, v%d, v%d", sA, sWV, sA, sA, T0, sA, T2, T1, vL, T0, T0, T1))
    P.append(L("v_lshlrev_b32 v%d, 4, v%d\nv_lshl_add_u32 v%d, v%d, 8, v%d\nv_lshrrev_b32 v%d, 4, v%d\nv_mul_u32_u24 v%d, 4608, v%d", T0, T0, T0, T7, T0, T3, T6, T3, T3))
    P.append(L("v_add_u32 v%d, v%d, v%d\nv_add_u32 v%d, %d, v%d", T0, T0, T3, T0, KVR, T0) + "\n" + stash(aPsw, T0))
    P.append(L("v_lshrrev_b32 v%d, 3, v0\nv_bfe_u32 v%d, v0, 4, 3\nv_xor_b32 v%d, v%d, v%d\nv_lshlrev_b32 v%d, 4, v%d", T0, T3, T3, T3, T1, T3, T3))
    P.append(L("v_lshl_add_u32 v%d, v%d, 7, v%d\nv_add_u32 v%d, %d, v%d", T3, T0, T3, T3, KVR, T3) + "\n" + stash(aPsr, T3))
    P.append(L("v_lshlrev_b32 v%d, 12, v%d\nv_lshl_add_u32 v%d, v%d, 4, v%d", T0, T0, T0, T1, T0) + "\n" + stash(aKst, T0))
    U0, U1, U2, U3, U4, U5, U6, U7 = range(88, 96)
    Q = []
    Q.append(L("v_lshrrev_b32 v%d, 5, v%d\nv_lshrrev_b32 v%d, 4, v%d\nv_and_b32 v%d, 31, v%d\nv_and_b32 v%d, 15, v%d", U2, vL, U5, vL, U6, vL, U7, vL))
    if Cfg.rot2:
        Q.append(L("s_and_b32 s%d, s%d, 3\ns_lshl_b32 s%d, s%d, 1\ns_add_u32 s%d, s%d, s%d\ns_sub_u32 s%d, s%d, 7\ns_min_u32 s%d, s%d, s%d", sA, sMT, sA, sA, sA, sA, sDT, sC, sA, sA, sA, sC))
    else: Q.append(L("s_mov_b32 s%d, 0", sA))
    Q.append(L("s_mul_i32 s%d, s%d, %d\ns_lshl_b32 s%d, s%d, 13", sDo, sA, 128 * 896, sHcur, sA))
    Q.append(L("s_lshl_b32 s%d, s%d, 1\ns_add_u32 s%d, s%d, s%d", sA, sMT, sA, sA, sWN))
    Q.append(L("s_lshl_b32 s%d, s%d, 1\ns_add_u32 s%d, s%d, s%d", sB, sFT, sB, sB, sWM))
    Q.append(L("s_lshl_b32 s%d, s%d, 9\ns_add_u32 s%d, s%d, %d", sMn, sA, sMn, sMn, ST_OFF))
    Q.append(L("s_lshl_b32 s%d, s%d, 2\ns_add_u32 s%d, s%d, s%d\ns_lshl_b32 s%d, s%d, 10\ns_add_u32 s%d, s%d, %d", sCs, sFT, sCs, sCs, sWM, sCs, sCs, sCs, sCs, CS_OFF))
    Q.append(L("s_mul_i32 s%d, s%d, 224\ns_lshl_b32 s%d, s%d, 2\ns_add_u32 s%d, s%d, s%d\ns_lshl_b32 s%d, s%d, 10\ns_add_u32 s%d, s%d, %d",
               sHst0, sA, sC, sB, sHst0, sHst0, sC, sHst0, sHst0, sHst1, sHst0, 112 * 1024))
    Q.append(L("s_lshl_b32 s%d, s%d, 5\ns_add_u32 s%d, s%d, s%d\ns_lshl_b32 s%d, s%d, 7\ns_add_u32 s%d, s%d, %d", sHfl, sA, sHfl, sHfl, sB, sHfl, sHfl, sHfl, sHfl, HF_OFF))
    Q.append(L("s_mov_b32 s%d, %d\ns_and_b32 s%d, s%d, 0xffffffe0\nv_add_lshl_u32 v%d, v%d, s%d, 7", sKF, KF_OFF, sA, sC2, U0, U6, sA) + "\n" + stash(aPollK, U0))
    Q.append(L("s_lshl_b32 s%d, s%d, 13\ns_add_u32 s%d, s%d, %d\ns_add_u32 s%d, s%d, 4096", sKld0, sC2, sKld0, sKld0, KVT_OFF, sKld1, sKld0))
    Q.append(L("s_mul_i32 s%d, s%d, %d\ns_add_u32 s%d, s%d, %d", sHL, sWN, XS, sHL, sHL, XB + XS))
    Q.append(("mark", "q1"))
    Q.append(L("v_lshrrev_b32 v%d, 7, v0\nv_mul_u32_u24 v%d, 4608, v%d\nv_and_b32 v%d, 127, v0\nv_lshl_add_u32 v%d, v%d, 2, v%d\nv_add_u32 v%d, %d, v%d\nv_mov_b32 v%d, 0", U3, U3, U3, U4, U3, U4, U3, U3, KVR + 4096, U3, U4))
    Q.append(DS("ds_write_b32 v%d, v%d" % (U3, U4), "kvw"))
    Q.append(L("v_and_b32 v%d, 3, v%d\nv_mul_u32_u24 v%d, 4160, v%d\nv_lshrrev_b32 v%d, 2, v%d\nv_lshl_add_u32 v%d, v%d, 3, v%d\nv_lshl_add_u32 v%d, v%d, 4, v%d", U3, U7, U3, U3, U0, U7, U3, U0, U3, U3, U5, U3))
    Q.append(L("s_lshl_b32 s%d, s%d, 8\ns_add_u32 s%d, s%d, s%d\nv_add_u32 v%d, s%d, v%d", sC, sWM, sC, sC, sHL, U3, sC, U3) + "\n" + stash(aCA0, U3))
    Q.append(L("v_mul_u32_u24 v%d, 4160, v%d\nv_lshl_add_u32 v%d, v%d, 2, v%d\nv_add_u32 v%d, s%d, v%d", U3, U5, U3, U7, U3, U3, sHL, U3) + "\n" + stash(aCA1, U3))
    Q.append(L("s_mul_i32 s%d, s%d, 4608\ns_add_u32 s%d, s%d, %d\ns_lshl_b32 s%d, s%d, 8\ns_add_u32 s%d, s%d, s%d\ns_add_u32 s%d, s%d, 480", sA, sWN, sA, sA, KVR, sC, sWM, sB, sA, sC, sB, sB))
    Q.append(L("v_lshlrev_b32 v%d, 5, v%d\nv_sub_u32 v%d, s%d, v%d\nv_lshl_add_u32 v%d, v%d, 4, v%d", U4, U7, U0, sB, U4, U0, U5, U0) + "\n" + stash(aCB, U0))
    Q.append(L("s_lshl_b32 s%d, s%d, 3\ns_sub_u32 s%d, s%d, s%d\ns_add_u32 s%d, s%d, %d", sC, sC, sB, sA, sC, sB, sB, 4088 - 1536))
    Q.append(L("v_sub_u32 v%d, s%d, v%d\nv_lshlrev_b32 v%d, 3, v%d\nv_sub_u32 v%d, v%d, v%d", U0, sB, U4, U4, U5, U0, U0, U4) + "\n" + stash(aCD, U0))
    Q.append(("mark", "q2"))
    Q.append(L("v_lshlrev_b32 v%d, 6, v%d\nv_lshl_add_u32 v%d, v%d, 4, v%d", U0, U7, U0, U5, U0) + "\n" + stash(aZst, U0))
    Q.append(L("s_lshl_b32 s%d, s%d, 1\ns_lshl_b32 s%d, s%d, 12\ns_add_u32 s%d, s%d, s%d\ns_add_u32 s%d, s%d, %d", sZst, sHS, sA, sWM, sZst, sZst, sA, sZst, sZst, Z_OFF))
    Q.append(L("s_lshl_b32 s%d, s%d, 1\ns_add_u32 s%d, s%d, s%d\ns_lshl_b32 s%d, s%d, 1\ns_add_u32 s%d, s%d, s%d", sA, sMT, sA, sA, sWN, sA, sA, sA, sA, sFG0))
    Q.append(L("s_lshl_b32 s%d, s%d, 1\ns_add_u32 s%d, s%d, s%d", sB, sDT, sB, sB, sWM))
    Q.append(L("s_lshl_b32 s%d, s%d, 18\ns_lshl_b32 s%d, s%d, 7\ns_add_u32 s%d, s%d, s%d\ns_add_u32 s%d, s%d, %d", sZld, sB, sC, sA, sZld, sZld, sC, sZld, sZld, Z_OFF))
    Q.append(L("s_lshl_b32 s%d, s%d, 9\ns_add_u32 s%d, s%d, %d", sSt2, sA, sSt2, sSt2, ST2_OFF))
    Q.append(L("s_and_b32 s%d, s%d, 0xfffffffe\ns_mul_i32 s%d, s%d, %d\ns_mul_i32 s%d, s%d, %d\ns_sub_u32 s%d, %d, s%d", sC, sA, sHbase, sC, 112 * 1024, sHB, sFG0, 112 * 1024, sHA, 112 * 1024, sHB))
    Q.append(L("s_mul_i32 s%d, s%d, %d\ns_lshl_b32 s%d, s%d, 6\ns_add_u32 s%d, s%d, s%d", sA, sA, 32 * 896, sC, sB, sA, sA, sC))
    Q.append(L("v_mul_u32_u24 v%d, 896, v%d\nv_lshlrev_b32 v%d, 4, v%d\nv_add3_u32 v%d, v%d, v%d, s%d", U0, U6, U1, U2, U0, U0, U1, sA) + "\n" + stash(aOo, U0))
    Q.append(L("v_lshrrev_b32 v%d, 2, v%d\nv_lshl_add_u32 v%d, v%d, 3, v%d\nv_lshlrev_b32 v%d, 6, v%d\nv_and_b32 v%d, 1, v%d\nv_lshl_add_u32 v%d, v%d, 5, v%d", U0, U7, U0, U2, U0, U0, U0, U1, U5, U0, U1, U0))
    Q.append(L("v_and_b32 v%d, 3, v%d\nv_lshl_add_u32 v%d, v%d, 3, v%d\ns_lshr_b32 s%d, s%d, 1\ns_add_u32 s%d, s%d, %d\nv_add_u32 v%d, s%d, v%d", U1, U7, U0, U1, U0, sZfl, sWL, sZfl, sZfl, ZL, U0, sZfl, U0) + "\n" + stash(aPollZ, U0))
    Q.append(L("v_lshrrev_b32 v%d, 3, v%d\nv_lshlrev_b32 v%d, 13, v%d\nv_and_b32 v%d, 7, v%d\nv_lshl_add_u32 v%d, v%d, 4, v%d", U0, vL, U0, U0, U1, vL, U0, U1, U0) + "\n" + stash(aZld, U0))
    Q.append(L("v_lshlrev_b32 v%d, 10, v%d\nv_lshl_add_u32 v%d, v%d, 4, v%d\nv_add_u32 v%d, s%d, v%d", U0, U2, U0, U6, U0, U0, sWL, U0) + "\n" + stash(aRr, U0))
    Q.append(L("s_lshl_b32 s%d, s%d, 2\ns_add_u32 s%d, s%d, s%d\ns_mul_i32 s%d, s%d, 3072\ns_add_u32 s%d, s%d, %d", sA, sC2, sA, sA, sWV, sPld, sA, sPld, sPld, PX_OFF))
    Q.append(L("s_xor_b32 s%d, s%d, 4\ns_mul_i32 s%d, s%d, 3072\ns_add_u32 s%d, s%d, %d", sA, sA, sPst, sA, sPst, sPst, PX_OFF))
    Q.append(L("s_mov_b32 s%d, %d", sHF, HF_OFF))
    Q.append(L("s_mul_i32 s%d, s%d, 14\ns_add_u32 s%d, s%d, s%d", sB, sFG0, sB, sB, sWM))
    Q.append(L("s_lshl_b32 s%d, s%d, 12\ns_add_u32 s%d, s%d, s%d\ns_add_u32 s%d, s%d, %d\ns_add_u32 s%d, s%d, s%d",
               sC, sB, sHbase, sHbase, sC, sHlim, sHbase, 56 * 1024, sHcur, sHbase, sHcur))
    Q.append(L("s_lshl_b32 s%d, s%d, 1\ns_add_u32 s%d, s%d, s%d\ns_lshl_b32 s%d, s%d, 5\ns_add_u32 s%d, s%d, s%d", sC, sMT, sC, sC, sWN, sC, sC, sA, sB, sC))
    Q.append(L("v_min_u32 v%d, 6, v%d\nv_lshlrev_b32 v%d, 1, v%d\nv_add_lshl_u32 v%d, v%d, s%d, 7", U0, vL, U0, U0, U0, U0, sA) + "\n" + stash(aPollH, U0))
    kvl.append(VM("buffer_load_ushort v%d, v%d, %s, s%d offen" % (HB0, TAP, srd(SRD_HK), sHS), "prep"))
    kvl.append(VM("buffer_load_ushort v%d, v%d, %s, s%d offen" % (HB1, TAP + 1, srd(SRD_HK), sHS), "prep"))
    if Cfg.hk_early: kvl.append(VM("buffer_load_dword v%d, v%d, %s, s%d offen %s" % (77, TAP + 2, srd(SRD_HK), sHS, Cfg.nt_hk), "prep"))
    qparts = [[]]
    for it in Q:
        if isinstance(it, tuple): qparts.append([])
        else: flatten(it, qparts[-1])
    RQ = Cfg.rq
    frs = []
    seq = []
    def addfrag(c, s4, jj):
        frs.append((c, s4, jj)); seq.extend([("m", len(frs) - 1, 0), ("m", len(frs) - 1, 1)])
    for c in range(14 - RQ):
        if c == Cfg.c1: seq.extend(("c", t) for t in range(4))
        for s4 in range(4):
            for jj in range(2): addfrag(c, s4, jj)
    for jj in range(2):
        for c in range(14 - RQ, 14):
            for s4 in range(4): addfrag(c, s4, jj)
        seq.extend([("c", 4 + 2 * jj), ("c", 5 + 2 * jj)])
    assert len(seq) == 232 and 7 <= Cfg.c1 < 14 - RQ
    use = {}; ctick = {}
    for n, e in enumerate(seq):
        if e[0] == "m": use.setdefault(e[1], 2 * n)
        else: ctick[e[1]] = 2 * n
    first = {}
    for i, (c, s4, jj) in enumerate(frs): first.setdefault(c, use[i])
    TB = {c: first[c] - Cfg.blead - (8 if c == Cfg.c1 else 0) for c in range(1, 14)}
    A_CONV = 2 * 232
    def barr(i): return TB[i]
    def conv_anchor(g): return A_CONV + g
    T_BC = A_CONV - Cfg.bc; T_BW = conv_anchor(Cfg.bw)
    def xread(ks, nt): return DS("ds_read_b128 %s, v%d offset:%d" % (ar(8 * ks + 4 * nt, 4), vB[ks & 3], ((ks >> 2) % 3) * XS + nt * 4096), ("FX", ks))
    def aread(i):
        c, s4, jj = frs[i]; slot = c % 6
        base = vA[jj] if slot < 3 else vA2[jj]
        return [DS("ds_read_b64_tr_b16 %s, v%d offset:%d" % (vr(AF + 4 * (i & 7) + 2 * p, 2), base, (slot % 3) * 16384 + s4 * 2048 + p * 512), ("FA", i)) for p in range(2)]
    def freads(i):
        c, s4, jj = frs[i]
        return ([xread(4 * c + s4, 0), xread(4 * c + s4, 1)] if (c < 7 and jj == 0) else []) + aread(i)
    P.append([WVM(("W", 0), ("X", 0)), I("s_barrier")])
    P.append(freads(0) + freads(1))
    P.append(stamp("b0"))
    sS = Stream("setup")
    sS.addall(qparts[0] + qparts[1] + qparts[2], by=Cfg.setup_by, key="setup")
    cur = []
    for j in range(7):
        cur.append(I("s_mov_b32 s%d, s%d" % (sG[j], sHcur)))
        if j < 6: cur += [I("s_add_u32 s%d, s%d, 8192" % (sHcur, sHcur)), [I("s_cmp_eq_u32 s%d, s%d" % (sHcur, sHlim)), I("s_cselect_b32 s%d, s%d, s%d" % (sHcur, sHbase, sHcur))]]
    sS.addall(cur, after=("kvl", 2), by=first[7] - 10)
    sF = Stream("frag", cap=2)
    for i in range(2, 112):
        c = frs[i][0]
        ea = max(TB.get(c, 0), use[i - 8] + 4 if i >= 8 else 0)
        by = use[i] - 6
        if c + 1 <= 14 - RQ: by = min(by, TB[c + 1] - 2)
        by = min(by, T_BC - 2)
        assert ea <= by, (i, ea, by)
        sF.addall(freads(i), at=ea, by=by)
    sD = Stream("dma")
    def addgrp(g, at, sp, key=None, by=None):
        at_, adv = g
        sps = sp if isinstance(sp, tuple) else (sp,) * 4
        sD.add(at_[0], at=at, space=max(sps[0] - 2, 0)); sD.add(at_[1])
        for i, a in enumerate(at_[2:]): sD.add(a, space=sps[i + 1], key=key if i == 2 else None, by=by)
        for a in adv: sD.add(a)
    sR = Stream("wdread", cap=2)
    vHs = vX[0]
    WD_AT = [barr(7)] + [barr(c + 1) if c + 1 <= 14 - RQ else T_BC for c in range(8, 14)]
    order = [x for x in Cfg.order if x[0] != "K"]
    order.insert(Cfg.kpos, ("K", 0))
    for n, (kind, i) in enumerate(order):
        sp = Cfg.sp1 if n < Cfg.kx else 0
        if n == Cfg.kx: nplain = len(sD.items)
        if kind == "W": addgrp(w_group(i), max(barr(i - 5) if i >= 6 else 0, Cfg.w_min.get(i, 0)), sp, key=("w", i), by=barr(i) - Cfg.minlead)
        elif kind == "X": addgrp(x_group(i), barr(i - 2) if i >= 3 else 0, sp, by=barr(i) - Cfg.minlead)
        elif kind == "K": sD.addall(kvl, key="kvl")
        elif kind == "H": pass
        else:
            addgrp(wd_group(i), max(WD_AT[i], Cfg.wd_min[i]), 0, by=T_BW - 2 * Cfg.minlead)
    for f in range(Cfg.wr_pre): sR.addall(wd_reads(f % 7, f // 7), at=T_BW, by=conv_anchor(143))
    sP = Stream("prep")
    def unp(dst, src, hi): return I("v_and_b32 v%d, 0xffff0000, v%d" % (dst, src)) if hi else I("v_lshlrev_b32 v%d, 16, v%d" % (dst, src))
    at = [WVM("prep")] + tag_from_epoch(vEp)
    at += [I("v_lshl_or_b32 v%d, v%d, 16, v%d" % (HB0, HB1, HB0)), I(stash(aHsrc, HB0))]
    for b in range(2):
        for i in range(4): at.append(unp(TAP + i, SKR + 2 * b + (i >> 1), i & 1))
        for a in range(11): at.append(unp(KFv + a, KR + a, b))
        out = OHI if b else OLO
        for w in range(4):
            for (o, R) in ((7 - 2 * w, R0), (6 - 2 * w, R1)):
                at.append(I("v_mul_f32 v%d, v%d, v%d" % (R, KFv + o, TAP + 3)))
                for i in (2, 1, 0): at.append(I("v_fmac_f32 v%d, v%d, v%d" % (R, KFv + o + 3 - i, TAP + i)))
                at.append(unp(VF, VR_ + o, b))
                at.append(I("v_mul_f32 v%d, v%d, v%d" % (R, R, VF)))
            at.append(I("v_cvt_pk_bf16_f32 v%d, v%d, v%d" % (out + w, R0, R1)))
    at.append(unstash(R0, aPsw))
    at.append(DS("ds_write_b128 v%d, %s" % (R0, vr(OLO, 4)), "psw"))
    at.append(DS("ds_write_b128 v%d, %s offset:128" % (R0, vr(OHI, 4)), "psw"))
    B_psw = Cfg.b_psw
    sP.addall(at, after=("kvl", Cfg.prep_lag), by=barr(B_psw) - 2)
    at = [unstash(R1, aPsr), DS("ds_read_b128 %s, v%d" % (vr(36, 4), R1), "psr"), DS("ds_read_b128 %s, v%d offset:4608" % (vr(40, 4), R1), "psr"),
          unstash(R0, aKst)]
    sP.addall(at, at=barr(B_psw), by=barr(B_psw) + 4)
    sP.add([WDS("psr"), VM("buffer_store_dwordx4 %s, v%d, %s, s%d offen sc1" % (vr(36, 4), R0, srd(SRD_WS), sKst0), "kvst")], at=barr(B_psw) + 10, by=barr(B_psw) + 16)
    sP.add(VM("buffer_store_dwordx4 %s, v%d, %s, s%d offen sc1" % (vr(40, 4), R0, srd(SRD_WS), sKst1), "kvst"), by=barr(B_psw) + 20, key="prepdone")
    B_kvst = B_psw + Cfg.kv_ack
    sP.add(flag_store(sKfl, []), at=barr(B_kvst), by=barr(B_kvst))
    CSF, MB, vPk, vPo, vCo, vMo, KV, vKw, vU0, vU1, vU2 = 32, 48, 56, 57, 58, 59, 14, 60, 4, 5, 8
    assert min(Cfg.cs_at, Cfg.polls_at, Cfg.t_at) > barr(B_psw) + 22
    sQ = Stream("cs")
    ldC = ["buffer_load_dwordx4 %s, v%d, %s, s%d offen offset:%d sc1" % (vr(CSF + 4 * jj, 4), vCo, srd(SRD_WS), sCs, 2048 * (jj >> 1) + 512 * (jj & 1)) for jj in range(4)]
    ldM = ["buffer_load_dwordx2 %s, v%d, %s, s%d offen offset:%d sc1" % (vr(MB + 4 * nt, 2), vMo, srd(SRD_WS), sMn, 256 * nt) for nt in range(2)]
    sQ.addall([I("v_and_b32 v%d, 511, v%d" % (vCo, vL16)), I("v_lshrrev_b32 v%d, 1, v%d" % (vMo, vCo))] + [VM(x, "cs") for x in ldC + ldM], at=Cfg.cs_at - 2, by=Cfg.cs_at + 60)
    cmp_ops = ["v_xor_b32 v%d, s%d, v%d" % (vU0, sTAG, CSF + 3), "v_xor_b32 v%d, s%d, v%d" % (vU1, sTAG, CSF + 7), "v_xor_b32 v%d, s%d, v%d" % (vU2, sTAG, CSF + 11),
               "v_or3_b32 v%d, v%d, v%d, v%d" % (vU0, vU0, vU1, vU2), "v_xor_b32 v%d, s%d, v%d" % (vU1, sTAG, CSF + 15), "v_xor_b32 v%d, s%d, v%d" % (vU2, sTAG, MB + 1),
               "v_or3_b32 v%d, v%d, v%d, v%d" % (vU0, vU0, vU1, vU2), "v_xor_b32 v%d, s%d, v%d" % (vU1, sTAG, MB + 5), "v_or_b32 v%d, v%d, v%d" % (vU0, vU0, vU1),
               "v_cmp_ne_u32 vcc, 0, v%d" % vU0]
    c1, c2 = check("C", ldC + ldM, cmp_ops, ["cs"])
    T_CORR = ctick[0]
    sQ.addall(c1, at=T_CORR - Cfg.cs_chk, by=T_CORR - 14)
    sQ.add(c2, by=T_CORR - 14)
    at = [I("v_mov_b32 v%d, 0" % (CSF + 4 * jj + 3)) for jj in range(4)]
    for nt in range(2):
        b = MB + 4 * nt
        at.append(I("v_xor_b32 v%d, 0x80000000, v%d" % (b, b)))
        at.append([I("v_cmp_gt_u32 vcc, 32, v%d" % vL), I("v_mov_b32 v%d, 0" % (b + 2)), I("v_mov_b32 v%d, 0" % (b + 3)), I("v_cndmask_b32 v%d, 0, v%d, vcc" % (b, b))])
        at.append(I("v_lshrrev_b32 v%d, 16, v%d" % (b + 1, b)))
        at.append(I("v_or_b32 v%d, v%d, v%d" % (b, b, b + 1)))
    sQ.addall(at, by=T_CORR - 6)
    sK = Stream("kv")
    ldK = "buffer_load_dword v%d, v%d, %s, s%d offen sc1" % (vPk, vPo, srd(SRD_WS), sKF)
    sK.addall([unstash(vPo, aPollK), VM(ldK, "pollK")], at=Cfg.polls_at - 2, by=Cfg.polls_at + 8)
    c1, c2 = check("K", [ldK], ["v_cmp_ne_u32 vcc, s%d, v%d" % (sTAG, vPk)], ["pollK"])
    pc = Cfg.polls_at + Cfg.polls_lag
    sK.add([c1, c2], at=pc, by=pc)
    sK.add(I("v_lshlrev_b32 v%d, 4, v0" % vKw), after=(("w", 13), 0))
    sK.add(VM("buffer_load_dwordx4 %s, v%d, %s, s%d offen sc1" % (vr(KV, 4), vKw, srd(SRD_WS), sKld0), "kvld"))
    sK.add(VM("buffer_load_dwordx4 %s, v%d, %s, s%d offen sc1" % (vr(KV + 4, 4), vKw, srd(SRD_WS), sKld1), "kvld"), by=pc + 24)
    sK.add(I("v_add_u32 v%d, %d, v%d" % (vKw, KVR, vKw)))
    sK.add([WVM("kvld"), DS("ds_write_b128 v%d, %s" % (vKw, vr(KV, 4)), "kvw")], at=min(pc + Cfg.kv_lag, T_BC - 14), by=T_BC - 12)
    sK.add(DS("ds_write_b128 v%d, %s offset:4608" % (vKw, vr(KV + 4, 4)), "kvw"), by=T_BC - 8, space=4)
    RV, SA_, SB_, vHw = 70, 62, 88, 61
    sG_ = Stream("hc")
    sG_.add([I("s_lshl_b32 s%d, s%d, 11" % (sZt0, sWM)), I("v_lshl_add_u32 v%d, v%d, 1, s%d" % (vHw, vL16, sZt0))], after=("prepdone", 4), at=Cfg.t_at)
    sG_.addall([VM("buffer_load_dwordx4 %s, v%d, %s, s%d offen %s" % (vr(RV, 4), vHw, srd(SRD_HK), sHS, Cfg.nt_hk), "hkl"),
                VM("buffer_load_dwordx4 %s, v%d, %s, s%d offen offset:16 %s" % (vr(RV + 4, 4), vHw, srd(SRD_HK), sHS, Cfg.nt_hk), "hkl"),
                VM("buffer_load_dwordx2 %s, v%d, %s, s%d offen offset:32 %s" % (vr(RV + 8, 2), vHw, srd(SRD_HK), sHS, Cfg.nt_hk), "hkl")], by=Cfg.t_at + 60)
    sG_.add(I("v_add_u32 v%d, s%d, v%d" % (vHw, sHL, vHw)), after=("setup", 2))
    def hw(c, base, tag="kvw"): return [DS("ds_write_b128 v%d, %s offset:%d" % (vHw, vr(base + 4 * q, 4), 4160 * c + 32 + 16 * q), tag) for q in range(2)]
    def al(dst, k): return I("v_alignbyte_b32 v%d, v%d, v%d, 2" % (dst, RV + k + 1, RV + k))
    mv = [I("v_mov_b32 v%d, v%d" % (SB_ + k, RV + 1 + k)) for k in range(8)]
    w1, w3, w0, w2 = hw(1, SB_, "hw1"), hw(3, RV + 2), hw(0, SA_), hw(2, SB_)
    at = [[WVM("hkl"), mv[0]]] + mv[1:4] + [w1[0]] + mv[4:] + [w1[1]] + [al(SA_ + k, k) for k in range(4)] + [w3[0]] + [al(SA_ + k, k) for k in range(4, 8)] + [w3[1], w0[0]]
    at += [[WDS("hw1"), al(SB_, 1)]] + [al(SB_ + k, k + 1) for k in range(1, 4)] + [w0[1]] + [al(SB_ + k, k + 1) for k in range(4, 8)] + w2
    at += [unstash(vHw, aCA1), DS("ds_write_b32 v%d, a%d" % (vHw, aHsrc), "kvw")]
    assert Cfg.hc_at >= barr(7)
    prevw = False
    for i, x in enumerate(at):
        isw = isinstance(x, Op) and x.kind == "ds" and "b128" in x.text
        sG_.add(x, at=Cfg.hc_at if i == 0 else None, space=4 if (isw and prevw) else 0, by=Cfg.hc_by, key="hcdone" if i == len(at) - 1 else None)
        prevw = isw
    sE = Stream("epi")
    vCA0, vCA1, vCB, vCD, vOo, vDv, vHo, vHp, vHt, vHA, vHB = 14, 15, 16, 17, 19, 20, 21, 13, 18, 10, 11
    def hflag(word, tags):
        return [WVM(*tags), VM("buffer_store_dword a%d, v%d, %s, s%d offen offset:%d sc1" % (aTag, vFlag0, srd(SRD_WS), sHfl, 4 * word), "flag")]
    for tl in range(8):
        jj, nt = tl >> 1, tl & 1
        a = ACC + tl * 16
        at = [I("v_mul_f32 v%d, v%d, v%d" % (a + r, a + r, a + r + 8)) for r in range(8)]
        at += [I("v_cvt_pk_bf16_f32 v%d, v%d, v%d" % (a + 8 + w, a + 2 * w, a + 2 * w + 1)) for w in range(4)]
        at.append(VM("buffer_store_dwordx4 %s, v%d, %s, s%d offen offset:%d %s" % (vr(a + 8, 4), vL16, srd(SRD_WS), sHst1 if nt else sHst0, jj * 1024, Cfg.hpol), ("hst", tl >= 4)))
        ea = ctick[tl] + 4 + (Cfg.hs_gap * tl if tl < 4 else 0)
        if ea >= A_CONV: ea += 1
        if tl == 4: sE.add(hflag(0, [("hst", False)]), at=Cfg.hflag0, by=Cfg.hflag0)
        sE.addall(at, at=ea, by=ea + 20 if tl < 6 else conv_anchor(Cfg.epi_by), key=("epi", tl))
    assert Cfg.hflag0 <= ctick[4] + 4
    if Cfg.hflag1 < 144: sE.add(hflag(1, [("hst", True)]), at=conv_anchor(Cfg.hflag1), by=conv_anchor(Cfg.hflag1))
    CACC = 32
    def cA(dd, r): return 128 + 64 * (dd & 1) + 8 * r
    def cB(dd, m): return 128 + 64 * (dd & 1) + 8 * m + 4
    def conv_reads(dd, r):
        at = [DS("ds_read_b64 %s, v%d offset:%d" % (vr(cA(dd, r) + half * 2, 2), vCA0, 64 * dd + 512 * r + 8 * half), ("C", dd, r)) for half in range(2)]
        at.append(DS("ds_read_b128 %s, v%d offset:%d" % (vr(cB(dd, r), 4), vCB, 3584 - 512 * r + 64 * dd), ("C", dd, r)))
        return at
    pairs = sorted([(r, m) for r in range(8) for m in range(8 - r)], key=lambda p: (max(p), p))
    first_use = {}
    for i, p in enumerate(pairs): first_use.setdefault(max(p), i)
    sC_ = Stream("convrd", cap=3)
    sC_.addall([unstash(vCA0, aCA0), unstash(vCB, aCB), unstash(vCD, aCD)], at=T_BC)
    for r in range(8): sC_.addall(conv_reads(0, r), at=T_BC, after=(("epi", r >> 1), 1), by=conv_anchor(first_use[r] - 6))
    for r in range(8): sC_.addall(conv_reads(1, r), after=(("epi", 4 + (r >> 1)), 1), by=conv_anchor(36 + first_use[r] - 8))
    for dd in (2, 3):
        for r in range(8): sC_.addall(conv_reads(dd, r), at=conv_anchor(36 * (dd - 1)), by=min(conv_anchor(36 * dd + first_use[r] - 8), T_BW - 3))
    XE = 2; vXA = 19
    sM = Stream("misc")
    if Cfg.rot1 == "d":
        sM.addall([[I("s_lshl_b32 s%d, s%d, 6" % (sZt2, sWM)), I("v_xor_b32 v%d, s%d, v%d" % (vXA, sZt2, vB[0]))],
                   [I("s_lshl_b32 s%d, s%d, 12" % (sZt2, sFG0)), I("v_add_u32 v%d, s%d, v%d" % (vXA, sZt2, vXA))],
                   DS("ds_read_b128 %s, v%d" % (vr(BF, 4), vXA), ("FX", 27)), I("v_xor_b32 v%d, 32, v%d" % (vXA, vXA)),
                   DS("ds_read_b128 %s, v%d" % (vr(BF + 4, 4), vXA), ("FX", 27))], at=barr(6), by=barr(7) - 4)
        sM.addall([I("v_mov_b32 v%d, v%d" % (XE + i, BF + i)) for i in range(8)], at=T_BC + 2)
        sM.add(unstash(vOo, aOo), at=conv_anchor(Cfg.xe_at))
    else:
        sM.add(unstash(vOo, aOo), at=conv_anchor(Cfg.xe_at))
        sM.add(VM("buffer_load_dwordx4 %s, v%d, %s, 0 offen" % (vr(XE, 4), vOo, srd(SRD_X)), "xe"))
        sM.add(VM("buffer_load_dwordx4 %s, v%d, %s, 0 offen offset:32" % (vr(XE + 4, 4), vOo, srd(SRD_X)), "xe"), space=2)
    sM.add([I("s_lshr_b32 s%d, s%d, 11" % (sZt1, sHS)), I("v_mov_b32 v%d, 0" % vHo)])
    sM.add(VM("buffer_load_ushort v%d, v%d, %s, s%d offen" % (0, vHo, srd(SRD_DD), sZt1), "xe"), space=2)
    sM.addall([unstash(vHo, aPollH), I("v_add_u32 v%d, s%d, v%d" % (vHA, sHA, vL16)), I("v_add_u32 v%d, s%d, v%d" % (vHB, sHB, vL16))])
    ldH = ["buffer_load_dword v%d, v%d, %s, s%d offen offset:%d sc1" % (vHp, vHo, srd(SRD_WS), sHF, 4 * w) for w in range(2)]
    sM.add(VM(ldH[0], "pollH"), at=conv_anchor(Cfg.hpoll), by=conv_anchor(Cfg.hpoll))
    NP = 24
    def hreg(f): return vr(64 + 4 * (f % NP), 4)
    def fidx(f): return f // 28, (f % 28) // 7, f % 7
    def hload(f):
        jt, jj, j = fidx(f)
        return VM("buffer_load_dwordx4 %s, v%d, %s, s%d offen offset:%d sc1" % (hreg(f), vHB if jt else vHA, srd(SRD_WS), sG[j], jj * 1024), ("H", f))
    hc1, hc2 = check("H", [ldH[0]], ["v_cmp_ne_u32 vcc, s%d, v%d" % (sTAG, vHp)], ["pollH"])
    nh = 0
    if Cfg.hcheck < 144:
        sM.add([hc1, hc2] + stamp("hok"), at=conv_anchor(Cfg.hcheck), by=conv_anchor(Cfg.hcheck))
        while nh < 14 and Cfg.hcheck + 6 + 4 * nh < 143:
            sM.add(hload(nh), by=conv_anchor(143)); nh += 1

    for it in sD.items[:nplain]: it["plan"] = False
    Cfg._vmtab = plan_vm([sP, sE, sQ, sK, sG_, sD, sM], list(range(0, A_CONV, 2)) + list(range(A_CONV, A_CONV + 144)), Cfg.vs_at, Cfg.vs2)
    SC = Sched([sF, sQ, sK, sD, sE, sC_, sG_, sM, sR, sP, sS])
    usage = []
    def emit_gap(now, budget, pre=0.0):
        if now in Cfg.tr_ticks and len(SC.streams) > 6: P.append(RAW("TSTAMP t%d" % now))
        o, u = SC.fill(now, budget - pre)
        P.append(o); usage.append(u + pre)
    def barrier(w, wd):
        o = [WVM(*w)] if w else []
        if wd: o.append(WDS(*wd))
        o.append(I("s_barrier"))
        return o
    def barrier_i(i):
        w = [("W", i)]; wd = []
        if i < 7: w.append(("X", i))
        if i == B_kvst: w.append("kvst")
        if i == B_psw: wd.append("psw")
        if i <= 14 - RQ: wd += [("FA", k) for k, f in enumerate(frs) if f[0] == i - 1]
        if i <= 7: wd.append(("FX", 4 * i - 1))
        return barrier(w, wd)
    def mf32(a, A_, B_, first): return "v_mfma_f32_32x32x16_bf16 %s, %s, %s, %s" % (vr(a, 16), A_, B_, "0" if first else vr(a, 16))
    tb_at = {t: c for c, t in TB.items()}
    for n, e in enumerate(seq):
        now = 2 * n; pre = 0.0
        if e[0] == "m":
            c, s4, jj = frs[e[1]]; nt = e[2]; ks = 4 * (c % 7) + s4
            if nt == 0:
                P.append(WDS(("FA", e[1]), ("FX", ks)))
                if first[c] == now and c in Cfg.stamps_k: P.append(stamp("c%d" % c))
            else: pre = 1.0
            P.append(mf32(ACC + (4 * (c // 7) + 2 * jj + nt) * 16, vr(AF + 4 * (e[1] & 7), 4), ar(8 * ks + 4 * nt, 4), ks == 0))
        else:
            P.append(mf32(ACC + e[1] * 16, vr(CSF + (e[1] >> 1) * 4, 4), vr(MB + (e[1] & 1) * 4, 4), False))
        if now in tb_at: P.append(barrier_i(tb_at[now])); pre += 2
        if now == T_BC: P.append(barrier([], ["kvw", ("FA", 111)])); pre += 2
        emit_gap(now, Cfg.b1 if now < first[7] else Cfg.b32, pre)
    P.append(stamp("g1end"))
    gi = 0
    for dd in range(4):
        seen = set()
        for i, (r, m) in enumerate(pairs):
            if first_use[max(r, m)] == i: P.append(WDS(("C", dd, max(r, m))))
            a = CACC + (r + m) * 4
            P.append("v_mfma_f32_16x16x32_bf16 %s, %s, %s, %s" % (vr(a, 4), vr(cA(dd, r), 4), vr(cB(dd, m), 4), "0" if (dd == 0 and (r + m) not in seen) else vr(a, 4)))
            seen.add(r + m)
            if conv_anchor(gi) == T_BW: P.append(barrier([("WD", u) for u in range(7)], [("C", 3, 7)]))
            emit_gap(conv_anchor(gi), Cfg.b16)
            gi += 1
    assert SC.done(), SC.left()
    Cfg._usage1 = usage; Cfg._log1 = SC.log
    P.append(stamp("convend"))

    CM, CP, CK, vT0, vT1, vT2 = 224, 240, 160, 22, 23, 24
    ZG = 176
    P.append(L("v_add_u32 v%d, s%d, v%d\nv_xor_b32 v%d, 4096, v%d", vT0, sWL, vL16, vT1, vT0))
    P.append(L("v_add_u32 v%d, %d, v%d\nv_add_u32 v%d, %d, v%d", 170, CEX, vT0, 171, CEX, vT1))
    for k in range(4): P.append(DS("ds_read_b64 %s, v%d offset:%d" % (vr(CK + 2 * k, 2), vCD, 512 * (3 - k)), "cxk"))
    P.append(L("s_cmp_eq_u32 s%d, 0\ns_cbranch_scc0 L_cx1", sWM))
    for k in range(4): P.append(DS("ds_write_b128 v170, %s offset:%d" % (vr(CACC + 16 + 4 * k, 4), 1024 * k), "cxw"))
    for k in range(16): P.append("v_mov_b32 v%d, v%d" % (CM + k, CACC + k))
    P.append(RAW("s_branch L_cx2\nL_cx1:"))
    for k in range(4): P.append(RAW("ds_write_b128 v170, %s offset:%d" % (vr(CACC + 4 * k, 4), 1024 * k)))
    for k in range(16): P.append(RAW("v_mov_b32 v%d, v%d" % (CM + k, CACC + 16 + k)))
    P.append(RAW("L_cx2:"))
    P.append([WDS("cxw"), I("s_barrier")])
    for k in range(4): P.append(DS("ds_read_b128 %s, v171 offset:%d" % (vr(CP + 4 * k, 4), 1024 * k), "cxr"))
    ep = [unstash(vT2, aZst), [WVM("xe"), I("v_lshlrev_b32 v0, 16, v0")]]
    for k in range(4):
        lo, hi = CK + 2 * k, CK + 1 + 2 * k
        for r, (src, h) in enumerate(((hi, 1), (hi, 0), (lo, 1), (lo, 0))):
            ep += [unp(168 + (r & 1), src, h), I("v_fmac_f32 v%d, v%d, v0" % (CM + 4 * k + r, 168 + (r & 1)))]
    for k in range(4): ep += [I("v_mov_b32 v%d, s%d" % (ZG + 4 * k + 2, sTAG)), I("v_mov_b32 v%d, s%d" % (ZG + 4 * k + 3, sTAG))]
    for k in range(4):
        ad = [I("v_add_f32 v%d, v%d, v%d" % (CM + 4 * k + r, CM + 4 * k + r, CP + 4 * k + r)) for r in range(4)]
        if k == 0: ad[0] = [WDS("cxr"), ad[0]]
        ep += ad + [I("v_cvt_pk_bf16_f32 v%d, v%d, v%d" % (ZG + 4 * k + w, CM + 4 * k + 2 * w, CM + 4 * k + 2 * w + 1)) for w in range(2)]
        ep.append(VM("buffer_store_dwordx4 %s, v%d, %s, s%d offen offset:%d sc1" % (vr(ZG + 4 * k, 4), vT2, srd(SRD_WS), sZst, 1024 * k), "zst"))
    if Cfg.hcheck >= 144:
        P.append([hc1, hc2]); P.append(stamp("hok"))
        while nh < Cfg.nfirst: P.append(hload(nh)); nh += 1
    if Cfg.hflag1 >= 144: ep.insert(len(ep) - 22, hflag(1, [("hst", True)]))
    if Cfg.h2_early: P.append(VM(ldH[1], "pollH2"))
    if not Cfg.ep_shadow: P.append(ep)
    P.append(stamp("zst"))

    ACA, ACB, ZV, XF, ST = 192, 224, 32, 48, 172
    vZp, vZo, vSo, vRr = 14, 15, 16, 17
    RR, GR = 160, 160
    sV = Stream("ep")
    if Cfg.ep_shadow: sV.addall(ep, by=Cfg.ep_by)
    sH = Stream("hload")
    g1, g2_ = check("H2", [ldH[1]], ["v_cmp_ne_u32 vcc, s%d, v%d" % (sTAG, vHp)], ["pollH2"])
    if not Cfg.h2_early: sH.add(VM(ldH[1], "pollH2"), at=Cfg.h2poll)
    hpace = -Cfg.hsp
    for f in range(nh, 56):
        if f == 14: sH.add([g1, g2_], at=Cfg.h2check, by=2 * f - 10)
        ea = 2 * (f - NP) + 2 if f >= NP else 0
        hpace = max(hpace + Cfg.hsp, ea, Cfg.h2check + 1 if f == 14 else 0)
        sH.add(hload(f), at=int(hpace), by=max(2 * f - 4, int(hpace) + 1))
    A_BAR = 56 + Cfg.bar_a
    sX = Stream("x")
    sX.addall([unp(XF + i, XE + (i >> 1), i & 1) for i in range(16)], at=Cfg.ep_by + 2)
    sX.add(unstash(vRr, aRr))
    sX.addall([I("v_add_u32 v%d, %d, v%d" % (vT0, REDA, vRr)), I("v_add_u32 v%d, %d, v%d" % (25, REDA, vT1))])
    sX.addall([DS("ds_write_b128 v25, %s offset:%d" % (vr(ACA + 16 + rq * 4, 4), rq * 1024), "rwa") for rq in range(4)], at=58, space=1, by=A_BAR - 3)
    def swaps(acc): return [I("v_permlane32_swap_b32 v%d, v%d" % (acc + 8 * kk + i, acc + 8 * kk + 4 + i)) for kk in range(2) for i in range(4)]
    sX.addall(swaps(ACA))
    sX.addall([DS("ds_read_b128 %s, v%d offset:%d" % (vr(ACA + 16 + kk * 8 + hs * 4, 4), vT0, kk * 2048 + hs * 512), "rra") for kk in range(2) for hs in range(2)], at=A_BAR, by=A_BAR + 1)
    def gpos(b, w): return b + (w // 3) * 4 + (w % 3)
    sX.addall([I("v_mov_b32 v%d, s%d" % (GR + 4 * k + 3, sTAG)) for k in range(3)])
    first = True
    for w in range(8):
        for i in (2 * w, 2 * w + 1):
            op = I("v_add_f32 v%d, v%d, v%d" % (ACA + i, ACA + i, ACA + 16 + i))
            if first: sX.add([WDS("rra"), op], space=2); first = False
            else: sX.add(op)
        sX.add(I("v_cvt_pk_bf16_f32 v%d, v%d, v%d" % (gpos(GR, w), ACA + 2 * w, ACA + 2 * w + 1)))
        if w % 3 == 2 or w == 7:
            k = w // 3
            sX.add(VM("buffer_store_dwordx4 %s, v%d, %s, s%d offen offset:%d sc1" % (vr(GR + 4 * k, 4), vL16, srd(SRD_WS), sPst, k * 1024), "pst"), by=A_BAR + 16, key=("pst", k))
    ldP = ["buffer_load_dwordx4 %s, v%d, %s, s%d offen offset:%d sc1" % (vr(ACA + 4 * k, 4), vL16, srd(SRD_WS), sPld, k * 1024) for k in range(3)]
    sX.addall([VM(x, "pld") for x in ldP], at=Cfg.pld, by=111)
    sZ = Stream("z")
    sZq = [sZld, sZt0, sZt1, sZt2]
    ldZ = ["buffer_load_dwordx4 %s, v%d, %s, s%d offen sc1" % (vr(ZG + 4 * i, 4), vZo, srd(SRD_WS), sZq[i]) for i in range(4)]
    ldS = "buffer_load_dwordx4 %s, v%d, %s, s%d offen sc1" % (vr(ST, 4), vSo, srd(SRD_WS), sSt2)
    sZ.addall([unstash(vZo, aZld), I("v_and_b32 v%d, 511, v%d" % (vSo, vL16))] + [I("s_add_u32 s%d, s%d, %d" % (sZq[i], sZld, i * 65536)) for i in range(1, 4)], at=Cfg.ep_by + 4)
    sZ.addall([VM(x, "zld") for x in ldZ + [ldS]], at=Cfg.zpoll)
    cmp_ops = ["v_xor_b32 v%d, s%d, v%d" % (ZG + 4 * i + 3, sTAG, ZG + 4 * i + 2) for i in range(4)] + ["v_xor_b32 v%d, s%d, v%d" % (ST + 3, sTAG, ST + 2),
               "v_or3_b32 v%d, v%d, v%d, v%d" % (ZG + 3, ZG + 3, ZG + 7, ZG + 11), "v_or3_b32 v%d, v%d, v%d, v%d" % (ZG + 3, ZG + 3, ZG + 15, ST + 3), "v_cmp_ne_u32 vcc, 0, v%d" % (ZG + 3)]
    c1, c2 = check("Z", ldZ + [ldS], cmp_ops, ["zld"])
    zt = list(c1) + [c2]
    zt += [[I("v_lshrrev_b32 v%d, 1, v%d" % (vZp, vL16)), I("v_add_u32 v%d, s%d, v%d" % (vZp, sZfl, vZp))]]
    zt += [DS("ds_write_b64 v%d, %s offset:%d" % (vZp, vr(ZG + 4 * i, 2), 512 * i), "zw") for i in range(4)]
    zt += [unstash(vZo, aPollZ), I("v_mul_f32 v%d, v%d, v%d" % (ST, ST, ST + 1)), I("v_mul_f32 v%d, v%d, v%d" % (ST + 2, ST + 1, ST + 1))]
    rd = [DS("ds_read_b64_tr_b16 %s, v%d offset:%d" % (vr(XE + 2 * q, 2), vZo, (q >> 1) * 1024 + (q & 1) * 256), "zr") for q in range(4)]
    rd[0] = [WDS("zw"), rd[0]]
    zt += rd
    for i in range(16):
        u = unp(ZV + i, XE + (i >> 1), i & 1)
        zt.append([WDS("zr"), u] if i == 0 else u)
        zt.append(I("v_fma_f32 v%d, v%d, v%d, -v%d" % (vZp, XF + i, ST + 1, ST)))
        zt.append(I("v_fma_f32 v%d, v%d, v%d, v%d" % (ZV + i, vZp, ZV + i, XF + i)))
    assert Cfg.zpoll + Cfg.zlag > A_BAR
    sZ.addall(zt, at=Cfg.zpoll + Cfg.zlag)
    sW = Stream("wr", cap=2)
    for f in range(Cfg.wr_pre, 28): sW.addall(wd_reads(f % 7, f // 7), by=max(2 * f - 5, 0))
    if Cfg.plan2: Cfg._vmtab2 = plan_vm([sH, sV, sX, sZ], list(range(112)), 0, 0.25, lead_div=5, lead_mul=1)
    SC = Sched([sW, sH, sV, sX, sZ])
    usage = []
    for f in range(56):
        jt, jj, j = fidx(f)
        P.append(WVM(("H", f)))
        if jt == 0: P.append(WDS(("WR", j, jj)))
        if f in Cfg.stamps_f: P.append(stamp("f%d" % f))
        for jd in range(2):
            a = (ACB if jt else ACA) + jd * 16
            P.append(mf32(a, ar(8 * (4 * j + jj) + 4 * jd, 4), hreg(f), f % 28 == 0))
            now = 2 * f + jd
            if now == A_BAR: P.append([WDS("rwa"), I("s_barrier")])
            emit_gap(now, Cfg.b2, 1.0 if jd else 0.0)
    for s_ in (sW, sH, sV, sX): assert s_.pos == len(s_.items), s_.name
    rest = [it["atom"] for it in sZ.items[sZ.pos:]]
    Cfg._usage2 = usage; Cfg._rest = len(rest)
    P.append(stamp("g2end"))
    P.append("s_nop 7\ns_nop 3")
    for rq in range(4): P.append(DS("ds_write_b128 v%d, %s offset:%d" % (vT1, vr(ACB + 16 + rq * 4, 4), REDB + rq * 1024), "rwb"))
    P.append(swaps(ACB))
    P.append([WDS("rwb"), I("s_barrier")])
    for kk in range(2):
        for hs in range(2):
            P.append(DS("ds_read_b128 %s, v%d offset:%d" % (vr(64 + kk * 8 + hs * 4, 4), vRr, REDB + kk * 2048 + hs * 512), "rrb"))
    P.append(rest)
    cmp_ops = ["v_xor_b32 v%d, s%d, v%d" % (ACA + 4 * k + 3, sTAG, ACA + 4 * k + 3) for k in range(3)]
    cmp_ops += ["v_or3_b32 v%d, v%d, v%d, v%d" % (ACA + 3, ACA + 3, ACA + 7, ACA + 11), "v_cmp_ne_u32 vcc, 0, v%d" % (ACA + 3)]
    c1, c2 = check("P", ldP, cmp_ops, ["pld"])
    P.append(WDS("rrb"))
    for i in range(16): P.append("v_add_f32 v%d, v%d, v%d" % (ACB + i, ACB + i, 64 + i))
    P.append([c1, c2])
    for kk in range(2):
        for i in range(8 * kk, 8 * kk + 8):
            P.append(unp(ACA + 16 + i, gpos(ACA, i >> 1), i & 1))
            P.append("v_add_f32 v%d, v%d, v%d" % (ACB + i, ACB + i, ACA + 16 + i))
            P.append("v_fma_f32 v%d, v%d, v%d, v%d" % (ACB + i, ACB + i, ST + 2, ZV + i))
        for w in range(4): P.append("v_cvt_pk_bf16_f32 v%d, v%d, v%d" % (80 + 4 * kk + w, ACB + 8 * kk + 2 * w, ACB + 8 * kk + 2 * w + 1))
        P.append(VM("buffer_store_dwordx4 %s, v%d, %s, 0 offen offset:%d %s" % (vr(80 + 4 * kk, 4), vOo, srd(SRD_OUT), 32 * kk, Cfg.opol), "out"))
    P.append(diag_tail(True))
    P.append("s_endpgm")
    return P
Cfg.ep_shadow = False; Cfg.ep_by = 20; Cfg.opol = ""
Cfg.order = [("X", 1), ("W", 2), ("X", 2), ("W", 3), ("X", 3), ("W", 4), ("X", 4), ("W", 5), ("X", 5), ("W", 6), ("X", 6), ("W", 7), ("W", 8), ("W", 9), ("W", 10),
             ("W", 11), ("W", 12), ("W", 13), ("D", 0), ("D", 1), ("D", 2), ("D", 3), ("D", 4), ("D", 5), ("D", 6)]
Cfg.t_at = 232; Cfg.hc_at = 270; Cfg.hc_by = 420; Cfg.cs_chk = 30; Cfg.w_min = {9: 176, 10: 216, 11: 244, 12: 262, 13: 280}
Cfg.vs1 = 0; Cfg.vs2 = 1.0; Cfg.vs3 = 0.0; Cfg.vs_at = 128; Cfg.hprio = True; Cfg.b2 = 6; Cfg.b1 = 10; Cfg.tr_ticks = (); Cfg.rq = 2; Cfg.c1 = 9; Cfg.blead = 8; Cfg.hs_gap = 22
Cfg.minlead = 10; Cfg.prep_lag = 40; Cfg.htouch = False; Cfg.hcheck = 84; Cfg.pld = 104; Cfg.nws = 6
Cfg.q_pro = 0; Cfg.b11 = 8; Cfg.bc = 20; Cfg.bw = 116; Cfg.cs_at = 200; Cfg.hflag0 = 426; Cfg.hflag1 = 120; Cfg.xe_at = 44
Cfg.h2_early = True; Cfg.h2poll = 0; Cfg.h2check = 4
Cfg.epi_prio = True; Cfg.stamps_f = (); Cfg.b_psw = 5; Cfg.kv_ack = 2; Cfg.epi_by = 14; Cfg.hcheck_early = True; Cfg.hsp = 2; Cfg.bar_a = 10

def gen_helper():
    stamp_n[0] = 0
    P = [WDS0()]
    if Cfg.diag: P.append("s_mov_b32 s89, s88")
    P.append(build_srd(SRD_X, 4, S * D * 2)); P.append(build_srd(SRD_WS, 28, WS_SIZE))
    P.append(L("s_and_b32 s%d, s2, 7\ns_lshr_b32 s%d, s2, 3", sA, sB))
    P.append(L("s_lshl_b32 s%d, s%d, 2\ns_add_u32 s%d, s%d, s%d", sT, sA, sT, sT, sB))
    P.append(L("s_lshr_b32 s%d, s%d, 1\ns_lshl_b32 s%d, s%d, 2\ns_add_u32 s%d, s%d, s%d", sC2, sA, sC2, sC2, sC2, sC2, sB))
    P.append(L("s_and_b32 s%d, s%d, 1\ns_mul_i32 s%d, s%d, 7\ns_add_u32 s%d, s%d, s%d", sA, sA, sFT, sA, sFT, sFT, sC2))
    P.append(L("s_cmp_ge_u32 s%d, 7\ns_cselect_b32 s%d, s20, s18\ns_cselect_b32 s%d, s21, s19", sC2, SRD_W1, SRD_W1 + 1))
    P.append(L("s_cselect_b32 s%d, 1, 0\ns_cselect_b32 s%d, 7, 0\ns_sub_u32 s%d, s%d, s%d", sMT, sA, sFT, sFT, sA))
    P.append(L("s_mov_b32 s%d, %d\ns_mov_b32 s%d, 0x00020000", SRD_W1 + 2, D * F * 2, SRD_W1 + 3))
    sNO, sONE, sLO, sHI, sSTO = sWL, sXL, sWo, sXo, sDo
    if Cfg.gpref: P.append(gpref(9, 10))
    P.append(L("s_cmp_ge_u32 s%d, 14\ns_cselect_b32 s%d, 0x40000000, 0", sC2, sNO))
    V0, V1, V2, V3, V4, V5 = 2, 3, 4, 5, 6, 7
    P.append(L("s_lshl_b32 s%d, s%d, 2\ns_add_u32 s%d, s%d, s%d\ns_mul_i32 s%d, s%d, %d\ns_add_u32 s%d, s%d, %d", sA, sT, sA, sA, sWV, sA, sA, 16 * 896, sB, sA, 8 * 896))
    P.append(L("v_lshrrev_b32 v%d, 3, v%d\nv_mul_u32_u24 v%d, 896, v%d\nv_and_b32 v%d, 7, v%d\nv_lshl_add_u32 v%d, v%d, 4, v%d", V0, vL, V0, V0, V1, vL, V0, V1, V0))
    P.append(L("s_getpc_b64 s[%d:%d]", sC, sC + 1))
    P.append(RAW("L_touch_base2:"))
    P.append(L("s_sub_u32 s%d, s%d, L_touch_base2-L_main\ns_subb_u32 s%d, s%d, 0", sC, sC, sC + 1, sC + 1))
    P.append(L("s_lshr_b32 s%d, s2, 3\ns_lshl_b32 s%d, s%d, 13\nv_lshrrev_b32 v%d, 2, v0\nv_lshlrev_b32 v%d, 7, v%d\nv_add_u32 v%d, s%d, v%d", sZt0, sZt0, sZt0, V4, V4, V4, V4, sZt0, V4))
    P.append(L("v_min_u32 v%d, L_end_of_code-L_main-4, v%d", V4, V4))
    P.append(VM("global_load_dword v%d, v%d, s[%d:%d]" % (8, V4, sC, sC + 1), "touch"))
    P.append(L("s_mov_b32 s%d, %d\nv_mov_b32 v%d, 0", sZt0, EP_OFF, V4))
    P.append(VM("buffer_load_dword v%d, v%d, %s, s%d offen sc1" % (V5, V4, srd(SRD_WS), sZt0), "ep"))
    P.append(L("v_lshrrev_b32 v%d, 4, v0\nv_mul_u32_u24 v%d, 3584, v%d\nv_and_b32 v%d, 15, v0\nv_lshl_add_u32 v%d, v%d, 4, v%d", V2, V2, V2, V3, V2, V3, V2))
    P.append(L("s_lshl_b32 s%d, s%d, 8\ns_add_u32 s%d, s%d, s%d", sD_, sFT, sD_, sD_, sNO))
    P.append(build_srd(SRD_WD, 22, D * F * 2))
    def wl(i):
        return ["s_add_u32 s%d, s%d, %d" % (sZt2, sD_, 16 * i * 3584),
                VM("buffer_load_dwordx4 %s, v%d, %s, s%d offen %s" % (vr(128 + 4 * i, 4), V2, srd(SRD_W1), sZt2, Cfg.nt_w), ("hw", i))]
    def xl(grp, i): return VM("buffer_load_dwordx4 %s, v%d, %s, s%d offen offset:%d %s" % (vr(32 + (grp * 7 + i) * 4, 4), V0, srd(SRD_X), sB if grp else sA, 128 * i, Cfg.nt_x), ("hx", grp))
    def red8(v):
        return ["s_nop 1", "v_add_f32_dpp v%d, v%d, v%d quad_perm:[1,0,3,2] row_mask:0xf bank_mask:0xf" % (v, v, v), "s_nop 1",
                "v_add_f32_dpp v%d, v%d, v%d quad_perm:[2,3,0,1] row_mask:0xf bank_mask:0xf" % (v, v, v), "s_nop 1",
                "v_add_f32_dpp v%d, v%d, v%d row_half_mirror row_mask:0xf bank_mask:0xf" % (v, v, v)]
    INV448 = 0x3b124925
    P.append(L("s_mov_b32 s%d, 0x3f803f80\ns_mov_b32 s%d, 0x00003f80\ns_mov_b32 s%d, 0x3f800000", sONE, sLO, sHI))
    U0, U1 = 88, 89
    MEAN = [90, 91]; G = [92, 96]
    vSo, vSo2 = 100, 101
    CSUM = 108
    for e in range(8): P.append("v_mov_b32 v%d, 0" % (CSUM + e))
    loads = [wl(i) for i in range(28)] + [xl(grp, i) for grp in range(2) for i in range(7)]
    AHEAD = 12
    for k in range(AHEAD): P.append(loads[k])
    nl = AHEAD
    for i in range(28):
        if nl < len(loads): P.append(loads[nl]); nl += 1
        if i >= 26 and nl < len(loads): P.append(loads[nl]); nl += 1
        P.append(WVM(("hw", i)))
        for w in range(4):
            src = 128 + 4 * i + w
            P.append("v_dot2c_f32_bf16 v%d, s%d, v%d\nv_dot2c_f32_bf16 v%d, s%d, v%d" % (CSUM + 2 * w, sLO, src, CSUM + 2 * w + 1, sHI, src))
    assert nl == len(loads)
    P.append(tag_from_epoch(V5))
    P.append(L("v_and_b32 v%d, 7, v%d\nv_cmp_eq_u32 vcc, 0, v%d\nv_mov_b32 v%d, %s\nv_lshlrev_b32 v%d, 1, v%d\nv_cndmask_b32 v%d, v%d, v%d, vcc\nv_cndmask_b32 v%d, v%d, v%d, vcc",
               V0, vL, V0, V1, OOB, V3, vL, vSo, V1, vL, vSo2, V1, V3))
    P.append(L("s_lshl_b32 s%d, s%d, 2\ns_add_u32 s%d, s%d, s%d\ns_lshl_b32 s%d, s%d, 7\ns_add_u32 s%d, s%d, %d", sA, sT, sA, sA, sWV, sA, sA, sSTO, sA, ST_OFF))
    P.append(L("s_lshl_b32 s%d, s%d, 1\ns_add_u32 s%d, s%d, %d", sA, sA, sZt1, sA, ST2_OFF))
    var = []; vi = 0
    for grp in range(2):
        SQ = 102 + 2 * grp; base = 32 + grp * 28
        var.append(L("v_mov_b32 v%d, 0\nv_mov_b32 v%d, 0", SQ, SQ + 1))
        for r in range(28):
            var.append(L("v_lshlrev_b32 v%d, 16, v%d\nv_and_b32 v%d, 0xffff0000, v%d\nv_sub_f32 v%d, v%d, v%d\nv_sub_f32 v%d, v%d, v%d\nv_fmac_f32 v%d, v%d, v%d\nv_fmac_f32 v%d, v%d, v%d",
                         U0, base + r, U1, base + r, U0, U0, MEAN[grp], U1, U1, MEAN[grp], SQ, U0, U0, SQ + 1, U1, U1))
    P.append(L("v_lshlrev_b32 v%d, 5, v0\ns_nop 2", V0))
    P.append(RAW("ds_write_b128 v%d, v[108:111]\nds_write_b128 v%d, v[112:115] offset:16" % (V0, V0)))
    P.append(WDS0()); P.append("s_barrier")
    P.append(L("v_and_b32 v%d, 127, v0\nv_lshlrev_b32 v%d, 2, v%d", V1, V0, V1))
    for rg in range(16): P.append(RAW("ds_read_b32 v%d, v%d offset:%d" % (128 + rg, V0, rg * 512)))
    P.append(L("v_lshrrev_b32 v%d, 4, v%d\nv_lshlrev_b32 v%d, 9, v%d\nv_and_b32 v%d, 15, v%d\nv_lshl_add_u32 v%d, v%d, 4, v%d", V2, V1, V2, V2, V3, V1, V2, V3, V2))
    P.append(L("v_cmp_gt_u32 vcc, 128, v0\nv_mov_b32 v%d, %s\ns_nop 0\nv_cndmask_b32 v%d, v%d, v%d, vcc", V3, OOB, V2, V3, V2))
    P.append(L("s_lshl_b32 s%d, s%d, 12\ns_lshl_b32 s%d, s%d, 8\ns_add_u32 s%d, s%d, s%d\ns_add_u32 s%d, s%d, %d\ns_add_u32 s%d, s%d, s%d", sA, sFT, sB, sMT, sA, sA, sB, sA, sA, CS_OFF, sA, sA, sNO))
    P.append(WDS0())
    for st in (1, 2, 4, 8):
        for rg in range(0, 16, 2 * st): P.append("v_add_f32 v%d, v%d, v%d" % (128 + rg, 128 + rg, 128 + rg + st))
    P.append("v_cvt_pk_bf16_f32 v116, v128, v128\nv_lshlrev_b32 v117, 16, v116\nv_sub_f32 v128, v128, v117")
    P.append("v_cvt_pk_bf16_f32 v118, v128, v128\nv_lshlrev_b32 v117, 16, v118\nv_sub_f32 v128, v128, v117")
    P.append("v_and_b32 v116, 0xffff, v116\nv_or_b32 v116, v116, v117")
    P.append(L("v_cvt_pk_bf16_f32 v117, v128, v128\nv_and_b32 v117, 0xffff, v117\nv_mov_b32 v118, 0\nv_mov_b32 v119, s%d", sTAG))
    P.append(VM("buffer_store_dwordx4 v[116:119], v%d, %s, s%d offen sc1" % (V2, srd(SRD_WS), sA), "cst"))
    P.append(stamp("cs"))
    for grp in range(2):
        base = 32 + grp * 28
        P.append(L("v_mov_b32 v%d, 0\nv_mov_b32 v%d, 0", U0, U1))
        P.append(WVM(("hx", grp)))
        for r in range(28): P.append("v_dot2c_f32_bf16 v%d, s%d, v%d" % (U1 if r & 1 else U0, sONE, base + r))
        P.append(L("s_nop 2\nv_add_f32 v%d, v%d, v%d", MEAN[grp], U0, U1))
        P.append(red8(MEAN[grp]))
        P.append(L("v_mul_f32 v%d, 0x%x, v%d", MEAN[grp], INV448, MEAN[grp]))
        P.append(L("v_cvt_pk_bf16_f32 v%d, v%d, v%d\nv_lshlrev_b32 v%d, 16, v%d\nv_mov_b32 v%d, s%d", G[grp], MEAN[grp], MEAN[grp], G[grp], G[grp], G[grp] + 1, sTAG))
        P.append(VM("buffer_store_dwordx2 %s, v%d, %s, s%d offen offset:%d sc1" % (vr(G[grp], 2), vSo, srd(SRD_WS), sSTO, 64 * grp), "mst"))
    P.append(stamp("mean"))
    if Cfg.h_hk:
        P.append(build_srd(SRD_HK, 12, D * S * 2))
        P.append(L("s_lshr_b32 s%d, s2, 3\ns_lshl_b32 s%d, s%d, 2\ns_add_u32 s%d, s%d, s%d\ns_lshl_b32 s%d, s%d, 3\ns_and_b32 s%d, s2, 7\ns_add_u32 s%d, s%d, s%d\ns_lshl_b32 s%d, s%d, 13",
                   sA, sA, sA, sA, sA, sWV, sA, sA, sB, sA, sA, sB, sA, sA))
        P.append(L("s_add_u32 s%d, s%d, %d\nv_lshlrev_b32 v%d, 7, v%d", sB, sA, 128 * 8192, V0, vL))
        P.append(VM("buffer_load_dword v118, v%d, %s, s%d offen nt" % (V0, srd(SRD_HK), sA), "wdt"))
        P.append(VM("buffer_load_dword v119, v%d, %s, s%d offen nt" % (V0, srd(SRD_HK), sB), "wdt"))
    if Cfg.h_wd:
        P.append(L("s_and_b32 s%d, s2, 1\ns_mul_i32 s%d, s%d, 6272\ns_lshr_b32 s%d, s2, 3\ns_lshl_b32 s%d, s%d, 2\ns_add_u32 s%d, s%d, s%d\ns_mul_i32 s%d, s%d, 392\ns_add_u32 s%d, s%d, s%d\ns_lshl_b32 s%d, s%d, 7",
                   sA, sA, sA, sB, sB, sB, sB, sB, sWV, sB, sB, sA, sA, sB, sA, sA))
        P.append(L("v_min_u32 v%d, 55, v%d\nv_lshlrev_b32 v%d, 7, v%d", V0, vL, V0, V0))
        nv = len(var) // 7
        for i in range(7):
            P.append(L("s_add_u32 s%d, s%d, %d", sB, sA, i * 56 * 128))
            P.append(VM("buffer_load_dword v%d, v%d, %s, s%d offen" % (120 + i, V0, srd(SRD_WD), sB), "wdt"))
            if i >= 3: P.append(var[vi:vi + 2 * nv]); vi = min(vi + 2 * nv, len(var))
    P.append(var[vi:])
    for grp in range(2):
        SQ = 102 + 2 * grp
        P.append(L("v_add_f32 v%d, v%d, v%d", SQ, SQ, SQ + 1))
        P.append(red8(SQ))
        P.append(L("v_mul_f32 v%d, 0x%x, v%d", SQ, INV448, SQ))
        P.append(L("v_cvt_pk_bf16_f32 v%d, v%d, v%d\nv_lshlrev_b32 v%d, 16, v%d", SQ, SQ, SQ, SQ, SQ))
        P.append(L("v_add_f32 v%d, 0x3727c5ac, v%d", SQ, SQ))
        P.append(L("v_cvt_pk_bf16_f32 v%d, v%d, v%d\nv_lshlrev_b32 v%d, 16, v%d", SQ, SQ, SQ, SQ, SQ))
        P.append(L("v_sqrt_f32 v%d, v%d\ns_nop 0", SQ, SQ))
        P.append(L("v_cvt_pk_bf16_f32 v%d, v%d, v%d\nv_lshlrev_b32 v%d, 16, v%d", SQ, SQ, SQ, SQ, SQ))
        P.append(L("v_rcp_f32 v%d, v%d\nv_mov_b32 v%d, s%d\nv_mov_b32 v%d, 0", G[grp] + 1, SQ, G[grp] + 2, sTAG, G[grp] + 3))
        P.append(VM("buffer_store_dwordx4 %s, v%d, %s, s%d offen offset:%d sc1" % (vr(G[grp], 4), vSo2, srd(SRD_WS), sZt1, 128 * grp), "rst"))
    P.append(stamp("rstd"))
    P.append(L("s_cmp_lg_u32 s2, 0\ns_cbranch_scc1 L_h_end\ns_cmp_lg_u32 s%d, 0\ns_cbranch_scc1 L_h_end", sWV))
    P.append(L("v_lshlrev_b32 v%d, 7, v%d\nv_and_b32 v%d, 31, v%d\nv_lshlrev_b32 v%d, 7, v%d\ns_mov_b32 s%d, 0", V0, vL, V1, vL, V1, V1, sSPIN))
    P.append(RAW("L_ep_spin:"))
    for i in range(3):
        P.append("s_mov_b32 s%d, %d" % (sA, KF_OFF + 8192 * i))
        P.append(RAW("buffer_load_dword v%d, v%d, %s, s%d offen sc1" % (32 + i, V0, srd(SRD_WS), sA)))
    P.append("s_mov_b32 s%d, %d" % (sA, KF_OFF + 8192 * 3))
    P.append(RAW("buffer_load_dword v35, v%d, %s, s%d offen sc1" % (V1, srd(SRD_WS), sA)))
    for i in range(2):
        P.append("s_mov_b32 s%d, %d" % (sA, ST_OFF + 8192 * i + 4))
        P.append(RAW("buffer_load_dword v%d, v%d, %s, s%d offen sc1" % (36 + i, V0, srd(SRD_WS), sA)))
    P.append(WVM0())
    for i in range(6): P.append("v_xor_b32 v%d, s%d, v%d" % (32 + i, sTAG, 32 + i))
    for i in range(1, 6): P.append("v_or_b32 v32, v32, v%d" % (32 + i))
    P.append("v_cmp_ne_u32 vcc, 0, v32")
    P.append(L("s_add_u32 s%d, s%d, 1\ns_cmp_lt_u32 s%d, %d\ns_cbranch_scc0 L_ep_go", sSPIN, sSPIN, sSPIN, Cfg.spin))
    P.append("s_cbranch_vccz L_ep_go\ns_sleep 32\ns_branch L_ep_spin")
    P.append(RAW("L_ep_go:"))
    P.append("s_mov_b32 s%d, %d" % (sA, EP_OFF))
    P.append(RAW("buffer_store_dword a%d, v%d, %s, s%d offen sc1" % (aTag, vFlag0, srd(SRD_WS), sA)))
    P.append(RAW("L_h_end:"))
    P.append(diag_tail())
    P.append("s_endpgm")
    return P
Cfg.qstamps = False; Cfg.x_nost = False; Cfg.hpol = "sc1"; Cfg.kpos = 3; Cfg.hk_early = False; Cfg.loadtest = False; Cfg.wr_pre = 4; Cfg.tr_only = []; Cfg.zld_by = 110; Cfg.dprio = True; Cfg.sp3 = 4; Cfg.wd_min = [300, 340, 384, 404, 446, 0, 0]; Cfg.setup_by = 150; Cfg.plan2 = True; Cfg.h_hk = True; Cfg.h_wd = True; Cfg.gpref = 0; Cfg.amp = None; Cfg.ctouch = False; Cfg.ptouch = 0; Cfg.dbg = 0; Cfg.scramble = False; Cfg.h_var = 1; Cfg.trace = False

def generate(diag=False):
    Cfg.diag = diag
    stamp_n[0] = 0
    del slow_paths[:]; del stamp_names[:]
    ref = open("cdna_kernels/%s.s.ref" % NAME).read().split("\n")
    head = [l for l in ref if l.startswith(";") and "@launch" not in l]
    out = head + ["; @launch grid=(256,1,1) block=(256,1,1) lds=%d" % LDS_SIZE]
    out += ['.amdgcn_target "amdgcn-amd-amdhsa--gfx950"', ".text", ".globl %s_kernel" % NAME, ".p2align 8",
            ".type %s_kernel,@function" % NAME, "%s_kernel:" % NAME]
    pro, _ = resolve([prologue_common(), "s_cmp_lt_u32 s2, 32", "s_cbranch_scc1 L_helper"])
    del TRACE['names'][:]
    TRACE['only'] = Cfg.tr_only
    m, mx = resolve(gen_main(), trace=Cfg.trace)
    h, _ = resolve([RAW("L_helper:"), gen_helper()])
    body = pro + m + "\n".join(slow_paths).split("\n") + ["L_end_of_main:"] + h + ["L_exit:", "s_endpgm", "L_end_of_code:"]
    body = "\n".join(body).split("\n")
    bad = lintmod.lint(body)
    for b in bad: print("HAZARD", b)
    for l in body: out.append(l if l.endswith(":") else "    " + l)
    out += ['.section .rodata,"a"', ".p2align 6", ".amdhsa_kernel %s_kernel" % NAME,
            "  .amdhsa_next_free_vgpr 512", "  .amdhsa_next_free_sgpr 102", "  .amdhsa_accum_offset 256",
            "  .amdhsa_group_segment_fixed_size 0", "  .amdhsa_kernarg_size 104", "  .amdhsa_user_sgpr_count 2",
            "  .amdhsa_user_sgpr_kernarg_segment_ptr 1", "  .amdhsa_system_sgpr_workgroup_id_x 1",
            "  .amdhsa_float_denorm_mode_32 3", ".end_amdhsa_kernel"]
    return "\n".join(out) + "\n", mx

if __name__ == "__main__":
    diag = "--diag" in sys.argv
    for a in sys.argv[1:]:
        if a.startswith("--") and "=" in a:
            k, v = a[2:].split("=", 1)
            assert hasattr(Cfg, k), k
            setattr(Cfg, k, eval(v))
    txt, mx = generate(diag)
    path = sys.argv[1] if len(sys.argv) > 1 and not sys.argv[1].startswith("--") else "cdna_kernels/%s.s" % NAME
    open(path, "w").write(txt)
    if diag: print("stamps:", stamp_names)
    if Cfg.trace: open(path + ".names", "w").write("\n".join(TRACE["names"]))
    if "--usage" in sys.argv:
        import numpy as np
        np.set_printoptions(linewidth=200)
        u = np.array(Cfg._usage1)
        print(u[:232].reshape(29, 8)); print(u[232:].reshape(4, 36)); print(np.array(Cfg._usage2).reshape(14, 8))
        for k, v in Cfg._log1.items(): print(k, v[0], v[-1], len(v))
        print("vm", sorted(Cfg._vmtab)); print("vm2", sorted(getattr(Cfg, "_vmtab2", []))); print("rest", Cfg._rest)
    print("wrote", path, "lines", txt.count("\n"), "max outstanding vm", mx)
```

```python
import sys
from dsl import *
import lint as lintmod

NAME = "parallel_sum__ssm_conv_h3__glu_gated_bilinear__prompt"
S, D, F = 2048, 448, 1792

H_OFF   = 0x000000
KVT_OFF = 0x700000
Z_OFF   = 0x8C0000
ST_OFF  = 0xC40000
CS_OFF  = 0xC44000
ST2_OFF = 0xC54000
HF_OFF  = 0xC60000
KF_OFF  = 0xC80000
ZF_OFF  = 0xC90000
EP_OFF  = 0xCB8000
DG_OFF  = 0xCC0000
PX_OFF  = 0xD00000
TR_OFF  = 0x1100000
WS_SIZE = 0x1280000

WR = 0
XB = 98304
XS = 16640
KVR = 148224
CEX = XB + XS
REDA, REDB = XB + 2 * XS, 0
ZL = 16384
LDS_SIZE = 163840

SRD_X, SRD_K, SRD_V, SRD_SK, SRD_HK, SRD_DD, SRD_W1, SRD_WD, SRD_OUT, SRD_WS = [32 + 4 * i for i in range(10)]
def srd(b): return "s[%d:%d]" % (b, b + 3)
sWV, sMT, sFT, sT, sDT, sC2, sTAG, sWM, sWN = 72, 73, 74, 75, 76, 77, 78, 79, 80
sWL, sXL, sWo, sXo, sDo, sSPIN = 81, 82, 83, 84, 85, 86
sA, sB, sC, sD_ = 90, 91, 92, 93
sZt0, sZt1, sZt2 = 94, 95, 96
(sHst0, sHst1, sHfl, sKst0, sKst1, sKfl, sKld0, sKld1, sCs, sMn, sHL, sHS, sZst, sZfl, sZld, sSt2,
 sHcur, sHbase, sHlim, sPst, sPld, sHA, sHB, sKF, sHF, sZF) = range(4, 30)
sG = list(range(36, 43))
s4r = 30
sFG0 = 31

vL = 1
vA = [2, 3, 4, 5]; vA2 = [6, 7, 8, 9]; vB = [10, 11, 12, 13]
vW = [14, 15, 16, 17]; vX = [18, 19, 20, 21]; vWd = [22, 23, 24, 25]
vWdA = [26, 27]; vWdA2 = [28, 29]
vL16, vFlag0 = 30, 31
BF, AF, ACC = 80, 96, 128
T0, T1, T2, T3, T4, T5, T6, T7 = range(60, 68)
(aTag, aHsrc, aPsw, aPsr, aKst, aPollK, aCA0, aCA1, aCB, aCD, aOo, aPollH, aZst, aPollZ, aZld, aRr) = range(224, 240)
aStamp = 240
def vr(b, n): return "v[%d:%d]" % (b, b + n - 1)
def ar(b, n): return "a[%d:%d]" % (b, b + n - 1)
OOB = "0x80000000"
def stash(a, v): return "v_accvgpr_write_b32 a%d, v%d" % (a, v)
def unstash(v, a): return I("v_accvgpr_read_b32 v%d, a%d" % (v, a))

class Cfg:
    diag = False
    spin = 100000
    rot1 = "d"
    rot2 = True
    nt_kv = "nt"; nt_hk = ""; nt_w = ""; nt_x = ""; nt_wd = ""
    sleep = 4
    sp1 = 2; kx = 12; sp2 = 4
    prep_at = 16
    polls_at = 340
    polls_lag = 36
    kv_lag = 60
    wd_lag = 40
    nws = 4
    wd_after = {5: 1, 8: 1, 11: 1, 14: 1, 16: 1}
    hdma_u = 6
    hflag = 30
    hpoll = 56
    nfirst = 8
    zflag = 16; zpoll = 60; zlag = 30
    stamps_k = (2, 4, 7, 9, 12)
    b32 = 5; b16 = 1.5

slow_paths = []
def check(name, loads, cmp_ops, tags):
    sl = ["L_slow_%s:" % name, "s_mov_b32 s%d, 0" % sSPIN, "L_spin_%s:" % name, "s_sleep %d" % Cfg.sleeps.get(name, Cfg.sleep)]
    sl += loads + ["s_add_u32 s%d, s%d, 1" % (sSPIN, sSPIN), "s_waitcnt vmcnt(0)"] + cmp_ops
    sl += ["s_cmp_lt_u32 s%d, %d" % (sSPIN, Cfg.spin), "s_cbranch_scc0 L_res_%s" % name,
           "s_cbranch_vccnz L_spin_%s" % name, "s_branch L_res_%s" % name]
    slow_paths.append("\n".join(sl))
    return [WVM(*tags)] + [I(c) for c in cmp_ops[:-1]], [I(cmp_ops[-1]), I("s_cbranch_vccnz L_slow_%s" % name), RAW("L_res_%s:" % name)]
def flag_store(sreg, wait_tags):
    ops = [WVM(*wait_tags)] if wait_tags else []
    ops.append(VM("buffer_store_dword a%d, v%d, %s, s%d offen sc1" % (aTag, vFlag0, srd(SRD_WS), sreg), "flag"))
    return ops

stamp_n = [0]; stamp_names = []
def stamp(name=""):
    if Cfg.amp and name == Cfg.amp[0]: return [I("s_memrealtime s[88:89]"), WDS0()]
    if not Cfg.diag or (Cfg.trace and name not in ("b0", "end", "mean", "cs", "rstd")): return []
    n = stamp_n[0]; stamp_n[0] += 1
    assert n < (6 if Cfg.trace else 14)
    stamp_names.append(name)
    return [I("s_memtime s[98:99]"), WDS0(), I("v_accvgpr_write_b32 a%d, s98" % (aStamp + 2 + n))]
def diag_tail(main=False):
    if Cfg.amp and main:
        p = [WVM0(), stamp("end"), "s_memrealtime s[98:99]", WDS0()]
        p.append("s_sub_u32 s%d, s88, s100\ns_mul_i32 s%d, s%d, %d\ns_min_u32 s%d, s%d, 20000" % (sA, sA, sA, Cfg.amp[1], sA, sA))
        p.append(RAW("L_amp:"))
        p.append("s_memrealtime s[88:89]\ns_waitcnt lgkmcnt(0)\ns_sub_u32 s%d, s88, s98\ns_cmp_lt_u32 s%d, s%d\ns_cbranch_scc1 L_amp" % (sB, sB, sA))
        return p
    if not Cfg.diag: return []
    p = [WVM0(), stamp("end"), "s_memrealtime s[98:99]", WDS0()]
    p.append("v_accvgpr_write_b32 a%d, s88\nv_accvgpr_write_b32 a%d, s89" % (aStamp, aStamp + 1))
    p.append("v_mov_b32 v32, s100\nv_mov_b32 v33, s98")
    p.append("s_lshl_b32 s%d, s2, 2\ns_add_u32 s%d, s%d, s%d\ns_lshl_b32 s%d, s%d, 7\ns_add_u32 s%d, s%d, %d" % (sA, sA, sA, sWV, sA, sA, sA, sA, DG_OFF))
    for i in range(4): p.append(VM("buffer_store_dwordx4 %s, v%d, %s, s%d offen offset:%d" % (ar(aStamp + 4 * i, 4), vFlag0, srd(SRD_WS), sA, 16 * i)))
    p.append(VM("buffer_store_dwordx2 v[32:33], v%d, %s, s%d offen offset:%d" % (vFlag0, srd(SRD_WS), sA, 104)))
    if Cfg.dbg:
        p.append("s_load_dwordx2 s[44:45], s[0:1], 88\ns_waitcnt lgkmcnt(0)\ns_mov_b32 s46, 256\ns_mov_b32 s47, 0x00020000")
        p.append("s_lshl_b32 s%d, s2, 2\ns_add_u32 s%d, s%d, s%d\ns_cmp_eq_u32 s%d, %d\ns_cselect_b32 s%d, 0, 0x40000000" % (sA, sA, sA, sWV, sA, Cfg.dbg * 4, sA))
        p.append("s_sub_u32 s%d, s98, s100\nv_accvgpr_write_b32 a%d, s%d\ns_nop 1" % (sB, aStamp + 1, sB))
        for i in range(4): p.append(VM("buffer_store_dwordx4 %s, v%d, s[44:47], s%d offen offset:%d" % (ar(aStamp + 4 * i, 4), vFlag0, sA, 16 * i)))
    if Cfg.trace:
        p.append("s_lshl_b32 s%d, s2, 2\ns_add_u32 s%d, s%d, s%d\ns_mul_i32 s%d, s%d, 768\ns_add_u32 s%d, s%d, %d" % (sA, sA, sA, sWV, sA, sA, sA, sA, TR_OFF))
        p.append("v_lshlrev_b32 v32, 2, v%d" % vL)
        for i in range(3): p.append(VM("buffer_store_dword a%d, v32, %s, s%d offen offset:%d" % (248 + i, srd(SRD_WS), sA, 256 * i)))
    p.append(WVM0())
    return p

def build_srd(b, ptr, size):
    return ["s_mov_b32 s%d, s%d" % (b, ptr), "s_mov_b32 s%d, s%d" % (b + 1, ptr + 1),
            "s_mov_b32 s%d, %d" % (b + 2, size), "s_mov_b32 s%d, 0x00020000" % (b + 3)]
def tag_from_epoch(vE):
    return [I("v_readfirstlane_b32 s%d, v%d" % (sTAG, vE)), I("s_nop 3"),
            I("s_mul_i32 s%d, s%d, 1664525" % (sTAG, sTAG)), I("s_add_u32 s%d, s%d, 1013904223" % (sTAG, sTAG)),
            I("v_accvgpr_write_b32 a%d, s%d" % (aTag, sTAG))]
def advance(sreg, step, limit):
    return [I("s_add_u32 s%d, s%d, %d" % (sreg, sreg, step)),
            [I("s_cmp_eq_u32 s%d, %d" % (sreg, limit)), I("s_cselect_b32 s%d, 0, s%d" % (sreg, sreg))]]

def L(fmt, *a): return fmt % a

def gpref(tmpv, dst, pol=""):
    p = [L("s_cmp_eq_u32 s%d, 1\ns_cselect_b32 s%d, s20, s18\ns_cselect_b32 s%d, s21, s19", sWV, sC, sC + 1),
         L("s_cmp_eq_u32 s%d, 3\ns_cselect_b32 s%d, s22, s%d\ns_cselect_b32 s%d, s23, s%d", sWV, sC, sC, sC + 1, sC + 1),
         L("s_cmp_eq_u32 s%d, 2\ns_cselect_b32 s%d, s4, s%d\ns_cselect_b32 s%d, s5, s%d\ns_cselect_b32 s%d, 56, 49", sWV, sC, sC, sC + 1, sC + 1, sA),
         L("s_mul_i32 s%d, s2, s%d\ns_sub_u32 s%d, s%d, 1\nv_min_u32 v%d, s%d, v%d\nv_add_lshl_u32 v%d, v%d, s%d, 7", sB, sA, sA, sA, tmpv, sA, vL, tmpv, tmpv, sB),
         VM("global_load_dword v%d, v%d, s[%d:%d] %s" % (dst, tmpv, sC, sC + 1, pol), "prep")]
    return p

def prologue_common():
    p = ["s_cmp_ge_u32 s2, 256\ns_cbranch_scc1 L_exit"]
    if Cfg.diag: p.append("s_memrealtime s[100:101]\ns_memtime s[88:89]")
    elif Cfg.amp: p.append("s_memrealtime s[100:101]")
    p.append("s_load_dwordx16 s[4:19], s[0:1], 0\ns_load_dwordx8 s[20:27], s[0:1], 64\ns_load_dwordx2 s[28:29], s[0:1], 96")
    p.append(L("v_and_b32 v%d, 63, v0\nv_lshrrev_b32 v%d, 6, v0\nv_lshlrev_b32 v%d, 4, v%d", vL, T0, vL16, vL))
    p.append(L("v_readfirstlane_b32 s%d, v%d", sWV, T0))
    p.append(L("v_cmp_eq_u32 vcc, 0, v%d\nv_mov_b32 v%d, %s\nv_mov_b32 v%d, 0\nv_cndmask_b32 v%d, v%d, v%d, vcc", vL, T1, OOB, T2, vFlag0, T1, T2))
    return p

def dma_group(sL, ldsconst, vs, srd_b, sOff, tag, pol, adv):
    at = [I("s_add_u32 m0, s%d, %d" % (sL, ldsconst))]
    for q in range(4):
        op = VM("buffer_load_dwordx4 v%d, %s, s%d offen offset:%d %s lds" % (vs[q], srd(srd_b), sOff, q * 1024, pol), tag)
        at.append([I("s_nop 0"), op] if q == 0 else op)
    return at, advance(sOff, *adv)
def w_group(c):
    at, adv = dma_group(sWL, WR + (c % 6) * 16384, vW, SRD_W1, sWo, ("W", c), Cfg.nt_w, (64 * 3584, 448 * 3584))
    if c == 6: adv = adv + [I("v_add_u32 v%d, 128, v%d" % (vW[q], vW[q])) for q in range(4)]
    return at, adv
def x_group(c): return dma_group(sXL, (c % 3) * XS, vX, SRD_X, sXo, ("X", c), Cfg.nt_x, (128, 896))
WD_BASE = [XB + 256, 32768, 49152, 65536, 81920, 0, 16384]
def wd_group(u): return dma_group(sWL, WD_BASE[u], vWd, SRD_WD, sDo, ("WD", u), Cfg.nt_wd, (128 * 896, 896 * 896))
def wd_reads(u, n4):
    at = []
    for jd in range(2):
        for p in range(2):
            off = WD_BASE[u] + (n4 >> 1) * 8192 + (n4 & 1) * 2048 + p * 1024
            base = vWdA[jd]
            if off >= 0x10000: base = vWdA2[jd]; off -= 0x10000
            at.append(DS("ds_read_b64_tr_b16 %s, v%d offset:%d" % (ar(8 * (4 * u + n4) + 4 * jd + 2 * p, 2), base, off), ("WR", u, n4)))
    return at

KR, VR_, vEp, SKR, TAP, KFv, R0, R1, VF, OLO, OHI = 33, 44, 32, 52, 56, 60, 71, 72, 73, 76, 32
KQ, KHL = 81920, 157440

def gen_main():
    P = [RAW("L_main:")]
    if Cfg.scramble:
        P.append(L("s_lshr_b32 s%d, s2, 3\ns_lshr_b32 s%d, s2, 5\ns_lshl_b32 s%d, s%d, 1\ns_xor_b32 s%d, s%d, s%d\ns_and_b32 s%d, s%d, 7\ns_xor_b32 s2, s2, s%d", sA, sB, sA, sA, sA, sA, sB, sA, sA, sA))
    P.append(L("s_sub_u32 s%d, s2, 32\ns_and_b32 s%d, s2, 7\ns_lshr_b32 s%d, s%d, 3", sC2, sA, sB, sC2))
    P.append(L("s_lshr_b32 s%d, s%d, 2\ns_and_b32 s%d, s%d, 3", sDT, sB, sB, sB))
    P.append(L("s_lshl_b32 s%d, s%d, 2\ns_add_u32 s%d, s%d, s%d", sT, sA, sT, sT, sB))
    P.append(L("s_lshr_b32 s%d, s%d, 1\ns_lshl_b32 s%d, s%d, 2\ns_add_u32 s%d, s%d, s%d", sMT, sA, sMT, sMT, sMT, sMT, sB))
    P.append(L("s_and_b32 s%d, s%d, 1\ns_mul_i32 s%d, s%d, 7\ns_add_u32 s%d, s%d, s%d", sFG0, sA, sFT, sFG0, sFT, sFT, sDT))
    P.append(L("s_and_b32 s%d, s%d, 1\ns_lshr_b32 s%d, s%d, 1", sWM, sWV, sWN, sWV))
    P.append(L("s_lshl_b32 s%d, s%d, 12\ns_add_u32 s%d, s%d, %d", sWL, sWV, sXL, sWL, XB + 256))
    if Cfg.rot1 == "0": P.append(L("s_mov_b32 s%d, 0", sA))
    elif Cfg.rot1 == "2": P.append(L("s_xor_b32 s%d, s%d, s%d\ns_and_b32 s%d, s%d, 1\ns_lshl_b32 s%d, s%d, 2", sA, sMT, sFT, sA, sA, sA, sA))
    elif Cfg.rot1 == "d": P.append(L("s_add_u32 s%d, s%d, 1\ns_sub_u32 s%d, s%d, 7\ns_min_u32 s%d, s%d, s%d", sA, sDT, sC, sA, sA, sA, sC))
    elif Cfg.rot1 == "3":
        P.append(L("s_add_u32 s%d, s%d, s%d\ns_mul_i32 s%d, s%d, 3\ns_mov_b32 s%d, 0x%x\ns_lshr_b32 s%d, s%d, s%d\ns_and_b32 s%d, s%d, 7",
                   sA, sB, sDT, sA, sA, sC, sum(((0, 2, 5)[i % 3]) << (3 * i) for i in range(10)), sA, sC, sA, sA, sA))
    else:
        P.append(L("s_lshl_b32 s%d, s%d, 1\ns_add_u32 s%d, s%d, s%d\ns_sub_u32 s%d, s%d, 7\ns_min_u32 s%d, s%d, s%d", sA, sB, sA, sA, sDT, sC, sA, sA, sA, sC))
    P.append(L("s_mul_i32 s%d, s%d, %d\ns_lshl_b32 s%d, s%d, 7", sWo, sA, 64 * 3584, sXo, sA))
    P.append(L("v_lshrrev_b32 v%d, 4, v%d", T0, vL))
    P.append(L("s_mul_i32 s%d, s%d, %d\ns_lshl_b32 s%d, s%d, 8\ns_add_u32 s%d, s%d, s%d", sA, sWM, 32 * 3584, sB, sFT, sA, sA, sB))
    P.append(L("v_lshrrev_b32 v%d, 3, v%d\nv_mul_u32_u24 v%d, 3584, v%d\ns_lshl_b32 s%d, s%d, 2", T1, vL, T1, T1, sB, sWN))
    P.append(L("v_and_b32 v%d, 1, v%d\nv_lshlrev_b32 v%d, 1, v%d\nv_or_b32 v%d, s%d, v%d\nv_and_b32 v%d, 7, v%d", T2, T0, T2, T2, T2, sB, T2, T3, vL))
    P.append(L("v_xor_b32 v%d, v%d, v%d\nv_lshlrev_b32 v%d, 4, v%d\nv_add3_u32 v%d, v%d, v%d, s%d", T2, T2, T3, T2, T2, vW[0], T1, T2, sA))
    for q in range(1, 4): P.append(L("v_add_u32 v%d, %d, v%d", vW[q], q * (8 * 3584 - 1024), vW[0]))
    P.append(L("s_lshl_b32 s%d, s%d, 2\ns_add_u32 s%d, s%d, s%d\ns_mul_i32 s%d, s%d, %d", sA, sMT, sA, sA, sWV, sA, sA, 32 * 896))
    P.append(L("v_lshrrev_b32 v%d, 3, v%d\nv_mul_u32_u24 v%d, 896, v%d\nv_and_b32 v%d, 7, v%d", T1, vL, T1, T1, T3, vL))
    P.append(L("v_xor_b32 v%d, v%d, v%d\nv_lshlrev_b32 v%d, 4, v%d\nv_add3_u32 v%d, v%d, v%d, s%d", T2, T3, T0, T2, T2, vX[0], T1, T2, sA))
    P.append(L("v_xor_b32 v%d, 64, v%d", T2, vX[0]))
    for q in range(1, 4): P.append(L("v_add_u32 v%d, %d, v%d", vX[q], q * (8 * 896 - 1024), T2 if q & 1 else vX[0]))
    P.append(WDS0())
    if Cfg.diag: P.append([I("s_memtime s[98:99]"), WDS0(), I("s_mov_b32 s89, s98")])
    P.append(L("s_cmp_ge_u32 s%d, 2\ns_cselect_b32 s%d, s20, s18\ns_cselect_b32 s%d, s21, s19", sWV, SRD_W1, SRD_W1 + 1))
    P.append(L("s_mov_b32 s%d, %d\ns_mov_b32 s%d, 0x00020000", SRD_W1 + 2, D * F * 2, SRD_W1 + 3))
    P.append(build_srd(SRD_X, 4, S * D * 2))
    if Cfg.gpref == 2: P.append(gpref(T4, 79))
    P.append(w_group(0)); P.append(x_group(0))
    if Cfg.gpref == 1: P.append(gpref(T4, 79))
    P.append(w_group(1))
    for b, ptr, size in ((SRD_K, 6, S * D * 2), (SRD_V, 8, S * D * 2), (SRD_SK, 10, D * 8), (SRD_HK, 12, D * S * 2 + 64), (SRD_DD, 14, D * 2),
                         (SRD_WD, 22, D * F * 2), (SRD_OUT, 24, S * D * 2), (SRD_WS, 28, WS_SIZE)):
        P.append(build_srd(b, ptr, size))
    P.append(L("s_mov_b32 s%d, %d\nv_mov_b32 v%d, 0", sA, EP_OFF, T4))
    P.append(VM("buffer_load_dword v%d, v%d, %s, s%d offen sc1" % (vEp, T4, srd(SRD_WS), sA), "prep"))
    if Cfg.ctouch:
        P.append(L("s_getpc_b64 s[%d:%d]\nv_lshlrev_b32 v%d, 7, v0\nv_min_u32 v%d, L_end_of_main-L_touch_base-4, v%d", sC, sC + 1, T4, T4, T4))
        P.append(RAW("L_touch_base:"))
        P.append(VM("global_load_dword v%d, v%d, s[%d:%d]" % (79, T4, sC, sC + 1), "prep"))
    if Cfg.ptouch:
        P.append(L("v_mul_u32_u24 v%d, %d, v0\nv_lshlrev_b32 v%d, 8, v%d", T4, Cfg.ptouch >> 8, T4, T4))
        P.append(VM("buffer_load_dword v%d, v%d, %s, 0 offen" % (79, T4, srd(SRD_WS)), "prep"))
        for sd in (SRD_OUT, SRD_WD, SRD_HK, SRD_DD, SRD_K, SRD_V):
            P.append(VM("buffer_load_dword v%d, v%d, %s, 0 offen" % (79, T4, srd(sd)), "prep"))
    P.append(L("s_mul_i32 s%d, s%d, %d\ns_lshl_b32 s%d, s%d, 7\ns_add_u32 s%d, s%d, s%d", sA, sFG0, 896 * 896, sB, sDT, sA, sA, sB))
    P.append(L("s_mul_i32 s%d, s%d, %d\ns_add_u32 s%d, s%d, s%d", sB, sWV, 32 * 896, sA, sA, sB))
    P.append(L("v_and_b32 v%d, 1, v%d\nv_lshlrev_b32 v%d, 2, v%d\nv_xor_b32 v%d, v%d, v%d\nv_lshlrev_b32 v%d, 4, v%d", T2, T0, T2, T2, T2, T2, T3, T2, T2))
    P.append(L("v_add3_u32 v%d, v%d, v%d, s%d", vWd[0], T1, T2, sA))
    for q in range(1, 4): P.append(L("v_add_u32 v%d, %d, v%d", vWd[q], q * (8 * 896 - 1024), vWd[0]))
    P.append(L("v_bfe_u32 v%d, v%d, 2, 2\nv_bfe_u32 v%d, v%d, 4, 1\nv_lshrrev_b32 v%d, 5, v%d", T0, vL, T1, vL, T2, vL))
    P.append(L("v_and_b32 v%d, 3, v%d\nv_lshlrev_b32 v%d, 3, v%d", T3, vL, T3, T3))
    P.append(L("v_lshl_add_u32 v%d, v%d, 3, v%d\nv_lshlrev_b32 v%d, 7, v%d\nv_lshl_add_u32 v%d, v%d, 13, v%d\nv_add_u32 v%d, v%d, v%d", T4, T2, T0, T4, T4, T4, T1, T4, T4, T4, T3))
    P.append(L("v_lshrrev_b32 v%d, 1, v%d\nv_lshl_or_b32 v%d, v%d, 1, v%d\ns_lshl_b32 s%d, s%d, 1\nv_xor_b32 v%d, s%d, v%d", T5, T0, T5, T1, T5, sA, sWM, T5, sA, T5))
    for jj in range(2):
        P.append(L("v_xor_b32 v%d, %d, v%d\nv_lshl_add_u32 v%d, v%d, 5, v%d\nv_add_u32 v%d, %d, v%d", vA[jj], jj, T5, vA[jj], vA[jj], T4, vA2[jj], 49152, vA[jj]))
    P.append(L("v_lshl_add_u32 v%d, v%d, 2, v%d\nv_lshlrev_b32 v%d, 7, v%d\ns_lshl_b32 s%d, s%d, 12", T4, T2, T0, T4, T4, sA, sWM))
    P.append(L("v_lshl_add_u32 v%d, v%d, 5, v%d\nv_add3_u32 v%d, v%d, v%d, s%d", T4, T1, T4, T4, T4, T3, sA))
    P.append(L("v_lshrrev_b32 v%d, 1, v%d\nv_xor_b32 v%d, s%d, v%d\nv_lshl_add_u32 v%d, v%d, 6, v%d", T5, T0, T5, sWM, T5, vWdA[0], T5, T4))
    P.append(L("v_xor_b32 v%d, 64, v%d\nv_add_u32 v%d, 0x10000, v%d\nv_add_u32 v%d, 0x10000, v%d", vWdA[1], vWdA[0], vWdA2[0], vWdA[0], vWdA2[1], vWdA[1]))
    P.append(L("v_and_b32 v%d, 31, v%d\nv_bfe_u32 v%d, v%d, 1, 3\nv_xor_b32 v%d, v%d, v%d", T6, vL, T1, vL, T1, T1, T2))
    P.append(L("s_lshl_b32 s%d, s%d, 13\ns_add_u32 s%d, s%d, %d\nv_lshlrev_b32 v%d, 7, v%d\nv_add_u32 v%d, s%d, v%d", sA, sWN, sA, sA, XB + 256, T0, T6, T0, sA, T0))
    for sp in range(4): P.append(L("v_xor_b32 v%d, %d, v%d\nv_lshl_add_u32 v%d, v%d, 4, v%d", vB[sp], 2 * sp, T1, vB[sp], vB[sp], T0))
    vKa, vKv, vKh = 68, 69, 70
    P.append(L("s_lshl_b32 s%d, s%d, 2\ns_add_u32 s%d, s%d, s%d\ns_mul_i32 s%d, s%d, %d\ns_lshl_b32 s%d, s%d, 7\ns_add_u32 s%d, s%d, s%d",
               sA, sT, sA, sA, sWV, sC, sA, 16 * 896, sB, sDT, s4r, sC, sB))
    P.append(L("s_add_u32 s%d, s%d, %d\ns_sub_u32 s%d, s%d, %d\ns_cmp_eq_u32 s%d, 0\ns_cselect_b32 s%d, 0x40000000, s%d", sZt1, s4r, 8 * 896 - 1024, sZt2, s4r, 8 * 896, sA, sZt2, sZt2))
    P.append(L("v_lshrrev_b32 v%d, 3, v%d\nv_mul_u32_u24 v%d, 896, v%d\nv_and_b32 v%d, 7, v%d\nv_lshl_add_u32 v%d, v%d, 4, v%d", T0, vL, R0, T0, T1, vL, R0, T1, R0))
    P.append(L("v_cmp_gt_u32 vcc, 40, v%d\nv_mov_b32 v%d, %s\ns_lshr_b32 s%d, s%d, 2\nv_cndmask_b32 v%d, v%d, v%d, vcc", vL, T0, OOB, sZt0, sWL, VF, R0, T0))
    P.append(L("s_lshl_b32 s%d, s%d, 9\nv_lshlrev_b32 v%d, 4, v%d", sD_, sDT, R1, T6))
    P.append(L("s_add_u32 s%d, s%d, %d\nv_lshl_add_u32 v%d, v%d, 2, s%d\nv_lshl_add_u32 v%d, v%d, 10, v%d\nv_add_u32 v%d, 2048, v%d", sA, sWL, KQ, T0, T6, sA, vKa, T2, T0, vKv, vKa))
    P.append(L("s_add_u32 s%d, s%d, %d\nv_lshl_add_u32 v%d, v%d, 2, s%d\nv_cmp_gt_u32 vcc, 32, v%d\ns_nop 1\nv_cndmask_b32 v%d, v%d, v%d, vcc\nv_add_u32 v%d, 640, v%d", sA, sZt0, KHL, T1, T6, sA, vL, vKh, T0, T1, vKh, vKh))
    def kd(srd_b, v, so, imm): return VM("buffer_load_dwordx4 v%d, %s, s%d offen offset:%d %s lds" % (v, srd(srd_b), so, imm, Cfg.nt_kv), "prep")
    kvl = [I("s_add_u32 m0, s%d, %d" % (sWL, KQ)), [I("s_nop 0"), kd(SRD_K, R0, s4r, 0)], kd(SRD_K, R0, sZt1, 1024),
           I("s_add_u32 m0, s%d, %d" % (sWL, KQ + 2048)), [I("s_nop 0"), kd(SRD_V, R0, s4r, 0)], kd(SRD_V, R0, sZt1, 1024),
           I("s_add_u32 m0, s%d, %d" % (sZt0, KHL)), [I("s_nop 0"), kd(SRD_K, VF, sZt2, 0)],
           VM("buffer_load_dwordx4 %s, v%d, %s, s%d offen" % (vr(SKR, 4), R1, srd(SRD_SK), sD_), "prep")]
    P.append(L("s_lshl_b32 s%d, s%d, 1\ns_add_u32 s%d, s%d, s%d\ns_lshl_b32 s%d, s%d, 12", sHS, sC2, sHS, sHS, sWN, sHS, sHS))
    P.append(L("v_and_b32 v%d, 15, v%d", T7, vL))
    P.append(L("s_lshl_b32 s%d, s%d, 18\ns_lshl_b32 s%d, s%d, 7\ns_sub_u32 s%d, s%d, s%d\ns_add_u32 s%d, s%d, %d\ns_add_u32 s%d, s%d, %d",
               sKst0, sDT, sA, sT, sKst0, sKst0, sA, sKst0, sKst0, KVT_OFF + 3968, sKst1, sKst0, 32 * 4096))
    P.append(L("s_lshl_b32 s%d, s%d, 5\ns_add_u32 s%d, s%d, s%d\ns_lshl_b32 s%d, s%d, 7\ns_add_u32 s%d, s%d, %d\ns_cmp_eq_u32 s%d, 0\ns_cselect_b32 s%d, s%d, 0x40000000",
               sA, sDT, sA, sA, sT, sA, sA, sA, sA, KF_OFF, sWV, sKfl, sA))
    P.append(L("s_lshl_b32 s%d, s%d, 1\ns_sub_u32 s%d, 7, s%d\nv_sub_u32 v%d, s%d, v%d\nv_and_b32 v%d, 7, v%d\nv_xor_b32 v%d, v%d, v%d", sA, sWV, sA, sA, T0, sA, T2, T1, vL, T0, T0, T1))
    P.append(L("v_lshlrev_b32 v%d, 4, v%d\nv_lshl_add_u32 v%d, v%d, 8, v%d\nv_lshrrev_b32 v%d, 4, v%d\nv_mul_u32_u24 v%d, 4608, v%d", T0, T0, T0, T7, T0, T3, T6, T3, T3))
    P.append(L("v_add_u32 v%d, v%d, v%d\nv_add_u32 v%d, %d, v%d", T0, T0, T3, T0, KVR, T0) + "\n" + stash(aPsw, T0))
    P.append(L("v_lshrrev_b32 v%d, 3, v0\nv_bfe_u32 v%d, v0, 4, 3\nv_xor_b32 v%d, v%d, v%d\nv_lshlrev_b32 v%d, 4, v%d", T0, T3, T3, T3, T1, T3, T3))
    P.append(L("v_lshl_add_u32 v%d, v%d, 7, v%d\nv_add_u32 v%d, %d, v%d", T3, T0, T3, T3, KVR, T3) + "\n" + stash(aPsr, T3))
    P.append(L("v_lshlrev_b32 v%d, 12, v%d\nv_lshl_add_u32 v%d, v%d, 4, v%d", T0, T0, T0, T1, T0) + "\n" + stash(aKst, T0))
    U0, U1, U2, U3, U4, U5, U6, U7 = range(88, 96)
    Q = []
    Q.append(L("v_lshrrev_b32 v%d, 5, v%d\nv_lshrrev_b32 v%d, 4, v%d\nv_and_b32 v%d, 31, v%d\nv_and_b32 v%d, 15, v%d", U2, vL, U5, vL, U6, vL, U7, vL))
    if Cfg.rot2:
        Q.append(L("s_and_b32 s%d, s%d, 3\ns_lshl_b32 s%d, s%d, 1\ns_add_u32 s%d, s%d, s%d\ns_sub_u32 s%d, s%d, 7\ns_min_u32 s%d, s%d, s%d", sA, sMT, sA, sA, sA, sA, sDT, sC, sA, sA, sA, sC))
    else: Q.append(L("s_mov_b32 s%d, 0", sA))
    Q.append(L("s_mul_i32 s%d, s%d, %d\ns_lshl_b32 s%d, s%d, 13", sDo, sA, 128 * 896, sHcur, sA))
    Q.append(L("s_lshl_b32 s%d, s%d, 1\ns_add_u32 s%d, s%d, s%d", sA, sMT, sA, sA, sWN))
    Q.append(L("s_lshl_b32 s%d, s%d, 1\ns_add_u32 s%d, s%d, s%d", sB, sFT, sB, sB, sWM))
    Q.append(L("s_lshl_b32 s%d, s%d, 9\ns_add_u32 s%d, s%d, %d", sMn, sA, sMn, sMn, ST_OFF))
    Q.append(L("s_lshl_b32 s%d, s%d, 2\ns_add_u32 s%d, s%d, s%d\ns_lshl_b32 s%d, s%d, 10\ns_add_u32 s%d, s%d, %d", sCs, sFT, sCs, sCs, sWM, sCs, sCs, sCs, sCs, CS_OFF))
    Q.append(L("s_mul_i32 s%d, s%d, 224\ns_lshl_b32 s%d, s%d, 2\ns_add_u32 s%d, s%d, s%d\ns_lshl_b32 s%d, s%d, 10\ns_add_u32 s%d, s%d, %d",
               sHst0, sA, sC, sB, sHst0, sHst0, sC, sHst0, sHst0, sHst1, sHst0, 112 * 1024))
    Q.append(L("s_lshl_b32 s%d, s%d, 5\ns_add_u32 s%d, s%d, s%d\ns_lshl_b32 s%d, s%d, 7\ns_add_u32 s%d, s%d, %d", sHfl, sA, sHfl, sHfl, sB, sHfl, sHfl, sHfl, sHfl, HF_OFF))
    Q.append(L("s_mov_b32 s%d, %d\ns_and_b32 s%d, s%d, 0xffffffe0\nv_add_lshl_u32 v%d, v%d, s%d, 7", sKF, KF_OFF, sA, sC2, U0, U6, sA) + "\n" + stash(aPollK, U0))
    Q.append(L("s_lshl_b32 s%d, s%d, 13\ns_add_u32 s%d, s%d, %d\ns_add_u32 s%d, s%d, 4096", sKld0, sC2, sKld0, sKld0, KVT_OFF, sKld1, sKld0))
    Q.append(L("s_mul_i32 s%d, s%d, %d\ns_add_u32 s%d, s%d, %d", sHL, sWN, XS, sHL, sHL, XB + XS))
    Q.append(("mark", "q1"))
    Q.append(L("v_lshrrev_b32 v%d, 7, v0\nv_mul_u32_u24 v%d, 4608, v%d\nv_and_b32 v%d, 127, v0\nv_lshl_add_u32 v%d, v%d, 2, v%d\nv_add_u32 v%d, %d, v%d\nv_mov_b32 v%d, 0", U3, U3, U3, U4, U3, U4, U3, U3, KVR + 4096, U3, U4))
    Q.append(DS("ds_write_b32 v%d, v%d" % (U3, U4), "kvw"))
    Q.append(L("v_and_b32 v%d, 3, v%d\nv_mul_u32_u24 v%d, 4160, v%d\nv_lshrrev_b32 v%d, 2, v%d\nv_lshl_add_u32 v%d, v%d, 3, v%d\nv_lshl_add_u32 v%d, v%d, 4, v%d", U3, U7, U3, U3, U0, U7, U3, U0, U3, U3, U5, U3))
    Q.append(L("s_lshl_b32 s%d, s%d, 8\ns_add_u32 s%d, s%d, s%d\nv_add_u32 v%d, s%d, v%d", sC, sWM, sC, sC, sHL, U3, sC, U3) + "\n" + stash(aCA0, U3))
    Q.append(L("v_mul_u32_u24 v%d, 4160, v%d\nv_lshl_add_u32 v%d, v%d, 2, v%d\nv_add_u32 v%d, s%d, v%d", U3, U5, U3, U7, U3, U3, sHL, U3) + "\n" + stash(aCA1, U3))
    Q.append(L("s_mul_i32 s%d, s%d, 4608\ns_add_u32 s%d, s%d, %d\ns_lshl_b32 s%d, s%d, 8\ns_add_u32 s%d, s%d, s%d\ns_add_u32 s%d, s%d, 480", sA, sWN, sA, sA, KVR, sC, sWM, sB, sA, sC, sB, sB))
    Q.append(L("v_lshlrev_b32 v%d, 5, v%d\nv_sub_u32 v%d, s%d, v%d\nv_lshl_add_u32 v%d, v%d, 4, v%d", U4, U7, U0, sB, U4, U0, U5, U0) + "\n" + stash(aCB, U0))
    Q.append(L("s_lshl_b32 s%d, s%d, 3\ns_sub_u32 s%d, s%d, s%d\ns_add_u32 s%d, s%d, %d", sC, sC, sB, sA, sC, sB, sB, 4088 - 1536))
    Q.append(L("v_sub_u32 v%d, s%d, v%d\nv_lshlrev_b32 v%d, 3, v%d\nv_sub_u32 v%d, v%d, v%d", U0, sB, U4, U4, U5, U0, U0, U4) + "\n" + stash(aCD, U0))
    Q.append(("mark", "q2"))
    Q.append(L("v_lshlrev_b32 v%d, 6, v%d\nv_lshl_add_u32 v%d, v%d, 4, v%d", U0, U7, U0, U5, U0) + "\n" + stash(aZst, U0))
    Q.append(L("s_lshl_b32 s%d, s%d, 1\ns_lshl_b32 s%d, s%d, 12\ns_add_u32 s%d, s%d, s%d\ns_add_u32 s%d, s%d, %d", sZst, sHS, sA, sWM, sZst, sZst, sA, sZst, sZst, Z_OFF))
    Q.append(L("s_lshl_b32 s%d, s%d, 1\ns_add_u32 s%d, s%d, s%d\ns_lshl_b32 s%d, s%d, 1\ns_add_u32 s%d, s%d, s%d", sA, sMT, sA, sA, sWN, sA, sA, sA, sA, sFG0))
    Q.append(L("s_lshl_b32 s%d, s%d, 1\ns_add_u32 s%d, s%d, s%d", sB, sDT, sB, sB, sWM))
    Q.append(L("s_lshl_b32 s%d, s%d, 18\ns_lshl_b32 s%d, s%d, 7\ns_add_u32 s%d, s%d, s%d\ns_add_u32 s%d, s%d, %d", sZld, sB, sC, sA, sZld, sZld, sC, sZld, sZld, Z_OFF))
    Q.append(L("s_lshl_b32 s%d, s%d, 9\ns_add_u32 s%d, s%d, %d", sSt2, sA, sSt2, sSt2, ST2_OFF))
    Q.append(L("s_and_b32 s%d, s%d, 0xfffffffe\ns_mul_i32 s%d, s%d, %d\ns_mul_i32 s%d, s%d, %d\ns_sub_u32 s%d, %d, s%d", sC, sA, sHbase, sC, 112 * 1024, sHB, sFG0, 112 * 1024, sHA, 112 * 1024, sHB))
    Q.append(L("s_mul_i32 s%d, s%d, %d\ns_lshl_b32 s%d, s%d, 6\ns_add_u32 s%d, s%d, s%d", sA, sA, 32 * 896, sC, sB, sA, sA, sC))
    Q.append(L("v_mul_u32_u24 v%d, 896, v%d\nv_lshlrev_b32 v%d, 4, v%d\nv_add3_u32 v%d, v%d, v%d, s%d", U0, U6, U1, U2, U0, U0, U1, sA) + "\n" + stash(aOo, U0))
    Q.append(L("v_lshrrev_b32 v%d, 2, v%d\nv_lshl_add_u32 v%d, v%d, 3, v%d\nv_lshlrev_b32 v%d, 6, v%d\nv_and_b32 v%d, 1, v%d\nv_lshl_add_u32 v%d, v%d, 5, v%d", U0, U7, U0, U2, U0, U0, U0, U1, U5, U0, U1, U0))
    Q.append(L("v_and_b32 v%d, 3, v%d\nv_lshl_add_u32 v%d, v%d, 3, v%d\ns_lshr_b32 s%d, s%d, 1\ns_add_u32 s%d, s%d, %d\nv_add_u32 v%d, s%d, v%d", U1, U7, U0, U1, U0, sZfl, sWL, sZfl, sZfl, ZL, U0, sZfl, U0) + "\n" + stash(aPollZ, U0))
    Q.append(L("v_lshrrev_b32 v%d, 3, v%d\nv_lshlrev_b32 v%d, 13, v%d\nv_and_b32 v%d, 7, v%d\nv_lshl_add_u32 v%d, v%d, 4, v%d", U0, vL, U0, U0, U1, vL, U0, U1, U0) + "\n" + stash(aZld, U0))
    Q.append(L("v_lshlrev_b32 v%d, 10, v%d\nv_lshl_add_u32 v%d, v%d, 4, v%d\nv_add_u32 v%d, s%d, v%d", U0, U2, U0, U6, U0, U0, sWL, U0) + "\n" + stash(aRr, U0))
    Q.append(L("s_lshl_b32 s%d, s%d, 2\ns_add_u32 s%d, s%d, s%d\ns_mul_i32 s%d, s%d, 3072\ns_add_u32 s%d, s%d, %d", sA, sC2, sA, sA, sWV, sPld, sA, sPld, sPld, PX_OFF))
    Q.append(L("s_xor_b32 s%d, s%d, 4\ns_mul_i32 s%d, s%d, 3072\ns_add_u32 s%d, s%d, %d", sA, sA, sPst, sA, sPst, sPst, PX_OFF))
    Q.append(L("s_mov_b32 s%d, %d", sHF, HF_OFF))
    Q.append(L("s_mul_i32 s%d, s%d, 14\ns_add_u32 s%d, s%d, s%d", sB, sFG0, sB, sB, sWM))
    Q.append(L("s_lshl_b32 s%d, s%d, 12\ns_add_u32 s%d, s%d, s%d\ns_add_u32 s%d, s%d, %d\ns_add_u32 s%d, s%d, s%d",
               sC, sB, sHbase, sHbase, sC, sHlim, sHbase, 56 * 1024, sHcur, sHbase, sHcur))
    Q.append(L("s_lshl_b32 s%d, s%d, 1\ns_add_u32 s%d, s%d, s%d\ns_lshl_b32 s%d, s%d, 5\ns_add_u32 s%d, s%d, s%d", sC, sMT, sC, sC, sWN, sC, sC, sA, sB, sC))
    Q.append(L("v_min_u32 v%d, 6, v%d\nv_lshlrev_b32 v%d, 1, v%d\nv_add_lshl_u32 v%d, v%d, s%d, 7", U0, vL, U0, U0, U0, U0, sA) + "\n" + stash(aPollH, U0))
    qparts = [[]]
    for it in Q:
        if isinstance(it, tuple): qparts.append([])
        else: flatten(it, qparts[-1])
    RQ = Cfg.rq
    frs = []
    seq = []
    def addfrag(c, s4, jj):
        frs.append((c, s4, jj)); seq.extend([("m", len(frs) - 1, 0), ("m", len(frs) - 1, 1)])
    for c in range(14 - RQ):
        if c == Cfg.c1: seq.extend(("c", t) for t in range(4))
        for s4 in range(4):
            for jj in range(2): addfrag(c, s4, jj)
    for jj in range(2):
        for c in range(14 - RQ, 14):
            for s4 in range(4): addfrag(c, s4, jj)
        seq.extend([("c", 4 + 2 * jj), ("c", 5 + 2 * jj)])
    assert len(seq) == 232 and 7 <= Cfg.c1 < 14 - RQ
    use = {}; ctick = {}
    for n, e in enumerate(seq):
        if e[0] == "m": use.setdefault(e[1], 2 * n)
        else: ctick[e[1]] = 2 * n
    first = {}
    for i, (c, s4, jj) in enumerate(frs): first.setdefault(c, use[i])
    TB = {c: first[c] - Cfg.blead - (8 if c == Cfg.c1 else 0) for c in range(1, 14)}
    A_CONV = 2 * 232
    def barr(i): return TB[i]
    def conv_anchor(g): return A_CONV + g
    T_BC = A_CONV - Cfg.bc; T_BW = conv_anchor(Cfg.bw)
    def xread(ks, nt): return DS("ds_read_b128 %s, v%d offset:%d" % (ar(8 * ks + 4 * nt, 4), vB[ks & 3], ((ks >> 2) % 3) * XS + nt * 4096), ("FX", ks))
    def aread(i):
        c, s4, jj = frs[i]; slot = c % 6
        base = vA[jj] if slot < 3 else vA2[jj]
        return [DS("ds_read_b64_tr_b16 %s, v%d offset:%d" % (vr(AF + 4 * (i & 7) + 2 * p, 2), base, (slot % 3) * 16384 + s4 * 2048 + p * 512), ("FA", i)) for p in range(2)]
    def freads(i):
        c, s4, jj = frs[i]
        return ([xread(4 * c + s4, 0), xread(4 * c + s4, 1)] if (c < 7 and jj == 0) else []) + aread(i)
    qall = qparts[0] + qparts[1] + qparts[2]
    P.append(qall[:Cfg.q_pro])
    if Cfg.x1_pro: P.append(x_group(1))
    P.append([WVM(("W", 0), ("X", 0)), I("s_barrier")])
    P.append(freads(0) + freads(1))
    P.append(stamp("b0"))
    sS = Stream("setup")
    sS.addall(qall[Cfg.q_pro:] + [I("s_nop 0")], by=Cfg.setup_by, key="setup")
    cur = []
    for j in range(7):
        cur.append(I("s_mov_b32 s%d, s%d" % (sG[j], sHcur)))
        if j < 6: cur += [I("s_add_u32 s%d, s%d, 8192" % (sHcur, sHcur)), [I("s_cmp_eq_u32 s%d, s%d" % (sHcur, sHlim)), I("s_cselect_b32 s%d, s%d, s%d" % (sHcur, sHbase, sHcur))]]
    sS.addall(cur, after=("kvl", 2), by=first[7] - 10)
    sF = Stream("frag", cap=2)
    for i in range(2, 112):
        c = frs[i][0]
        ea = max(TB.get(c, 0), use[i - 8] + 4 if i >= 8 else 0)
        by = use[i] - 6
        if c + 1 <= 14 - RQ: by = min(by, TB[c + 1] - 2)
        by = min(by, T_BC - 2)
        assert ea <= by, (i, ea, by)
        sF.addall(freads(i), at=ea, by=by)
    sD = Stream("dma")
    def addgrp(g, at, sp, key=None, by=None):
        at_, adv = g
        if key == ("w", 5): sD.add(WDS("kr"), after=("kread", 2))
        sps = sp if isinstance(sp, tuple) else (sp,) * 4
        sD.add(at_[0], at=at, space=max(sps[0] - 2, 0)); sD.add(at_[1])
        for i, a in enumerate(at_[2:]): sD.add(a, space=sps[i + 1], key=key if i == 2 else None, by=by)
        for a in adv: sD.add(a)
    sR = Stream("wdread", cap=2)
    vHs = vX[0]
    WD_AT = [barr(7)] + [barr(c + 1) if c + 1 <= 14 - RQ else T_BC for c in range(8, 14)]
    order = [x for x in Cfg.order if x[0] != "K" and not (Cfg.x1_pro and x == ("X", 1))]
    order.insert(Cfg.kpos, ("K", 0))
    for n, (kind, i) in enumerate(order):
        sp = Cfg.sp1 if n < Cfg.kx - Cfg.x1_pro else 0
        if n == Cfg.kx - Cfg.x1_pro: nplain = len(sD.items)
        if kind == "W": addgrp(w_group(i), max(barr(i - 5) if i >= 6 else 0, Cfg.w_min.get(i, 0)), sp, key=("w", i), by=barr(i) - Cfg.minlead)
        elif kind == "X": addgrp(x_group(i), barr(i - 2) if i >= 3 else 0, sp, by=barr(i) - Cfg.minlead)
        elif kind == "K": sD.addall(kvl, key="kvl")
        elif kind == "H": pass
        else:
            addgrp(wd_group(i), max(WD_AT[i], Cfg.wd_min[i]), 0, by=T_BW - 2 * Cfg.minlead)
    for f in range(Cfg.wr_pre): sR.addall(wd_reads(f % 7, f // 7), at=T_BW, by=conv_anchor(143))
    sP = Stream("prep")
    def unp(dst, src, hi): return I("v_and_b32 v%d, 0xffff0000, v%d" % (dst, src)) if hi else I("v_lshlrev_b32 v%d, 16, v%d" % (dst, src))
    rd = [DS("ds_read_b32 v%d, v%d" % (KR, vKh), "kr"), DS("ds_read2_b32 %s, v%d offset0:32 offset1:64" % (vr(KR + 1, 2), vKh), "kr")]
    rd += [DS("ds_read2_b32 %s, v%d offset0:%d offset1:%d" % (vr(KR + 3 + o, 2), vKa, 32 * o, 32 * o + 32), "kr") for o in range(0, 8, 2)]
    rd += [DS("ds_read2_b32 %s, v%d offset0:%d offset1:%d" % (vr(VR_ + o, 2), vKv, 32 * o, 32 * o + 32), "kr") for o in range(0, 8, 2)]
    sP.addall([[WVM("prep"), rd[0]]] + rd[1:], after=("kvl", Cfg.prep_lag), key="kread", by=barr(5) - Cfg.minlead - 12)
    at = tag_from_epoch(vEp)
    for b in range(2):
        for i in range(4): at.append(unp(TAP + i, SKR + 2 * b + (i >> 1), i & 1))
        for a in range(11): at.append([WDS("kr"), unp(KFv + a, KR + a, b)] if (a, b) == (0, 0) else unp(KFv + a, KR + a, b))
        out = OHI if b else OLO
        for w in range(4):
            for (o, R) in ((7 - 2 * w, R0), (6 - 2 * w, R1)):
                at.append(I("v_mul_f32 v%d, v%d, v%d" % (R, KFv + o, TAP + 3)))
                for i in (2, 1, 0): at.append(I("v_fmac_f32 v%d, v%d, v%d" % (R, KFv + o + 3 - i, TAP + i)))
                at.append(unp(VF, VR_ + o, b))
                at.append(I("v_mul_f32 v%d, v%d, v%d" % (R, R, VF)))
            at.append(I("v_cvt_pk_bf16_f32 v%d, v%d, v%d" % (out + w, R0, R1)))
    at.append(unstash(R0, aPsw))
    at.append(DS("ds_write_b128 v%d, %s" % (R0, vr(OLO, 4)), "psw"))
    at.append(DS("ds_write_b128 v%d, %s offset:128" % (R0, vr(OHI, 4)), "psw"))
    B_psw = Cfg.b_psw
    sP.addall(at, by=barr(B_psw) - 2)
    at = [unstash(R1, aPsr), DS("ds_read_b128 %s, v%d" % (vr(36, 4), R1), "psr"), DS("ds_read_b128 %s, v%d offset:4608" % (vr(40, 4), R1), "psr"),
          unstash(R0, aKst)]
    sP.addall(at, at=barr(B_psw), by=barr(B_psw) + 4)
    sP.add([WDS("psr"), VM("buffer_store_dwordx4 %s, v%d, %s, s%d offen sc1" % (vr(36, 4), R0, srd(SRD_WS), sKst0), "kvst")], at=barr(B_psw) + 10, by=barr(B_psw) + 16)
    sP.add(VM("buffer_store_dwordx4 %s, v%d, %s, s%d offen sc1" % (vr(40, 4), R0, srd(SRD_WS), sKst1), "kvst"), by=barr(B_psw) + 20, key="prepdone")
    B_kvst = B_psw + Cfg.kv_ack
    sP.add(flag_store(sKfl, []), at=barr(B_kvst), by=barr(B_kvst))
    CSF, MB, vPk, vPo, vCo, vMo, KV, vKw, vU0, vU1, vU2 = 32, 48, 56, 57, 58, 59, 14, 60, 4, 5, 8
    assert min(Cfg.cs_at, Cfg.polls_at, Cfg.t_at) > barr(B_psw) + 22
    sQ = Stream("cs")
    ldC = ["buffer_load_dwordx4 %s, v%d, %s, s%d offen offset:%d sc1" % (vr(CSF + 4 * jj, 4), vCo, srd(SRD_WS), sCs, 2048 * (jj >> 1) + 512 * (jj & 1)) for jj in range(4)]
    ldM = ["buffer_load_dwordx2 %s, v%d, %s, s%d offen offset:%d sc1" % (vr(MB + 4 * nt, 2), vMo, srd(SRD_WS), sMn, 256 * nt) for nt in range(2)]
    sQ.addall([I("v_and_b32 v%d, 511, v%d" % (vCo, vL16)), I("v_lshrrev_b32 v%d, 1, v%d" % (vMo, vCo))] + [VM(x, "cs") for x in ldC[:2] + ldM], at=Cfg.cs_at - 2, by=Cfg.cs_at + 60)
    cmp_ops = ["v_xor_b32 v%d, s%d, v%d" % (vU0, sTAG, CSF + 3), "v_xor_b32 v%d, s%d, v%d" % (vU1, sTAG, CSF + 7), "v_xor_b32 v%d, s%d, v%d" % (vU2, sTAG, MB + 1),
               "v_or3_b32 v%d, v%d, v%d, v%d" % (vU0, vU0, vU1, vU2), "v_xor_b32 v%d, s%d, v%d" % (vU1, sTAG, MB + 5), "v_or_b32 v%d, v%d, v%d" % (vU0, vU0, vU1),
               "v_cmp_ne_u32 vcc, 0, v%d" % vU0]
    c1, c2 = check("C", ldC[:2] + ldM, cmp_ops, ["cs"])
    T_CORR = ctick[0]
    sQ.addall(c1, at=T_CORR - Cfg.cs_chk, by=T_CORR - 14)
    sQ.add(c2, by=T_CORR - 14)
    at = [I("v_mov_b32 v%d, 0" % (CSF + 4 * jj + 3)) for jj in range(2)]
    for nt in range(2):
        b = MB + 4 * nt
        at.append(I("v_xor_b32 v%d, 0x80000000, v%d" % (b, b)))
        at.append([I("v_cmp_gt_u32 vcc, 32, v%d" % vL), I("v_mov_b32 v%d, 0" % (b + 2)), I("v_mov_b32 v%d, 0" % (b + 3)), I("v_cndmask_b32 v%d, 0, v%d, vcc" % (b, b))])
        at.append(I("v_lshrrev_b32 v%d, 16, v%d" % (b + 1, b)))
        at.append(I("v_or_b32 v%d, v%d, v%d" % (b, b, b + 1)))
    sQ.addall(at, by=T_CORR - 6)
    sQ.addall([VM(x, "cs2") for x in ldC[2:]], at=Cfg.cs2_at, by=Cfg.cs2_at + 24)
    cmp_ops = ["v_xor_b32 v%d, s%d, v%d" % (vU0, sTAG, CSF + 11), "v_xor_b32 v%d, s%d, v%d" % (vU1, sTAG, CSF + 15), "v_or_b32 v%d, v%d, v%d" % (vU0, vU0, vU1), "v_cmp_ne_u32 vcc, 0, v%d" % vU0]
    c1, c2 = check("C2", ldC[2:], cmp_ops, ["cs2"])
    sQ.addall(c1, at=ctick[4] - 14, by=ctick[4] - 10)
    sQ.add(c2, by=ctick[4] - 10)
    sQ.addall([I("v_mov_b32 v%d, 0" % (CSF + 4 * jj + 3)) for jj in range(2, 4)], by=ctick[4] - 6)
    sK = Stream("kv")
    ldK = "buffer_load_dword v%d, v%d, %s, s%d offen sc1" % (vPk, vPo, srd(SRD_WS), sKF)
    sK.addall([unstash(vPo, aPollK), VM(ldK, "pollK")], at=Cfg.polls_at - 2, by=Cfg.polls_at + 8)
    c1, c2 = check("K", [ldK], ["v_cmp_ne_u32 vcc, s%d, v%d" % (sTAG, vPk)], ["pollK"])
    pc = Cfg.polls_at + Cfg.polls_lag
    sK.add([c1, c2], at=pc, by=pc)
    sK.add(I("v_lshlrev_b32 v%d, 4, v0" % vKw), after=(("w", 13), 0))
    sK.add(VM("buffer_load_dwordx4 %s, v%d, %s, s%d offen sc1" % (vr(KV, 4), vKw, srd(SRD_WS), sKld0), "kvld"))
    sK.add(VM("buffer_load_dwordx4 %s, v%d, %s, s%d offen sc1" % (vr(KV + 4, 4), vKw, srd(SRD_WS), sKld1), "kvld"), by=pc + 24)
    sK.add(I("v_add_u32 v%d, %d, v%d" % (vKw, KVR, vKw)))
    sK.add([WVM("kvld"), DS("ds_write_b128 v%d, %s" % (vKw, vr(KV, 4)), "kvw")], at=min(pc + Cfg.kv_lag, T_BC - 14), by=T_BC - 12)
    sK.add(DS("ds_write_b128 v%d, %s offset:4608" % (vKw, vr(KV + 4, 4)), "kvw"), by=T_BC - 8, space=4)
    RV, SA_, SB_, vHw = 70, 62, 88, 61
    sG_ = Stream("hc")
    sG_.add([I("s_lshl_b32 s%d, s%d, 11" % (sZt0, sWM)), I("v_lshl_add_u32 v%d, v%d, 1, s%d" % (vHw, vL16, sZt0))], after=("prepdone", 4), at=Cfg.t_at)
    sG_.addall([VM("buffer_load_dwordx4 %s, v%d, %s, s%d offen %s" % (vr(RV, 4), vHw, srd(SRD_HK), sHS, Cfg.nt_hk), "hkl"),
                VM("buffer_load_dwordx4 %s, v%d, %s, s%d offen offset:16 %s" % (vr(RV + 4, 4), vHw, srd(SRD_HK), sHS, Cfg.nt_hk), "hkl"),
                VM("buffer_load_dwordx2 %s, v%d, %s, s%d offen offset:32 %s" % (vr(RV + 8, 2), vHw, srd(SRD_HK), sHS, Cfg.nt_hk), "hkl")], by=Cfg.t_at + 60)
    assert Cfg.t_at > barr(7)
    sG_.addall([I("v_and_b32 v10, 15, v%d" % vL), I("v_lshrrev_b32 v11, 4, v%d" % vL), I("v_lshl_add_u32 v10, v10, 1, v11"), I("v_subrev_u32 v10, 15, v10"),
                I("v_lshlrev_b32 v10, 1, v10"), I("v_add_u32 v11, 2, v10"),
                VM("buffer_load_ushort v12, v10, %s, s%d offen" % (srd(SRD_HK), sHS), "hkl"), VM("buffer_load_ushort v13, v11, %s, s%d offen" % (srd(SRD_HK), sHS), "hkl")])
    sG_.add(I("v_add_u32 v%d, s%d, v%d" % (vHw, sHL, vHw)), after=("setup", 2))
    def hw(c, base, tag="kvw"): return [DS("ds_write_b128 v%d, %s offset:%d" % (vHw, vr(base + 4 * q, 4), 4160 * c + 32 + 16 * q), tag) for q in range(2)]
    def al(dst, k): return I("v_alignbyte_b32 v%d, v%d, v%d, 2" % (dst, RV + k + 1, RV + k))
    mv = [I("v_mov_b32 v%d, v%d" % (SB_ + k, RV + 1 + k)) for k in range(8)]
    w1, w3, w0, w2 = hw(1, SB_, "hw1"), hw(3, RV + 2), hw(0, SA_), hw(2, SB_)
    at = [[WVM("hkl"), mv[0]]] + mv[1:4] + [w1[0]] + mv[4:] + [w1[1]] + [al(SA_ + k, k) for k in range(4)] + [w3[0]] + [al(SA_ + k, k) for k in range(4, 8)] + [w3[1], w0[0]]
    at += [[WDS("hw1"), al(SB_, 1)]] + [al(SB_ + k, k + 1) for k in range(1, 4)] + [w0[1]] + [al(SB_ + k, k + 1) for k in range(4, 8)] + w2
    at += [unstash(vHw, aCA1), I("v_lshl_or_b32 v12, v13, 16, v12"), DS("ds_write_b32 v%d, v12" % vHw, "kvw")]
    assert Cfg.hc_at >= barr(7)
    prevw = False
    for i, x in enumerate(at):
        isw = isinstance(x, Op) and x.kind == "ds" and "b128" in x.text
        sG_.add(x, at=Cfg.hc_at if i == 0 else None, space=4 if (isw and prevw) else 0, by=Cfg.hc_by, key="hcdone" if i == len(at) - 1 else None)
        prevw = isw
    sE = Stream("epi")
    vCA0, vCA1, vCB, vCD, vOo, vDv, vHo, vHp, vHt, vHA, vHB = 14, 15, 16, 17, 19, 20, 21, 13, 18, 10, 11
    def hflag(word, tags):
        return [WVM(*tags), VM("buffer_store_dword a%d, v%d, %s, s%d offen offset:%d sc1" % (aTag, vFlag0, srd(SRD_WS), sHfl, 4 * word), "flag")]
    for tl in range(8):
        jj, nt = tl >> 1, tl & 1
        a = ACC + tl * 16
        at = [I("v_mul_f32 v%d, v%d, v%d" % (a + r, a + r, a + r + 8)) for r in range(8)]
        at += [I("v_cvt_pk_bf16_f32 v%d, v%d, v%d" % (a + 8 + w, a + 2 * w, a + 2 * w + 1)) for w in range(4)]
        at.append(VM("buffer_store_dwordx4 %s, v%d, %s, s%d offen offset:%d %s" % (vr(a + 8, 4), vL16, srd(SRD_WS), sHst1 if nt else sHst0, jj * 1024, Cfg.hpol), ("hst", 0 if tl < 4 else (tl >> 1) - 1)))
        ea = ctick[tl] + 4 + (Cfg.hs_gap * tl if tl < 4 else 0)
        if ea >= A_CONV: ea += 1
        if tl == 4: sE.add(hflag(0, [("hst", 0)]), at=Cfg.hflag0, by=Cfg.hflag0)
        sE.addall(at, at=ea, by=ea + 20 if tl < 6 else conv_anchor(Cfg.epi_by), key=("epi", tl))
    assert Cfg.hflag0 <= ctick[4] + 4
    sE.add(hflag(1, [("hst", 1)]), at=conv_anchor(Cfg.hflagm), by=conv_anchor(Cfg.hflagm))
    if Cfg.hflag1 < 144: sE.add(hflag(2, [("hst", 2)]), at=conv_anchor(Cfg.hflag1), by=conv_anchor(Cfg.hflag1))
    CACC = 32
    def cA(dd, r): return 128 + 64 * (dd & 1) + 8 * r
    def cB(dd, m): return 128 + 64 * (dd & 1) + 8 * m + 4
    def conv_reads(dd, r):
        at = [DS("ds_read_b64 %s, v%d offset:%d" % (vr(cA(dd, r) + half * 2, 2), vCA0, 64 * dd + 512 * r + 8 * half), ("C", dd, r)) for half in range(2)]
        at.append(DS("ds_read_b128 %s, v%d offset:%d" % (vr(cB(dd, r), 4), vCB, 3584 - 512 * r + 64 * dd), ("C", dd, r)))
        return at
    pairs = sorted([(r, m) for r in range(8) for m in range(8 - r)], key=lambda p: (max(p), p))
    first_use = {}
    for i, p in enumerate(pairs): first_use.setdefault(max(p), i)
    sC_ = Stream("convrd", cap=3)
    sC_.addall([unstash(vCA0, aCA0), unstash(vCB, aCB), unstash(vCD, aCD)], at=T_BC)
    for r in range(8): sC_.addall(conv_reads(0, r), at=T_BC, after=(("epi", r >> 1), 1), by=conv_anchor(first_use[r] - 6))
    for r in range(8): sC_.addall(conv_reads(1, r), after=(("epi", 4 + (r >> 1)), 1), by=conv_anchor(36 + first_use[r] - 8))
    for dd in (2, 3):
        for r in range(8): sC_.addall(conv_reads(dd, r), at=conv_anchor(36 * (dd - 1)), by=min(conv_anchor(36 * dd + first_use[r] - 8), T_BW - 3))
    XE = 2; vXA = 19
    sM = Stream("misc")
    if Cfg.rot1 == "d":
        sM.addall([[I("s_lshl_b32 s%d, s%d, 6" % (sZt2, sWM)), I("v_xor_b32 v%d, s%d, v%d" % (vXA, sZt2, vB[0]))],
                   [I("s_lshl_b32 s%d, s%d, 12" % (sZt2, sFG0)), I("v_add_u32 v%d, s%d, v%d" % (vXA, sZt2, vXA))],
                   DS("ds_read_b128 %s, v%d" % (vr(BF, 4), vXA), ("FX", 27)), I("v_xor_b32 v%d, 32, v%d" % (vXA, vXA)),
                   DS("ds_read_b128 %s, v%d" % (vr(BF + 4, 4), vXA), ("FX", 27))], at=barr(6), by=barr(7) - 4)
        sM.addall([I("v_mov_b32 v%d, v%d" % (XE + i, BF + i)) for i in range(8)], at=T_BC + 2)
        sM.add(unstash(vOo, aOo), at=conv_anchor(Cfg.xe_at))
    else:
        sM.add(unstash(vOo, aOo), at=conv_anchor(Cfg.xe_at))
        sM.add(VM("buffer_load_dwordx4 %s, v%d, %s, 0 offen" % (vr(XE, 4), vOo, srd(SRD_X)), "xe"))
        sM.add(VM("buffer_load_dwordx4 %s, v%d, %s, 0 offen offset:32" % (vr(XE + 4, 4), vOo, srd(SRD_X)), "xe"), space=2)
    sM.add([I("s_lshr_b32 s%d, s%d, 11" % (sZt1, sHS)), I("v_mov_b32 v%d, 0" % vHo)])
    sM.add(VM("buffer_load_ushort v%d, v%d, %s, s%d offen" % (0, vHo, srd(SRD_DD), sZt1), "xe"), space=2)
    sM.addall([unstash(vHo, aPollH), I("v_add_u32 v%d, s%d, v%d" % (vHA, sHA, vL16)), I("v_add_u32 v%d, s%d, v%d" % (vHB, sHB, vL16))])
    ldH = ["buffer_load_dword v%d, v%d, %s, s%d offen offset:%d sc1" % (vHp, vHo, srd(SRD_WS), sHF, 4 * w) for w in range(3)]
    sM.add(VM(ldH[0], "pollH"), at=conv_anchor(Cfg.hpoll), by=conv_anchor(Cfg.hpoll))
    NP = 21
    def hreg(f): return vr(64 + 4 * (f % NP), 4)
    def fidx(f): return f // 28, (f % 28) // 7, f % 7
    def hload(f):
        jt, jj, j = fidx(f)
        return VM("buffer_load_dwordx4 %s, v%d, %s, s%d offen offset:%d sc1" % (hreg(f), vHB if jt else vHA, srd(SRD_WS), sG[j], jj * 1024), ("H", f))
    CM, CP, CK, KD, ZG, vT0, vT1, vT2 = 224, 240, 152, 160, 176, 4 + 58, 4 + 59, 24
    vT0, vT1 = 18, 20
    sN = Stream("kd")
    sN.addall([DS("ds_read_b64 %s, v%d offset:%d" % (vr(CK + 2 * k, 2), vCD, 512 * (3 - k)), "cxk") for k in range(4)], at=conv_anchor(109))
    sN.add([WVM("xe"), I("v_lshlrev_b32 v0, 16, v0")])
    for k in range(4):
        lo, hi = CK + 2 * k, CK + 1 + 2 * k
        for r, (src, h) in enumerate(((hi, 1), (hi, 0), (lo, 1), (lo, 0))):
            u = unp(KD + 4 * k + r, src, h)
            sN.add([WDS("cxk"), u] if (k, r) == (0, 0) else u, by=conv_anchor(143))
    sN.addall([I("v_add_u32 v%d, s%d, v%d" % (vT0, sWL, vL16)), I("v_xor_b32 v%d, 4096, v%d" % (vT1, vT0)),
               I("v_add_u32 v%d, %d, v%d" % (150, CEX, vT0)), I("v_add_u32 v%d, %d, v%d" % (151, CEX, vT1))], by=conv_anchor(143))
    hc1, hc2 = check("H", [ldH[0]], ["v_cmp_ne_u32 vcc, s%d, v%d" % (sTAG, vHp)], ["pollH"])
    nh = 0
    if Cfg.hcheck < 144:
        sM.add([hc1, hc2] + stamp("hok"), at=conv_anchor(Cfg.hcheck), by=conv_anchor(Cfg.hcheck))
        while nh < 14 and Cfg.hcheck + 6 + 4 * nh < 143:
            sM.add(hload(nh), by=conv_anchor(143)); nh += 1

    for it in sD.items[:nplain]: it["plan"] = False
    Cfg._vmtab = plan_vm([sP, sE, sQ, sK, sG_, sD, sM], list(range(0, A_CONV, 2)) + list(range(A_CONV, A_CONV + 144)), Cfg.vs_at, Cfg.vs2)
    SC = Sched([sF, sQ, sK, sD, sE, sC_, sG_, sM, sR, sP, sS, sN])
    usage = []
    def emit_gap(now, budget, pre=0.0):
        if now in Cfg.tr_ticks and len(SC.streams) > 6: P.append(RAW("TSTAMP t%d" % now))
        o, u = SC.fill(now, budget - pre)
        P.append(o); usage.append(u + pre)
    def barrier(w, wd):
        o = [WVM(*w)] if w else []
        if wd: o.append(WDS(*wd))
        o.append(I("s_barrier"))
        return o
    def barrier_i(i):
        w = [("W", i)]; wd = []
        if i < 7: w.append(("X", i))
        if i == B_kvst: w.append("kvst")
        if i == B_psw: wd.append("psw")
        if i <= 14 - RQ: wd += [("FA", k) for k, f in enumerate(frs) if f[0] == i - 1]
        if i <= 7: wd.append(("FX", 4 * i - 1))
        return barrier(w, wd)
    def mf32(a, A_, B_, first): return "v_mfma_f32_32x32x16_bf16 %s, %s, %s, %s" % (vr(a, 16), A_, B_, "0" if first else vr(a, 16))
    tb_at = {t: c for c, t in TB.items()}
    for n, e in enumerate(seq):
        now = 2 * n; pre = 0.0
        if e[0] == "m":
            c, s4, jj = frs[e[1]]; nt = e[2]; ks = 4 * (c % 7) + s4
            if nt == 0:
                P.append(WDS(("FA", e[1]), ("FX", ks)))
                if first[c] == now and c in Cfg.stamps_k: P.append(stamp("c%d" % c))
            else: pre = 1.0
            P.append(mf32(ACC + (4 * (c // 7) + 2 * jj + nt) * 16, vr(AF + 4 * (e[1] & 7), 4), ar(8 * ks + 4 * nt, 4), ks == 0))
        else:
            P.append(mf32(ACC + e[1] * 16, vr(CSF + (e[1] >> 1) * 4, 4), vr(MB + (e[1] & 1) * 4, 4), False))
        if now in tb_at: P.append(barrier_i(tb_at[now])); pre += 2
        if now == T_BC: P.append(barrier([], ["kvw", ("FA", 111)])); pre += 2
        emit_gap(now, Cfg.b1 if now < first[7] else Cfg.b32, pre)
    P.append(stamp("g1end"))
    gi = 0
    for dd in range(4):
        seen = set()
        for i, (r, m) in enumerate(pairs):
            if first_use[max(r, m)] == i: P.append(WDS(("C", dd, max(r, m))))
            a = CACC + (r + m) * 4
            P.append("v_mfma_f32_16x16x32_bf16 %s, %s, %s, %s" % (vr(a, 4), vr(cA(dd, r), 4), vr(cB(dd, m), 4), "0" if (dd == 0 and (r + m) not in seen) else vr(a, 4)))
            seen.add(r + m)
            if conv_anchor(gi) == T_BW: P.append(barrier([("WD", u) for u in range(7)], [("C", 3, 7)]))
            emit_gap(conv_anchor(gi), Cfg.b16)
            gi += 1
    assert SC.done(), SC.left()
    Cfg._usage1 = usage; Cfg._log1 = SC.log
    P.append(stamp("convend"))

    for k in range(4): P.append("v_mov_b32 v%d, s%d\nv_mov_b32 v%d, s%d" % (ZG + 4 * k + 2, sTAG, ZG + 4 * k + 3, sTAG))
    P.append(L("s_cmp_eq_u32 s%d, 0\ns_cbranch_scc0 L_cx1", sWM))
    for k in range(4):
        P.append(DS("ds_write_b128 v150, %s offset:%d" % (vr(CACC + 16 + 4 * k, 4), 1024 * k), "cxw"))
        for r in range(4): P.append("v_fma_f32 v%d, v%d, v0, v%d" % (CM + 4 * k + r, KD + 4 * k + r, CACC + 4 * k + r))
    P.append(RAW("s_branch L_cx2\nL_cx1:"))
    for k in range(4):
        P.append(RAW("ds_write_b128 v150, %s offset:%d" % (vr(CACC + 4 * k, 4), 1024 * k)))
        for r in range(4): P.append(RAW("v_fma_f32 v%d, v%d, v0, v%d" % (CM + 4 * k + r, KD + 4 * k + r, CACC + 16 + 4 * k + r)))
    P.append(RAW("L_cx2:"))
    P.append(unstash(vT2, aZst))
    P.append([WDS("cxw"), I("s_barrier")])
    for k in range(4): P.append(DS("ds_read_b128 %s, v151 offset:%d" % (vr(CP + 4 * k, 4), 1024 * k), ("cxr", k)))
    ep = []
    for k in range(4):
        ad = [I("v_add_f32 v%d, v%d, v%d" % (CM + 4 * k + r, CM + 4 * k + r, CP + 4 * k + r)) for r in range(4)]
        ad[0] = [WDS(("cxr", k)), ad[0]]
        ep += ad + [I("v_cvt_pk_bf16_f32 v%d, v%d, v%d" % (ZG + 4 * k + w, CM + 4 * k + 2 * w, CM + 4 * k + 2 * w + 1)) for w in range(2)]
        ep.append(VM("buffer_store_dwordx4 %s, v%d, %s, s%d offen offset:%d sc1" % (vr(ZG + 4 * k, 4), vT2, srd(SRD_WS), sZst, 1024 * k), "zst"))
    if Cfg.hcheck >= 144:
        P.append([hc1, hc2]); P.append(stamp("hok"))
        while nh < Cfg.nfirst: P.append(hload(nh)); nh += 1
    if Cfg.hflag1 >= 144: ep.insert(0, hflag(2, [("hst", 2)]))
    if Cfg.h2_early: P.append(VM(ldH[1], "pollH2"))
    if not Cfg.ep_shadow: P.append(ep)
    P.append(stamp("zst"))

    ACA, ACB, ZV, XF, ST = 192, 224, 32, 48, 172
    vZp, vZo, vSo, vRr = 14, 15, 16, 17
    RR, GR = 160, 160
    sV = Stream("ep")
    if Cfg.ep_shadow: sV.addall(ep, by=Cfg.ep_by)
    sH = Stream("hload")
    g1, g2_ = check("H2", [ldH[1]], ["v_cmp_ne_u32 vcc, s%d, v%d" % (sTAG, vHp)], ["pollH2"])
    if not Cfg.h2_early: sH.add(VM(ldH[1], "pollH2"), at=Cfg.h2poll)
    hpace = -Cfg.hsp
    for f in range(nh, 56):
        if f == 14: sH.add([g1, g2_], at=Cfg.h2check, by=2 * f - 10)
        if f == Cfg.h3poll_f: sH.add(VM(ldH[2], "pollH3"))
        if f == 21: sH.add(list(check("H3", [ldH[2]], ["v_cmp_ne_u32 vcc, s%d, v%d" % (sTAG, vHp)], ["pollH3"])), at=Cfg.h3check, by=2 * f - 8)
        ea = 2 * (f - NP) + 2 if f >= NP else 0
        hpace = max(hpace + Cfg.hsp, ea, Cfg.h2check + 1 if f == 14 else (Cfg.h3check + 1 if f == 21 else 0))
        sH.add(hload(f), at=int(hpace), by=max(2 * f - 4, int(hpace) + 1))
    A_BAR = 56 + Cfg.bar_a
    sX = Stream("x")
    sX.addall([unp(XF + i, XE + (i >> 1), i & 1) for i in range(16)], at=Cfg.ep_by + 2 if Cfg.ep_shadow else 2, key="xf")
    sX.add(unstash(vRr, aRr))
    sX.addall([I("v_add_u32 v%d, %d, v%d" % (vT0, REDA, vRr)), I("v_add_u32 v%d, %d, v%d" % (25, REDA, vT1))])
    sX.addall([DS("ds_write_b128 v25, %s offset:%d" % (vr(ACA + 16 + rq * 4, 4), rq * 1024), "rwa") for rq in range(4)], at=58, space=1, by=A_BAR - 3)
    def swaps(acc): return [I("v_permlane32_swap_b32 v%d, v%d" % (acc + 8 * kk + i, acc + 8 * kk + 4 + i)) for kk in range(2) for i in range(4)]
    sX.addall(swaps(ACA))
    sX.addall([DS("ds_read_b128 %s, v%d offset:%d" % (vr(ACA + 16 + kk * 8 + hs * 4, 4), vT0, kk * 2048 + hs * 512), "rra") for kk in range(2) for hs in range(2)], at=A_BAR, by=A_BAR + 1)
    def gpos(b, w): return b + (w // 3) * 4 + (w % 3)
    sX.addall([I("v_mov_b32 v%d, s%d" % (GR + 4 * k + 3, sTAG)) for k in range(3)])
    first = True
    for w in range(8):
        for i in (2 * w, 2 * w + 1):
            op = I("v_add_f32 v%d, v%d, v%d" % (ACA + i, ACA + i, ACA + 16 + i))
            if first: sX.add([WDS("rra"), op], space=2); first = False
            else: sX.add(op)
        sX.add(I("v_cvt_pk_bf16_f32 v%d, v%d, v%d" % (gpos(GR, w), ACA + 2 * w, ACA + 2 * w + 1)))
        if w % 3 == 2 or w == 7:
            k = w // 3
            sX.add(VM("buffer_store_dwordx4 %s, v%d, %s, s%d offen offset:%d sc1" % (vr(GR + 4 * k, 4), vL16, srd(SRD_WS), sPst, k * 1024), "pst"), by=A_BAR + 16, key=("pst", k))
    ldP = ["buffer_load_dwordx4 %s, v%d, %s, s%d offen offset:%d sc1" % (vr(ACA + 4 * k, 4), vL16, srd(SRD_WS), sPld, k * 1024) for k in range(3)]
    sX.addall([VM(x, "pld") for x in ldP], at=Cfg.pld, by=111)
    sZ = Stream("z")
    sZq = [sZld, sZt0, sZt1, sZt2]
    ldZ = ["buffer_load_dwordx4 %s, v%d, %s, s%d offen sc1" % (vr(ZG + 4 * i, 4), vZo, srd(SRD_WS), sZq[i]) for i in range(4)]
    ldS = "buffer_load_dwordx4 %s, v%d, %s, s%d offen sc1" % (vr(ST, 4), vSo, srd(SRD_WS), sSt2)
    sZ.addall([I("v_and_b32 v%d, 511, v%d" % (vSo, vL16)), VM(ldS, "sld")], at=Cfg.st_at)
    sZ.addall([unstash(vZo, aZld)] + [I("s_add_u32 s%d, s%d, %d" % (sZq[i], sZld, i * 65536)) for i in range(1, 4)])
    c1, c2 = check("S", [ldS], ["v_cmp_ne_u32 vcc, s%d, v%d" % (sTAG, ST + 2)], ["sld"])
    sZ.add([c1, c2], at=Cfg.st_at + Cfg.st_lag, after=("xf", 0))
    sZ.addall([I("v_mul_f32 v%d, v%d, v%d" % (ST, ST, ST + 1)), I("v_mul_f32 v%d, v%d, v%d" % (ST + 2, ST + 1, ST + 1))])
    sZ.addall([I("v_fma_f32 v%d, v%d, v%d, -v%d" % (ZV + i, XF + i, ST + 1, ST)) for i in range(16)])
    sZ.add([I("v_lshrrev_b32 v%d, 1, v%d" % (vZp, vL16)), I("v_add_u32 v%d, s%d, v%d" % (vZp, sZfl, vZp))])
    sZ.addall([VM(x, "zld") for x in ldZ], at=Cfg.zpoll)
    cmp_ops = ["v_xor_b32 v%d, s%d, v%d" % (ZG + 4 * i + 3, sTAG, ZG + 4 * i + 2) for i in range(4)] + [
               "v_or3_b32 v%d, v%d, v%d, v%d" % (ZG + 3, ZG + 3, ZG + 7, ZG + 11), "v_or_b32 v%d, v%d, v%d" % (ZG + 3, ZG + 3, ZG + 15), "v_cmp_ne_u32 vcc, 0, v%d" % (ZG + 3)]
    c1, c2 = check("Z", ldZ, cmp_ops, ["zld"])
    zt = list(c1) + [c2]
    zt += [DS("ds_write_b64 v%d, %s offset:%d" % (vZp, vr(ZG + 4 * i, 2), 512 * i), "zw") for i in range(4)]
    zt += [unstash(vSo, aPollZ)]
    rd = [DS("ds_read_b64_tr_b16 %s, v%d offset:%d" % (vr(XE + 2 * q, 2), vSo, (q >> 1) * 1024 + (q & 1) * 256), "zr") for q in range(4)]
    rd[0] = [WDS("zw"), rd[0]]
    zt += rd
    for i in range(16):
        u = unp(148 + (i & 1), XE + (i >> 1), i & 1)
        zt.append([WDS("zr"), u] if i == 0 else u)
        zt.append(I("v_fma_f32 v%d, v%d, v%d, v%d" % (ZV + i, ZV + i, 148 + (i & 1), XF + i)))
    assert Cfg.zpoll + Cfg.zlag > A_BAR
    sZ.addall(zt, at=Cfg.zpoll + Cfg.zlag)
    sW = Stream("wr", cap=2)
    for f in range(Cfg.wr_pre, 28): sW.addall(wd_reads(f % 7, f // 7), by=max(2 * f - 5, 0))
    if Cfg.plan2: Cfg._vmtab2 = plan_vm([sH, sV, sX, sZ], list(range(112)), 0, 0.25, lead_div=5, lead_mul=1)
    SC = Sched([sW, sH, sV, sX, sZ])
    usage = []
    for f in range(56):
        jt, jj, j = fidx(f)
        P.append(WVM(("H", f)))
        if jt == 0: P.append(WDS(("WR", j, jj)))
        if f in Cfg.stamps_f: P.append(stamp("f%d" % f))
        for jd in range(2):
            a = (ACB if jt else ACA) + jd * 16
            P.append(mf32(a, ar(8 * (4 * j + jj) + 4 * jd, 4), hreg(f), f % 28 == 0))
            now = 2 * f + jd
            if now == A_BAR: P.append([WDS("rwa"), I("s_barrier")])
            emit_gap(now, Cfg.b2, 1.0 if jd else 0.0)
    for s_ in (sW, sH, sV, sX): assert s_.pos == len(s_.items), s_.name
    rest = [it["atom"] for it in sZ.items[sZ.pos:]]
    Cfg._usage2 = usage; Cfg._rest = len(rest)
    P.append(stamp("g2end"))
    P.append("s_nop 7\ns_nop 3")
    for rq in range(4): P.append(DS("ds_write_b128 v%d, %s offset:%d" % (vT1, vr(ACB + 16 + rq * 4, 4), REDB + rq * 1024), "rwb"))
    P.append(swaps(ACB))
    P.append([WDS("rwb"), I("s_barrier")])
    for kk in range(2):
        for hs in range(2):
            P.append(DS("ds_read_b128 %s, v%d offset:%d" % (vr(64 + kk * 8 + hs * 4, 4), vRr, REDB + kk * 2048 + hs * 512), "rrb"))
    P.append(rest)
    cmp_ops = ["v_xor_b32 v%d, s%d, v%d" % (ACA + 4 * k + 3, sTAG, ACA + 4 * k + 3) for k in range(3)]
    cmp_ops += ["v_or3_b32 v%d, v%d, v%d, v%d" % (ACA + 3, ACA + 3, ACA + 7, ACA + 11), "v_cmp_ne_u32 vcc, 0, v%d" % (ACA + 3)]
    c1, c2 = check("P", ldP, cmp_ops, ["pld"])
    P.append(WDS("rrb"))
    for i in range(16): P.append("v_add_f32 v%d, v%d, v%d" % (ACB + i, ACB + i, 64 + i))
    P.append([c1, c2])
    for kk in range(2):
        for i in range(8 * kk, 8 * kk + 8):
            P.append(unp(ACA + 16 + i, gpos(ACA, i >> 1), i & 1))
            P.append("v_add_f32 v%d, v%d, v%d" % (ACB + i, ACB + i, ACA + 16 + i))
            P.append("v_fma_f32 v%d, v%d, v%d, v%d" % (ACB + i, ACB + i, ST + 2, ZV + i))
        for w in range(4): P.append("v_cvt_pk_bf16_f32 v%d, v%d, v%d" % (80 + 4 * kk + w, ACB + 8 * kk + 2 * w, ACB + 8 * kk + 2 * w + 1))
        P.append(VM("buffer_store_dwordx4 %s, v%d, %s, 0 offen offset:%d %s" % (vr(80 + 4 * kk, 4), vOo, srd(SRD_OUT), 32 * kk, Cfg.opol), "out"))
    P.append(diag_tail(True))
    P.append("s_endpgm")
    return P
Cfg.ep_shadow = False; Cfg.ep_by = 20; Cfg.opol = ""
Cfg.order = [("X", 1), ("W", 2), ("X", 2), ("W", 3), ("X", 3), ("W", 4), ("X", 4), ("W", 5), ("X", 5), ("W", 6), ("X", 6), ("W", 7), ("W", 8), ("W", 9), ("W", 10),
             ("W", 11), ("W", 12), ("W", 13), ("D", 0), ("D", 1), ("D", 2), ("D", 3), ("D", 4), ("D", 5), ("D", 6)]
Cfg.t_at = 232; Cfg.hc_at = 270; Cfg.hc_by = 420; Cfg.cs_chk = 30; Cfg.w_min = {9: 176, 10: 216, 11: 244, 12: 262, 13: 280}
Cfg.vs1 = 0; Cfg.vs2 = 1.0; Cfg.vs3 = 0.0; Cfg.vs_at = 128; Cfg.hprio = True; Cfg.b2 = 5; Cfg.b1 = 6.5; Cfg.tr_ticks = (); Cfg.rq = 2; Cfg.c1 = 9; Cfg.blead = 8; Cfg.hs_gap = 22
Cfg.minlead = 10; Cfg.prep_lag = 40; Cfg.htouch = False; Cfg.hcheck = 84; Cfg.pld = 104; Cfg.nws = 6
Cfg.q_pro = 999; Cfg.b11 = 8; Cfg.bc = 20; Cfg.bw = 116; Cfg.cs_at = 210; Cfg.hflag0 = 426; Cfg.hflag1 = 120; Cfg.xe_at = 44
Cfg.h2_early = True; Cfg.h2poll = 0; Cfg.h2check = 4
Cfg.epi_prio = True; Cfg.stamps_f = (); Cfg.b_psw = 6; Cfg.kv_ack = 2; Cfg.epi_by = 14; Cfg.hcheck_early = True; Cfg.hsp = 2; Cfg.bar_a = 10

def gen_helper():
    stamp_n[0] = 0
    P = [WDS0()]
    if Cfg.diag: P.append("s_mov_b32 s89, s88")
    P.append(build_srd(SRD_X, 4, S * D * 2)); P.append(build_srd(SRD_WS, 28, WS_SIZE))
    P.append(L("s_and_b32 s%d, s2, 7\ns_lshr_b32 s%d, s2, 3", sA, sB))
    P.append(L("s_lshl_b32 s%d, s%d, 2\ns_add_u32 s%d, s%d, s%d", sT, sA, sT, sT, sB))
    P.append(L("s_lshr_b32 s%d, s%d, 1\ns_lshl_b32 s%d, s%d, 2\ns_add_u32 s%d, s%d, s%d", sC2, sA, sC2, sC2, sC2, sC2, sB))
    P.append(L("s_and_b32 s%d, s%d, 1\ns_mul_i32 s%d, s%d, 7\ns_add_u32 s%d, s%d, s%d", sA, sA, sFT, sA, sFT, sFT, sC2))
    P.append(L("s_cmp_ge_u32 s%d, 7\ns_cselect_b32 s%d, s20, s18\ns_cselect_b32 s%d, s21, s19", sC2, SRD_W1, SRD_W1 + 1))
    P.append(L("s_cselect_b32 s%d, 1, 0\ns_cselect_b32 s%d, 7, 0\ns_sub_u32 s%d, s%d, s%d", sMT, sA, sFT, sFT, sA))
    P.append(L("s_mov_b32 s%d, %d\ns_mov_b32 s%d, 0x00020000", SRD_W1 + 2, D * F * 2, SRD_W1 + 3))
    sNO, sONE, sLO, sHI, sSTO = sWL, sXL, sWo, sXo, sDo
    if Cfg.gpref: P.append(gpref(9, 10))
    P.append(L("s_cmp_ge_u32 s%d, 14\ns_cselect_b32 s%d, 0x40000000, 0", sC2, sNO))
    V0, V1, V2, V3, V4, V5 = 2, 3, 4, 5, 6, 7
    P.append(L("s_lshl_b32 s%d, s%d, 2\ns_add_u32 s%d, s%d, s%d\ns_mul_i32 s%d, s%d, %d\ns_add_u32 s%d, s%d, %d", sA, sT, sA, sA, sWV, sA, sA, 16 * 896, sB, sA, 8 * 896))
    P.append(L("v_lshrrev_b32 v%d, 3, v%d\nv_mul_u32_u24 v%d, 896, v%d\nv_and_b32 v%d, 7, v%d\nv_lshl_add_u32 v%d, v%d, 4, v%d", V0, vL, V0, V0, V1, vL, V0, V1, V0))
    P.append(L("s_getpc_b64 s[%d:%d]", sC, sC + 1))
    P.append(RAW("L_touch_base2:"))
    P.append(L("s_sub_u32 s%d, s%d, L_touch_base2-L_main\ns_subb_u32 s%d, s%d, 0", sC, sC, sC + 1, sC + 1))
    P.append(L("s_lshr_b32 s%d, s2, 3\ns_lshl_b32 s%d, s%d, 13\nv_lshrrev_b32 v%d, 2, v0\nv_lshlrev_b32 v%d, 7, v%d\nv_add_u32 v%d, s%d, v%d", sZt0, sZt0, sZt0, V4, V4, V4, V4, sZt0, V4))
    P.append(L("v_min_u32 v%d, L_end_of_code-L_main-4, v%d", V4, V4))
    P.append(VM("global_load_dword v%d, v%d, s[%d:%d]" % (8, V4, sC, sC + 1), "touch"))
    P.append(L("s_mov_b32 s%d, %d\nv_mov_b32 v%d, 0", sZt0, EP_OFF, V4))
    P.append(VM("buffer_load_dword v%d, v%d, %s, s%d offen sc1" % (V5, V4, srd(SRD_WS), sZt0), "ep"))
    P.append(L("v_lshrrev_b32 v%d, 3, v0\nv_mul_u32_u24 v%d, 3584, v%d\nv_and_b32 v%d, 7, v0\nv_lshl_add_u32 v%d, v%d, 4, v%d", V2, V2, V2, V3, V2, V3, V2))
    P.append(L("s_lshl_b32 s%d, s%d, 8\ns_add_u32 s%d, s%d, s%d", sD_, sFT, sD_, sD_, sNO))
    P.append(build_srd(SRD_WD, 22, D * F * 2))
    def wl(i):
        return ["s_add_u32 s%d, s%d, %d" % (sZt2, sD_, 32 * (i % 14) * 3584 + 128 * (i // 14)),
                VM("buffer_load_dwordx4 %s, v%d, %s, s%d offen %s" % (vr(128 + 4 * i, 4), V2, srd(SRD_W1), sZt2, Cfg.nt_w), ("hw", i))]
    def xl(grp, i): return VM("buffer_load_dwordx4 %s, v%d, %s, s%d offen offset:%d %s" % (vr(32 + (grp * 7 + i) * 4, 4), V0, srd(SRD_X), sB if grp else sA, 128 * i, Cfg.nt_x), ("hx", grp))
    def red8(v):
        return ["s_nop 1", "v_add_f32_dpp v%d, v%d, v%d quad_perm:[1,0,3,2] row_mask:0xf bank_mask:0xf" % (v, v, v), "s_nop 1",
                "v_add_f32_dpp v%d, v%d, v%d quad_perm:[2,3,0,1] row_mask:0xf bank_mask:0xf" % (v, v, v), "s_nop 1",
                "v_add_f32_dpp v%d, v%d, v%d row_half_mirror row_mask:0xf bank_mask:0xf" % (v, v, v)]
    INV448 = 0x3b124925
    P.append(L("s_mov_b32 s%d, 0x3f803f80\ns_mov_b32 s%d, 0x00003f80\ns_mov_b32 s%d, 0x3f800000", sONE, sLO, sHI))
    U0, U1 = 88, 89
    MEAN = [90, 91]; G = [92, 96]
    vSo, vSo2 = 100, 101
    CSUM = 108
    vCw, vCr, vCs, sCo = 10, 11, 12, 87
    for k in range(14): P.append(wl(k))
    P.append(L("v_lshlrev_b32 v%d, 5, v0\nv_lshlrev_b32 v%d, 2, v%d", vCw, vCr, vL))
    P.append(L("v_lshrrev_b32 v%d, 4, v%d\nv_lshlrev_b32 v%d, 9, v%d\nv_and_b32 v%d, 15, v%d\nv_lshl_add_u32 v%d, v%d, 4, v%d", vCs, vL, vCs, vCs, V3, vL, vCs, V3, vCs))
    P.append(L("s_lshl_b32 s%d, s%d, 12\ns_lshl_b32 s%d, s%d, 8\ns_add_u32 s%d, s%d, s%d\ns_add_u32 s%d, s%d, %d", sCo, sFT, sZt0, sMT, sCo, sCo, sZt0, sCo, sCo, CS_OFF))
    P.append(L("s_cmp_eq_u32 s%d, 0\ns_cselect_b32 s%d, s%d, 0x40000000\ns_add_u32 s%d, s%d, s%d", sWV, sZt0, sNO, sCo, sCo, sZt0))
    def colsum(half, fill):
        o = ["v_mov_b32 v%d, 0" % (CSUM + e) for e in range(8)]
        for i in range(14 * half, 14 * half + 14):
            if fill: o.append(fill.pop(0))
            o.append(WVM(("hw", i)))
            for w in range(4):
                src = 128 + 4 * i + w
                o.append("v_dot2c_f32_bf16 v%d, s%d, v%d\nv_dot2c_f32_bf16 v%d, s%d, v%d" % (CSUM + 2 * w, sLO, src, CSUM + 2 * w + 1, sHI, src))
        if half == 0: o.append(tag_from_epoch(V5))
        o.append("s_nop 2")
        o.append(RAW("ds_write_b128 v%d, v[108:111] offset:%d\nds_write_b128 v%d, v[112:115] offset:%d" % (vCw, 8192 * half, vCw, 8192 * half + 16)))
        o += [WDS0(), "s_barrier"]
        for rg in range(0, 32, 2): o.append(RAW("ds_read2st64_b32 %s, v%d offset0:%d offset1:%d" % (vr(128 + rg, 2), vCr, 32 * half + rg, 32 * half + rg + 1)))
        o.append(WDS0())
        for st in (1, 2, 4, 8, 16):
            for rg in range(0, 32, 2 * st): o.append("v_add_f32 v%d, v%d, v%d" % (128 + rg, 128 + rg, 128 + rg + st))
        o.append("v_cvt_pk_bf16_f32 v116, v128, v128\nv_lshlrev_b32 v117, 16, v116\nv_sub_f32 v128, v128, v117")
        o.append("v_cvt_pk_bf16_f32 v118, v128, v128\nv_lshlrev_b32 v117, 16, v118\nv_sub_f32 v128, v128, v117")
        o.append("v_and_b32 v116, 0xffff, v116\nv_or_b32 v116, v116, v117")
        o.append(L("v_cvt_pk_bf16_f32 v117, v128, v128\nv_and_b32 v117, 0xffff, v117\nv_mov_b32 v118, 0\nv_mov_b32 v119, s%d", sTAG))
        o.append(VM("buffer_store_dwordx4 v[116:119], v%d, %s, s%d offen offset:%d sc1" % (vCs, srd(SRD_WS), sCo, 2048 * half), "cst"))
        return o
    P.append(colsum(0, [xl(grp, i) for grp in range(2) for i in range(7)]))
    P.append(stamp("cs"))
    P.append(L("v_and_b32 v%d, 7, v%d\nv_cmp_eq_u32 vcc, 0, v%d\nv_mov_b32 v%d, %s\nv_lshlrev_b32 v%d, 1, v%d\nv_cndmask_b32 v%d, v%d, v%d, vcc\nv_cndmask_b32 v%d, v%d, v%d, vcc",
               V0, vL, V0, V1, OOB, V3, vL, vSo, V1, vL, vSo2, V1, V3))
    P.append(L("s_lshl_b32 s%d, s%d, 2\ns_add_u32 s%d, s%d, s%d\ns_lshl_b32 s%d, s%d, 7\ns_add_u32 s%d, s%d, %d", sA, sT, sA, sA, sWV, sA, sA, sSTO, sA, ST_OFF))
    P.append(L("s_lshl_b32 s%d, s%d, 1\ns_add_u32 s%d, s%d, %d", sA, sA, sZt1, sA, ST2_OFF))
    var = []; vi = 0
    for grp in range(2):
        SQ = 102 + 2 * grp; base = 32 + grp * 28
        var.append(L("v_mov_b32 v%d, 0\nv_mov_b32 v%d, 0", SQ, SQ + 1))
        for r in range(28):
            var.append(L("v_lshlrev_b32 v%d, 16, v%d\nv_and_b32 v%d, 0xffff0000, v%d\nv_sub_f32 v%d, v%d, v%d\nv_sub_f32 v%d, v%d, v%d\nv_fmac_f32 v%d, v%d, v%d\nv_fmac_f32 v%d, v%d, v%d",
                         U0, base + r, U1, base + r, U0, U0, MEAN[grp], U1, U1, MEAN[grp], SQ, U0, U0, SQ + 1, U1, U1))
    for grp in range(2):
        base = 32 + grp * 28
        P.append(L("v_mov_b32 v%d, 0\nv_mov_b32 v%d, 0", U0, U1))
        P.append(WVM(("hx", grp)))
        for r in range(28): P.append("v_dot2c_f32_bf16 v%d, s%d, v%d" % (U1 if r & 1 else U0, sONE, base + r))
        P.append(L("s_nop 2\nv_add_f32 v%d, v%d, v%d", MEAN[grp], U0, U1))
        P.append(red8(MEAN[grp]))
        P.append(L("v_mul_f32 v%d, 0x%x, v%d", MEAN[grp], INV448, MEAN[grp]))
        P.append(L("v_cvt_pk_bf16_f32 v%d, v%d, v%d\nv_lshlrev_b32 v%d, 16, v%d\nv_mov_b32 v%d, s%d", G[grp], MEAN[grp], MEAN[grp], G[grp], G[grp], G[grp] + 1, sTAG))
        P.append(VM("buffer_store_dwordx2 %s, v%d, %s, s%d offen offset:%d sc1" % (vr(G[grp], 2), vSo, srd(SRD_WS), sSTO, 64 * grp), "mst"))
    P.append(stamp("mean"))
    for k in range(14, 28): P.append(wl(k))
    P.append(var[:30]); vi = 30
    P.append(colsum(1, None))
    if Cfg.h_hk:
        P.append(build_srd(SRD_HK, 12, D * S * 2))
        P.append(L("s_lshr_b32 s%d, s2, 3\ns_lshl_b32 s%d, s%d, 2\ns_add_u32 s%d, s%d, s%d\ns_lshl_b32 s%d, s%d, 3\ns_and_b32 s%d, s2, 7\ns_add_u32 s%d, s%d, s%d\ns_lshl_b32 s%d, s%d, 13",
                   sA, sA, sA, sA, sA, sWV, sA, sA, sB, sA, sA, sB, sA, sA))
        P.append(L("s_add_u32 s%d, s%d, %d\nv_lshlrev_b32 v%d, 7, v%d", sB, sA, 128 * 8192, V0, vL))
        P.append(VM("buffer_load_dword v126, v%d, %s, s%d offen nt" % (V0, srd(SRD_HK), sA), "wdt"))
        P.append(VM("buffer_load_dword v127, v%d, %s, s%d offen nt" % (V0, srd(SRD_HK), sB), "wdt"))
    if Cfg.h_wd:
        P.append(L("s_and_b32 s%d, s2, 1\ns_mul_i32 s%d, s%d, 6272\ns_lshr_b32 s%d, s2, 3\ns_lshl_b32 s%d, s%d, 2\ns_add_u32 s%d, s%d, s%d\ns_mul_i32 s%d, s%d, 392\ns_add_u32 s%d, s%d, s%d\ns_lshl_b32 s%d, s%d, 7",
                   sA, sA, sA, sB, sB, sB, sB, sB, sWV, sB, sB, sA, sA, sB, sA, sA))
        P.append(L("v_min_u32 v%d, 55, v%d\nv_lshlrev_b32 v%d, 7, v%d", V0, vL, V0, V0))
        nv = 4
        for i in range(7):
            if Cfg.h_rot:
                if i == 0: P.append(L("s_bfe_u32 s%d, s2, 0x20001\ns_mul_i32 s%d, s%d, %d", sZt0, sZt0, sZt0, 2 * 56 * 128))
                P.append(L("s_add_u32 s%d, s%d, s%d", sB, sA, sZt0)); P.append(advance(sZt0, 56 * 128, 7 * 56 * 128))
            else: P.append(L("s_add_u32 s%d, s%d, %d", sB, sA, i * 56 * 128))
            P.append(VM("buffer_load_dword v%d, v%d, %s, s%d offen" % (240 + i, V0, srd(SRD_WD), sB), "wdt"))
            if i >= 3: P.append(var[vi:vi + 2 * nv]); vi = min(vi + 2 * nv, len(var))
    P.append(var[vi:])
    for grp in range(2):
        SQ = 102 + 2 * grp
        P.append(L("v_add_f32 v%d, v%d, v%d", SQ, SQ, SQ + 1))
        P.append(red8(SQ))
        P.append(L("v_mul_f32 v%d, 0x%x, v%d", SQ, INV448, SQ))
        P.append(L("v_cvt_pk_bf16_f32 v%d, v%d, v%d\nv_lshlrev_b32 v%d, 16, v%d", SQ, SQ, SQ, SQ, SQ))
        P.append(L("v_add_f32 v%d, 0x3727c5ac, v%d", SQ, SQ))
        P.append(L("v_cvt_pk_bf16_f32 v%d, v%d, v%d\nv_lshlrev_b32 v%d, 16, v%d", SQ, SQ, SQ, SQ, SQ))
        P.append(L("v_sqrt_f32 v%d, v%d\ns_nop 0", SQ, SQ))
        P.append(L("v_cvt_pk_bf16_f32 v%d, v%d, v%d\nv_lshlrev_b32 v%d, 16, v%d", SQ, SQ, SQ, SQ, SQ))
        P.append(L("v_rcp_f32 v%d, v%d\nv_mov_b32 v%d, s%d\nv_mov_b32 v%d, 0", G[grp] + 1, SQ, G[grp] + 2, sTAG, G[grp] + 3))
        P.append(VM("buffer_store_dwordx4 %s, v%d, %s, s%d offen offset:%d sc1" % (vr(G[grp], 4), vSo2, srd(SRD_WS), sZt1, 128 * grp), "rst"))
    P.append(stamp("rstd"))
    P.append(L("s_cmp_lg_u32 s2, 0\ns_cbranch_scc1 L_h_end\ns_cmp_lg_u32 s%d, 0\ns_cbranch_scc1 L_h_end", sWV))
    P.append(L("v_lshlrev_b32 v%d, 7, v%d\nv_and_b32 v%d, 31, v%d\nv_lshlrev_b32 v%d, 7, v%d\ns_mov_b32 s%d, 0", V0, vL, V1, vL, V1, V1, sSPIN))
    P.append(RAW("L_ep_spin:"))
    for i in range(3):
        P.append("s_mov_b32 s%d, %d" % (sA, KF_OFF + 8192 * i))
        P.append(RAW("buffer_load_dword v%d, v%d, %s, s%d offen sc1" % (32 + i, V0, srd(SRD_WS), sA)))
    P.append("s_mov_b32 s%d, %d" % (sA, KF_OFF + 8192 * 3))
    P.append(RAW("buffer_load_dword v35, v%d, %s, s%d offen sc1" % (V1, srd(SRD_WS), sA)))
    for i in range(2):
        P.append("s_mov_b32 s%d, %d" % (sA, ST_OFF + 8192 * i + 4))
        P.append(RAW("buffer_load_dword v%d, v%d, %s, s%d offen sc1" % (36 + i, V0, srd(SRD_WS), sA)))
    P.append(WVM0())
    for i in range(6): P.append("v_xor_b32 v%d, s%d, v%d" % (32 + i, sTAG, 32 + i))
    for i in range(1, 6): P.append("v_or_b32 v32, v32, v%d" % (32 + i))
    P.append("v_cmp_ne_u32 vcc, 0, v32")
    P.append(L("s_add_u32 s%d, s%d, 1\ns_cmp_lt_u32 s%d, %d\ns_cbranch_scc0 L_ep_go", sSPIN, sSPIN, sSPIN, Cfg.spin))
    P.append("s_cbranch_vccz L_ep_go\ns_sleep 32\ns_branch L_ep_spin")
    P.append(RAW("L_ep_go:"))
    P.append("s_mov_b32 s%d, %d" % (sA, EP_OFF))
    P.append(RAW("buffer_store_dword a%d, v%d, %s, s%d offen sc1" % (aTag, vFlag0, srd(SRD_WS), sA)))
    P.append(RAW("L_h_end:"))
    P.append(diag_tail())
    P.append("s_endpgm")
    return P
Cfg.qstamps = False; Cfg.x_nost = False; Cfg.hpol = "sc1"; Cfg.kpos = 2; Cfg.hk_early = False; Cfg.loadtest = False; Cfg.wr_pre = 4; Cfg.tr_only = []; Cfg.zld_by = 110; Cfg.dprio = True; Cfg.sp3 = 4; Cfg.wd_min = [300, 340, 384, 404, 446, 0, 0]; Cfg.setup_by = 150; Cfg.x1_pro = 1; Cfg.h_rot = True; Cfg.h_order = 0; Cfg.cs2_at = 344; Cfg.abl = (); Cfg.sleeps = {}; Cfg.hflagm = 118; Cfg.h3poll_f = 15; Cfg.h3check = 22; Cfg.st_at = 8; Cfg.st_lag = 30; Cfg.plan2 = True; Cfg.h_hk = True; Cfg.h_wd = True; Cfg.gpref = 0; Cfg.amp = None; Cfg.ctouch = False; Cfg.ptouch = 0; Cfg.dbg = 0; Cfg.scramble = False; Cfg.h_var = 1; Cfg.trace = False

def generate(diag=False):
    Cfg.diag = diag
    stamp_n[0] = 0
    del slow_paths[:]; del stamp_names[:]
    ref = open("cdna_kernels/%s.s.ref" % NAME).read().split("\n")
    head = [l for l in ref if l.startswith(";") and "@launch" not in l]
    out = head + ["; @launch grid=(256,1,1) block=(256,1,1) lds=%d" % LDS_SIZE]
    out += ['.amdgcn_target "amdgcn-amd-amdhsa--gfx950"', ".text", ".globl %s_kernel" % NAME, ".p2align 8",
            ".type %s_kernel,@function" % NAME, "%s_kernel:" % NAME]
    pro, _ = resolve([prologue_common(), "s_cmp_lt_u32 s2, 32", "s_cbranch_scc1 L_helper"])
    del TRACE['names'][:]
    TRACE['only'] = Cfg.tr_only
    m, mx = resolve(gen_main(), trace=Cfg.trace)
    h, _ = resolve([RAW("L_helper:"), gen_helper()])
    body = pro + m + "\n".join(slow_paths).split("\n") + ["L_end_of_main:"] + h + ["L_exit:", "s_endpgm", "L_end_of_code:"]
    body = "\n".join(body).split("\n")
    if Cfg.abl:
        nb = []
        for l in body:
            drop = False
            if "hst" in Cfg.abl and l.startswith("buffer_store_dwordx4") and (" s%d offen" % sHst0 in l or " s%d offen" % sHst1 in l): drop = True
            if "zst" in Cfg.abl and l.startswith("buffer_store_dwordx4") and " s%d offen" % sZst in l: drop = True
            if "pst" in Cfg.abl and l.startswith("buffer_store_dwordx4") and " s%d offen" % sPst in l: drop = True
            if "kst" in Cfg.abl and l.startswith("buffer_store_dwordx4") and (" s%d offen" % sKst0 in l or " s%d offen" % sKst1 in l): drop = True
            if drop: l = l.replace("buffer_store_dwordx4 v[", "buffer_store_dword v").replace(l[l.index(":"):l.index("]") + 1], "", 1); import re as _re; l = _re.sub(r"^(buffer_store_dword v\d+), v\d+,", r"\1, v%d," % vFlag0, l)
            if "wd" in Cfg.abl and srd(SRD_WD) in l and " lds" in l: l = "buffer_load_dword v12, v%d, %s, 0 offen" % (vFlag0, srd(SRD_WD))
            if "chk" in Cfg.abl and l.startswith("s_cbranch_vccnz L_slow"): l = "s_nop 0"
            nb.append(l)
        body = nb
    bad = lintmod.lint(body)
    for b in bad: print("HAZARD", b)
    for l in body: out.append(l if l.endswith(":") else "    " + l)
    out += ['.section .rodata,"a"', ".p2align 6", ".amdhsa_kernel %s_kernel" % NAME,
            "  .amdhsa_next_free_vgpr 512", "  .amdhsa_next_free_sgpr 102", "  .amdhsa_accum_offset 256",
            "  .amdhsa_group_segment_fixed_size 0", "  .amdhsa_kernarg_size 104", "  .amdhsa_user_sgpr_count 2",
            "  .amdhsa_user_sgpr_kernarg_segment_ptr 1", "  .amdhsa_system_sgpr_workgroup_id_x 1",
            "  .amdhsa_float_denorm_mode_32 3", ".end_amdhsa_kernel"]
    return "\n".join(out) + "\n", mx

if __name__ == "__main__":
    diag = "--diag" in sys.argv
    for a in sys.argv[1:]:
        if a.startswith("--") and "=" in a:
            k, v = a[2:].split("=", 1)
            assert hasattr(Cfg, k), k
            setattr(Cfg, k, eval(v))
    txt, mx = generate(diag)
    path = sys.argv[1] if len(sys.argv) > 1 and not sys.argv[1].startswith("--") else "cdna_kernels/%s.s" % NAME
    open(path, "w").write(txt)
    if diag: print("stamps:", stamp_names)
    if Cfg.trace: open(path + ".names", "w").write("\n".join(TRACE["names"]))
    if "--usage" in sys.argv:
        import numpy as np
        np.set_printoptions(linewidth=200)
        u = np.array(Cfg._usage1)
        print(u[:232].reshape(29, 8)); print(u[232:].reshape(4, 36)); print(np.array(Cfg._usage2).reshape(14, 8))
        for k, v in Cfg._log1.items(): print(k, v[0], v[-1], len(v))
        print("vm", sorted(Cfg._vmtab)); print("vm2", sorted(getattr(Cfg, "_vmtab2", []))); print("rest", Cfg._rest)
    print("wrote", path, "lines", txt.count("\n"), "max outstanding vm", mx)
```

```python
import sys
from dsl import *
import lint as lintmod

NAME = "parallel_sum__ssm_conv_h3__glu_gated_bilinear__prompt"
S, D, F = 2048, 448, 1792

H_OFF   = 0x000000
KVT_OFF = 0x700000
Z_OFF   = 0x8C0000
ST_OFF  = 0xC40000
CS_OFF  = 0xC44000
ST2_OFF = 0xC54000
HF_OFF  = 0xC60000
KF_OFF  = 0xC80000
ZF_OFF  = 0xC90000
EP_OFF  = 0xCB8000
DG_OFF  = 0xCC0000
PX_OFF  = 0xD00000
TR_OFF  = 0x1100000
WS_SIZE = 0x1280000

WR = 0
XB = 98304
XS = 16640
KVR = 148224
CEX = XB + XS
REDA, REDB = XB + 2 * XS, 0
ZL = 16384
LDS_SIZE = 163840

SRD_X, SRD_K, SRD_V, SRD_SK, SRD_HK, SRD_DD, SRD_W1, SRD_WD, SRD_OUT, SRD_WS = [32 + 4 * i for i in range(10)]
def srd(b): return "s[%d:%d]" % (b, b + 3)
sWV, sMT, sFT, sT, sDT, sC2, sTAG, sWM, sWN = 72, 73, 74, 75, 76, 77, 78, 79, 80
sWL, sXL, sWo, sXo, sDo, sSPIN = 81, 82, 83, 84, 85, 86
sA, sB, sC, sD_ = 90, 91, 92, 93
sZt0, sZt1, sZt2 = 94, 95, 96
(sHst0, sHst1, sHfl, sKst0, sKst1, sKfl, sKld0, sKld1, sCs, sMn, sHL, sHS, sZst, sZfl, sZld, sSt2,
 sHcur, sHbase, sHlim, sPst, sPld, sHA, sHB, sKF, sHF, sZF) = range(4, 30)
sG = list(range(36, 43))
s4r = 30
sFG0 = 31

vL = 1
vA = [2, 3, 4, 5]; vA2 = [6, 7, 8, 9]; vB = [10, 11, 12, 13]
vW = [14, 15, 16, 17]; vX = [18, 19, 20, 21]; vWd = [22, 23, 24, 25]
vWdA = [26, 27]; vWdA2 = [28, 29]
vL16, vFlag0 = 30, 31
BF, AF, ACC = 80, 96, 128
T0, T1, T2, T3, T4, T5, T6, T7 = range(60, 68)
(aTag, aHsrc, aPsw, aPsr, aKst, aPollK, aCA0, aCA1, aCB, aCD, aOo, aPollH, aZst, aPollZ, aZld, aRr) = range(224, 240)
aStamp = 240
def vr(b, n): return "v[%d:%d]" % (b, b + n - 1)
def ar(b, n): return "a[%d:%d]" % (b, b + n - 1)
OOB = "0x80000000"
def stash(a, v): return "v_accvgpr_write_b32 a%d, v%d" % (a, v)
def unstash(v, a): return I("v_accvgpr_read_b32 v%d, a%d" % (v, a))

class Cfg:
    diag = False
    spin = 100000
    rot1 = "d"
    rot2 = True
    nt_kv = "nt"; nt_hk = ""; nt_w = ""; nt_x = ""; nt_wd = ""
    sleep = 4
    sp1 = 2; kx = 12; sp2 = 4
    prep_at = 16
    polls_at = 340
    polls_lag = 36
    kv_lag = 60
    wd_lag = 40
    nws = 4
    wd_after = {5: 1, 8: 1, 11: 1, 14: 1, 16: 1}
    hdma_u = 6
    hflag = 30
    hpoll = 56
    nfirst = 8
    zflag = 16; zpoll = 60; zlag = 30
    stamps_k = (2, 4, 7, 9, 12)
    b32 = 5; b16 = 1.5

slow_paths = []
def check(name, loads, cmp_ops, tags):
    sl = ["L_slow_%s:" % name, "s_mov_b32 s%d, 0" % sSPIN, "L_spin_%s:" % name, "s_sleep %d" % Cfg.sleeps.get(name, Cfg.sleep)]
    sl += loads + ["s_add_u32 s%d, s%d, 1" % (sSPIN, sSPIN), "s_waitcnt vmcnt(0)"] + cmp_ops
    sl += ["s_cmp_lt_u32 s%d, %d" % (sSPIN, Cfg.spin), "s_cbranch_scc0 L_res_%s" % name,
           "s_cbranch_vccnz L_spin_%s" % name, "s_branch L_res_%s" % name]
    slow_paths.append("\n".join(sl))
    return [WVM(*tags)] + [I(c) for c in cmp_ops[:-1]], [I(cmp_ops[-1]), I("s_cbranch_vccnz L_slow_%s" % name), RAW("L_res_%s:" % name)]
def flag_store(sreg, wait_tags):
    ops = [WVM(*wait_tags)] if wait_tags else []
    ops.append(VM("buffer_store_dword a%d, v%d, %s, s%d offen sc1" % (aTag, vFlag0, srd(SRD_WS), sreg), "flag"))
    return ops

stamp_n = [0]; stamp_names = []
def stamp(name=""):
    if Cfg.amp and name == Cfg.amp[0]: return [I("s_memrealtime s[88:89]"), WDS0()]
    if not Cfg.diag or (Cfg.trace and name not in ("b0", "end", "mean", "cs", "rstd")): return []
    n = stamp_n[0]; stamp_n[0] += 1
    assert n < (6 if Cfg.trace else 14)
    stamp_names.append(name)
    return [I("s_memtime s[98:99]"), WDS0(), I("v_accvgpr_write_b32 a%d, s98" % (aStamp + 2 + n))]
def diag_tail(main=False):
    if Cfg.amp and main:
        p = [WVM0(), stamp("end"), "s_memrealtime s[98:99]", WDS0()]
        p.append("s_sub_u32 s%d, s88, s100\ns_mul_i32 s%d, s%d, %d\ns_min_u32 s%d, s%d, 20000" % (sA, sA, sA, Cfg.amp[1], sA, sA))
        p.append(RAW("L_amp:"))
        p.append("s_memrealtime s[88:89]\ns_waitcnt lgkmcnt(0)\ns_sub_u32 s%d, s88, s98\ns_cmp_lt_u32 s%d, s%d\ns_cbranch_scc1 L_amp" % (sB, sB, sA))
        return p
    if not Cfg.diag: return []
    p = [WVM0(), stamp("end"), "s_memrealtime s[98:99]", WDS0()]
    p.append("v_accvgpr_write_b32 a%d, s88\nv_accvgpr_write_b32 a%d, s89" % (aStamp, aStamp + 1))
    p.append("v_mov_b32 v32, s100\nv_mov_b32 v33, s98")
    p.append("s_lshl_b32 s%d, s2, 2\ns_add_u32 s%d, s%d, s%d\ns_lshl_b32 s%d, s%d, 7\ns_add_u32 s%d, s%d, %d" % (sA, sA, sA, sWV, sA, sA, sA, sA, DG_OFF))
    for i in range(4): p.append(VM("buffer_store_dwordx4 %s, v%d, %s, s%d offen offset:%d" % (ar(aStamp + 4 * i, 4), vFlag0, srd(SRD_WS), sA, 16 * i)))
    p.append(VM("buffer_store_dwordx2 v[32:33], v%d, %s, s%d offen offset:%d" % (vFlag0, srd(SRD_WS), sA, 104)))
    if Cfg.dbg:
        p.append("s_load_dwordx2 s[44:45], s[0:1], 88\ns_waitcnt lgkmcnt(0)\ns_mov_b32 s46, 256\ns_mov_b32 s47, 0x00020000")
        p.append("s_lshl_b32 s%d, s2, 2\ns_add_u32 s%d, s%d, s%d\ns_cmp_eq_u32 s%d, %d\ns_cselect_b32 s%d, 0, 0x40000000" % (sA, sA, sA, sWV, sA, Cfg.dbg * 4, sA))
        p.append("s_sub_u32 s%d, s98, s100\nv_accvgpr_write_b32 a%d, s%d\ns_nop 1" % (sB, aStamp + 1, sB))
        for i in range(4): p.append(VM("buffer_store_dwordx4 %s, v%d, s[44:47], s%d offen offset:%d" % (ar(aStamp + 4 * i, 4), vFlag0, sA, 16 * i)))
    if Cfg.trace:
        p.append("s_lshl_b32 s%d, s2, 2\ns_add_u32 s%d, s%d, s%d\ns_mul_i32 s%d, s%d, 768\ns_add_u32 s%d, s%d, %d" % (sA, sA, sA, sWV, sA, sA, sA, sA, TR_OFF))
        p.append("v_lshlrev_b32 v32, 2, v%d" % vL)
        for i in range(3): p.append(VM("buffer_store_dword a%d, v32, %s, s%d offen offset:%d" % (248 + i, srd(SRD_WS), sA, 256 * i)))
    p.append(WVM0())
    return p

def build_srd(b, ptr, size):
    return ["s_mov_b32 s%d, s%d" % (b, ptr), "s_mov_b32 s%d, s%d" % (b + 1, ptr + 1),
            "s_mov_b32 s%d, %d" % (b + 2, size), "s_mov_b32 s%d, 0x00020000" % (b + 3)]
def tag_from_epoch(vE):
    return [I("v_readfirstlane_b32 s%d, v%d" % (sTAG, vE)), I("s_nop 3"),
            I("s_mul_i32 s%d, s%d, 1664525" % (sTAG, sTAG)), I("s_add_u32 s%d, s%d, 1013904223" % (sTAG, sTAG)),
            I("v_accvgpr_write_b32 a%d, s%d" % (aTag, sTAG))]
def advance(sreg, step, limit, base=0):
    return [I("s_add_u32 s%d, s%d, %d" % (sreg, sreg, step)),
            [I("s_cmp_eq_u32 s%d, %d" % (sreg, limit + base)), I("s_cselect_b32 s%d, %d, s%d" % (sreg, base, sreg))]]
def seqc():
    l = [(k, k, 0) for k in range(7)] + [(k + Cfg.lag - 0.5, k, 1) for k in range(7)]
    return [(k, p) for _, k, p in sorted(l)]
sWo1 = 87

def L(fmt, *a): return fmt % a

def gpref(tmpv, dst, pol=""):
    p = [L("s_cmp_eq_u32 s%d, 1\ns_cselect_b32 s%d, s20, s18\ns_cselect_b32 s%d, s21, s19", sWV, sC, sC + 1),
         L("s_cmp_eq_u32 s%d, 3\ns_cselect_b32 s%d, s22, s%d\ns_cselect_b32 s%d, s23, s%d", sWV, sC, sC, sC + 1, sC + 1),
         L("s_cmp_eq_u32 s%d, 2\ns_cselect_b32 s%d, s4, s%d\ns_cselect_b32 s%d, s5, s%d\ns_cselect_b32 s%d, 56, 49", sWV, sC, sC, sC + 1, sC + 1, sA),
         L("s_mul_i32 s%d, s2, s%d\ns_sub_u32 s%d, s%d, 1\nv_min_u32 v%d, s%d, v%d\nv_add_lshl_u32 v%d, v%d, s%d, 7", sB, sA, sA, sA, tmpv, sA, vL, tmpv, tmpv, sB),
         VM("global_load_dword v%d, v%d, s[%d:%d] %s" % (dst, tmpv, sC, sC + 1, pol), "prep")]
    return p

def prologue_common():
    p = ["s_cmp_ge_u32 s2, 256\ns_cbranch_scc1 L_exit"]
    if Cfg.diag: p.append("s_memrealtime s[100:101]\ns_memtime s[88:89]")
    elif Cfg.amp: p.append("s_memrealtime s[100:101]")
    p.append("s_load_dwordx16 s[4:19], s[0:1], 0\ns_load_dwordx8 s[20:27], s[0:1], 64\ns_load_dwordx2 s[28:29], s[0:1], 96")
    p.append(L("v_and_b32 v%d, 63, v0\nv_lshrrev_b32 v%d, 6, v0\nv_lshlrev_b32 v%d, 4, v%d", vL, T0, vL16, vL))
    p.append(L("v_readfirstlane_b32 s%d, v%d", sWV, T0))
    p.append(L("v_cmp_eq_u32 vcc, 0, v%d\nv_mov_b32 v%d, %s\nv_mov_b32 v%d, 0\nv_cndmask_b32 v%d, v%d, v%d, vcc", vL, T1, OOB, T2, vFlag0, T1, T2))
    return p

def dma_group(sL, ldsconst, vs, srd_b, sOff, tag, pol, adv):
    at = [I("s_add_u32 m0, s%d, %d" % (sL, ldsconst))]
    for q in range(4):
        op = VM("buffer_load_dwordx4 v%d, %s, s%d offen offset:%d %s lds" % (vs[q], srd(srd_b), sOff, q * 1024, pol), tag)
        at.append([I("s_nop 0"), op] if q == 0 else op)
    return at, advance(sOff, *adv)
def w_group(c):
    p = seqc()[c][1]
    return dma_group(sWL, WR + (c % 6) * 16384, vW, SRD_W1, sWo1 if p else sWo, ("W", c), Cfg.nt_w, (64 * 3584, 448 * 3584, 128 * p))
def x_group(c): return dma_group(sXL, (c % 3) * XS, vX, SRD_X, sXo, ("X", c), Cfg.nt_x, (128, 896))
WD_BASE = [XB + 256, 32768, 49152, 65536, 81920, 0, 16384]
def wd_group(u): return dma_group(sWL, WD_BASE[u], vWd, SRD_WD, sDo, ("WD", u), Cfg.nt_wd, (128 * 896, 896 * 896))
def wd_reads(u, n4):
    at = []
    for jd in range(2):
        for p in range(2):
            off = WD_BASE[u] + (n4 >> 1) * 8192 + (n4 & 1) * 2048 + p * 1024
            base = vWdA[jd]
            if off >= 0x10000: base = vWdA2[jd]; off -= 0x10000
            at.append(DS("ds_read_b64_tr_b16 %s, v%d offset:%d" % (ar(8 * (4 * u + n4) + 4 * jd + 2 * p, 2), base, off), ("WR", u, n4)))
    return at

KR, VR_, vEp, SKR, TAP, KFv, R0, R1, VF, OLO, OHI = 33, 44, 32, 52, 56, 60, 71, 72, 73, 76, 32
KQ, KHL = 81920, 157440

def gen_main():
    P = [RAW("L_main:")]
    if Cfg.scramble:
        P.append(L("s_lshr_b32 s%d, s2, 3\ns_lshr_b32 s%d, s2, 5\ns_lshl_b32 s%d, s%d, 1\ns_xor_b32 s%d, s%d, s%d\ns_and_b32 s%d, s%d, 7\ns_xor_b32 s2, s2, s%d", sA, sB, sA, sA, sA, sA, sB, sA, sA, sA))
    P.append(L("s_sub_u32 s%d, s2, 32\ns_and_b32 s%d, s2, 7\ns_lshr_b32 s%d, s%d, 3", sC2, sA, sB, sC2))
    P.append(L("s_lshr_b32 s%d, s%d, 2\ns_and_b32 s%d, s%d, 3", sDT, sB, sB, sB))
    P.append(L("s_lshl_b32 s%d, s%d, 2\ns_add_u32 s%d, s%d, s%d", sT, sA, sT, sT, sB))
    P.append(L("s_lshr_b32 s%d, s%d, 1\ns_lshl_b32 s%d, s%d, 2\ns_add_u32 s%d, s%d, s%d", sMT, sA, sMT, sMT, sMT, sMT, sB))
    P.append(L("s_and_b32 s%d, s%d, 1\ns_mul_i32 s%d, s%d, 7\ns_add_u32 s%d, s%d, s%d", sFG0, sA, sFT, sFG0, sFT, sFT, sDT))
    P.append(L("s_and_b32 s%d, s%d, 1\ns_lshr_b32 s%d, s%d, 1", sWM, sWV, sWN, sWV))
    P.append(L("s_lshl_b32 s%d, s%d, 12\ns_add_u32 s%d, s%d, %d", sWL, sWV, sXL, sWL, XB + 256))
    if Cfg.rot1 == "0": P.append(L("s_mov_b32 s%d, 0", sA))
    elif Cfg.rot1 == "2": P.append(L("s_xor_b32 s%d, s%d, s%d\ns_and_b32 s%d, s%d, 1\ns_lshl_b32 s%d, s%d, 2", sA, sMT, sFT, sA, sA, sA, sA))
    elif Cfg.rot1 == "d": P.append(L("s_add_u32 s%d, s%d, 1\ns_sub_u32 s%d, s%d, 7\ns_min_u32 s%d, s%d, s%d", sA, sDT, sC, sA, sA, sA, sC))
    elif Cfg.rot1 == "3":
        P.append(L("s_add_u32 s%d, s%d, s%d\ns_mul_i32 s%d, s%d, 3\ns_mov_b32 s%d, 0x%x\ns_lshr_b32 s%d, s%d, s%d\ns_and_b32 s%d, s%d, 7",
                   sA, sB, sDT, sA, sA, sC, sum(((0, 2, 5)[i % 3]) << (3 * i) for i in range(10)), sA, sC, sA, sA, sA))
    else:
        P.append(L("s_lshl_b32 s%d, s%d, 1\ns_add_u32 s%d, s%d, s%d\ns_sub_u32 s%d, s%d, 7\ns_min_u32 s%d, s%d, s%d", sA, sB, sA, sA, sDT, sC, sA, sA, sA, sC))
    P.append(L("s_mul_i32 s%d, s%d, %d\ns_lshl_b32 s%d, s%d, 7", sWo, sA, 64 * 3584, sXo, sA))
    P.append(L("s_add_u32 s%d, s%d, 128", sWo1, sWo))
    P.append(L("v_lshrrev_b32 v%d, 4, v%d", T0, vL))
    P.append(L("s_mul_i32 s%d, s%d, %d\ns_lshl_b32 s%d, s%d, 8\ns_add_u32 s%d, s%d, s%d", sA, sWM, 32 * 3584, sB, sFT, sA, sA, sB))
    P.append(L("v_lshrrev_b32 v%d, 3, v%d\nv_mul_u32_u24 v%d, 3584, v%d\ns_lshl_b32 s%d, s%d, 2", T1, vL, T1, T1, sB, sWN))
    P.append(L("v_and_b32 v%d, 1, v%d\nv_lshlrev_b32 v%d, 1, v%d\nv_or_b32 v%d, s%d, v%d\nv_and_b32 v%d, 7, v%d", T2, T0, T2, T2, T2, sB, T2, T3, vL))
    P.append(L("v_xor_b32 v%d, v%d, v%d\nv_lshlrev_b32 v%d, 4, v%d\nv_add3_u32 v%d, v%d, v%d, s%d", T2, T2, T3, T2, T2, vW[0], T1, T2, sA))
    for q in range(1, 4): P.append(L("v_add_u32 v%d, %d, v%d", vW[q], q * (8 * 3584 - 1024), vW[0]))
    P.append(L("s_lshl_b32 s%d, s%d, 2\ns_add_u32 s%d, s%d, s%d\ns_mul_i32 s%d, s%d, %d", sA, sMT, sA, sA, sWV, sA, sA, 32 * 896))
    P.append(L("v_lshrrev_b32 v%d, 3, v%d\nv_mul_u32_u24 v%d, 896, v%d\nv_and_b32 v%d, 7, v%d", T1, vL, T1, T1, T3, vL))
    P.append(L("v_xor_b32 v%d, v%d, v%d\nv_lshlrev_b32 v%d, 4, v%d\nv_add3_u32 v%d, v%d, v%d, s%d", T2, T3, T0, T2, T2, vX[0], T1, T2, sA))
    P.append(L("v_xor_b32 v%d, 64, v%d", T2, vX[0]))
    for q in range(1, 4): P.append(L("v_add_u32 v%d, %d, v%d", vX[q], q * (8 * 896 - 1024), T2 if q & 1 else vX[0]))
    P.append(WDS0())
    if Cfg.diag: P.append([I("s_memtime s[98:99]"), WDS0(), I("s_mov_b32 s89, s98")])
    P.append(L("s_cmp_ge_u32 s%d, 2\ns_cselect_b32 s%d, s20, s18\ns_cselect_b32 s%d, s21, s19", sWV, SRD_W1, SRD_W1 + 1))
    P.append(L("s_mov_b32 s%d, %d\ns_mov_b32 s%d, 0x00020000", SRD_W1 + 2, D * F * 2, SRD_W1 + 3))
    P.append(build_srd(SRD_X, 4, S * D * 2))
    if Cfg.gpref == 2: P.append(gpref(T4, 79))
    P.append(w_group(0)); P.append(x_group(0))
    if Cfg.gpref == 1: P.append(gpref(T4, 79))
    P.append(w_group(1))
    for b, ptr, size in ((SRD_K, 6, S * D * 2), (SRD_V, 8, S * D * 2), (SRD_SK, 10, D * 8), (SRD_HK, 12, D * S * 2 + 64), (SRD_DD, 14, D * 2),
                         (SRD_WD, 22, D * F * 2), (SRD_OUT, 24, S * D * 2), (SRD_WS, 28, WS_SIZE)):
        P.append(build_srd(b, ptr, size))
    P.append(L("s_mov_b32 s%d, %d\nv_mov_b32 v%d, 0", sA, EP_OFF, T4))
    P.append(VM("buffer_load_dword v%d, v%d, %s, s%d offen sc1" % (vEp, T4, srd(SRD_WS), sA), "prep"))
    if Cfg.ctouch:
        P.append(L("s_getpc_b64 s[%d:%d]\nv_lshlrev_b32 v%d, 7, v0\nv_min_u32 v%d, L_end_of_main-L_touch_base-4, v%d", sC, sC + 1, T4, T4, T4))
        P.append(RAW("L_touch_base:"))
        P.append(VM("global_load_dword v%d, v%d, s[%d:%d]" % (79, T4, sC, sC + 1), "prep"))
    if Cfg.ptouch:
        P.append(L("v_mul_u32_u24 v%d, %d, v0\nv_lshlrev_b32 v%d, 8, v%d", T4, Cfg.ptouch >> 8, T4, T4))
        P.append(VM("buffer_load_dword v%d, v%d, %s, 0 offen" % (79, T4, srd(SRD_WS)), "prep"))
        for sd in (SRD_OUT, SRD_WD, SRD_HK, SRD_DD, SRD_K, SRD_V):
            P.append(VM("buffer_load_dword v%d, v%d, %s, 0 offen" % (79, T4, srd(sd)), "prep"))
    P.append(L("s_mul_i32 s%d, s%d, %d\ns_lshl_b32 s%d, s%d, 7\ns_add_u32 s%d, s%d, s%d", sA, sFG0, 896 * 896, sB, sDT, sA, sA, sB))
    P.append(L("s_mul_i32 s%d, s%d, %d\ns_add_u32 s%d, s%d, s%d", sB, sWV, 32 * 896, sA, sA, sB))
    P.append(L("v_and_b32 v%d, 1, v%d\nv_lshlrev_b32 v%d, 2, v%d\nv_xor_b32 v%d, v%d, v%d\nv_lshlrev_b32 v%d, 4, v%d", T2, T0, T2, T2, T2, T2, T3, T2, T2))
    P.append(L("v_add3_u32 v%d, v%d, v%d, s%d", vWd[0], T1, T2, sA))
    for q in range(1, 4): P.append(L("v_add_u32 v%d, %d, v%d", vWd[q], q * (8 * 896 - 1024), vWd[0]))
    P.append(L("v_bfe_u32 v%d, v%d, 2, 2\nv_bfe_u32 v%d, v%d, 4, 1\nv_lshrrev_b32 v%d, 5, v%d", T0, vL, T1, vL, T2, vL))
    P.append(L("v_and_b32 v%d, 3, v%d\nv_lshlrev_b32 v%d, 3, v%d", T3, vL, T3, T3))
    P.append(L("v_lshl_add_u32 v%d, v%d, 3, v%d\nv_lshlrev_b32 v%d, 7, v%d\nv_lshl_add_u32 v%d, v%d, 13, v%d\nv_add_u32 v%d, v%d, v%d", T4, T2, T0, T4, T4, T4, T1, T4, T4, T4, T3))
    P.append(L("v_lshrrev_b32 v%d, 1, v%d\nv_lshl_or_b32 v%d, v%d, 1, v%d\ns_lshl_b32 s%d, s%d, 1\nv_xor_b32 v%d, s%d, v%d", T5, T0, T5, T1, T5, sA, sWM, T5, sA, T5))
    for jj in range(2):
        P.append(L("v_xor_b32 v%d, %d, v%d\nv_lshl_add_u32 v%d, v%d, 5, v%d\nv_add_u32 v%d, %d, v%d", vA[jj], jj, T5, vA[jj], vA[jj], T4, vA2[jj], 49152, vA[jj]))
    P.append(L("v_lshl_add_u32 v%d, v%d, 2, v%d\nv_lshlrev_b32 v%d, 7, v%d\ns_lshl_b32 s%d, s%d, 12", T4, T2, T0, T4, T4, sA, sWM))
    P.append(L("v_lshl_add_u32 v%d, v%d, 5, v%d\nv_add3_u32 v%d, v%d, v%d, s%d", T4, T1, T4, T4, T4, T3, sA))
    P.append(L("v_lshrrev_b32 v%d, 1, v%d\nv_xor_b32 v%d, s%d, v%d\nv_lshl_add_u32 v%d, v%d, 6, v%d", T5, T0, T5, sWM, T5, vWdA[0], T5, T4))
    P.append(L("v_xor_b32 v%d, 64, v%d\nv_add_u32 v%d, 0x10000, v%d\nv_add_u32 v%d, 0x10000, v%d", vWdA[1], vWdA[0], vWdA2[0], vWdA[0], vWdA2[1], vWdA[1]))
    P.append(L("v_and_b32 v%d, 31, v%d\nv_bfe_u32 v%d, v%d, 1, 3\nv_xor_b32 v%d, v%d, v%d", T6, vL, T1, vL, T1, T1, T2))
    P.append(L("s_lshl_b32 s%d, s%d, 13\ns_add_u32 s%d, s%d, %d\nv_lshlrev_b32 v%d, 7, v%d\nv_add_u32 v%d, s%d, v%d", sA, sWN, sA, sA, XB + 256, T0, T6, T0, sA, T0))
    for sp in range(4): P.append(L("v_xor_b32 v%d, %d, v%d\nv_lshl_add_u32 v%d, v%d, 4, v%d", vB[sp], 2 * sp, T1, vB[sp], vB[sp], T0))
    vKa, vKv, vKh = 68, 69, 70
    P.append(L("s_lshl_b32 s%d, s%d, 2\ns_add_u32 s%d, s%d, s%d\ns_mul_i32 s%d, s%d, %d\ns_lshl_b32 s%d, s%d, 7\ns_add_u32 s%d, s%d, s%d",
               sA, sT, sA, sA, sWV, sC, sA, 16 * 896, sB, sDT, s4r, sC, sB))
    P.append(L("s_add_u32 s%d, s%d, %d\ns_sub_u32 s%d, s%d, %d\ns_cmp_eq_u32 s%d, 0\ns_cselect_b32 s%d, 0x40000000, s%d", sZt1, s4r, 8 * 896 - 1024, sZt2, s4r, 8 * 896, sA, sZt2, sZt2))
    P.append(L("v_lshrrev_b32 v%d, 3, v%d\nv_mul_u32_u24 v%d, 896, v%d\nv_and_b32 v%d, 7, v%d\nv_lshl_add_u32 v%d, v%d, 4, v%d", T0, vL, R0, T0, T1, vL, R0, T1, R0))
    P.append(L("v_cmp_gt_u32 vcc, 40, v%d\nv_mov_b32 v%d, %s\ns_lshr_b32 s%d, s%d, 2\nv_cndmask_b32 v%d, v%d, v%d, vcc", vL, T0, OOB, sZt0, sWL, VF, R0, T0))
    P.append(L("s_lshl_b32 s%d, s%d, 9\nv_lshlrev_b32 v%d, 4, v%d", sD_, sDT, R1, T6))
    P.append(L("s_add_u32 s%d, s%d, %d\nv_lshl_add_u32 v%d, v%d, 2, s%d\nv_lshl_add_u32 v%d, v%d, 10, v%d\nv_add_u32 v%d, 2048, v%d", sA, sWL, KQ, T0, T6, sA, vKa, T2, T0, vKv, vKa))
    P.append(L("s_add_u32 s%d, s%d, %d\nv_lshl_add_u32 v%d, v%d, 2, s%d\nv_cmp_gt_u32 vcc, 32, v%d\ns_nop 1\nv_cndmask_b32 v%d, v%d, v%d, vcc\nv_add_u32 v%d, 640, v%d", sA, sZt0, KHL, T1, T6, sA, vL, vKh, T0, T1, vKh, vKh))
    def kd(srd_b, v, so, imm): return VM("buffer_load_dwordx4 v%d, %s, s%d offen offset:%d %s lds" % (v, srd(srd_b), so, imm, Cfg.nt_kv), "prep")
    kvl = [I("s_add_u32 m0, s%d, %d" % (sWL, KQ)), [I("s_nop 0"), kd(SRD_K, R0, s4r, 0)], kd(SRD_K, R0, sZt1, 1024),
           I("s_add_u32 m0, s%d, %d" % (sWL, KQ + 2048)), [I("s_nop 0"), kd(SRD_V, R0, s4r, 0)], kd(SRD_V, R0, sZt1, 1024),
           I("s_add_u32 m0, s%d, %d" % (sZt0, KHL)), [I("s_nop 0"), kd(SRD_K, VF, sZt2, 0)],
           VM("buffer_load_dwordx4 %s, v%d, %s, s%d offen" % (vr(SKR, 4), R1, srd(SRD_SK), sD_), "prep")]
    P.append(L("s_lshl_b32 s%d, s%d, 1\ns_add_u32 s%d, s%d, s%d\ns_lshl_b32 s%d, s%d, 12", sHS, sC2, sHS, sHS, sWN, sHS, sHS))
    P.append(L("v_and_b32 v%d, 15, v%d", T7, vL))
    P.append(L("s_lshl_b32 s%d, s%d, 18\ns_lshl_b32 s%d, s%d, 7\ns_sub_u32 s%d, s%d, s%d\ns_add_u32 s%d, s%d, %d\ns_add_u32 s%d, s%d, %d",
               sKst0, sDT, sA, sT, sKst0, sKst0, sA, sKst0, sKst0, KVT_OFF + 3968, sKst1, sKst0, 32 * 4096))
    P.append(L("s_lshl_b32 s%d, s%d, 5\ns_add_u32 s%d, s%d, s%d\ns_lshl_b32 s%d, s%d, 7\ns_add_u32 s%d, s%d, %d\ns_cmp_eq_u32 s%d, 0\ns_cselect_b32 s%d, s%d, 0x40000000",
               sA, sDT, sA, sA, sT, sA, sA, sA, sA, KF_OFF, sWV, sKfl, sA))
    P.append(L("s_lshl_b32 s%d, s%d, 1\ns_sub_u32 s%d, 7, s%d\nv_sub_u32 v%d, s%d, v%d\nv_and_b32 v%d, 7, v%d\nv_xor_b32 v%d, v%d, v%d", sA, sWV, sA, sA, T0, sA, T2, T1, vL, T0, T0, T1))
    P.append(L("v_lshlrev_b32 v%d, 4, v%d\nv_lshl_add_u32 v%d, v%d, 8, v%d\nv_lshrrev_b32 v%d, 4, v%d\nv_mul_u32_u24 v%d, 4608, v%d", T0, T0, T0, T7, T0, T3, T6, T3, T3))
    P.append(L("v_add_u32 v%d, v%d, v%d\nv_add_u32 v%d, %d, v%d", T0, T0, T3, T0, KVR, T0) + "\n" + stash(aPsw, T0))
    P.append(L("v_lshrrev_b32 v%d, 3, v0\nv_bfe_u32 v%d, v0, 4, 3\nv_xor_b32 v%d, v%d, v%d\nv_lshlrev_b32 v%d, 4, v%d", T0, T3, T3, T3, T1, T3, T3))
    P.append(L("v_lshl_add_u32 v%d, v%d, 7, v%d\nv_add_u32 v%d, %d, v%d", T3, T0, T3, T3, KVR, T3) + "\n" + stash(aPsr, T3))
    P.append(L("v_lshlrev_b32 v%d, 12, v%d\nv_lshl_add_u32 v%d, v%d, 4, v%d", T0, T0, T0, T1, T0) + "\n" + stash(aKst, T0))
    U0, U1, U2, U3, U4, U5, U6, U7 = range(88, 96)
    Q = []
    Q.append(L("v_lshrrev_b32 v%d, 5, v%d\nv_lshrrev_b32 v%d, 4, v%d\nv_and_b32 v%d, 31, v%d\nv_and_b32 v%d, 15, v%d", U2, vL, U5, vL, U6, vL, U7, vL))
    if Cfg.rot2:
        Q.append(L("s_and_b32 s%d, s%d, 3\ns_lshl_b32 s%d, s%d, 1\ns_add_u32 s%d, s%d, s%d\ns_sub_u32 s%d, s%d, 7\ns_min_u32 s%d, s%d, s%d", sA, sMT, sA, sA, sA, sA, sDT, sC, sA, sA, sA, sC))
    else: Q.append(L("s_mov_b32 s%d, 0", sA))
    Q.append(L("s_mul_i32 s%d, s%d, %d\ns_lshl_b32 s%d, s%d, 13", sDo, sA, 128 * 896, sHcur, sA))
    Q.append(L("s_lshl_b32 s%d, s%d, 1\ns_add_u32 s%d, s%d, s%d", sA, sMT, sA, sA, sWN))
    Q.append(L("s_lshl_b32 s%d, s%d, 1\ns_add_u32 s%d, s%d, s%d", sB, sFT, sB, sB, sWM))
    Q.append(L("s_lshl_b32 s%d, s%d, 9\ns_add_u32 s%d, s%d, %d", sMn, sA, sMn, sMn, ST_OFF))
    Q.append(L("s_lshl_b32 s%d, s%d, 2\ns_add_u32 s%d, s%d, s%d\ns_lshl_b32 s%d, s%d, 10\ns_add_u32 s%d, s%d, %d", sCs, sFT, sCs, sCs, sWM, sCs, sCs, sCs, sCs, CS_OFF))
    Q.append(L("s_mul_i32 s%d, s%d, 224\ns_lshl_b32 s%d, s%d, 2\ns_add_u32 s%d, s%d, s%d\ns_lshl_b32 s%d, s%d, 10\ns_add_u32 s%d, s%d, %d",
               sHst0, sA, sC, sB, sHst0, sHst0, sC, sHst0, sHst0, sHst1, sHst0, 112 * 1024))
    Q.append(L("s_lshl_b32 s%d, s%d, 5\ns_add_u32 s%d, s%d, s%d\ns_lshl_b32 s%d, s%d, 7\ns_add_u32 s%d, s%d, %d", sHfl, sA, sHfl, sHfl, sB, sHfl, sHfl, sHfl, sHfl, HF_OFF))
    Q.append(L("s_mov_b32 s%d, %d\ns_and_b32 s%d, s%d, 0xffffffe0\nv_add_lshl_u32 v%d, v%d, s%d, 7", sKF, KF_OFF, sA, sC2, U0, U6, sA) + "\n" + stash(aPollK, U0))
    Q.append(L("s_lshl_b32 s%d, s%d, 13\ns_add_u32 s%d, s%d, %d\ns_add_u32 s%d, s%d, 4096", sKld0, sC2, sKld0, sKld0, KVT_OFF, sKld1, sKld0))
    Q.append(L("s_mul_i32 s%d, s%d, %d\ns_add_u32 s%d, s%d, %d", sHL, sWN, XS, sHL, sHL, XB + XS))
    Q.append(("mark", "q1"))
    Q.append(L("v_lshrrev_b32 v%d, 7, v0\nv_mul_u32_u24 v%d, 4608, v%d\nv_and_b32 v%d, 127, v0\nv_lshl_add_u32 v%d, v%d, 2, v%d\nv_add_u32 v%d, %d, v%d\nv_mov_b32 v%d, 0", U3, U3, U3, U4, U3, U4, U3, U3, KVR + 4096, U3, U4))
    Q.append(DS("ds_write_b32 v%d, v%d" % (U3, U4), "kvw"))
    Q.append(L("v_and_b32 v%d, 3, v%d\nv_mul_u32_u24 v%d, 4160, v%d\nv_lshrrev_b32 v%d, 2, v%d\nv_lshl_add_u32 v%d, v%d, 3, v%d\nv_lshl_add_u32 v%d, v%d, 4, v%d", U3, U7, U3, U3, U0, U7, U3, U0, U3, U3, U5, U3))
    Q.append(L("s_lshl_b32 s%d, s%d, 8\ns_add_u32 s%d, s%d, s%d\nv_add_u32 v%d, s%d, v%d", sC, sWM, sC, sC, sHL, U3, sC, U3) + "\n" + stash(aCA0, U3))
    Q.append(L("v_mul_u32_u24 v%d, 4160, v%d\nv_lshl_add_u32 v%d, v%d, 2, v%d\nv_add_u32 v%d, s%d, v%d", U3, U5, U3, U7, U3, U3, sHL, U3) + "\n" + stash(aCA1, U3))
    Q.append(L("s_mul_i32 s%d, s%d, 4608\ns_add_u32 s%d, s%d, %d\ns_lshl_b32 s%d, s%d, 8\ns_add_u32 s%d, s%d, s%d\ns_add_u32 s%d, s%d, 480", sA, sWN, sA, sA, KVR, sC, sWM, sB, sA, sC, sB, sB))
    Q.append(L("v_lshlrev_b32 v%d, 5, v%d\nv_sub_u32 v%d, s%d, v%d\nv_lshl_add_u32 v%d, v%d, 4, v%d", U4, U7, U0, sB, U4, U0, U5, U0) + "\n" + stash(aCB, U0))
    Q.append(L("s_lshl_b32 s%d, s%d, 3\ns_sub_u32 s%d, s%d, s%d\ns_add_u32 s%d, s%d, %d", sC, sC, sB, sA, sC, sB, sB, 4088 - 1536))
    Q.append(L("v_sub_u32 v%d, s%d, v%d\nv_lshlrev_b32 v%d, 3, v%d\nv_sub_u32 v%d, v%d, v%d", U0, sB, U4, U4, U5, U0, U0, U4) + "\n" + stash(aCD, U0))
    Q.append(("mark", "q2"))
    Q.append(L("v_lshlrev_b32 v%d, 6, v%d\nv_lshl_add_u32 v%d, v%d, 4, v%d", U0, U7, U0, U5, U0) + "\n" + stash(aZst, U0))
    Q.append(L("s_lshl_b32 s%d, s%d, 1\ns_lshl_b32 s%d, s%d, 12\ns_add_u32 s%d, s%d, s%d\ns_add_u32 s%d, s%d, %d", sZst, sHS, sA, sWM, sZst, sZst, sA, sZst, sZst, Z_OFF))
    Q.append(L("s_lshl_b32 s%d, s%d, 1\ns_add_u32 s%d, s%d, s%d\ns_lshl_b32 s%d, s%d, 1\ns_add_u32 s%d, s%d, s%d", sA, sMT, sA, sA, sWN, sA, sA, sA, sA, sFG0))
    Q.append(L("s_lshl_b32 s%d, s%d, 1\ns_add_u32 s%d, s%d, s%d", sB, sDT, sB, sB, sWM))
    Q.append(L("s_lshl_b32 s%d, s%d, 18\ns_lshl_b32 s%d, s%d, 7\ns_add_u32 s%d, s%d, s%d\ns_add_u32 s%d, s%d, %d", sZld, sB, sC, sA, sZld, sZld, sC, sZld, sZld, Z_OFF))
    Q.append(L("s_lshl_b32 s%d, s%d, 9\ns_add_u32 s%d, s%d, %d", sSt2, sA, sSt2, sSt2, ST2_OFF))
    Q.append(L("s_and_b32 s%d, s%d, 0xfffffffe\ns_mul_i32 s%d, s%d, %d\ns_mul_i32 s%d, s%d, %d\ns_sub_u32 s%d, %d, s%d", sC, sA, sHbase, sC, 112 * 1024, sHB, sFG0, 112 * 1024, sHA, 112 * 1024, sHB))
    Q.append(L("s_mul_i32 s%d, s%d, %d\ns_lshl_b32 s%d, s%d, 6\ns_add_u32 s%d, s%d, s%d", sA, sA, 32 * 896, sC, sB, sA, sA, sC))
    Q.append(L("v_mul_u32_u24 v%d, 896, v%d\nv_lshlrev_b32 v%d, 4, v%d\nv_add3_u32 v%d, v%d, v%d, s%d", U0, U6, U1, U2, U0, U0, U1, sA) + "\n" + stash(aOo, U0))
    Q.append(L("v_lshrrev_b32 v%d, 2, v%d\nv_lshl_add_u32 v%d, v%d, 3, v%d\nv_lshlrev_b32 v%d, 6, v%d\nv_and_b32 v%d, 1, v%d\nv_lshl_add_u32 v%d, v%d, 5, v%d", U0, U7, U0, U2, U0, U0, U0, U1, U5, U0, U1, U0))
    Q.append(L("v_and_b32 v%d, 3, v%d\nv_lshl_add_u32 v%d, v%d, 3, v%d\ns_lshr_b32 s%d, s%d, 1\ns_add_u32 s%d, s%d, %d\nv_add_u32 v%d, s%d, v%d", U1, U7, U0, U1, U0, sZfl, sWL, sZfl, sZfl, ZL, U0, sZfl, U0) + "\n" + stash(aPollZ, U0))
    Q.append(L("v_lshrrev_b32 v%d, 3, v%d\nv_lshlrev_b32 v%d, 13, v%d\nv_and_b32 v%d, 7, v%d\nv_lshl_add_u32 v%d, v%d, 4, v%d", U0, vL, U0, U0, U1, vL, U0, U1, U0) + "\n" + stash(aZld, U0))
    Q.append(L("v_lshlrev_b32 v%d, 10, v%d\nv_lshl_add_u32 v%d, v%d, 4, v%d\nv_add_u32 v%d, s%d, v%d", U0, U2, U0, U6, U0, U0, sWL, U0) + "\n" + stash(aRr, U0))
    Q.append(L("s_lshl_b32 s%d, s%d, 2\ns_add_u32 s%d, s%d, s%d\ns_mul_i32 s%d, s%d, 3072\ns_add_u32 s%d, s%d, %d", sA, sC2, sA, sA, sWV, sPld, sA, sPld, sPld, PX_OFF))
    Q.append(L("s_xor_b32 s%d, s%d, 4\ns_mul_i32 s%d, s%d, 3072\ns_add_u32 s%d, s%d, %d", sA, sA, sPst, sA, sPst, sPst, PX_OFF))
    Q.append(L("s_mov_b32 s%d, %d", sHF, HF_OFF))
    Q.append(L("s_mul_i32 s%d, s%d, 14\ns_add_u32 s%d, s%d, s%d", sB, sFG0, sB, sB, sWM))
    Q.append(L("s_lshl_b32 s%d, s%d, 12\ns_add_u32 s%d, s%d, s%d\ns_add_u32 s%d, s%d, %d\ns_add_u32 s%d, s%d, s%d",
               sC, sB, sHbase, sHbase, sC, sHlim, sHbase, 56 * 1024, sHcur, sHbase, sHcur))
    Q.append(L("s_lshl_b32 s%d, s%d, 1\ns_add_u32 s%d, s%d, s%d\ns_lshl_b32 s%d, s%d, 5\ns_add_u32 s%d, s%d, s%d", sC, sMT, sC, sC, sWN, sC, sC, sA, sB, sC))
    Q.append(L("v_min_u32 v%d, 6, v%d\nv_lshlrev_b32 v%d, 1, v%d\nv_add_lshl_u32 v%d, v%d, s%d, 7", U0, vL, U0, U0, U0, U0, sA) + "\n" + stash(aPollH, U0))
    qparts = [[]]
    for it in Q:
        if isinstance(it, tuple): qparts.append([])
        else: flatten(it, qparts[-1])
    RQ = Cfg.rq
    SQC = seqc(); posa = {k: c for c, (k, p) in enumerate(SQC) if p == 0}
    C1 = max(Cfg.c1, posa[6] + 1)
    frs = []
    seq = []
    def addfrag(c, s4, jj):
        frs.append((c, s4, jj)); seq.extend([("m", len(frs) - 1, 0), ("m", len(frs) - 1, 1)])
    for c in range(14 - RQ):
        if c == C1: seq.extend(("c", t) for t in range(4))
        for s4 in range(4):
            for jj in range(2): addfrag(c, s4, jj)
    for jj in range(2):
        for c in range(14 - RQ, 14):
            for s4 in range(4): addfrag(c, s4, jj)
        seq.extend([("c", 4 + 2 * jj), ("c", 5 + 2 * jj)])
    assert len(seq) == 232 and C1 < 14 - RQ, (C1, RQ)
    use = {}; ctick = {}
    for n, e in enumerate(seq):
        if e[0] == "m": use.setdefault(e[1], 2 * n)
        else: ctick[e[1]] = 2 * n
    first = {}
    for i, (c, s4, jj) in enumerate(frs): first.setdefault(c, use[i])
    TB = {c: first[c] - Cfg.blead - (8 if c == C1 else 0) for c in range(1, 14)}
    A_CONV = 2 * 232
    def barr(i): return TB[i]
    def conv_anchor(g): return A_CONV + g
    T_BC = A_CONV - Cfg.bc; T_BW = conv_anchor(Cfg.bw)
    def xread(ks, nt): return DS("ds_read_b128 %s, v%d offset:%d" % (ar(8 * ks + 4 * nt, 4), vB[ks & 3], ((ks >> 2) % 3) * XS + nt * 4096), ("FX", ks))
    def aread(i):
        c, s4, jj = frs[i]; slot = c % 6
        base = vA[jj] if slot < 3 else vA2[jj]
        return [DS("ds_read_b64_tr_b16 %s, v%d offset:%d" % (vr(AF + 4 * (i & 7) + 2 * p, 2), base, (slot % 3) * 16384 + s4 * 2048 + p * 512), ("FA", i)) for p in range(2)]
    def freads(i):
        c, s4, jj = frs[i]
        k, p = SQC[c]
        return ([xread(4 * k + s4, 0), xread(4 * k + s4, 1)] if (p == 0 and jj == 0) else []) + aread(i)
    qall = qparts[0] + qparts[1] + qparts[2]
    P.append(qall[:Cfg.q_pro])
    if Cfg.x1_pro: P.append(x_group(1))
    P.append([WVM(("W", 0), ("X", 0)), I("s_barrier")])
    P.append(freads(0) + freads(1))
    P.append(stamp("b0"))
    sS = Stream("setup")
    sS.addall(qall[Cfg.q_pro:] + [I("s_nop 0")], by=Cfg.setup_by, key="setup")
    cur = []
    for j in range(7):
        cur.append(I("s_mov_b32 s%d, s%d" % (sG[j], sHcur)))
        if j < 6: cur += [I("s_add_u32 s%d, s%d, 8192" % (sHcur, sHcur)), [I("s_cmp_eq_u32 s%d, s%d" % (sHcur, sHlim)), I("s_cselect_b32 s%d, s%d, s%d" % (sHcur, sHbase, sHcur))]]
    sS.addall(cur, after=("kvl", 2), by=200)
    sF = Stream("frag", cap=2)
    for i in range(2, 112):
        c = frs[i][0]
        ea = max(TB.get(c, 0), use[i - 8] + 4 if i >= 8 else 0)
        by = use[i] - 6
        if c + 1 <= 14 - RQ: by = min(by, TB[c + 1] - 2)
        by = min(by, T_BC - 2)
        assert ea <= by, (i, ea, by)
        sF.addall(freads(i), at=ea, by=by)
    sD = Stream("dma")
    def addgrp(g, at, sp, key=None, by=None):
        at_, adv = g
        if key == ("w", 5): sD.add(WDS("kr"), after=("kread", 2))
        sps = sp if isinstance(sp, tuple) else (sp,) * 4
        sD.add(at_[0], at=at, space=max(sps[0] - 2, 0)); sD.add(at_[1])
        for i, a in enumerate(at_[2:]): sD.add(a, space=sps[i + 1], key=key if i == 2 else None, by=by)
        for a in adv: sD.add(a)
    sR = Stream("wdread", cap=2)
    vHs = vX[0]
    WD_AT = [barr(posa[6] + 1)] + [barr(c + 1) if c + 1 <= 14 - RQ else T_BC for c in range(8, 14)]
    srt = sorted(zip(WD_AT, [XB + 256, 32768, 49152, 65536, 81920, 0, 16384]), key=lambda z: z[0])
    WD_AT = [z[0] for z in srt]; WD_BASE[:] = [z[1] for z in srt]
    order = []
    for c in range(1, 14):
        k, p = SQC[c]
        if p == 0 and not (k == 1 and Cfg.x1_pro): order.append(("X", k))
        if c >= 2: order.append(("W", c))
    order.insert(Cfg.kpos, ("K", 0))
    KX = order.index(("W", Cfg.plan_from)) if Cfg.plan_from < 14 else len(order)
    order += [("D", u) for u in Cfg.d_order]
    for n, (kind, i) in enumerate(order):
        sp = (Cfg.sp1 if n < Cfg.kx else Cfg.sp2) if n < KX else 0
        if n == KX: nplain = len(sD.items)
        if kind == "W": addgrp(w_group(i), max(barr(i - 5) if i >= 6 else 0, Cfg.w_min.get(i, 0), barr(i) - Cfg.lead), sp, key=("w", i), by=barr(i) - Cfg.minlead)
        elif kind == "X": addgrp(x_group(i), max(barr(posa[i - 3] + 1) if i >= 3 else 0, barr(posa[i]) - Cfg.lead - 16), sp, by=barr(posa[i]) - Cfg.minlead)
        elif kind == "K": sD.addall(kvl, key="kvl")
        elif kind == "H": pass
        else:
            addgrp(wd_group(i), max(WD_AT[i], Cfg.wd_min[i]), 0, by=T_BW - 2 * Cfg.minlead)
    for f in range(Cfg.wr_pre): sR.addall(wd_reads(f % 7, f // 7), at=T_BW, by=conv_anchor(143))
    sP = Stream("prep")
    def unp(dst, src, hi): return I("v_and_b32 v%d, 0xffff0000, v%d" % (dst, src)) if hi else I("v_lshlrev_b32 v%d, 16, v%d" % (dst, src))
    rd = [DS("ds_read_b32 v%d, v%d" % (KR, vKh), "kr"), DS("ds_read2_b32 %s, v%d offset0:32 offset1:64" % (vr(KR + 1, 2), vKh), "kr")]
    rd += [DS("ds_read2_b32 %s, v%d offset0:%d offset1:%d" % (vr(KR + 3 + o, 2), vKa, 32 * o, 32 * o + 32), "kr") for o in range(0, 8, 2)]
    rd += [DS("ds_read2_b32 %s, v%d offset0:%d offset1:%d" % (vr(VR_ + o, 2), vKv, 32 * o, 32 * o + 32), "kr") for o in range(0, 8, 2)]
    sP.addall([[WVM("prep"), rd[0]]] + rd[1:], after=("kvl", Cfg.prep_lag), key="kread", by=barr(5) - Cfg.minlead - 12)
    at = tag_from_epoch(vEp)
    for b in range(2):
        for i in range(4): at.append(unp(TAP + i, SKR + 2 * b + (i >> 1), i & 1))
        for a in range(11): at.append([WDS("kr"), unp(KFv + a, KR + a, b)] if (a, b) == (0, 0) else unp(KFv + a, KR + a, b))
        out = OHI if b else OLO
        for w in range(4):
            for (o, R) in ((7 - 2 * w, R0), (6 - 2 * w, R1)):
                at.append(I("v_mul_f32 v%d, v%d, v%d" % (R, KFv + o, TAP + 3)))
                for i in (2, 1, 0): at.append(I("v_fmac_f32 v%d, v%d, v%d" % (R, KFv + o + 3 - i, TAP + i)))
                at.append(unp(VF, VR_ + o, b))
                at.append(I("v_mul_f32 v%d, v%d, v%d" % (R, R, VF)))
            at.append(I("v_cvt_pk_bf16_f32 v%d, v%d, v%d" % (out + w, R0, R1)))
    at.append(unstash(R0, aPsw))
    at.append(DS("ds_write_b128 v%d, %s" % (R0, vr(OLO, 4)), "psw"))
    at.append(DS("ds_write_b128 v%d, %s offset:128" % (R0, vr(OHI, 4)), "psw"))
    B_psw = Cfg.b_psw
    sP.addall(at, by=barr(B_psw) - 2)
    at = [unstash(R1, aPsr), DS("ds_read_b128 %s, v%d" % (vr(36, 4), R1), "psr"), DS("ds_read_b128 %s, v%d offset:4608" % (vr(40, 4), R1), "psr"),
          unstash(R0, aKst)]
    sP.addall(at, at=barr(B_psw), by=barr(B_psw) + 4)
    sP.add([WDS("psr"), VM("buffer_store_dwordx4 %s, v%d, %s, s%d offen sc1" % (vr(36, 4), R0, srd(SRD_WS), sKst0), "kvst")], at=barr(B_psw) + 10, by=barr(B_psw) + 16)
    sP.add(VM("buffer_store_dwordx4 %s, v%d, %s, s%d offen sc1" % (vr(40, 4), R0, srd(SRD_WS), sKst1), "kvst"), by=barr(B_psw) + 20, key="prepdone")
    B_kvst = B_psw + Cfg.kv_ack
    sP.add(flag_store(sKfl, []), at=barr(B_kvst), by=barr(B_kvst))
    CSF, MB, vPk, vPo, vCo, vMo, KV, vKw, vU0, vU1, vU2 = 32, 48, 56, 57, 58, 59, 14, 60, 4, 5, 8
    assert min(Cfg.cs_at, Cfg.polls_at, Cfg.t_at) > barr(B_psw) + 22
    sQ = Stream("cs")
    ldC = ["buffer_load_dwordx4 %s, v%d, %s, s%d offen offset:%d sc1" % (vr(CSF + 4 * jj, 4), vCo, srd(SRD_WS), sCs, 2048 * (jj >> 1) + 512 * (jj & 1)) for jj in range(4)]
    ldM = ["buffer_load_dwordx2 %s, v%d, %s, s%d offen offset:%d sc1" % (vr(MB + 4 * nt, 2), vMo, srd(SRD_WS), sMn, 256 * nt) for nt in range(2)]
    sQ.addall([I("v_and_b32 v%d, 511, v%d" % (vCo, vL16)), I("v_lshrrev_b32 v%d, 1, v%d" % (vMo, vCo))] + [VM(x, "cs") for x in ldC[:2] + ldM], at=Cfg.cs_at - 2, by=Cfg.cs_at + 60)
    cmp_ops = ["v_xor_b32 v%d, s%d, v%d" % (vU0, sTAG, CSF + 3), "v_xor_b32 v%d, s%d, v%d" % (vU1, sTAG, CSF + 7), "v_xor_b32 v%d, s%d, v%d" % (vU2, sTAG, MB + 1),
               "v_or3_b32 v%d, v%d, v%d, v%d" % (vU0, vU0, vU1, vU2), "v_xor_b32 v%d, s%d, v%d" % (vU1, sTAG, MB + 5), "v_or_b32 v%d, v%d, v%d" % (vU0, vU0, vU1),
               "v_cmp_ne_u32 vcc, 0, v%d" % vU0]
    c1, c2 = check("C", ldC[:2] + ldM, cmp_ops, ["cs"])
    T_CORR = ctick[0]
    sQ.addall(c1, at=T_CORR - Cfg.cs_chk, by=T_CORR - 14)
    sQ.add(c2, by=T_CORR - 14)
    at = [I("v_mov_b32 v%d, 0" % (CSF + 4 * jj + 3)) for jj in range(2)]
    for nt in range(2):
        b = MB + 4 * nt
        at.append(I("v_xor_b32 v%d, 0x80000000, v%d" % (b, b)))
        at.append([I("v_cmp_gt_u32 vcc, 32, v%d" % vL), I("v_mov_b32 v%d, 0" % (b + 2)), I("v_mov_b32 v%d, 0" % (b + 3)), I("v_cndmask_b32 v%d, 0, v%d, vcc" % (b, b))])
        at.append(I("v_lshrrev_b32 v%d, 16, v%d" % (b + 1, b)))
        at.append(I("v_or_b32 v%d, v%d, v%d" % (b, b, b + 1)))
    sQ.addall(at, by=T_CORR - 6)
    sQ.addall([VM(x, "cs2") for x in ldC[2:]], at=Cfg.cs2_at, by=Cfg.cs2_at + 24)
    cmp_ops = ["v_xor_b32 v%d, s%d, v%d" % (vU0, sTAG, CSF + 11), "v_xor_b32 v%d, s%d, v%d" % (vU1, sTAG, CSF + 15), "v_or_b32 v%d, v%d, v%d" % (vU0, vU0, vU1), "v_cmp_ne_u32 vcc, 0, v%d" % vU0]
    c1, c2 = check("C2", ldC[2:], cmp_ops, ["cs2"])
    sQ.addall(c1, at=ctick[4] - 14, by=ctick[4] - 10)
    sQ.add(c2, by=ctick[4] - 10)
    sQ.addall([I("v_mov_b32 v%d, 0" % (CSF + 4 * jj + 3)) for jj in range(2, 4)], by=ctick[4] - 6)
    sK = Stream("kv")
    if Cfg.kv_alt: KV = 10 - 10 + 62
    ldK = "buffer_load_dword v%d, v%d, %s, s%d offen sc1" % (vPk, vPo, srd(SRD_WS), sKF)
    sK.addall([unstash(vPo, aPollK), VM(ldK, "pollK")], at=Cfg.polls_at - 2, by=Cfg.polls_at + 8)
    c1, c2 = check("K", [ldK], ["v_cmp_ne_u32 vcc, s%d, v%d" % (sTAG, vPk)], ["pollK"])
    pc = Cfg.polls_at + Cfg.polls_lag
    sK.add([c1, c2], at=pc, by=pc)
    sK.add(I("v_lshlrev_b32 v%d, 4, v0" % vKw), after=("hcdone" if Cfg.kv_alt else ("w", 13), 4 if Cfg.kv_alt else 0))
    sK.add(VM("buffer_load_dwordx4 %s, v%d, %s, s%d offen sc1" % (vr(KV, 4), vKw, srd(SRD_WS), sKld0), "kvld"))
    sK.add(VM("buffer_load_dwordx4 %s, v%d, %s, s%d offen sc1" % (vr(KV + 4, 4), vKw, srd(SRD_WS), sKld1), "kvld"), by=pc + 24)
    sK.add(I("v_add_u32 v%d, %d, v%d" % (vKw, KVR, vKw)))
    sK.add([WVM("kvld"), DS("ds_write_b128 v%d, %s" % (vKw, vr(KV, 4)), "kvw")], at=min(pc + Cfg.kv_lag, T_BC - 14), by=T_BC - 12)
    sK.add(DS("ds_write_b128 v%d, %s offset:4608" % (vKw, vr(KV + 4, 4)), "kvw"), by=T_BC - 8, space=4)
    RV, SA_, SB_, vHw = 70, 62, 88, 61
    sG_ = Stream("hc")
    sG_.add([I("s_lshl_b32 s%d, s%d, 11" % (sZt0, sWM)), I("v_lshl_add_u32 v%d, v%d, 1, s%d" % (vHw, vL16, sZt0))], after=("prepdone", 4), at=Cfg.t_at)
    sG_.addall([VM("buffer_load_dwordx4 %s, v%d, %s, s%d offen %s" % (vr(RV, 4), vHw, srd(SRD_HK), sHS, Cfg.nt_hk), "hkl"),
                VM("buffer_load_dwordx4 %s, v%d, %s, s%d offen offset:16 %s" % (vr(RV + 4, 4), vHw, srd(SRD_HK), sHS, Cfg.nt_hk), "hkl"),
                VM("buffer_load_dwordx2 %s, v%d, %s, s%d offen offset:32 %s" % (vr(RV + 8, 2), vHw, srd(SRD_HK), sHS, Cfg.nt_hk), "hkl")], by=Cfg.t_at + 60)
    sG_.addall([I("v_and_b32 v9, 15, v%d" % vL), I("v_lshrrev_b32 v69, 4, v%d" % vL), I("v_lshl_add_u32 v9, v9, 1, v69"), I("v_subrev_u32 v9, 15, v9"),
                I("v_lshlrev_b32 v9, 1, v9"), I("v_add_u32 v69, 2, v9"),
                VM("buffer_load_ushort v9, v9, %s, s%d offen" % (srd(SRD_HK), sHS), "hkl"), VM("buffer_load_ushort v69, v69, %s, s%d offen" % (srd(SRD_HK), sHS), "hkl")])
    sG_.add(I("v_add_u32 v%d, s%d, v%d" % (vHw, sHL, vHw)), after=("setup", 2))
    def hw(c, base, tag="kvw"): return [DS("ds_write_b128 v%d, %s offset:%d" % (vHw, vr(base + 4 * q, 4), 4160 * c + 32 + 16 * q), tag) for q in range(2)]
    def al(dst, k): return I("v_alignbyte_b32 v%d, v%d, v%d, 2" % (dst, RV + k + 1, RV + k))
    mv = [I("v_mov_b32 v%d, v%d" % (SB_ + k, RV + 1 + k)) for k in range(8)]
    w1, w3, w0, w2 = hw(1, SB_, "hw1"), hw(3, RV + 2), hw(0, SA_), hw(2, SB_)
    at = [[WVM("hkl"), I("v_lshl_or_b32 v9, v69, 16, v9")]] + mv[0:4] + [w1[0]] + mv[4:] + [w1[1]] + [al(SA_ + k, k) for k in range(4)] + [w3[0]] + [al(SA_ + k, k) for k in range(4, 8)] + [w3[1], w0[0]]
    at += [[WDS("hw1"), al(SB_, 1)]] + [al(SB_ + k, k + 1) for k in range(1, 4)] + [w0[1]] + [al(SB_ + k, k + 1) for k in range(4, 8)] + w2
    at += [unstash(vHw, aCA1), DS("ds_write_b32 v%d, v9" % vHw, "kvw")]
    HC_AT = max(Cfg.hc_at, barr(posa[5] + 1))
    prevw = False
    for i, x in enumerate(at):
        isw = isinstance(x, Op) and x.kind == "ds" and "b128" in x.text
        sG_.add(x, at=HC_AT if i == 0 else None, space=4 if (isw and prevw) else 0, by=Cfg.hc_by, key="hcdone" if i == len(at) - 1 else None)
        prevw = isw
    sE = Stream("epi")
    vCA0, vCA1, vCB, vCD, vOo, vDv, vHo, vHp, vHt, vHA, vHB = 14, 15, 16, 17, 19, 20, 21, 13, 18, 10, 11
    def hflag(word, tags):
        return [WVM(*tags), VM("buffer_store_dword a%d, v%d, %s, s%d offen offset:%d sc1" % (aTag, vFlag0, srd(SRD_WS), sHfl, 4 * word), "flag")]
    for tl in range(8):
        jj, nt = tl >> 1, tl & 1
        a = ACC + tl * 16
        at = [I("v_mul_f32 v%d, v%d, v%d" % (a + r, a + r, a + r + 8)) for r in range(8)]
        at += [I("v_cvt_pk_bf16_f32 v%d, v%d, v%d" % (a + 8 + w, a + 2 * w, a + 2 * w + 1)) for w in range(4)]
        at.append(VM("buffer_store_dwordx4 %s, v%d, %s, s%d offen offset:%d %s" % (vr(a + 8, 4), vL16, srd(SRD_WS), sHst1 if nt else sHst0, jj * 1024, Cfg.hpol), ("hst", 0 if tl < 4 else (tl >> 1) - 1)))
        ea = ctick[tl] + 4 + (Cfg.hs_gap * tl if tl < 4 else 0)
        if ea >= A_CONV: ea += 1
        sE.addall(at, at=ea, by=ea + 20 if tl < 6 else conv_anchor(Cfg.epi_by), key=("epi", tl))
    sL_ = Stream("flags")
    sL_.add(hflag(0, [("hst", 0)]), at=Cfg.hflag0, by=Cfg.hflag0, after=(("epi", 3), 1))
    if Cfg.st3: sE.add(hflag(1, [("hst", 1)]), at=conv_anchor(Cfg.hflagm), by=conv_anchor(Cfg.hflagm))
    if Cfg.hflag1 < 144: sE.add(hflag(2, [("hst", 2)]), at=conv_anchor(Cfg.hflag1), by=conv_anchor(Cfg.hflag1))
    CACC = 32
    def cA(dd, r): return 128 + 64 * (dd & 1) + 8 * r
    def cB(dd, m): return 128 + 64 * (dd & 1) + 8 * m + 4
    def conv_reads(dd, r):
        at = [DS("ds_read_b64 %s, v%d offset:%d" % (vr(cA(dd, r) + half * 2, 2), vCA0, 64 * dd + 512 * r + 8 * half), ("C", dd, r)) for half in range(2)]
        at.append(DS("ds_read_b128 %s, v%d offset:%d" % (vr(cB(dd, r), 4), vCB, 3584 - 512 * r + 64 * dd), ("C", dd, r)))
        return at
    pairs = sorted([(r, m) for r in range(8) for m in range(8 - r)], key=lambda p: (max(p), p))
    first_use = {}
    for i, p in enumerate(pairs): first_use.setdefault(max(p), i)
    sC_ = Stream("convrd", cap=3)
    sC_.addall([unstash(vCA0, aCA0), unstash(vCB, aCB), unstash(vCD, aCD)], at=T_BC)
    for r in range(8): sC_.addall(conv_reads(0, r), at=T_BC, after=(("epi", r >> 1), 1), by=conv_anchor(first_use[r] - 6))
    for r in range(8): sC_.addall(conv_reads(1, r), after=(("epi", 4 + (r >> 1)), 1), by=conv_anchor(36 + first_use[r] - 8))
    for dd in (2, 3):
        for r in range(8): sC_.addall(conv_reads(dd, r), at=conv_anchor(36 * (dd - 1)), by=min(conv_anchor(36 * dd + first_use[r] - 8), T_BW - 3))
    XE = 2; vXA = 19
    sM = Stream("misc")
    if Cfg.rot1 == "d":
        sM.addall([[I("s_lshl_b32 s%d, s%d, 6" % (sZt2, sWM)), I("v_xor_b32 v%d, s%d, v%d" % (vXA, sZt2, vB[0]))],
                   [I("s_lshl_b32 s%d, s%d, 12" % (sZt2, sFG0)), I("v_add_u32 v%d, s%d, v%d" % (vXA, sZt2, vXA))],
                   DS("ds_read_b128 %s, v%d" % (vr(BF, 4), vXA), ("FX", 27)), I("v_xor_b32 v%d, 32, v%d" % (vXA, vXA)),
                   DS("ds_read_b128 %s, v%d" % (vr(BF + 4, 4), vXA), ("FX", 27))], at=barr(posa[6]), by=barr(posa[6] + 1) - 4)
        sM.addall([I("v_mov_b32 v%d, v%d" % (XE + i, BF + i)) for i in range(8)], at=T_BC + 2)
        sM.add(unstash(vOo, aOo), at=conv_anchor(Cfg.xe_at))
    else:
        sM.add(unstash(vOo, aOo), at=conv_anchor(Cfg.xe_at))
        sM.add(VM("buffer_load_dwordx4 %s, v%d, %s, 0 offen" % (vr(XE, 4), vOo, srd(SRD_X)), "xe"))
        sM.add(VM("buffer_load_dwordx4 %s, v%d, %s, 0 offen offset:32" % (vr(XE + 4, 4), vOo, srd(SRD_X)), "xe"), space=2)
    sM.add([I("s_lshr_b32 s%d, s%d, 11" % (sZt1, sHS)), I("v_mov_b32 v%d, 0" % vHo)])
    sM.add(VM("buffer_load_ushort v%d, v%d, %s, s%d offen" % (0, vHo, srd(SRD_DD), sZt1), "xe"), space=2)
    sM.addall([unstash(vHo, aPollH), I("v_add_u32 v%d, s%d, v%d" % (vHA, sHA, vL16)), I("v_add_u32 v%d, s%d, v%d" % (vHB, sHB, vL16))])
    ldH = ["buffer_load_dword v%d, v%d, %s, s%d offen offset:%d sc1" % (vHp, vHo, srd(SRD_WS), sHF, 4 * w) for w in ((0, 1, 2) if Cfg.st3 else (0, 2))]
    sM.add(VM(ldH[0], "pollH"), at=conv_anchor(Cfg.hpoll), by=conv_anchor(Cfg.hpoll))
    NP = 28
    def hreg(f): return vr(64 + 4 * (f % NP), 4)
    def fidx(f): return f // 28, (f % 28) // 7, f % 7
    def hload(f):
        jt, jj, j = fidx(f)
        return VM("buffer_load_dwordx4 %s, v%d, %s, s%d offen offset:%d sc1" % (hreg(f), vHB if jt else vHA, srd(SRD_WS), sG[j], jj * 1024), ("H", f))
    CM, CP, CK, KD, ZG, vT0, vT1, vT2 = 224, 240, 152, 160, 176, 4 + 58, 4 + 59, 24
    vT0, vT1 = 18, 20
    sN = Stream("kd")
    sN.addall([DS("ds_read_b64 %s, v%d offset:%d" % (vr(CK + 2 * k, 2), vCD, 512 * (3 - k)), "cxk") for k in range(4)], at=conv_anchor(109))
    sN.add([WVM("xe"), I("v_lshlrev_b32 v0, 16, v0")])
    for k in range(4):
        lo, hi = CK + 2 * k, CK + 1 + 2 * k
        for r, (src, h) in enumerate(((hi, 1), (hi, 0), (lo, 1), (lo, 0))):
            u = unp(KD + 4 * k + r, src, h)
            sN.add([WDS("cxk"), u] if (k, r) == (0, 0) else u, by=conv_anchor(143))
    sN.addall([I("v_add_u32 v%d, s%d, v%d" % (vT0, sWL, vL16)), I("v_xor_b32 v%d, 4096, v%d" % (vT1, vT0)),
               I("v_add_u32 v%d, %d, v%d" % (150, CEX, vT0)), I("v_add_u32 v%d, %d, v%d" % (151, CEX, vT1))], by=conv_anchor(143))
    hc1, hc2 = check("H", [ldH[0]], ["v_cmp_ne_u32 vcc, s%d, v%d" % (sTAG, vHp)], ["pollH"])
    nh = 0
    if Cfg.hcheck < 144:
        sM.add([hc1, hc2] + stamp("hok"), at=conv_anchor(Cfg.hcheck), by=conv_anchor(Cfg.hcheck))
        while nh < 14 and Cfg.hcheck + 6 + 4 * nh < 143:
            sM.add(hload(nh), by=conv_anchor(143)); nh += 1

    for st in (sP, sE, sQ, sG_):
        if st.name in Cfg.drop:
            for it in st.items:
                a = it["atom"]
                if isinstance(a, Op) and a.kind == "i" and a.text.startswith(("v_mul_f32", "v_fmac", "v_cvt", "v_and_b32 v6", "v_lshlrev_b32 v6", "v_and_b32 v7", "v_lshlrev_b32 v7", "v_mov", "v_align", "v_xor", "v_or")):
                    it["atom"] = []; it["cost"] = 0
                elif isinstance(a, Op) and a.kind == "ds" and "ds_write_b128" in a.text:
                    it["atom"] = DS("ds_read_b32 v9, v%d" % vL16, a.tag); it["cost"] = 1
    for it in sD.items[:nplain]: it["plan"] = False
    Cfg._vmtab = plan_vm([sL_, sP, sE, sQ, sK, sG_, sD, sM], list(range(0, A_CONV, 2)) + list(range(A_CONV, A_CONV + 144)), Cfg.vs_at, Cfg.vs2)
    SC = Sched([sF, sL_, sQ, sK, sD, sE, sC_, sG_, sM, sR, sP, sS, sN])
    usage = []
    def emit_gap(now, budget, pre=0.0):
        if now in Cfg.tr_ticks and len(SC.streams) > 6: P.append(RAW("TSTAMP t%d" % now))
        if now in Cfg.tr_anch and len(SC.streams) <= 6: P.append(RAW("TSTAMP a%d" % now))
        o, u = SC.fill(now, budget - pre)
        P.append(o); usage.append(u + pre)
    def barrier(w, wd):
        o = [WVM(*w)] if w else []
        if wd: o.append(WDS(*wd))
        o.append(I("s_barrier"))
        return o
    def barrier_i(i):
        w = [("W", i)]; wd = []
        if SQC[i][1] == 0: w.append(("X", SQC[i][0]))
        if i == B_kvst: w.append("kvst")
        if i == B_psw: wd.append("psw")
        if i <= 14 - RQ: wd += [("FA", k) for k, f in enumerate(frs) if f[0] == i - 1]
        if SQC[i - 1][1] == 0: wd.append(("FX", 4 * SQC[i - 1][0] + 3))
        return barrier(w, wd)
    def mf32(a, A_, B_, first): return "v_mfma_f32_32x32x16_bf16 %s, %s, %s, %s" % (vr(a, 16), A_, B_, "0" if first else vr(a, 16))
    tb_at = {t: c for c, t in TB.items()}
    for n, e in enumerate(seq):
        now = 2 * n; pre = 0.0
        if e[0] == "m":
            c, s4, jj = frs[e[1]]; nt = e[2]; ks = 4 * SQC[c][0] + s4
            if nt == 0:
                P.append(WDS(("FA", e[1]), ("FX", ks)))
                if first[c] == now and c in Cfg.stamps_k: P.append(stamp("c%d" % c))
            else: pre = 1.0
            P.append(mf32(ACC + (4 * SQC[c][1] + 2 * jj + nt) * 16, vr(AF + 4 * (e[1] & 7), 4), ar(8 * ks + 4 * nt, 4), ks == 0))
        else:
            P.append(mf32(ACC + e[1] * 16, vr(CSF + (e[1] >> 1) * 4, 4), vr(MB + (e[1] & 1) * 4, 4), False))
        if now in tb_at: P.append(barrier_i(tb_at[now])); pre += 2
        if now == T_BC: P.append(barrier([], ["kvw", ("FA", 111)])); pre += 2
        emit_gap(now, Cfg.b1 if now < Cfg.b1_until else Cfg.b32, pre)
    P.append(stamp("g1end"))
    gi = 0
    for dd in range(4):
        seen = set()
        for i, (r, m) in enumerate(pairs):
            if first_use[max(r, m)] == i: P.append(WDS(("C", dd, max(r, m))))
            a = CACC + (r + m) * 4
            P.append("v_mfma_f32_16x16x32_bf16 %s, %s, %s, %s" % (vr(a, 4), vr(cA(dd, r), 4), vr(cB(dd, m), 4), "0" if (dd == 0 and (r + m) not in seen) else vr(a, 4)))
            seen.add(r + m)
            if conv_anchor(gi) == T_BW: P.append(barrier([("WD", u) for u in range(7)], [("C", 3, 7)]))
            emit_gap(conv_anchor(gi), Cfg.b16)
            gi += 1
    assert SC.done(), SC.left()
    Cfg._usage1 = usage; Cfg._log1 = SC.log
    P.append(stamp("convend"))

    for k in range(4): P.append("v_mov_b32 v%d, s%d\nv_mov_b32 v%d, s%d" % (ZG + 4 * k + 2, sTAG, ZG + 4 * k + 3, sTAG))
    P.append(L("s_cmp_eq_u32 s%d, 0\ns_cbranch_scc0 L_cx1", sWM))
    for k in range(4):
        P.append(DS("ds_write_b128 v150, %s offset:%d" % (vr(CACC + 16 + 4 * k, 4), 1024 * k), "cxw"))
        for r in range(4): P.append("v_fma_f32 v%d, v%d, v0, v%d" % (CM + 4 * k + r, KD + 4 * k + r, CACC + 4 * k + r))
    P.append(RAW("s_branch L_cx2\nL_cx1:"))
    for k in range(4):
        P.append(RAW("ds_write_b128 v150, %s offset:%d" % (vr(CACC + 4 * k, 4), 1024 * k)))
        for r in range(4): P.append(RAW("v_fma_f32 v%d, v%d, v0, v%d" % (CM + 4 * k + r, KD + 4 * k + r, CACC + 16 + 4 * k + r)))
    P.append(RAW("L_cx2:"))
    P.append(unstash(vT2, aZst))
    P.append([WDS("cxw"), I("s_barrier")])
    for k in range(4): P.append(DS("ds_read_b128 %s, v151 offset:%d" % (vr(CP + 4 * k, 4), 1024 * k), ("cxr", k)))
    ep = []
    for k in range(4):
        ad = [I("v_add_f32 v%d, v%d, v%d" % (CM + 4 * k + r, CM + 4 * k + r, CP + 4 * k + r)) for r in range(4)]
        ad[0] = [WDS(("cxr", k)), ad[0]]
        ep += ad + [I("v_cvt_pk_bf16_f32 v%d, v%d, v%d" % (ZG + 4 * k + w, CM + 4 * k + 2 * w, CM + 4 * k + 2 * w + 1)) for w in range(2)]
        ep.append(VM("buffer_store_dwordx4 %s, v%d, %s, s%d offen offset:%d sc1" % (vr(ZG + 4 * k, 4), vT2, srd(SRD_WS), sZst, 1024 * k), "zst"))
    if Cfg.hcheck >= 144:
        P.append([hc1, hc2]); P.append(stamp("hok"))
        while nh < Cfg.nfirst: P.append(hload(nh)); nh += 1
    if Cfg.hflag1 >= 144: ep.insert(0, hflag(2, [("hst", 2)]))
    if Cfg.h2_early: P.append(VM(ldH[1], "pollH2"))
    if not Cfg.ep_shadow: P.append(ep)
    P.append(stamp("zst"))

    ACA, ACB, ZV, XF, ST = 192, 224, 32, 48, 22
    vZp, vZo, vSo, vRr = 14, 15, 16, 17
    GR = ACA + 16
    assert not Cfg.ep_shadow or Cfg.st_at > Cfg.zs_at + 3 * Cfg.zs_gap + 2
    sV = Stream("ep")
    if Cfg.ep_shadow:
        sV.addall([x for x in ep if not (isinstance(x, Op) and x.kind == "vm")], by=Cfg.ep_by)
        for k, x in enumerate([x for x in ep if isinstance(x, Op) and x.kind == "vm"]): sV.add(x, at=Cfg.zs_at + Cfg.zs_gap * k)
        assert Cfg.zs_at + 3 * Cfg.zs_gap + 4 < Cfg.zpoll and Cfg.zs_at > Cfg.ep_by
    sH = Stream("hload")
    g1, g2_ = check("H2", [ldH[1]], ["v_cmp_ne_u32 vcc, s%d, v%d" % (sTAG, vHp)], ["pollH2"])
    if not Cfg.h2_early: sH.add(VM(ldH[1], "pollH2"), at=Cfg.h2poll)
    hpace = -Cfg.hsp
    for f in range(nh, 56):
        if f == 14: sH.add([g1, g2_], at=Cfg.h2check, by=2 * f - 10)
        if Cfg.st3 and f == Cfg.h3poll_f: sH.add(VM(ldH[2], "pollH3"))
        if Cfg.st3 and f == 21: sH.add(list(check("H3", [ldH[2]], ["v_cmp_ne_u32 vcc, s%d, v%d" % (sTAG, vHp)], ["pollH3"])), at=Cfg.h3check, by=2 * f - 8)
        ea = 2 * (f - NP) + 2 if f >= NP else 0
        hpace = max(hpace + (Cfg.hsp0 if f < 21 else Cfg.hsp), ea, Cfg.h2check + 1 if f == 14 else (Cfg.h3check + 1 if (f == 21 and Cfg.st3) else 0))
        sH.add(hload(f), at=int(hpace), by=max(2 * f - 4, int(hpace) + 1))
    A_BAR = 56 + Cfg.bar_a
    sX = Stream("x")
    sX.addall([unp(XF + i, XE + (i >> 1), i & 1) for i in range(16)], at=Cfg.ep_by + 2 if Cfg.ep_shadow else 2, key="xf")
    sX.add(unstash(vRr, aRr))
    sX.addall([I("v_add_u32 v%d, %d, v%d" % (vT0, REDA, vRr)), I("v_add_u32 v%d, %d, v%d" % (25, REDA, vT1))])
    sX.addall([DS("ds_write_b128 v25, %s offset:%d" % (vr(ACA + 16 + rq * 4, 4), rq * 1024), "rwa") for rq in range(4)], at=58, space=2, by=A_BAR - 1)
    def swaps(acc): return [I("v_permlane32_swap_b32 v%d, v%d" % (acc + 8 * kk + i, acc + 8 * kk + 4 + i)) for kk in range(2) for i in range(4)]
    sX.addall([DS("ds_read_b128 %s, v%d offset:%d" % (vr(ACA + 16 + kk * 8 + hs * 4, 4), vT0, kk * 2048 + hs * 512), "rra") for kk in range(2) for hs in range(2)], at=A_BAR, by=A_BAR + 1)
    sX.addall(swaps(ACA))
    def gpos(b, w): return b + (w // 3) * 4 + (w % 3)
    for i in range(16):
        op = I("v_add_f32 v%d, v%d, v%d" % (ACA + i, ACA + i, ACA + 16 + i))
        if i == 0: sX.add([WDS("rra"), op], space=2)
        else: sX.add(op)
    for w in range(8):
        sX.add(I("v_cvt_pk_bf16_f32 v%d, v%d, v%d" % (gpos(GR, w), ACA + 2 * w, ACA + 2 * w + 1)))
        if w % 3 == 2 or w == 7:
            k = w // 3
            sX.add(I("v_mov_b32 v%d, s%d" % (GR + 4 * k + 3, sTAG)))
            sX.add(VM("buffer_store_dwordx4 %s, v%d, %s, s%d offen offset:%d sc1" % (vr(GR + 4 * k, 4), vL16, srd(SRD_WS), sPst, k * 1024), "pst"), by=A_BAR + 20, key=("pst", k))
    ldP = ["buffer_load_dwordx4 %s, v%d, %s, s%d offen offset:%d sc1" % (vr(ACA + 4 * k, 4), vL16, srd(SRD_WS), sPld, k * 1024) for k in range(3)]
    sX.addall([VM(x, "pld") for x in ldP], at=Cfg.pld, by=111)
    sZ = Stream("z")
    sZq = [sZld, sZt0, sZt1, sZt2]
    ldZ = ["buffer_load_dwordx4 %s, v%d, %s, s%d offen sc1" % (vr(ZG + 4 * i, 4), vZo, srd(SRD_WS), sZq[i]) for i in range(4)]
    ldS = "buffer_load_dwordx3 %s, v%d, %s, s%d offen sc1" % (vr(ST, 3), vSo, srd(SRD_WS), sSt2)
    sZ.addall([I("v_and_b32 v%d, 511, v%d" % (vSo, vL16)), VM(ldS, "sld")], at=Cfg.st_at)
    sZ.addall([unstash(vZo, aZld)] + [I("s_add_u32 s%d, s%d, %d" % (sZq[i], sZld, i * 65536)) for i in range(1, 4)])
    c1, c2 = check("S", [ldS], ["v_cmp_ne_u32 vcc, s%d, v%d" % (sTAG, ST + 2)], ["sld"])
    sZ.add([c1, c2], at=Cfg.st_at + Cfg.st_lag, after=("xf", 0))
    sZ.addall([I("v_mul_f32 v%d, v%d, v%d" % (ST, ST, ST + 1)), I("v_mul_f32 v%d, v%d, v%d" % (ST + 2, ST + 1, ST + 1))])
    sZ.addall([I("v_fma_f32 v%d, v%d, v%d, -v%d" % (ZV + i, XF + i, ST + 1, ST)) for i in range(16)])
    sZ.add([I("v_lshrrev_b32 v%d, 1, v%d" % (vZp, vL16)), I("v_add_u32 v%d, s%d, v%d" % (vZp, sZfl, vZp))])
    sZ.addall([VM(x, "zld") for x in ldZ], at=Cfg.zpoll)
    cmp_ops = ["v_xor_b32 v%d, s%d, v%d" % (ZG + 4 * i + 3, sTAG, ZG + 4 * i + 2) for i in range(4)] + [
               "v_or3_b32 v%d, v%d, v%d, v%d" % (ZG + 3, ZG + 3, ZG + 7, ZG + 11), "v_or_b32 v%d, v%d, v%d" % (ZG + 3, ZG + 3, ZG + 15), "v_cmp_ne_u32 vcc, 0, v%d" % (ZG + 3)]
    c1, c2 = check("Z", ldZ, cmp_ops, ["zld"])
    zt = list(c1) + [c2]
    zt += [DS("ds_write_b64 v%d, %s offset:%d" % (vZp, vr(ZG + 4 * i, 2), 512 * i), "zw") for i in range(4)]
    zt += [unstash(vSo, aPollZ)]
    rd = [DS("ds_read_b64_tr_b16 %s, v%d offset:%d" % (vr(XE + 2 * q, 2), vSo, (q >> 1) * 1024 + (q & 1) * 256), "zr") for q in range(4)]
    rd[0] = [WDS("zw"), rd[0]]
    zt += rd
    for i in range(16):
        u = unp((12, 0)[i & 1], XE + (i >> 1), i & 1)
        zt.append([WDS("zr"), u] if i == 0 else u)
        zt.append(I("v_fma_f32 v%d, v%d, v%d, v%d" % (ZV + i, ZV + i, (12, 0)[i & 1], XF + i)))
    assert Cfg.zpoll + Cfg.zlag > A_BAR
    sZ.addall(zt, at=Cfg.zpoll + Cfg.zlag)
    sW = Stream("wr", cap=2)
    for f in range(Cfg.wr_pre, 28): sW.addall(wd_reads(f % 7, f // 7), by=max(2 * f - 5, 0))
    if Cfg.plan2: Cfg._vmtab2 = plan_vm([sH, sV, sX, sZ], list(range(112)), 0, 0.25, lead_div=Cfg.ld2, lead_mul=1)
    SC = Sched([sW, sH, sV, sX, sZ])
    usage = []
    for f in range(56):
        jt, jj, j = fidx(f)
        P.append(WVM(("H", f)))
        if jt == 0: P.append(WDS(("WR", j, jj)))
        if f in Cfg.stamps_f: P.append(stamp("f%d" % f))
        for jd in range(2):
            a = (ACB if jt else ACA) + jd * 16
            P.append(mf32(a, ar(8 * (4 * j + jj) + 4 * jd, 4), hreg(f), f % 28 == 0))
            now = 2 * f + jd
            if now == A_BAR: P.append([WDS("rwa"), I("s_barrier")])
            emit_gap(now, Cfg.b2, 1.0 if jd else 0.0)
    for s_ in (sW, sH, sV, sX): assert s_.pos == len(s_.items), s_.name
    rest = [it["atom"] for it in sZ.items[sZ.pos:]]
    Cfg._usage2 = usage; Cfg._rest = len(rest)
    P.append(stamp("g2end"))
    P.append("s_nop 7\ns_nop 3")
    for rq in range(4): P.append(DS("ds_write_b128 v%d, %s offset:%d" % (vT1, vr(ACB + 16 + rq * 4, 4), REDB + rq * 1024), "rwb"))
    P.append(swaps(ACB))
    P.append([WDS("rwb"), I("s_barrier")])
    for kk in range(2):
        for hs in range(2):
            P.append(DS("ds_read_b128 %s, v%d offset:%d" % (vr(64 + kk * 8 + hs * 4, 4), vRr, REDB + kk * 2048 + hs * 512), "rrb"))
    P.append(rest)
    cmp_ops = ["v_xor_b32 v%d, s%d, v%d" % (ACA + 4 * k + 3, sTAG, ACA + 4 * k + 3) for k in range(3)]
    cmp_ops += ["v_or3_b32 v%d, v%d, v%d, v%d" % (ACA + 3, ACA + 3, ACA + 7, ACA + 11), "v_cmp_ne_u32 vcc, 0, v%d" % (ACA + 3)]
    c1, c2 = check("P", ldP, cmp_ops, ["pld"])
    P.append(WDS("rrb"))
    for i in range(16): P.append("v_add_f32 v%d, v%d, v%d" % (ACB + i, ACB + i, 64 + i))
    P.append([c1, c2])
    for kk in range(2):
        for i in range(8 * kk, 8 * kk + 8):
            P.append(unp(ACA + 16 + i, gpos(ACA, i >> 1), i & 1))
            P.append("v_add_f32 v%d, v%d, v%d" % (ACB + i, ACB + i, ACA + 16 + i))
            P.append("v_fma_f32 v%d, v%d, v%d, v%d" % (ACB + i, ACB + i, ST + 2, ZV + i))
        for w in range(4): P.append("v_cvt_pk_bf16_f32 v%d, v%d, v%d" % (80 + 4 * kk + w, ACB + 8 * kk + 2 * w, ACB + 8 * kk + 2 * w + 1))
        P.append(VM("buffer_store_dwordx4 %s, v%d, %s, 0 offen offset:%d %s" % (vr(80 + 4 * kk, 4), vOo, srd(SRD_OUT), 32 * kk, Cfg.opol), "out"))
    P.append(diag_tail(True))
    P.append("s_endpgm")
    return P
Cfg.ep_shadow = False; Cfg.ep_by = 20; Cfg.opol = ""
Cfg.order = [("X", 1), ("W", 2), ("X", 2), ("W", 3), ("X", 3), ("W", 4), ("X", 4), ("W", 5), ("X", 5), ("W", 6), ("X", 6), ("W", 7), ("W", 8), ("W", 9), ("W", 10),
             ("W", 11), ("W", 12), ("W", 13), ("D", 0), ("D", 1), ("D", 2), ("D", 3), ("D", 4), ("D", 5), ("D", 6)]
Cfg.t_at = 232; Cfg.hc_at = 270; Cfg.hc_by = 420; Cfg.cs_chk = 30; Cfg.w_min = {9: 176, 10: 216, 11: 244, 12: 262, 13: 280}
Cfg.vs1 = 0; Cfg.vs2 = 1.0; Cfg.vs3 = 0.0; Cfg.vs_at = 128; Cfg.hprio = True; Cfg.b2 = 5; Cfg.b1 = 6.5; Cfg.tr_ticks = (); Cfg.rq = 2; Cfg.c1 = 9; Cfg.blead = 14; Cfg.hs_gap = 22
Cfg.minlead = 10; Cfg.prep_lag = 40; Cfg.htouch = False; Cfg.hcheck = 84; Cfg.pld = 104; Cfg.nws = 6
Cfg.q_pro = 999; Cfg.b11 = 8; Cfg.bc = 20; Cfg.bw = 116; Cfg.cs_at = 210; Cfg.hflag0 = 426; Cfg.hflag1 = 120; Cfg.xe_at = 44
Cfg.h2_early = True; Cfg.h2poll = 0; Cfg.h2check = 4
Cfg.epi_prio = True; Cfg.stamps_f = (); Cfg.b_psw = 6; Cfg.kv_ack = 2; Cfg.epi_by = 18; Cfg.hcheck_early = True; Cfg.hsp = 1.5; Cfg.bar_a = 10

def gen_helper():
    stamp_n[0] = 0
    P = [WDS0()]
    if Cfg.diag: P.append("s_mov_b32 s89, s88")
    P.append(build_srd(SRD_X, 4, S * D * 2)); P.append(build_srd(SRD_WS, 28, WS_SIZE))
    P.append(L("s_and_b32 s%d, s2, 7\ns_lshr_b32 s%d, s2, 3", sA, sB))
    P.append(L("s_lshl_b32 s%d, s%d, 2\ns_add_u32 s%d, s%d, s%d", sT, sA, sT, sT, sB))
    P.append(L("s_lshr_b32 s%d, s%d, 1\ns_lshl_b32 s%d, s%d, 2\ns_add_u32 s%d, s%d, s%d", sC2, sA, sC2, sC2, sC2, sC2, sB))
    P.append(L("s_and_b32 s%d, s%d, 1\ns_mul_i32 s%d, s%d, 7\ns_add_u32 s%d, s%d, s%d", sA, sA, sFT, sA, sFT, sFT, sC2))
    P.append(L("s_cmp_ge_u32 s%d, 7\ns_cselect_b32 s%d, s20, s18\ns_cselect_b32 s%d, s21, s19", sC2, SRD_W1, SRD_W1 + 1))
    P.append(L("s_cselect_b32 s%d, 1, 0\ns_cselect_b32 s%d, 7, 0\ns_sub_u32 s%d, s%d, s%d", sMT, sA, sFT, sFT, sA))
    P.append(L("s_mov_b32 s%d, %d\ns_mov_b32 s%d, 0x00020000", SRD_W1 + 2, D * F * 2, SRD_W1 + 3))
    sNO, sONE, sLO, sHI, sSTO = sWL, sXL, sWo, sXo, sDo
    if Cfg.gpref: P.append(gpref(9, 10))
    P.append(L("s_cmp_ge_u32 s%d, 14\ns_cselect_b32 s%d, 0x40000000, 0", sC2, sNO))
    V0, V1, V2, V3, V4, V5 = 2, 3, 4, 5, 6, 7
    P.append(L("s_lshl_b32 s%d, s%d, 2\ns_add_u32 s%d, s%d, s%d\ns_mul_i32 s%d, s%d, %d\ns_add_u32 s%d, s%d, %d", sA, sT, sA, sA, sWV, sA, sA, 16 * 896, sB, sA, 8 * 896))
    P.append(L("v_lshrrev_b32 v%d, 3, v%d\nv_mul_u32_u24 v%d, 896, v%d\nv_and_b32 v%d, 7, v%d\nv_lshl_add_u32 v%d, v%d, 4, v%d", V0, vL, V0, V0, V1, vL, V0, V1, V0))
    P.append(L("s_getpc_b64 s[%d:%d]", sC, sC + 1))
    P.append(RAW("L_touch_base2:"))
    P.append(L("s_sub_u32 s%d, s%d, L_touch_base2-L_main\ns_subb_u32 s%d, s%d, 0", sC, sC, sC + 1, sC + 1))
    P.append(L("s_lshr_b32 s%d, s2, 3\ns_lshl_b32 s%d, s%d, 13\nv_lshrrev_b32 v%d, 2, v0\nv_lshlrev_b32 v%d, 7, v%d\nv_add_u32 v%d, s%d, v%d", sZt0, sZt0, sZt0, V4, V4, V4, V4, sZt0, V4))
    P.append(L("v_min_u32 v%d, L_end_of_code-L_main-4, v%d", V4, V4))
    P.append(VM("global_load_dword v%d, v%d, s[%d:%d]" % (8, V4, sC, sC + 1), "touch"))
    P.append(L("s_mov_b32 s%d, %d\nv_mov_b32 v%d, 0", sZt0, EP_OFF, V4))
    P.append(VM("buffer_load_dword v%d, v%d, %s, s%d offen sc1" % (V5, V4, srd(SRD_WS), sZt0), "ep"))
    P.append(L("v_lshrrev_b32 v%d, 3, v0\nv_mul_u32_u24 v%d, 3584, v%d\nv_and_b32 v%d, 7, v0\nv_lshl_add_u32 v%d, v%d, 4, v%d", V2, V2, V2, V3, V2, V3, V2))
    P.append(L("s_lshl_b32 s%d, s%d, 8\ns_add_u32 s%d, s%d, s%d", sD_, sFT, sD_, sD_, sNO))
    P.append(build_srd(SRD_WD, 22, D * F * 2))
    def wl(i):
        return ["s_add_u32 s%d, s%d, %d" % (sZt2, sD_, 32 * (i % 14) * 3584 + 128 * (i // 14)),
                VM("buffer_load_dwordx4 %s, v%d, %s, s%d offen %s" % (vr(128 + 4 * i, 4), V2, srd(SRD_W1), sZt2, Cfg.nt_w), ("hw", i))]
    def xl(grp, i): return VM("buffer_load_dwordx4 %s, v%d, %s, s%d offen offset:%d %s" % (vr(32 + (grp * 7 + i) * 4, 4), V0, srd(SRD_X), sB if grp else sA, 128 * i, Cfg.nt_x), ("hx", grp))
    def red8(v):
        return ["s_nop 1", "v_add_f32_dpp v%d, v%d, v%d quad_perm:[1,0,3,2] row_mask:0xf bank_mask:0xf" % (v, v, v), "s_nop 1",
                "v_add_f32_dpp v%d, v%d, v%d quad_perm:[2,3,0,1] row_mask:0xf bank_mask:0xf" % (v, v, v), "s_nop 1",
                "v_add_f32_dpp v%d, v%d, v%d row_half_mirror row_mask:0xf bank_mask:0xf" % (v, v, v)]
    INV448 = 0x3b124925
    P.append(L("s_mov_b32 s%d, 0x3f803f80\ns_mov_b32 s%d, 0x00003f80\ns_mov_b32 s%d, 0x3f800000", sONE, sLO, sHI))
    U0, U1 = 88, 89
    MEAN = [90, 91]; G = [92, 96]
    vSo, vSo2 = 100, 101
    CSUM = 108
    vCw, vCr, vCs, sCo = 10, 11, 12, 87
    for k in range(14): P.append(wl(k))
    P.append(L("v_lshlrev_b32 v%d, 5, v0\nv_lshlrev_b32 v%d, 2, v%d", vCw, vCr, vL))
    P.append(L("v_lshrrev_b32 v%d, 4, v%d\nv_lshlrev_b32 v%d, 9, v%d\nv_and_b32 v%d, 15, v%d\nv_lshl_add_u32 v%d, v%d, 4, v%d", vCs, vL, vCs, vCs, V3, vL, vCs, V3, vCs))
    P.append(L("s_lshl_b32 s%d, s%d, 12\ns_lshl_b32 s%d, s%d, 8\ns_add_u32 s%d, s%d, s%d\ns_add_u32 s%d, s%d, %d", sCo, sFT, sZt0, sMT, sCo, sCo, sZt0, sCo, sCo, CS_OFF))
    P.append(L("s_cmp_eq_u32 s%d, 0\ns_cselect_b32 s%d, s%d, 0x40000000\ns_add_u32 s%d, s%d, s%d", sWV, sZt0, sNO, sCo, sCo, sZt0))
    def colsum(half, fill):
        o = ["v_mov_b32 v%d, 0" % (CSUM + e) for e in range(8)]
        for i in range(14 * half, 14 * half + 14):
            if fill: o.append(fill.pop(0))
            o.append(WVM(("hw", i)))
            for w in range(4):
                src = 128 + 4 * i + w
                o.append("v_dot2c_f32_bf16 v%d, s%d, v%d\nv_dot2c_f32_bf16 v%d, s%d, v%d" % (CSUM + 2 * w, sLO, src, CSUM + 2 * w + 1, sHI, src))
        if half == 0: o.append(tag_from_epoch(V5))
        o.append("s_nop 2")
        o.append(RAW("ds_write_b128 v%d, v[108:111] offset:%d\nds_write_b128 v%d, v[112:115] offset:%d" % (vCw, 8192 * half, vCw, 8192 * half + 16)))
        o += [WDS0(), "s_barrier"]
        for rg in range(0, 32, 2): o.append(RAW("ds_read2st64_b32 %s, v%d offset0:%d offset1:%d" % (vr(128 + rg, 2), vCr, 32 * half + rg, 32 * half + rg + 1)))
        o.append(WDS0())
        for st in (1, 2, 4, 8, 16):
            for rg in range(0, 32, 2 * st): o.append("v_add_f32 v%d, v%d, v%d" % (128 + rg, 128 + rg, 128 + rg + st))
        o.append("v_cvt_pk_bf16_f32 v116, v128, v128\nv_lshlrev_b32 v117, 16, v116\nv_sub_f32 v128, v128, v117")
        o.append("v_cvt_pk_bf16_f32 v118, v128, v128\nv_lshlrev_b32 v117, 16, v118\nv_sub_f32 v128, v128, v117")
        o.append("v_and_b32 v116, 0xffff, v116\nv_or_b32 v116, v116, v117")
        o.append(L("v_cvt_pk_bf16_f32 v117, v128, v128\nv_and_b32 v117, 0xffff, v117\nv_mov_b32 v118, 0\nv_mov_b32 v119, s%d", sTAG))
        o.append(VM("buffer_store_dwordx4 v[116:119], v%d, %s, s%d offen offset:%d sc1" % (vCs, srd(SRD_WS), sCo, 2048 * half), "cst"))
        return o
    P.append(colsum(0, [xl(grp, i) for grp in range(2) for i in range(7)]))
    P.append(stamp("cs"))
    P.append(L("v_and_b32 v%d, 7, v%d\nv_cmp_eq_u32 vcc, 0, v%d\nv_mov_b32 v%d, %s\nv_lshlrev_b32 v%d, 1, v%d\nv_cndmask_b32 v%d, v%d, v%d, vcc\nv_cndmask_b32 v%d, v%d, v%d, vcc",
               V0, vL, V0, V1, OOB, V3, vL, vSo, V1, vL, vSo2, V1, V3))
    P.append(L("s_lshl_b32 s%d, s%d, 2\ns_add_u32 s%d, s%d, s%d\ns_lshl_b32 s%d, s%d, 7\ns_add_u32 s%d, s%d, %d", sA, sT, sA, sA, sWV, sA, sA, sSTO, sA, ST_OFF))
    P.append(L("s_lshl_b32 s%d, s%d, 1\ns_add_u32 s%d, s%d, %d", sA, sA, sZt1, sA, ST2_OFF))
    var = []; vi = 0
    for grp in range(2):
        SQ = 102 + 2 * grp; base = 32 + grp * 28
        var.append(L("v_mov_b32 v%d, 0\nv_mov_b32 v%d, 0", SQ, SQ + 1))
        for r in range(28):
            var.append(L("v_lshlrev_b32 v%d, 16, v%d\nv_and_b32 v%d, 0xffff0000, v%d\nv_sub_f32 v%d, v%d, v%d\nv_sub_f32 v%d, v%d, v%d\nv_fmac_f32 v%d, v%d, v%d\nv_fmac_f32 v%d, v%d, v%d",
                         U0, base + r, U1, base + r, U0, U0, MEAN[grp], U1, U1, MEAN[grp], SQ, U0, U0, SQ + 1, U1, U1))
    for grp in range(2):
        base = 32 + grp * 28
        P.append(L("v_mov_b32 v%d, 0\nv_mov_b32 v%d, 0", U0, U1))
        P.append(WVM(("hx", grp)))
        for r in range(28): P.append("v_dot2c_f32_bf16 v%d, s%d, v%d" % (U1 if r & 1 else U0, sONE, base + r))
        P.append(L("s_nop 2\nv_add_f32 v%d, v%d, v%d", MEAN[grp], U0, U1))
        P.append(red8(MEAN[grp]))
        P.append(L("v_mul_f32 v%d, 0x%x, v%d", MEAN[grp], INV448, MEAN[grp]))
        P.append(L("v_cvt_pk_bf16_f32 v%d, v%d, v%d\nv_lshlrev_b32 v%d, 16, v%d\nv_mov_b32 v%d, s%d", G[grp], MEAN[grp], MEAN[grp], G[grp], G[grp], G[grp] + 1, sTAG))
        P.append(VM("buffer_store_dwordx2 %s, v%d, %s, s%d offen offset:%d sc1" % (vr(G[grp], 2), vSo, srd(SRD_WS), sSTO, 64 * grp), "mst"))
    P.append(stamp("mean"))
    for k in range(14, 28): P.append(wl(k))
    P.append(var[:30]); vi = 30
    P.append(colsum(1, None))
    if Cfg.h_hk:
        P.append(build_srd(SRD_HK, 12, D * S * 2))
        P.append(L("s_lshr_b32 s%d, s2, 3\ns_lshl_b32 s%d, s%d, 2\ns_add_u32 s%d, s%d, s%d\ns_lshl_b32 s%d, s%d, 3\ns_and_b32 s%d, s2, 7\ns_add_u32 s%d, s%d, s%d\ns_lshl_b32 s%d, s%d, 13",
                   sA, sA, sA, sA, sA, sWV, sA, sA, sB, sA, sA, sB, sA, sA))
        P.append(L("s_add_u32 s%d, s%d, %d\nv_lshlrev_b32 v%d, 7, v%d", sB, sA, 128 * 8192, V0, vL))
        P.append(VM("buffer_load_dword v126, v%d, %s, s%d offen nt" % (V0, srd(SRD_HK), sA), "wdt"))
        P.append(VM("buffer_load_dword v127, v%d, %s, s%d offen nt" % (V0, srd(SRD_HK), sB), "wdt"))
    if Cfg.h_wd:
        P.append(L("s_and_b32 s%d, s2, 1\ns_mul_i32 s%d, s%d, 6272\ns_lshr_b32 s%d, s2, 3\ns_lshl_b32 s%d, s%d, 2\ns_add_u32 s%d, s%d, s%d\ns_mul_i32 s%d, s%d, 392\ns_add_u32 s%d, s%d, s%d\ns_lshl_b32 s%d, s%d, 7",
                   sA, sA, sA, sB, sB, sB, sB, sB, sWV, sB, sB, sA, sA, sB, sA, sA))
        P.append(L("v_min_u32 v%d, 55, v%d\nv_lshlrev_b32 v%d, 7, v%d", V0, vL, V0, V0))
        nv = 4
        for i in range(7):
            if Cfg.h_rot:
                if i == 0: P.append(L("s_bfe_u32 s%d, s2, 0x20001\ns_mul_i32 s%d, s%d, %d", sZt0, sZt0, sZt0, 2 * 56 * 128))
                P.append(L("s_add_u32 s%d, s%d, s%d", sB, sA, sZt0)); P.append(advance(sZt0, 56 * 128, 7 * 56 * 128))
            else: P.append(L("s_add_u32 s%d, s%d, %d", sB, sA, i * 56 * 128))
            P.append(VM("buffer_load_dword v%d, v%d, %s, s%d offen" % (240 + i, V0, srd(SRD_WD), sB), "wdt"))
            if i >= 3: P.append(var[vi:vi + 2 * nv]); vi = min(vi + 2 * nv, len(var))
    P.append(var[vi:])
    for grp in range(2):
        SQ = 102 + 2 * grp
        P.append(L("v_add_f32 v%d, v%d, v%d", SQ, SQ, SQ + 1))
        P.append(red8(SQ))
        P.append(L("v_mul_f32 v%d, 0x%x, v%d", SQ, INV448, SQ))
        P.append(L("v_cvt_pk_bf16_f32 v%d, v%d, v%d\nv_lshlrev_b32 v%d, 16, v%d", SQ, SQ, SQ, SQ, SQ))
        P.append(L("v_add_f32 v%d, 0x3727c5ac, v%d", SQ, SQ))
        P.append(L("v_cvt_pk_bf16_f32 v%d, v%d, v%d\nv_lshlrev_b32 v%d, 16, v%d", SQ, SQ, SQ, SQ, SQ))
        P.append(L("v_sqrt_f32 v%d, v%d\ns_nop 0", SQ, SQ))
        P.append(L("v_cvt_pk_bf16_f32 v%d, v%d, v%d\nv_lshlrev_b32 v%d, 16, v%d", SQ, SQ, SQ, SQ, SQ))
        P.append(L("v_rcp_f32 v%d, v%d\nv_mov_b32 v%d, s%d\nv_mov_b32 v%d, 0", G[grp] + 1, SQ, G[grp] + 2, sTAG, G[grp] + 3))
        P.append(VM("buffer_store_dwordx4 %s, v%d, %s, s%d offen offset:%d sc1" % (vr(G[grp], 4), vSo2, srd(SRD_WS), sZt1, 128 * grp), "rst"))
    P.append(stamp("rstd"))
    P.append(L("s_cmp_lg_u32 s2, 0\ns_cbranch_scc1 L_h_end\ns_cmp_lg_u32 s%d, 0\ns_cbranch_scc1 L_h_end", sWV))
    P.append(L("v_lshlrev_b32 v%d, 7, v%d\nv_and_b32 v%d, 31, v%d\nv_lshlrev_b32 v%d, 7, v%d\ns_mov_b32 s%d, 0", V0, vL, V1, vL, V1, V1, sSPIN))
    P.append(RAW("L_ep_spin:"))
    for i in range(3):
        P.append("s_mov_b32 s%d, %d" % (sA, KF_OFF + 8192 * i))
        P.append(RAW("buffer_load_dword v%d, v%d, %s, s%d offen sc1" % (32 + i, V0, srd(SRD_WS), sA)))
    P.append("s_mov_b32 s%d, %d" % (sA, KF_OFF + 8192 * 3))
    P.append(RAW("buffer_load_dword v35, v%d, %s, s%d offen sc1" % (V1, srd(SRD_WS), sA)))
    for i in range(2):
        P.append("s_mov_b32 s%d, %d" % (sA, ST_OFF + 8192 * i + 4))
        P.append(RAW("buffer_load_dword v%d, v%d, %s, s%d offen sc1" % (36 + i, V0, srd(SRD_WS), sA)))
    P.append(WVM0())
    for i in range(6): P.append("v_xor_b32 v%d, s%d, v%d" % (32 + i, sTAG, 32 + i))
    for i in range(1, 6): P.append("v_or_b32 v32, v32, v%d" % (32 + i))
    P.append("v_cmp_ne_u32 vcc, 0, v32")
    P.append(L("s_add_u32 s%d, s%d, 1\ns_cmp_lt_u32 s%d, %d\ns_cbranch_scc0 L_ep_go", sSPIN, sSPIN, sSPIN, Cfg.spin))
    P.append("s_cbranch_vccz L_ep_go\ns_sleep 32\ns_branch L_ep_spin")
    P.append(RAW("L_ep_go:"))
    P.append("s_mov_b32 s%d, %d" % (sA, EP_OFF))
    P.append(RAW("buffer_store_dword a%d, v%d, %s, s%d offen sc1" % (aTag, vFlag0, srd(SRD_WS), sA)))
    P.append(RAW("L_h_end:"))
    P.append(diag_tail())
    P.append("s_endpgm")
    return P
Cfg.qstamps = False; Cfg.x_nost = False; Cfg.hpol = "sc1"; Cfg.kpos = 2; Cfg.hk_early = False; Cfg.loadtest = False; Cfg.wr_pre = 4; Cfg.tr_only = []; Cfg.zld_by = 110; Cfg.dprio = True; Cfg.sp3 = 4; Cfg.wd_min = [300, 340, 384, 404, 446, 0, 0]; Cfg.setup_by = 150; Cfg.ld2 = 4; Cfg.st3 = False; Cfg.tr_anch = (); Cfg.kv_alt = False; Cfg.lead = 999; Cfg.hsp0 = 1.5; Cfg.zs_at = 12; Cfg.zs_gap = 6; Cfg.drop = (); Cfg.lag = 7; Cfg.plan_from = 7; Cfg.b1_until = 224; Cfg.d_order = range(7); Cfg.x1_pro = 1; Cfg.h_rot = True; Cfg.h_order = 0; Cfg.cs2_at = 344; Cfg.abl = (); Cfg.sleeps = {}; Cfg.hflagm = 118; Cfg.h3poll_f = 15; Cfg.h3check = 22; Cfg.st_at = 8; Cfg.st_lag = 30; Cfg.plan2 = True; Cfg.h_hk = True; Cfg.h_wd = True; Cfg.gpref = 0; Cfg.amp = None; Cfg.ctouch = False; Cfg.ptouch = 0; Cfg.dbg = 0; Cfg.scramble = False; Cfg.h_var = 1; Cfg.trace = False

def generate(diag=False):
    Cfg.diag = diag
    stamp_n[0] = 0
    del slow_paths[:]; del stamp_names[:]
    ref = open("cdna_kernels/%s.s.ref" % NAME).read().split("\n")
    head = [l for l in ref if l.startswith(";") and "@launch" not in l]
    out = head + ["; @launch grid=(256,1,1) block=(256,1,1) lds=%d" % LDS_SIZE]
    out += ['.amdgcn_target "amdgcn-amd-amdhsa--gfx950"', ".text", ".globl %s_kernel" % NAME, ".p2align 8",
            ".type %s_kernel,@function" % NAME, "%s_kernel:" % NAME]
    pro, _ = resolve([prologue_common(), "s_cmp_lt_u32 s2, 32", "s_cbranch_scc1 L_helper"])
    del TRACE['names'][:]
    TRACE['only'] = Cfg.tr_only
    m, mx = resolve(gen_main(), trace=Cfg.trace)
    h, _ = resolve([RAW("L_helper:"), gen_helper()])
    body = pro + m + "\n".join(slow_paths).split("\n") + ["L_end_of_main:"] + h + ["L_exit:", "s_endpgm", "L_end_of_code:"]
    body = "\n".join(body).split("\n")
    if Cfg.abl:
        nb = []; inmain = True
        for l in body:
            drop = False
            if "hst" in Cfg.abl and l.startswith("buffer_store_dwordx4") and (" s%d offen" % sHst0 in l or " s%d offen" % sHst1 in l): drop = True
            if "zst" in Cfg.abl and l.startswith("buffer_store_dwordx4") and " s%d offen" % sZst in l: drop = True
            if "pst" in Cfg.abl and l.startswith("buffer_store_dwordx4") and " s%d offen" % sPst in l: drop = True
            if "kst" in Cfg.abl and l.startswith("buffer_store_dwordx4") and (" s%d offen" % sKst0 in l or " s%d offen" % sKst1 in l): drop = True
            if drop: l = l.replace("buffer_store_dwordx4 v[", "buffer_store_dword v").replace(l[l.index(":"):l.index("]") + 1], "", 1); import re as _re; l = _re.sub(r"^(buffer_store_dword v\d+), v\d+,", r"\1, v%d," % vFlag0, l)
            if "wd" in Cfg.abl and srd(SRD_WD) in l and " lds" in l: l = "buffer_load_dword v12, v%d, %s, 0 offen" % (vFlag0, srd(SRD_WD))
            if "mfma" in Cfg.abl and l.startswith("v_mfma"): continue
            if "ds" in Cfg.abl and l.startswith("ds_read") and inmain: continue
            if "valu" in Cfg.abl and inmain and l.startswith(("v_mul_f32", "v_fma", "v_cvt_pk", "v_add_f32", "v_align", "v_permlane")): continue
            if "vm" in Cfg.abl and inmain and (" lds" in l or (l.startswith("buffer_load_dwordx4") and "sc1" in l)): l = "buffer_load_dword v9, v%d, %s, 0 offen" % (vFlag0, srd(SRD_X))
            if l.startswith("L_end_of_main"): inmain = False
            if "chk" in Cfg.abl and l.startswith("s_cbranch_vccnz L_slow"): l = "s_nop 0"
            nb.append(l)
        body = nb
    bad = lintmod.lint(body)
    for b in ([] if Cfg.abl else bad): print("HAZARD", b)
    for l in body: out.append(l if l.endswith(":") else "    " + l)
    out += ['.section .rodata,"a"', ".p2align 6", ".amdhsa_kernel %s_kernel" % NAME,
            "  .amdhsa_next_free_vgpr 512", "  .amdhsa_next_free_sgpr 102", "  .amdhsa_accum_offset 256",
            "  .amdhsa_group_segment_fixed_size 0", "  .amdhsa_kernarg_size 104", "  .amdhsa_user_sgpr_count 2",
            "  .amdhsa_user_sgpr_kernarg_segment_ptr 1", "  .amdhsa_system_sgpr_workgroup_id_x 1",
            "  .amdhsa_float_denorm_mode_32 3", ".end_amdhsa_kernel"]
    return "\n".join(out) + "\n", mx

if __name__ == "__main__":
    diag = "--diag" in sys.argv
    for a in sys.argv[1:]:
        if a.startswith("--") and "=" in a:
            k, v = a[2:].split("=", 1)
            assert hasattr(Cfg, k), k
            setattr(Cfg, k, eval(v))
    txt, mx = generate(diag)
    path = sys.argv[1] if len(sys.argv) > 1 and not sys.argv[1].startswith("--") else "cdna_kernels/%s.s" % NAME
    open(path, "w").write(txt)
    if diag: print("stamps:", stamp_names)
    if Cfg.trace: open(path + ".names", "w").write("\n".join(TRACE["names"]))
    if "--usage" in sys.argv:
        import numpy as np
        np.set_printoptions(linewidth=200)
        u = np.array(Cfg._usage1)
        print(u[:232].reshape(29, 8)); print(u[232:].reshape(4, 36)); print(np.array(Cfg._usage2).reshape(14, 8))
        for k, v in Cfg._log1.items(): print(k, v[0], v[-1], len(v))
        print("vm", sorted(Cfg._vmtab)); print("vm2", sorted(getattr(Cfg, "_vmtab2", []))); print("rest", Cfg._rest)
    print("wrote", path, "lines", txt.count("\n"), "max outstanding vm", mx)
```

```python
import sys
from dsl import *
import lint as lintmod

NAME = "parallel_sum__ssm_conv_h3__glu_gated_bilinear__prompt"
S, D, F = 2048, 448, 1792

H_OFF   = 0x000000
KVT_OFF = 0x700000
Z_OFF   = 0x8C0000
ST_OFF  = 0xC40000
CS_OFF  = 0xC44000
ST2_OFF = 0xC54000
HF_OFF  = 0xC60000
KF_OFF  = 0xC80000
ZF_OFF  = 0xC90000
EP_OFF  = 0xCB8000
DG_OFF  = 0xCC0000
PX_OFF  = 0xD00000
TR_OFF  = 0x1100000
WS_SIZE = 0x1280000

WR = 0
XB = 98304
XS = 16640
KVR = 148224
CEX = XB + XS
REDA, REDB = XB + 2 * XS, 0
ZL = 16384
LDS_SIZE = 163840

SRD_X, SRD_K, SRD_V, SRD_SK, SRD_HK, SRD_DD, SRD_W1, SRD_WD, SRD_OUT, SRD_WS = [32 + 4 * i for i in range(10)]
def srd(b): return "s[%d:%d]" % (b, b + 3)
sWV, sMT, sFT, sT, sDT, sC2, sTAG, sWM, sWN = 72, 73, 74, 75, 76, 77, 78, 79, 80
sWL, sXL, sWo, sXo, sDo, sSPIN = 81, 82, 83, 84, 85, 86
sA, sB, sC, sD_ = 90, 91, 92, 93
sZt0, sZt1, sZt2 = 94, 95, 96
(sHst0, sHst1, sHfl, sKst0, sKst1, sKfl, sKld0, sKld1, sCs, sMn, sHL, sHS, sZst, sZfl, sZld, sSt2,
 sHcur, sHbase, sHlim, sPst, sPld, sHA, sHB, sKF, sHF, sZF) = range(4, 30)
sG = list(range(36, 43))
s4r = 30
sFG0 = 31

vL = 1
vA = [2, 3, 4, 5]; vA2 = [6, 7, 8, 9]; vB = [10, 11, 12, 13]
vW = [14, 15, 16, 17]; vX = [18, 19, 20, 21]; vWd = [22, 23, 24, 25]
vWdA = [26, 27]; vWdA2 = [28, 29]
vL16, vFlag0 = 30, 31
BF, AF, ACC = 80, 96, 128
T0, T1, T2, T3, T4, T5, T6, T7 = range(60, 68)
(aTag, aHsrc, aPsw, aPsr, aKst, aPollK, aCA0, aCA1, aCB, aCD, aOo, aPollH, aZst, aPollZ, aZld, aRr) = range(224, 240)
aStamp = 240
def vr(b, n): return "v[%d:%d]" % (b, b + n - 1)
def ar(b, n): return "a[%d:%d]" % (b, b + n - 1)
OOB = "0x80000000"
def stash(a, v): return "v_accvgpr_write_b32 a%d, v%d" % (a, v)
def unstash(v, a): return I("v_accvgpr_read_b32 v%d, a%d" % (v, a))

class Cfg:
    diag = False
    spin = 100000
    rot1 = "d"
    rot2 = True
    nt_kv = "nt"; nt_hk = ""; nt_w = ""; nt_x = ""; nt_wd = ""
    sleep = 4
    sp1 = 2; kx = 12; sp2 = 4
    prep_at = 16
    polls_at = 340
    polls_lag = 36
    kv_lag = 60
    wd_lag = 40
    nws = 4
    wd_after = {5: 1, 8: 1, 11: 1, 14: 1, 16: 1}
    hdma_u = 6
    hflag = 30
    hpoll = 56
    nfirst = 8
    zflag = 16; zpoll = 60; zlag = 30
    stamps_k = (2, 4, 7, 9, 12)
    b32 = 5; b16 = 1.5

slow_paths = []
def check(name, loads, cmp_ops, tags):
    sl = ["L_slow_%s:" % name, "s_mov_b32 s%d, 0" % sSPIN, "L_spin_%s:" % name, "s_sleep %d" % Cfg.sleeps.get(name, Cfg.sleep)]
    sl += loads + ["s_add_u32 s%d, s%d, 1" % (sSPIN, sSPIN), "s_waitcnt vmcnt(0)"] + cmp_ops
    sl += ["s_cmp_lt_u32 s%d, %d" % (sSPIN, Cfg.spin), "s_cbranch_scc0 L_res_%s" % name,
           "s_cbranch_vccnz L_spin_%s" % name, "s_branch L_res_%s" % name]
    slow_paths.append("\n".join(sl))
    return [WVM(*tags)] + [I(c) for c in cmp_ops[:-1]], [I(cmp_ops[-1]), I("s_cbranch_vccnz L_slow_%s" % name), RAW("L_res_%s:" % name)]
def flag_store(sreg, wait_tags):
    ops = [WVM(*wait_tags)] if wait_tags else []
    ops.append(VM("buffer_store_dword a%d, v%d, %s, s%d offen sc1" % (aTag, vFlag0, srd(SRD_WS), sreg), "flag"))
    return ops

stamp_n = [0]; stamp_names = []
def stamp(name=""):
    if Cfg.amp and name == Cfg.amp[0]: return [I("s_memrealtime s[88:89]"), WDS0()]
    if not Cfg.diag or (Cfg.trace and name not in ("b0", "end", "mean", "cs", "rstd")): return []
    n = stamp_n[0]; stamp_n[0] += 1
    assert n < (6 if Cfg.trace else 14)
    stamp_names.append(name)
    return [I("s_memtime s[98:99]"), WDS0(), I("v_accvgpr_write_b32 a%d, s98" % (aStamp + 2 + n))]
def diag_tail(main=False):
    if Cfg.amp and main:
        p = [WVM0(), stamp("end"), "s_memrealtime s[98:99]", WDS0()]
        p.append("s_sub_u32 s%d, s88, s100\ns_mul_i32 s%d, s%d, %d\ns_min_u32 s%d, s%d, 20000" % (sA, sA, sA, Cfg.amp[1], sA, sA))
        p.append(RAW("L_amp:"))
        p.append("s_memrealtime s[88:89]\ns_waitcnt lgkmcnt(0)\ns_sub_u32 s%d, s88, s98\ns_cmp_lt_u32 s%d, s%d\ns_cbranch_scc1 L_amp" % (sB, sB, sA))
        return p
    if not Cfg.diag: return []
    p = [WVM0(), stamp("end"), "s_memrealtime s[98:99]", WDS0()]
    p.append("v_accvgpr_write_b32 a%d, s88\nv_accvgpr_write_b32 a%d, s89" % (aStamp, aStamp + 1))
    p.append("v_mov_b32 v32, s100\nv_mov_b32 v33, s98")
    p.append("s_lshl_b32 s%d, s2, 2\ns_add_u32 s%d, s%d, s%d\ns_lshl_b32 s%d, s%d, 7\ns_add_u32 s%d, s%d, %d" % (sA, sA, sA, sWV, sA, sA, sA, sA, DG_OFF))
    for i in range(4): p.append(VM("buffer_store_dwordx4 %s, v%d, %s, s%d offen offset:%d" % (ar(aStamp + 4 * i, 4), vFlag0, srd(SRD_WS), sA, 16 * i)))
    p.append(VM("buffer_store_dwordx2 v[32:33], v%d, %s, s%d offen offset:%d" % (vFlag0, srd(SRD_WS), sA, 104)))
    if Cfg.dbg:
        p.append("s_load_dwordx2 s[44:45], s[0:1], 88\ns_waitcnt lgkmcnt(0)\ns_mov_b32 s46, 256\ns_mov_b32 s47, 0x00020000")
        p.append("s_lshl_b32 s%d, s2, 2\ns_add_u32 s%d, s%d, s%d\ns_cmp_eq_u32 s%d, %d\ns_cselect_b32 s%d, 0, 0x40000000" % (sA, sA, sA, sWV, sA, Cfg.dbg * 4, sA))
        p.append("s_sub_u32 s%d, s98, s100\nv_accvgpr_write_b32 a%d, s%d\ns_nop 1" % (sB, aStamp + 1, sB))
        for i in range(4): p.append(VM("buffer_store_dwordx4 %s, v%d, s[44:47], s%d offen offset:%d" % (ar(aStamp + 4 * i, 4), vFlag0, sA, 16 * i)))
    if Cfg.trace:
        p.append("s_lshl_b32 s%d, s2, 2\ns_add_u32 s%d, s%d, s%d\ns_mul_i32 s%d, s%d, 768\ns_add_u32 s%d, s%d, %d" % (sA, sA, sA, sWV, sA, sA, sA, sA, TR_OFF))
        p.append("v_lshlrev_b32 v32, 2, v%d" % vL)
        for i in range(3): p.append(VM("buffer_store_dword a%d, v32, %s, s%d offen offset:%d" % (248 + i, srd(SRD_WS), sA, 256 * i)))
    p.append(WVM0())
    return p

def build_srd(b, ptr, size):
    if b == SRD_WS and Cfg.ws_base:
        return ["s_add_u32 s%d, s%d, %d" % (b, ptr, Cfg.ws_base), "s_addc_u32 s%d, s%d, 0" % (b + 1, ptr + 1),
                "s_mov_b32 s%d, %d" % (b + 2, size), "s_mov_b32 s%d, 0x00020000" % (b + 3)]
    return ["s_mov_b32 s%d, s%d" % (b, ptr), "s_mov_b32 s%d, s%d" % (b + 1, ptr + 1),
            "s_mov_b32 s%d, %d" % (b + 2, size), "s_mov_b32 s%d, 0x00020000" % (b + 3)]
def tag_from_epoch(vE):
    return [I("v_readfirstlane_b32 s%d, v%d" % (sTAG, vE)), I("s_nop 3"),
            I("s_mul_i32 s%d, s%d, 1664525" % (sTAG, sTAG)), I("s_add_u32 s%d, s%d, 1013904223" % (sTAG, sTAG)),
            I("v_accvgpr_write_b32 a%d, s%d" % (aTag, sTAG))]
def advance(sreg, step, limit, base=0):
    return [I("s_add_u32 s%d, s%d, %d" % (sreg, sreg, step)),
            [I("s_cmp_eq_u32 s%d, %d" % (sreg, limit + base)), I("s_cselect_b32 s%d, %d, s%d" % (sreg, base, sreg))]]
def seqc():
    l = [(k, k, 0) for k in range(7)] + [(k + Cfg.lag - 0.5, k, 1) for k in range(7)]
    return [(k, p) for _, k, p in sorted(l)]
sWo1 = 87

def L(fmt, *a): return fmt % a

def gpref(tmpv, dst, pol=""):
    p = [L("s_cmp_eq_u32 s%d, 1\ns_cselect_b32 s%d, s20, s18\ns_cselect_b32 s%d, s21, s19", sWV, sC, sC + 1),
         L("s_cmp_eq_u32 s%d, 3\ns_cselect_b32 s%d, s22, s%d\ns_cselect_b32 s%d, s23, s%d", sWV, sC, sC, sC + 1, sC + 1),
         L("s_cmp_eq_u32 s%d, 2\ns_cselect_b32 s%d, s4, s%d\ns_cselect_b32 s%d, s5, s%d\ns_cselect_b32 s%d, 56, 49", sWV, sC, sC, sC + 1, sC + 1, sA),
         L("s_mul_i32 s%d, s2, s%d\ns_sub_u32 s%d, s%d, 1\nv_min_u32 v%d, s%d, v%d\nv_add_lshl_u32 v%d, v%d, s%d, 7", sB, sA, sA, sA, tmpv, sA, vL, tmpv, tmpv, sB),
         VM("global_load_dword v%d, v%d, s[%d:%d] %s" % (dst, tmpv, sC, sC + 1, pol), "prep")]
    return p

def prologue_common():
    p = ["s_cmp_ge_u32 s2, 256\ns_cbranch_scc1 L_exit"]
    if Cfg.diag: p.append("s_memrealtime s[100:101]\ns_memtime s[88:89]")
    elif Cfg.amp: p.append("s_memrealtime s[100:101]")
    p.append("s_load_dwordx16 s[4:19], s[0:1], 0\ns_load_dwordx8 s[20:27], s[0:1], 64\ns_load_dwordx2 s[28:29], s[0:1], 96")
    p.append(L("v_and_b32 v%d, 63, v0\nv_lshrrev_b32 v%d, 6, v0\nv_lshlrev_b32 v%d, 4, v%d", vL, T0, vL16, vL))
    p.append(L("v_readfirstlane_b32 s%d, v%d", sWV, T0))
    p.append(L("v_cmp_eq_u32 vcc, 0, v%d\nv_mov_b32 v%d, %s\nv_mov_b32 v%d, 0\nv_cndmask_b32 v%d, v%d, v%d, vcc", vL, T1, OOB, T2, vFlag0, T1, T2))
    return p

def dma_group(sL, ldsconst, vs, srd_b, sOff, tag, pol, adv):
    at = [I("s_add_u32 m0, s%d, %d" % (sL, ldsconst))]
    for q in range(4):
        op = VM("buffer_load_dwordx4 v%d, %s, s%d offen offset:%d %s lds" % (vs[q], srd(srd_b), sOff, q * 1024, pol), tag)
        at.append([I("s_nop 0"), op] if q == 0 else op)
    return at, advance(sOff, *adv)
def w_group(c):
    p = seqc()[c][1]
    return dma_group(sWL, WR + (c % 6) * 16384, vW, SRD_W1, sWo1 if p else sWo, ("W", c), Cfg.nt_w, (64 * 3584, 448 * 3584, 128 * p))
def x_group(c): return dma_group(sXL, (c % 3) * XS, vX, SRD_X, sXo, ("X", c), Cfg.nt_x, (128, 896))
WD_BASE = [XB + 256, 32768, 49152, 65536, 81920, 0, 16384]
def wd_group(u): return dma_group(sWL, WD_BASE[u], vWd, SRD_WD, sDo, ("WD", u), Cfg.nt_wd, (128 * 896, 896 * 896))
def wd_reads(u, n4):
    at = []
    for jd in range(2):
        for p in range(2):
            off = WD_BASE[u] + (n4 >> 1) * 8192 + (n4 & 1) * 2048 + p * 1024
            base = vWdA[jd]
            if off >= 0x10000: base = vWdA2[jd]; off -= 0x10000
            at.append(DS("ds_read_b64_tr_b16 %s, v%d offset:%d" % (ar(8 * (4 * u + n4) + 4 * jd + 2 * p, 2), base, off), ("WR", u, n4)))
    return at

KR, VR_, vEp, SKR, TAP, KFv, R0, R1, VF, OLO, OHI = 33, 44, 32, 52, 56, 60, 71, 72, 73, 76, 32
KQ, KHL = 81920, 157440

def gen_main():
    P = [RAW("L_main:")]
    if Cfg.scramble:
        P.append(L("s_lshr_b32 s%d, s2, 3\ns_lshr_b32 s%d, s2, 5\ns_lshl_b32 s%d, s%d, 1\ns_xor_b32 s%d, s%d, s%d\ns_and_b32 s%d, s%d, 7\ns_xor_b32 s2, s2, s%d", sA, sB, sA, sA, sA, sA, sB, sA, sA, sA))
    P.append(L("s_sub_u32 s%d, s2, 32\ns_and_b32 s%d, s2, 7\ns_lshr_b32 s%d, s%d, 3", sC2, sA, sB, sC2))
    P.append(L("s_lshr_b32 s%d, s%d, 2\ns_and_b32 s%d, s%d, 3", sDT, sB, sB, sB))
    P.append(L("s_lshl_b32 s%d, s%d, 2\ns_add_u32 s%d, s%d, s%d", sT, sA, sT, sT, sB))
    P.append(L("s_lshr_b32 s%d, s%d, 1\ns_lshl_b32 s%d, s%d, 2\ns_add_u32 s%d, s%d, s%d", sMT, sA, sMT, sMT, sMT, sMT, sB))
    P.append(L("s_and_b32 s%d, s%d, 1\ns_mul_i32 s%d, s%d, 7\ns_add_u32 s%d, s%d, s%d", sFG0, sA, sFT, sFG0, sFT, sFT, sDT))
    P.append(L("s_and_b32 s%d, s%d, 1\ns_lshr_b32 s%d, s%d, 1", sWM, sWV, sWN, sWV))
    P.append(L("s_lshl_b32 s%d, s%d, 12\ns_add_u32 s%d, s%d, %d", sWL, sWV, sXL, sWL, XB + 256))
    if Cfg.rot1 == "0": P.append(L("s_mov_b32 s%d, 0", sA))
    elif Cfg.rot1 == "2": P.append(L("s_xor_b32 s%d, s%d, s%d\ns_and_b32 s%d, s%d, 1\ns_lshl_b32 s%d, s%d, 2", sA, sMT, sFT, sA, sA, sA, sA))
    elif Cfg.rot1 == "d": P.append(L("s_add_u32 s%d, s%d, 1\ns_sub_u32 s%d, s%d, 7\ns_min_u32 s%d, s%d, s%d", sA, sDT, sC, sA, sA, sA, sC))
    elif Cfg.rot1 == "3":
        P.append(L("s_add_u32 s%d, s%d, s%d\ns_mul_i32 s%d, s%d, 3\ns_mov_b32 s%d, 0x%x\ns_lshr_b32 s%d, s%d, s%d\ns_and_b32 s%d, s%d, 7",
                   sA, sB, sDT, sA, sA, sC, sum(((0, 2, 5)[i % 3]) << (3 * i) for i in range(10)), sA, sC, sA, sA, sA))
    else:
        P.append(L("s_lshl_b32 s%d, s%d, 1\ns_add_u32 s%d, s%d, s%d\ns_sub_u32 s%d, s%d, 7\ns_min_u32 s%d, s%d, s%d", sA, sB, sA, sA, sDT, sC, sA, sA, sA, sC))
    P.append(L("s_mul_i32 s%d, s%d, %d\ns_lshl_b32 s%d, s%d, 7", sWo, sA, 64 * 3584, sXo, sA))
    P.append(L("s_add_u32 s%d, s%d, 128", sWo1, sWo))
    P.append(L("v_lshrrev_b32 v%d, 4, v%d", T0, vL))
    P.append(L("s_mul_i32 s%d, s%d, %d\ns_lshl_b32 s%d, s%d, 8\ns_add_u32 s%d, s%d, s%d", sA, sWM, 32 * 3584, sB, sFT, sA, sA, sB))
    P.append(L("v_lshrrev_b32 v%d, 3, v%d\nv_mul_u32_u24 v%d, 3584, v%d\ns_lshl_b32 s%d, s%d, 2", T1, vL, T1, T1, sB, sWN))
    P.append(L("v_and_b32 v%d, 1, v%d\nv_lshlrev_b32 v%d, 1, v%d\nv_or_b32 v%d, s%d, v%d\nv_and_b32 v%d, 7, v%d", T2, T0, T2, T2, T2, sB, T2, T3, vL))
    P.append(L("v_xor_b32 v%d, v%d, v%d\nv_lshlrev_b32 v%d, 4, v%d\nv_add3_u32 v%d, v%d, v%d, s%d", T2, T2, T3, T2, T2, vW[0], T1, T2, sA))
    for q in range(1, 4): P.append(L("v_add_u32 v%d, %d, v%d", vW[q], q * (8 * 3584 - 1024), vW[0]))
    P.append(L("s_lshl_b32 s%d, s%d, 2\ns_add_u32 s%d, s%d, s%d\ns_xor_b32 s%d, s%d, s%d\ns_xor_b32 s%d, s%d, 1\ns_mul_i32 s%d, s%d, %d", sA, sMT, sA, sA, sWV, sA, sA, sFG0, sA, sA, sA, sA, 32 * 896))
    P.append(L("v_lshrrev_b32 v%d, 3, v%d\nv_mul_u32_u24 v%d, 896, v%d\nv_and_b32 v%d, 7, v%d", T1, vL, T1, T1, T3, vL))
    P.append(L("v_xor_b32 v%d, v%d, v%d\nv_lshlrev_b32 v%d, 4, v%d\nv_add3_u32 v%d, v%d, v%d, s%d", T2, T3, T0, T2, T2, vX[0], T1, T2, sA))
    P.append(L("v_xor_b32 v%d, 64, v%d", T2, vX[0]))
    for q in range(1, 4): P.append(L("v_add_u32 v%d, %d, v%d", vX[q], q * (8 * 896 - 1024), T2 if q & 1 else vX[0]))
    P.append(WDS0())
    if Cfg.diag: P.append([I("s_memtime s[98:99]"), WDS0(), I("s_mov_b32 s89, s98")])
    P.append(L("s_cmp_ge_u32 s%d, 2\ns_cselect_b32 s%d, s20, s18\ns_cselect_b32 s%d, s21, s19", sWV, SRD_W1, SRD_W1 + 1))
    P.append(L("s_mov_b32 s%d, %d\ns_mov_b32 s%d, 0x00020000", SRD_W1 + 2, D * F * 2, SRD_W1 + 3))
    P.append(build_srd(SRD_X, 4, S * D * 2))
    if Cfg.gpref == 2: P.append(gpref(T4, 79))
    P.append(w_group(0)); P.append(x_group(0))
    if Cfg.gpref == 1: P.append(gpref(T4, 79))
    P.append(w_group(1))
    for b, ptr, size in ((SRD_K, 6, S * D * 2), (SRD_V, 8, S * D * 2), (SRD_SK, 10, D * 8), (SRD_HK, 12, D * S * 2 + 64), (SRD_DD, 14, D * 2),
                         (SRD_WD, 22, D * F * 2), (SRD_OUT, 24, S * D * 2), (SRD_WS, 28, WS_SIZE)):
        P.append(build_srd(b, ptr, size))
    P.append(L("s_mov_b32 s%d, %d\nv_mov_b32 v%d, 0", sA, EP_OFF, T4))
    P.append(VM("buffer_load_dword v%d, v%d, %s, s%d offen sc1" % (vEp, T4, srd(SRD_WS), sA), "prep"))
    if Cfg.ctouch:
        P.append(L("s_getpc_b64 s[%d:%d]\nv_lshlrev_b32 v%d, 7, v0\nv_min_u32 v%d, L_end_of_main-L_touch_base-4, v%d", sC, sC + 1, T4, T4, T4))
        P.append(RAW("L_touch_base:"))
        P.append(VM("global_load_dword v%d, v%d, s[%d:%d]" % (79, T4, sC, sC + 1), "prep"))
    if Cfg.ptouch:
        P.append(L("v_mul_u32_u24 v%d, %d, v0\nv_lshlrev_b32 v%d, 8, v%d", T4, Cfg.ptouch >> 8, T4, T4))
        P.append(VM("buffer_load_dword v%d, v%d, %s, 0 offen" % (79, T4, srd(SRD_WS)), "prep"))
        for sd in (SRD_OUT, SRD_WD, SRD_HK, SRD_DD, SRD_K, SRD_V):
            P.append(VM("buffer_load_dword v%d, v%d, %s, 0 offen" % (79, T4, srd(sd)), "prep"))
    P.append(L("s_mul_i32 s%d, s%d, %d\ns_lshl_b32 s%d, s%d, 7\ns_add_u32 s%d, s%d, s%d", sA, sFG0, 896 * 896, sB, sDT, sA, sA, sB))
    P.append(L("s_mul_i32 s%d, s%d, %d\ns_add_u32 s%d, s%d, s%d", sB, sWV, 32 * 896, sA, sA, sB))
    P.append(L("v_and_b32 v%d, 1, v%d\nv_lshlrev_b32 v%d, 2, v%d\nv_xor_b32 v%d, v%d, v%d\nv_lshlrev_b32 v%d, 4, v%d", T2, T0, T2, T2, T2, T2, T3, T2, T2))
    P.append(L("v_add3_u32 v%d, v%d, v%d, s%d", vWd[0], T1, T2, sA))
    for q in range(1, 4): P.append(L("v_add_u32 v%d, %d, v%d", vWd[q], q * (8 * 896 - 1024), vWd[0]))
    P.append(L("v_bfe_u32 v%d, v%d, 2, 2\nv_bfe_u32 v%d, v%d, 4, 1\nv_lshrrev_b32 v%d, 5, v%d", T0, vL, T1, vL, T2, vL))
    P.append(L("v_and_b32 v%d, 3, v%d\nv_lshlrev_b32 v%d, 3, v%d", T3, vL, T3, T3))
    P.append(L("v_lshl_add_u32 v%d, v%d, 3, v%d\nv_lshlrev_b32 v%d, 7, v%d\nv_lshl_add_u32 v%d, v%d, 13, v%d\nv_add_u32 v%d, v%d, v%d", T4, T2, T0, T4, T4, T4, T1, T4, T4, T4, T3))
    P.append(L("v_lshrrev_b32 v%d, 1, v%d\nv_lshl_or_b32 v%d, v%d, 1, v%d\ns_lshl_b32 s%d, s%d, 1\nv_xor_b32 v%d, s%d, v%d", T5, T0, T5, T1, T5, sA, sWM, T5, sA, T5))
    for jj in range(2):
        P.append(L("v_xor_b32 v%d, %d, v%d\nv_lshl_add_u32 v%d, v%d, 5, v%d\nv_add_u32 v%d, %d, v%d", vA[jj], jj, T5, vA[jj], vA[jj], T4, vA2[jj], 49152, vA[jj]))
    P.append(L("v_lshl_add_u32 v%d, v%d, 2, v%d\nv_lshlrev_b32 v%d, 7, v%d\ns_lshl_b32 s%d, s%d, 12", T4, T2, T0, T4, T4, sA, sWM))
    P.append(L("v_lshl_add_u32 v%d, v%d, 5, v%d\nv_add3_u32 v%d, v%d, v%d, s%d", T4, T1, T4, T4, T4, T3, sA))
    P.append(L("v_lshrrev_b32 v%d, 1, v%d\nv_xor_b32 v%d, s%d, v%d\nv_lshl_add_u32 v%d, v%d, 6, v%d", T5, T0, T5, sWM, T5, vWdA[0], T5, T4))
    P.append(L("v_xor_b32 v%d, 64, v%d\nv_add_u32 v%d, 0x10000, v%d\nv_add_u32 v%d, 0x10000, v%d", vWdA[1], vWdA[0], vWdA2[0], vWdA[0], vWdA2[1], vWdA[1]))
    P.append(L("v_and_b32 v%d, 31, v%d\nv_bfe_u32 v%d, v%d, 1, 3\nv_xor_b32 v%d, v%d, v%d", T6, vL, T1, vL, T1, T1, T2))
    P.append(L("s_lshl_b32 s%d, s%d, 13\ns_add_u32 s%d, s%d, %d\nv_lshlrev_b32 v%d, 7, v%d\nv_add_u32 v%d, s%d, v%d", sA, sWN, sA, sA, XB + 256, T0, T6, T0, sA, T0))
    for sp in range(4): P.append(L("v_xor_b32 v%d, %d, v%d\nv_lshl_add_u32 v%d, v%d, 4, v%d", vB[sp], 2 * sp, T1, vB[sp], vB[sp], T0))
    vKa, vKv, vKh = 68, 69, 70
    P.append(L("s_lshl_b32 s%d, s%d, 2\ns_add_u32 s%d, s%d, s%d\ns_mul_i32 s%d, s%d, %d\ns_lshl_b32 s%d, s%d, 7\ns_add_u32 s%d, s%d, s%d",
               sA, sT, sA, sA, sWV, sC, sA, 16 * 896, sB, sDT, s4r, sC, sB))
    P.append(L("s_add_u32 s%d, s%d, %d\ns_sub_u32 s%d, s%d, %d\ns_cmp_eq_u32 s%d, 0\ns_cselect_b32 s%d, 0x40000000, s%d", sZt1, s4r, 8 * 896 - 1024, sZt2, s4r, 8 * 896, sA, sZt2, sZt2))
    P.append(L("v_lshrrev_b32 v%d, 3, v%d\nv_mul_u32_u24 v%d, 896, v%d\nv_and_b32 v%d, 7, v%d\nv_lshl_add_u32 v%d, v%d, 4, v%d", T0, vL, R0, T0, T1, vL, R0, T1, R0))
    P.append(L("v_cmp_gt_u32 vcc, 40, v%d\nv_mov_b32 v%d, %s\ns_lshr_b32 s%d, s%d, 2\nv_cndmask_b32 v%d, v%d, v%d, vcc", vL, T0, OOB, sZt0, sWL, VF, R0, T0))
    P.append(L("s_lshl_b32 s%d, s%d, 9\nv_lshlrev_b32 v%d, 4, v%d", sD_, sDT, R1, T6))
    P.append(L("s_add_u32 s%d, s%d, %d\nv_lshl_add_u32 v%d, v%d, 2, s%d\nv_lshl_add_u32 v%d, v%d, 10, v%d\nv_add_u32 v%d, 2048, v%d", sA, sWL, KQ, T0, T6, sA, vKa, T2, T0, vKv, vKa))
    P.append(L("s_add_u32 s%d, s%d, %d\nv_lshl_add_u32 v%d, v%d, 2, s%d\nv_cmp_gt_u32 vcc, 32, v%d\ns_nop 1\nv_cndmask_b32 v%d, v%d, v%d, vcc\nv_add_u32 v%d, 640, v%d", sA, sZt0, KHL, T1, T6, sA, vL, vKh, T0, T1, vKh, vKh))
    def kd(srd_b, v, so, imm): return VM("buffer_load_dwordx4 v%d, %s, s%d offen offset:%d %s lds" % (v, srd(srd_b), so, imm, Cfg.nt_kv), "prep")
    kvl = [I("s_add_u32 m0, s%d, %d" % (sWL, KQ)), [I("s_nop 0"), kd(SRD_K, R0, s4r, 0)], kd(SRD_K, R0, sZt1, 1024),
           I("s_add_u32 m0, s%d, %d" % (sWL, KQ + 2048)), [I("s_nop 0"), kd(SRD_V, R0, s4r, 0)], kd(SRD_V, R0, sZt1, 1024),
           I("s_add_u32 m0, s%d, %d" % (sZt0, KHL)), [I("s_nop 0"), kd(SRD_K, VF, sZt2, 0)],
           VM("buffer_load_dwordx4 %s, v%d, %s, s%d offen" % (vr(SKR, 4), R1, srd(SRD_SK), sD_), "prep")]
    P.append(L("s_lshl_b32 s%d, s%d, 1\ns_add_u32 s%d, s%d, s%d\ns_lshl_b32 s%d, s%d, 12", sHS, sC2, sHS, sHS, sWN, sHS, sHS))
    P.append(L("v_and_b32 v%d, 15, v%d", T7, vL))
    P.append(L("s_lshl_b32 s%d, s%d, 18\ns_lshl_b32 s%d, s%d, 7\ns_sub_u32 s%d, s%d, s%d\ns_add_u32 s%d, s%d, %d\ns_add_u32 s%d, s%d, %d",
               sKst0, sDT, sA, sT, sKst0, sKst0, sA, sKst0, sKst0, KVT_OFF + 3968, sKst1, sKst0, 32 * 4096))
    P.append(L("s_lshl_b32 s%d, s%d, 5\ns_add_u32 s%d, s%d, s%d\ns_lshl_b32 s%d, s%d, 7\ns_add_u32 s%d, s%d, %d\ns_cmp_eq_u32 s%d, 0\ns_cselect_b32 s%d, s%d, 0x40000000",
               sA, sDT, sA, sA, sT, sA, sA, sA, sA, KF_OFF, sWV, sKfl, sA))
    P.append(L("s_lshl_b32 s%d, s%d, 1\ns_sub_u32 s%d, 7, s%d\nv_sub_u32 v%d, s%d, v%d\nv_and_b32 v%d, 7, v%d\nv_xor_b32 v%d, v%d, v%d", sA, sWV, sA, sA, T0, sA, T2, T1, vL, T0, T0, T1))
    P.append(L("v_lshlrev_b32 v%d, 4, v%d\nv_lshl_add_u32 v%d, v%d, 8, v%d\nv_lshrrev_b32 v%d, 4, v%d\nv_mul_u32_u24 v%d, 4608, v%d", T0, T0, T0, T7, T0, T3, T6, T3, T3))
    P.append(L("v_add_u32 v%d, v%d, v%d\nv_add_u32 v%d, %d, v%d", T0, T0, T3, T0, KVR, T0) + "\n" + stash(aPsw, T0))
    P.append(L("v_lshrrev_b32 v%d, 3, v0\nv_bfe_u32 v%d, v0, 4, 3\nv_xor_b32 v%d, v%d, v%d\nv_lshlrev_b32 v%d, 4, v%d", T0, T3, T3, T3, T1, T3, T3))
    P.append(L("v_lshl_add_u32 v%d, v%d, 7, v%d\nv_add_u32 v%d, %d, v%d", T3, T0, T3, T3, KVR, T3) + "\n" + stash(aPsr, T3))
    P.append(L("v_lshlrev_b32 v%d, 12, v%d\nv_lshl_add_u32 v%d, v%d, 4, v%d", T0, T0, T0, T1, T0) + "\n" + stash(aKst, T0))
    U0, U1, U2, U3, U4, U5, U6, U7 = range(88, 96)
    Q = []
    Q.append(L("v_lshrrev_b32 v%d, 5, v%d\nv_lshrrev_b32 v%d, 4, v%d\nv_and_b32 v%d, 31, v%d\nv_and_b32 v%d, 15, v%d", U2, vL, U5, vL, U6, vL, U7, vL))
    Q.append(L("s_mov_b32 s%d, s%d", sA, sDT))
    Q.append(L("s_mul_i32 s%d, s%d, %d\ns_lshl_b32 s%d, s%d, 13", sDo, sA, 128 * 896, sHcur, sA))
    Q.append(L("s_lshl_b32 s%d, s%d, 1\ns_add_u32 s%d, s%d, s%d", sA, sMT, sA, sA, sWN))
    Q.append(L("s_lshl_b32 s%d, s%d, 1\ns_add_u32 s%d, s%d, s%d", sB, sFT, sB, sB, sWM))
    Q.append(L("s_lshl_b32 s%d, s%d, 9\ns_add_u32 s%d, s%d, %d", sMn, sA, sMn, sMn, ST_OFF))
    Q.append(L("s_lshl_b32 s%d, s%d, 8\ns_add_u32 s%d, s%d, s%d\ns_xor_b32 s%d, s%d, 256", sC, sFG0, sZF, sMn, sC, sMn, sZF))
    Q.append(L("s_lshl_b32 s%d, s%d, 2\ns_add_u32 s%d, s%d, s%d\ns_lshl_b32 s%d, s%d, 10\ns_add_u32 s%d, s%d, %d", sCs, sFT, sCs, sCs, sWM, sCs, sCs, sCs, sCs, CS_OFF))
    Q.append(L("s_mul_i32 s%d, s%d, 224\ns_lshl_b32 s%d, s%d, 2\ns_add_u32 s%d, s%d, s%d\ns_lshl_b32 s%d, s%d, 10\ns_add_u32 s%d, s%d, %d",
               sHst0, sA, sC, sB, sHst0, sHst0, sC, sHst1, sHst0, sHst0, sHst1, 112 * 1024))
    Q.append(L("s_mul_i32 s%d, s%d, %d\ns_sub_u32 s%d, s%d, s%d\ns_add_u32 s%d, s%d, s%d", sC, sFG0, 112 * 1024, sHst0, sHst0, sC, sHst1, sHst1, sC))
    Q.append(L("s_lshl_b32 s%d, s%d, 5\ns_add_u32 s%d, s%d, s%d\ns_lshl_b32 s%d, s%d, 7\ns_add_u32 s%d, s%d, %d", sHfl, sA, sHfl, sHfl, sB, sHfl, sHfl, sHfl, sHfl, HF_OFF))
    Q.append(L("s_mov_b32 s%d, %d\ns_and_b32 s%d, s%d, 0xffffffe0\nv_add_lshl_u32 v%d, v%d, s%d, 7", sKF, KF_OFF, sA, sC2, U0, U6, sA) + "\n" + stash(aPollK, U0))
    Q.append(L("s_lshl_b32 s%d, s%d, 13\ns_add_u32 s%d, s%d, %d\ns_add_u32 s%d, s%d, 4096", sKld0, sC2, sKld0, sKld0, KVT_OFF, sKld1, sKld0))
    Q.append(L("s_mul_i32 s%d, s%d, %d\ns_add_u32 s%d, s%d, %d", sHL, sWN, XS, sHL, sHL, XB + XS))
    Q.append(("mark", "q1"))
    Q.append(L("v_lshrrev_b32 v%d, 7, v0\nv_mul_u32_u24 v%d, 4608, v%d\nv_and_b32 v%d, 127, v0\nv_lshl_add_u32 v%d, v%d, 2, v%d\nv_add_u32 v%d, %d, v%d\nv_mov_b32 v%d, 0", U3, U3, U3, U4, U3, U4, U3, U3, KVR + 4096, U3, U4))
    Q.append(DS("ds_write_b32 v%d, v%d" % (U3, U4), "kvw"))
    Q.append(L("v_and_b32 v%d, 3, v%d\nv_mul_u32_u24 v%d, 4160, v%d\nv_lshrrev_b32 v%d, 2, v%d\nv_lshl_add_u32 v%d, v%d, 3, v%d\nv_lshl_add_u32 v%d, v%d, 4, v%d", U3, U7, U3, U3, U0, U7, U3, U0, U3, U3, U5, U3))
    Q.append(L("s_lshl_b32 s%d, s%d, 8\ns_add_u32 s%d, s%d, s%d\nv_add_u32 v%d, s%d, v%d", sC, sWM, sC, sC, sHL, U3, sC, U3) + "\n" + stash(aCA0, U3))
    Q.append(L("v_mul_u32_u24 v%d, 4160, v%d\nv_lshl_add_u32 v%d, v%d, 2, v%d\nv_add_u32 v%d, s%d, v%d", U3, U5, U3, U7, U3, U3, sHL, U3) + "\n" + stash(aCA1, U3))
    Q.append(L("s_mul_i32 s%d, s%d, 4608\ns_add_u32 s%d, s%d, %d\ns_lshl_b32 s%d, s%d, 8\ns_add_u32 s%d, s%d, s%d\ns_add_u32 s%d, s%d, 480", sA, sWN, sA, sA, KVR, sC, sWM, sB, sA, sC, sB, sB))
    Q.append(L("v_lshlrev_b32 v%d, 5, v%d\nv_sub_u32 v%d, s%d, v%d\nv_lshl_add_u32 v%d, v%d, 4, v%d", U4, U7, U0, sB, U4, U0, U5, U0) + "\n" + stash(aCB, U0))
    Q.append(L("s_lshl_b32 s%d, s%d, 3\ns_sub_u32 s%d, s%d, s%d\ns_add_u32 s%d, s%d, %d", sC, sC, sB, sA, sC, sB, sB, 4088 - 1536))
    Q.append(L("v_sub_u32 v%d, s%d, v%d\nv_lshlrev_b32 v%d, 3, v%d\nv_sub_u32 v%d, v%d, v%d", U0, sB, U4, U4, U5, U0, U0, U4) + "\n" + stash(aCD, U0))
    Q.append(("mark", "q2"))
    Q.append(L("v_lshlrev_b32 v%d, 6, v%d\nv_lshl_add_u32 v%d, v%d, 4, v%d", U0, U7, U0, U5, U0) + "\n" + stash(aZst, U0))
    Q.append(L("s_lshl_b32 s%d, s%d, 1\ns_lshl_b32 s%d, s%d, 12\ns_add_u32 s%d, s%d, s%d\ns_add_u32 s%d, s%d, %d", sZst, sHS, sA, sWM, sZst, sZst, sA, sZst, sZst, Z_OFF))
    Q.append(L("s_lshl_b32 s%d, s%d, 1\ns_add_u32 s%d, s%d, s%d\ns_lshl_b32 s%d, s%d, 1\ns_add_u32 s%d, s%d, s%d", sA, sMT, sA, sA, sWN, sA, sA, sA, sA, sFG0))
    Q.append(L("s_lshl_b32 s%d, s%d, 1\ns_add_u32 s%d, s%d, s%d", sB, sDT, sB, sB, sWM))
    Q.append(L("s_lshl_b32 s%d, s%d, 18\ns_lshl_b32 s%d, s%d, 7\ns_add_u32 s%d, s%d, s%d\ns_add_u32 s%d, s%d, %d", sZld, sB, sC, sA, sZld, sZld, sC, sZld, sZld, Z_OFF))
    Q.append(L("s_lshl_b32 s%d, s%d, 9\ns_add_u32 s%d, s%d, %d", sSt2, sA, sSt2, sSt2, ST2_OFF))
    Q.append(L("s_and_b32 s%d, s%d, 0xfffffffe\ns_mul_i32 s%d, s%d, %d\ns_mul_i32 s%d, s%d, %d\ns_sub_u32 s%d, %d, s%d", sC, sA, sHbase, sC, 112 * 1024, sHB, sFG0, 112 * 1024, sHA, 112 * 1024, sHB))
    Q.append(L("s_mul_i32 s%d, s%d, %d\ns_lshl_b32 s%d, s%d, 6\ns_add_u32 s%d, s%d, s%d", sA, sA, 32 * 896, sC, sB, sA, sA, sC))
    Q.append(L("v_mul_u32_u24 v%d, 896, v%d\nv_lshlrev_b32 v%d, 4, v%d\nv_add3_u32 v%d, v%d, v%d, s%d", U0, U6, U1, U2, U0, U0, U1, sA) + "\n" + stash(aOo, U0))
    Q.append(L("v_lshrrev_b32 v%d, 2, v%d\nv_lshl_add_u32 v%d, v%d, 3, v%d\nv_lshlrev_b32 v%d, 6, v%d\nv_and_b32 v%d, 1, v%d\nv_lshl_add_u32 v%d, v%d, 5, v%d", U0, U7, U0, U2, U0, U0, U0, U1, U5, U0, U1, U0))
    Q.append(L("v_and_b32 v%d, 3, v%d\nv_lshl_add_u32 v%d, v%d, 3, v%d\ns_lshr_b32 s%d, s%d, 1\ns_add_u32 s%d, s%d, %d\nv_add_u32 v%d, s%d, v%d", U1, U7, U0, U1, U0, sZfl, sWL, sZfl, sZfl, ZL, U0, sZfl, U0) + "\n" + stash(aPollZ, U0))
    Q.append(L("v_lshrrev_b32 v%d, 3, v%d\nv_lshlrev_b32 v%d, 13, v%d\nv_and_b32 v%d, 7, v%d\nv_lshl_add_u32 v%d, v%d, 4, v%d", U0, vL, U0, U0, U1, vL, U0, U1, U0) + "\n" + stash(aZld, U0))
    Q.append(L("v_lshlrev_b32 v%d, 10, v%d\nv_lshl_add_u32 v%d, v%d, 4, v%d\nv_add_u32 v%d, s%d, v%d", U0, U2, U0, U6, U0, U0, sWL, U0) + "\n" + stash(aRr, U0))
    Q.append(L("s_lshl_b32 s%d, s%d, 2\ns_add_u32 s%d, s%d, s%d\ns_mul_i32 s%d, s%d, 3072\ns_add_u32 s%d, s%d, %d", sA, sC2, sA, sA, sWV, sPld, sA, sPld, sPld, PX_OFF))
    Q.append(L("s_xor_b32 s%d, s%d, 4\ns_mul_i32 s%d, s%d, 3072\ns_add_u32 s%d, s%d, %d", sA, sA, sPst, sA, sPst, sPst, PX_OFF))
    Q.append(L("s_mov_b32 s%d, %d", sHF, HF_OFF))
    Q.append(L("s_mul_i32 s%d, s%d, 14\ns_add_u32 s%d, s%d, s%d", sB, sFG0, sB, sB, sWM))
    Q.append(L("s_lshl_b32 s%d, s%d, 12\ns_add_u32 s%d, s%d, s%d\ns_add_u32 s%d, s%d, %d\ns_add_u32 s%d, s%d, s%d",
               sC, sB, sHbase, sHbase, sC, sHlim, sHbase, 56 * 1024, sHcur, sHbase, sHcur))
    Q.append(L("s_lshl_b32 s%d, s%d, 1\ns_add_u32 s%d, s%d, s%d\ns_lshl_b32 s%d, s%d, 5\ns_add_u32 s%d, s%d, s%d", sC, sMT, sC, sC, sWN, sC, sC, sA, sB, sC))
    Q.append(L("v_min_u32 v%d, 6, v%d\nv_lshlrev_b32 v%d, 1, v%d\nv_add_lshl_u32 v%d, v%d, s%d, 7", U0, vL, U0, U0, U0, U0, sA) + "\n" + stash(aPollH, U0))
    qparts = [[]]
    for it in Q:
        if isinstance(it, tuple): qparts.append([])
        else: flatten(it, qparts[-1])
    RQ = Cfg.rq
    SQC = seqc(); posa = {k: c for c, (k, p) in enumerate(SQC) if p == 0}
    C1 = max(Cfg.c1, posa[6] + 1)
    frs = []
    seq = []
    def addfrag(c, s4, jj):
        frs.append((c, s4, jj)); seq.extend([("m", len(frs) - 1, 0), ("m", len(frs) - 1, 1)])
    for c in range(14 - RQ):
        if c == C1: seq.extend(("c", t) for t in range(4))
        for s4 in range(4):
            for jj in range(2): addfrag(c, s4, jj)
    for jj in range(2):
        for c in range(14 - RQ, 14):
            for s4 in range(4): addfrag(c, s4, jj)
        seq.extend([("c", 4 + 2 * jj), ("c", 5 + 2 * jj)])
    assert len(seq) == 232 and C1 < 14 - RQ, (C1, RQ)
    use = {}; ctick = {}
    for n, e in enumerate(seq):
        if e[0] == "m": use.setdefault(e[1], 2 * n)
        else: ctick[e[1]] = 2 * n
    first = {}
    for i, (c, s4, jj) in enumerate(frs): first.setdefault(c, use[i])
    TB = {c: first[c] - Cfg.blead - (8 if c == C1 else 0) for c in range(1, 14)}
    A_CONV = 2 * 232
    def barr(i): return TB[i]
    def conv_anchor(g): return A_CONV + g
    T_BC = A_CONV - Cfg.bc; T_BW = conv_anchor(Cfg.bw)
    def xread(ks, nt): return DS("ds_read_b128 %s, v%d offset:%d" % (ar(8 * ks + 4 * nt, 4), vB[ks & 3], ((ks >> 2) % 3) * XS + nt * 4096), ("FX", ks))
    def aread(i):
        c, s4, jj = frs[i]; slot = c % 6
        base = vA[jj] if slot < 3 else vA2[jj]
        return [DS("ds_read_b64_tr_b16 %s, v%d offset:%d" % (vr(AF + 4 * (i & 7) + 2 * p, 2), base, (slot % 3) * 16384 + s4 * 2048 + p * 512), ("FA", i)) for p in range(2)]
    def freads(i):
        c, s4, jj = frs[i]
        k, p = SQC[c]
        return ([xread(4 * k + s4, 0), xread(4 * k + s4, 1)] if (p == 0 and jj == 0) else []) + aread(i)
    qall = qparts[0] + qparts[1] + qparts[2]
    P.append(qall[:Cfg.q_pro])
    if Cfg.x1_pro: P.append(x_group(1))
    P.append([WVM(("W", 0), ("X", 0)), I("s_barrier")])
    P.append(freads(0) + freads(1))
    P.append(stamp("b0"))
    sS = Stream("setup")
    sS.addall(qall[Cfg.q_pro:] + [I("s_nop 0")], by=Cfg.setup_by, key="setup")
    cur = []
    for j in range(7):
        cur.append(I("s_mov_b32 s%d, s%d" % (sG[j], sHcur)))
        if j < 6: cur += [I("s_add_u32 s%d, s%d, 8192" % (sHcur, sHcur)), [I("s_cmp_eq_u32 s%d, s%d" % (sHcur, sHlim)), I("s_cselect_b32 s%d, s%d, s%d" % (sHcur, sHbase, sHcur))]]
    sS.addall(cur, after=("kvl", 2), by=200)
    sF = Stream("frag", cap=2)
    for i in range(2, 112):
        c = frs[i][0]
        ea = max(TB.get(c, 0), use[i - 8] + 4 if i >= 8 else 0)
        by = use[i] - 6
        if c + 1 <= 14 - RQ: by = min(by, TB[c + 1] - 2)
        by = min(by, T_BC - 2)
        assert ea <= by, (i, ea, by)
        sF.addall(freads(i), at=ea, by=by)
    sD = Stream("dma")
    def addgrp(g, at, sp, key=None, by=None):
        at_, adv = g
        if key == ("w", 5): sD.add(WDS("kr"), after=("kread", 2))
        sps = sp if isinstance(sp, tuple) else (sp,) * 4
        sD.add(at_[0], at=at, space=max(sps[0] - 2, 0)); sD.add(at_[1])
        for i, a in enumerate(at_[2:]): sD.add(a, space=sps[i + 1], key=key if i == 2 else None, by=by)
        for a in adv: sD.add(a)
    sR = Stream("wdread", cap=2)
    vHs = vX[0]
    WD_AT = [barr(posa[6] + 1)] + [barr(c + 1) if c + 1 <= 14 - RQ else T_BC for c in range(8, 14)]
    srt = sorted(zip(WD_AT, [XB + 256, 32768, 49152, 65536, 81920, 0, 16384]), key=lambda z: z[0])
    WD_AT = [z[0] for z in srt]; WD_BASE[:] = [z[1] for z in srt]
    order = []
    for c in range(1, 14):
        k, p = SQC[c]
        if p == 0 and not (k == 1 and Cfg.x1_pro): order.append(("X", k))
        if c >= 2: order.append(("W", c))
    order.insert(Cfg.kpos, ("K", 0))
    KX = order.index(("W", Cfg.plan_from)) if Cfg.plan_from < 14 else len(order)
    order += [("D", u) for u in Cfg.d_order]
    for n, (kind, i) in enumerate(order):
        sp = (Cfg.sp1 if n < Cfg.kx else Cfg.sp2) if n < KX else 0
        if n == KX: nplain = len(sD.items)
        if kind == "W": addgrp(w_group(i), max(barr(i - 5) if i >= 6 else 0, Cfg.w_min.get(i, 0), barr(i) - Cfg.lead), sp, key=("w", i), by=barr(i) - Cfg.minlead)
        elif kind == "X": addgrp(x_group(i), max(barr(posa[i - 3] + 1) if i >= 3 else 0, barr(posa[i]) - Cfg.lead - 16), sp, by=barr(posa[i]) - Cfg.minlead)
        elif kind == "K": sD.addall(kvl, key="kvl")
        elif kind == "H": pass
        else:
            addgrp(wd_group(i), max(WD_AT[i], Cfg.wd_min[i]), 0, by=T_BW - 2 * Cfg.minlead)
    for f in range(Cfg.wr_pre): sR.addall(wd_reads(f % 7, f // 7), at=T_BW, by=conv_anchor(143))
    sP = Stream("prep")
    def unp(dst, src, hi): return I("v_and_b32 v%d, 0xffff0000, v%d" % (dst, src)) if hi else I("v_lshlrev_b32 v%d, 16, v%d" % (dst, src))
    rd = [DS("ds_read_b32 v%d, v%d" % (KR, vKh), "kr"), DS("ds_read2_b32 %s, v%d offset0:32 offset1:64" % (vr(KR + 1, 2), vKh), "kr")]
    rd += [DS("ds_read2_b32 %s, v%d offset0:%d offset1:%d" % (vr(KR + 3 + o, 2), vKa, 32 * o, 32 * o + 32), "kr") for o in range(0, 8, 2)]
    rd += [DS("ds_read2_b32 %s, v%d offset0:%d offset1:%d" % (vr(VR_ + o, 2), vKv, 32 * o, 32 * o + 32), "kr") for o in range(0, 8, 2)]
    sP.addall([[WVM("prep"), rd[0]]] + rd[1:], after=("kvl", Cfg.prep_lag), key="kread", by=barr(5) - Cfg.minlead - 12)
    at = tag_from_epoch(vEp)
    for b in range(2):
        for i in range(4): at.append(unp(TAP + i, SKR + 2 * b + (i >> 1), i & 1))
        for a in range(11): at.append([WDS("kr"), unp(KFv + a, KR + a, b)] if (a, b) == (0, 0) else unp(KFv + a, KR + a, b))
        out = OHI if b else OLO
        for w in range(4):
            for (o, R) in ((7 - 2 * w, R0), (6 - 2 * w, R1)):
                at.append(I("v_mul_f32 v%d, v%d, v%d" % (R, KFv + o, TAP + 3)))
                for i in (2, 1, 0): at.append(I("v_fmac_f32 v%d, v%d, v%d" % (R, KFv + o + 3 - i, TAP + i)))
                at.append(unp(VF, VR_ + o, b))
                at.append(I("v_mul_f32 v%d, v%d, v%d" % (R, R, VF)))
            at.append(I("v_cvt_pk_bf16_f32 v%d, v%d, v%d" % (out + w, R0, R1)))
    at.append(unstash(R0, aPsw))
    at.append(DS("ds_write_b128 v%d, %s" % (R0, vr(OLO, 4)), "psw"))
    at.append(DS("ds_write_b128 v%d, %s offset:128" % (R0, vr(OHI, 4)), "psw"))
    B_psw = Cfg.b_psw
    sP.addall(at, by=barr(B_psw) - 2)
    at = [unstash(R1, aPsr), DS("ds_read_b128 %s, v%d" % (vr(36, 4), R1), "psr"), DS("ds_read_b128 %s, v%d offset:4608" % (vr(40, 4), R1), "psr"),
          unstash(R0, aKst)]
    sP.addall(at, at=barr(B_psw), by=barr(B_psw) + 4)
    sP.add([WDS("psr"), VM("buffer_store_dwordx4 %s, v%d, %s, s%d offen sc1" % (vr(36, 4), R0, srd(SRD_WS), sKst0), "kvst")], at=barr(B_psw) + 10, by=barr(B_psw) + 16)
    sP.add(VM("buffer_store_dwordx4 %s, v%d, %s, s%d offen sc1" % (vr(40, 4), R0, srd(SRD_WS), sKst1), "kvst"), by=barr(B_psw) + 20, key="prepdone")
    B_kvst = B_psw + Cfg.kv_ack
    sP.add(flag_store(sKfl, []), at=barr(B_kvst), by=barr(B_kvst))
    CSF, MB, vPk, vPo, vCo, vMo, KV, vKw, vU0, vU1, vU2 = 32, 48, 56, 57, 58, 59, 14, 60, 4, 5, 8
    assert min(Cfg.cs_at, Cfg.polls_at, Cfg.t_at) > barr(B_psw) + 22
    sQ = Stream("cs")
    ldC = ["buffer_load_dwordx4 %s, v%d, %s, s%d offen offset:%d sc1" % (vr(CSF + 4 * jj, 4), vCo, srd(SRD_WS), sCs, 2048 * (jj >> 1) + 512 * (jj & 1)) for jj in range(4)]
    ldM = ["buffer_load_dwordx2 %s, v%d, %s, s%d offen sc1" % (vr(MB + 4 * nt, 2), vMo, srd(SRD_WS), sZF if nt else sMn) for nt in range(2)]
    sQ.addall([I("v_and_b32 v%d, 511, v%d" % (vCo, vL16)), I("v_lshrrev_b32 v%d, 1, v%d" % (vMo, vCo))] + [VM(x, "cs") for x in ldC[:2] + ldM], at=Cfg.cs_at - 2, by=Cfg.cs_at + 60)
    cmp_ops = ["v_xor_b32 v%d, s%d, v%d" % (vU0, sTAG, CSF + 3), "v_xor_b32 v%d, s%d, v%d" % (vU1, sTAG, CSF + 7), "v_xor_b32 v%d, s%d, v%d" % (vU2, sTAG, MB + 1),
               "v_or3_b32 v%d, v%d, v%d, v%d" % (vU0, vU0, vU1, vU2), "v_xor_b32 v%d, s%d, v%d" % (vU1, sTAG, MB + 5), "v_or_b32 v%d, v%d, v%d" % (vU0, vU0, vU1),
               "v_cmp_ne_u32 vcc, 0, v%d" % vU0]
    c1, c2 = check("C", ldC[:2] + ldM, cmp_ops, ["cs"])
    T_CORR = ctick[0]
    sQ.addall(c1, at=T_CORR - Cfg.cs_chk, by=T_CORR - 14)
    sQ.add(c2, by=T_CORR - 14)
    at = [I("v_mov_b32 v%d, 0" % (CSF + 4 * jj + 3)) for jj in range(2)]
    for nt in range(2):
        b = MB + 4 * nt
        at.append(I("v_xor_b32 v%d, 0x80000000, v%d" % (b, b)))
        at.append([I("v_cmp_gt_u32 vcc, 32, v%d" % vL), I("v_mov_b32 v%d, 0" % (b + 2)), I("v_mov_b32 v%d, 0" % (b + 3)), I("v_cndmask_b32 v%d, 0, v%d, vcc" % (b, b))])
        at.append(I("v_lshrrev_b32 v%d, 16, v%d" % (b + 1, b)))
        at.append(I("v_or_b32 v%d, v%d, v%d" % (b, b, b + 1)))
    sQ.addall(at, by=T_CORR - 6)
    sQ.addall([VM(x, "cs2") for x in ldC[2:]], at=Cfg.cs2_at, by=Cfg.cs2_at + 24)
    cmp_ops = ["v_xor_b32 v%d, s%d, v%d" % (vU0, sTAG, CSF + 11), "v_xor_b32 v%d, s%d, v%d" % (vU1, sTAG, CSF + 15), "v_or_b32 v%d, v%d, v%d" % (vU0, vU0, vU1), "v_cmp_ne_u32 vcc, 0, v%d" % vU0]
    c1, c2 = check("C2", ldC[2:], cmp_ops, ["cs2"])
    sQ.addall(c1, at=ctick[4] - 14, by=ctick[4] - 10)
    sQ.add(c2, by=ctick[4] - 10)
    sQ.addall([I("v_mov_b32 v%d, 0" % (CSF + 4 * jj + 3)) for jj in range(2, 4)], by=ctick[4] - 6)
    sK = Stream("kv")
    if Cfg.m_touch:
        sK.addall([[I("s_lshl_b32 s%d, s%d, 2" % (sZt1, sC2)), I("s_add_u32 s%d, s%d, s%d" % (sZt1, sZt1, sWV)), I("s_mul_i32 s%d, s%d, %d" % (sZt1, sZt1, 14 * 128))],
                   I("v_min_u32 v%d, 13, v%d" % (vPk, vL)), I("v_lshlrev_b32 v%d, 7, v%d" % (vPk, vPk)),
                   VM("buffer_load_dword v%d, v%d, %s, s%d offen" % (vPk, vPk, srd(SRD_WD), sZt1), "mt")], at=Cfg.m_touch, by=Cfg.m_touch + 12)
    if Cfg.kv_alt: KV = 10 - 10 + 62
    ldK = "buffer_load_dword v%d, v%d, %s, s%d offen sc1" % (vPk, vPo, srd(SRD_WS), sKF)
    sK.addall([unstash(vPo, aPollK), VM(ldK, "pollK")], at=Cfg.polls_at - 2, by=Cfg.polls_at + 8)
    c1, c2 = check("K", [ldK], ["v_cmp_ne_u32 vcc, s%d, v%d" % (sTAG, vPk)], ["pollK"])
    pc = Cfg.polls_at + Cfg.polls_lag
    sK.add([c1, c2], at=pc, by=pc)
    sK.add(I("v_lshlrev_b32 v%d, 4, v0" % vKw), after=("hcdone" if Cfg.kv_alt else ("w", 13), 4 if Cfg.kv_alt else 0))
    sK.add(VM("buffer_load_dwordx4 %s, v%d, %s, s%d offen sc1" % (vr(KV, 4), vKw, srd(SRD_WS), sKld0), "kvld"))
    sK.add(VM("buffer_load_dwordx4 %s, v%d, %s, s%d offen sc1" % (vr(KV + 4, 4), vKw, srd(SRD_WS), sKld1), "kvld"), by=pc + 24)
    sK.add(I("v_add_u32 v%d, %d, v%d" % (vKw, KVR, vKw)))
    sK.add([WVM("kvld"), DS("ds_write_b128 v%d, %s" % (vKw, vr(KV, 4)), "kvw")], at=min(pc + Cfg.kv_lag, T_BC - 14), by=T_BC - 12)
    sK.add(DS("ds_write_b128 v%d, %s offset:4608" % (vKw, vr(KV + 4, 4)), "kvw"), by=T_BC - 8, space=4)
    RV, SA_, SB_, vHw = 70, 62, 88, 61
    sG_ = Stream("hc")
    sG_.add([I("s_lshl_b32 s%d, s%d, 11" % (sZt0, sWM)), I("v_lshl_add_u32 v%d, v%d, 1, s%d" % (vHw, vL16, sZt0))], after=("prepdone", 4), at=Cfg.t_at)
    sG_.addall([VM("buffer_load_dwordx4 %s, v%d, %s, s%d offen %s" % (vr(RV, 4), vHw, srd(SRD_HK), sHS, Cfg.nt_hk), "hkl"),
                VM("buffer_load_dwordx4 %s, v%d, %s, s%d offen offset:16 %s" % (vr(RV + 4, 4), vHw, srd(SRD_HK), sHS, Cfg.nt_hk), "hkl"),
                VM("buffer_load_dwordx2 %s, v%d, %s, s%d offen offset:32 %s" % (vr(RV + 8, 2), vHw, srd(SRD_HK), sHS, Cfg.nt_hk), "hkl")], by=Cfg.t_at + 60)
    sG_.addall([I("v_and_b32 v9, 15, v%d" % vL), I("v_lshrrev_b32 v69, 4, v%d" % vL), I("v_lshl_add_u32 v9, v9, 1, v69"), I("v_subrev_u32 v9, 15, v9"),
                I("v_lshlrev_b32 v9, 1, v9"), I("v_add_u32 v69, 2, v9"),
                VM("buffer_load_ushort v9, v9, %s, s%d offen" % (srd(SRD_HK), sHS), "hkl"), VM("buffer_load_ushort v69, v69, %s, s%d offen" % (srd(SRD_HK), sHS), "hkl")])
    sG_.add(I("v_add_u32 v%d, s%d, v%d" % (vHw, sHL, vHw)), after=("setup", 2))
    def hw(c, base, tag="kvw"): return [DS("ds_write_b128 v%d, %s offset:%d" % (vHw, vr(base + 4 * q, 4), 4160 * c + 32 + 16 * q), tag) for q in range(2)]
    def al(dst, k): return I("v_alignbyte_b32 v%d, v%d, v%d, 2" % (dst, RV + k + 1, RV + k))
    mv = [I("v_mov_b32 v%d, v%d" % (SB_ + k, RV + 1 + k)) for k in range(8)]
    w1, w3, w0, w2 = hw(1, SB_, "hw1"), hw(3, RV + 2), hw(0, SA_), hw(2, SB_)
    at = [[WVM("hkl"), I("v_lshl_or_b32 v9, v69, 16, v9")]] + mv[0:4] + [w1[0]] + mv[4:] + [w1[1]] + [al(SA_ + k, k) for k in range(4)] + [w3[0]] + [al(SA_ + k, k) for k in range(4, 8)] + [w3[1], w0[0]]
    at += [[WDS("hw1"), al(SB_, 1)]] + [al(SB_ + k, k + 1) for k in range(1, 4)] + [w0[1]] + [al(SB_ + k, k + 1) for k in range(4, 8)] + w2
    at += [unstash(vHw, aCA1), DS("ds_write_b32 v%d, v9" % vHw, "kvw")]
    HC_AT = max(Cfg.hc_at, barr(posa[5] + 1))
    prevw = False
    for i, x in enumerate(at):
        isw = isinstance(x, Op) and x.kind == "ds" and "b128" in x.text
        sG_.add(x, at=HC_AT if i == 0 else None, space=4 if (isw and prevw) else 0, by=Cfg.hc_by, key="hcdone" if i == len(at) - 1 else None)
        prevw = isw
    sE = Stream("epi")
    vCA0, vCA1, vCB, vCD, vOo, vDv, vHo, vHp, vHt, vHA, vHB = 14, 15, 16, 17, 19, 20, 21, 13, 18, 10, 11
    KEEP = [136, 152, 128, 132, 140, 144, 148, 156]
    def hflag(word, tags):
        return [WVM(*tags), VM("buffer_store_dword a%d, v%d, %s, s%d offen offset:%d sc1" % (aTag, vFlag0, srd(SRD_WS), sHfl, 4 * word), "flag")]
    for tl in range(8):
        jj, nt = tl >> 1, tl & 1
        a = ACC + tl * 16
        at = [I("v_mul_f32 v%d, v%d, v%d" % (a + r, a + r, a + r + 8)) for r in range(8)]
        at += [I("v_cvt_pk_bf16_f32 v%d, v%d, v%d" % (KEEP[tl] + w, a + 2 * w, a + 2 * w + 1)) for w in range(4)]
        at.append(VM("buffer_store_dwordx4 %s, v%d, %s, s%d offen offset:%d %s" % (vr(KEEP[tl], 4), vL16, srd(SRD_WS), sHst1 if nt else sHst0, jj * 1024, Cfg.hpol), ("hst", 0 if tl < 4 else (tl >> 1) - 1)))
        ea = ctick[tl] + 4 + (Cfg.hs_gap * tl if tl < 4 else 0)
        if ea >= A_CONV: ea += 1
        sE.addall(at, at=ea, by=ea + 20 if tl < 6 else conv_anchor(Cfg.epi_by), key=("epi", tl))
    sL_ = Stream("flags")
    sL_.add(hflag(0, [("hst", 0)]), at=Cfg.hflag0, by=Cfg.hflag0, after=(("epi", 3), 1))
    if Cfg.st3: sE.add(hflag(1, [("hst", 1)]), at=conv_anchor(Cfg.hflagm), by=conv_anchor(Cfg.hflagm))
    if Cfg.hflag1 < 144: sE.add(hflag(2, [("hst", 2)]), at=conv_anchor(Cfg.hflag1), by=conv_anchor(Cfg.hflag1))
    CACC = 32
    def cA(dd, r): return 192 + 8 * r if dd & 1 else (160 + 8 * r if r < 4 else 96 + 8 * (r - 4))
    def cB(dd, m): return cA(dd, m) + 4
    def conv_reads(dd, r):
        at = [DS("ds_read_b64 %s, v%d offset:%d" % (vr(cA(dd, r) + half * 2, 2), vCA0, 64 * dd + 512 * r + 8 * half), ("C", dd, r)) for half in range(2)]
        at.append(DS("ds_read_b128 %s, v%d offset:%d" % (vr(cB(dd, r), 4), vCB, 3584 - 512 * r + 64 * dd), ("C", dd, r)))
        return at
    pairs = sorted([(r, m) for r in range(8) for m in range(8 - r)], key=lambda p: (max(p), p))
    first_use = {}
    for i, p in enumerate(pairs): first_use.setdefault(max(p), i)
    sC_ = Stream("convrd", cap=3)
    sC_.addall([unstash(vCA0, aCA0), unstash(vCB, aCB), unstash(vCD, aCD)], at=T_BC)
    for r in range(8): sC_.addall(conv_reads(0, r), at=T_BC if r < 4 else max(T_BC, use[104 + 2 * (r - 4) + 1] + 4), after=(("epi", 3), 1), by=conv_anchor(first_use[r] - 6))
    for r in range(8): sC_.addall(conv_reads(1, r), after=(("epi", 4 + (r >> 1)), 1), by=conv_anchor(36 + first_use[r] - 8))
    for dd in (2, 3):
        for r in range(8): sC_.addall(conv_reads(dd, r), at=conv_anchor(36 * (dd - 1)), by=min(conv_anchor(36 * dd + first_use[r] - 8), T_BW - 3))
    XE = 2; vXA = 19
    sM = Stream("misc")
    if Cfg.rot1 == "d":
        sM.addall([[I("s_lshl_b32 s%d, s%d, 6" % (sZt2, sWM)), I("v_xor_b32 v%d, s%d, v%d" % (vXA, sZt2, vB[0]))],
                   DS("ds_read_b128 %s, v%d offset:4096" % (vr(BF, 4), vXA), ("FX", 27)), I("v_xor_b32 v%d, 32, v%d" % (vXA, vXA)),
                   DS("ds_read_b128 %s, v%d offset:4096" % (vr(BF + 4, 4), vXA), ("FX", 27))], at=barr(posa[6]), by=barr(posa[6] + 1) - 4)
        sM.addall([I("v_mov_b32 v%d, v%d" % (XE + i, BF + i)) for i in range(8)], at=T_BC + 2)
        sM.add(unstash(vOo, aOo), at=conv_anchor(Cfg.xe_at))
    else:
        sM.add(unstash(vOo, aOo), at=conv_anchor(Cfg.xe_at))
        sM.add(VM("buffer_load_dwordx4 %s, v%d, %s, 0 offen" % (vr(XE, 4), vOo, srd(SRD_X)), "xe"))
        sM.add(VM("buffer_load_dwordx4 %s, v%d, %s, 0 offen offset:32" % (vr(XE + 4, 4), vOo, srd(SRD_X)), "xe"), space=2)
    sM.add([I("s_lshr_b32 s%d, s%d, 11" % (sZt1, sHS)), I("v_mov_b32 v%d, 0" % vHo)])
    sM.add(VM("buffer_load_ushort v%d, v%d, %s, s%d offen" % (0, vHo, srd(SRD_DD), sZt1), "xe"), space=2)
    sM.addall([unstash(vHo, aPollH), I("v_add_u32 v%d, s%d, v%d" % (vHA, sHA, vL16)), I("v_add_u32 v%d, s%d, v%d" % (vHB, sHB, vL16))])
    ldH = ["buffer_load_dword v%d, v%d, %s, s%d offen offset:%d sc1" % (vHp, vHo, srd(SRD_WS), sHF, 4 * w) for w in ((0, 1, 2) if Cfg.st3 else (0, 2))]
    sM.add(VM(ldH[0], "pollH"), at=conv_anchor(Cfg.hpoll), by=conv_anchor(Cfg.hpoll))
    POOL = [64 + 4 * i for i in range(16)] + [160 + 4 * i for i in range(4)]
    NP = len(POOL)
    LF = [f for f in range(56) if f % 7]
    def hreg(f):
        if f % 7 == 0: return vr(KEEP[2 * ((f % 28) // 7) + f // 28], 4)
        return vr(POOL[LF.index(f) % NP], 4)
    def fidx(f): return f // 28, (f % 28) // 7, f % 7
    def hload(f):
        jt, jj, j = fidx(f)
        return VM("buffer_load_dwordx4 %s, v%d, %s, s%d offen offset:%d sc1" % (hreg(f), vHB if jt else vHA, srd(SRD_WS), sG[j], jj * 1024), ("H", f))
    CM, CP, CK, KD, ZG, vT0, vT1, vT2 = 224, 240, 176, 160, 176, 0, 0, 24
    vT0, vT1 = 18, 20
    sN = Stream("kd")
    sN.addall([DS("ds_read_b64 %s, v%d offset:%d" % (vr(CK + 2 * k, 2), vCD, 512 * (3 - k)), "cxk") for k in range(4)], at=conv_anchor(109))
    sN.add([WVM("xe"), I("v_lshlrev_b32 v0, 16, v0")])
    for k in range(4):
        lo, hi = CK + 2 * k, CK + 1 + 2 * k
        for r, (src, h) in enumerate(((hi, 1), (hi, 0), (lo, 1), (lo, 0))):
            u = unp(KD + 4 * k + r, src, h)
            sN.add([WDS("cxk"), u] if (k, r) == (0, 0) else u, by=conv_anchor(143))
    sN.addall([I("v_add_u32 v%d, s%d, v%d" % (vT0, sWL, vL16)), I("v_xor_b32 v%d, 4096, v%d" % (vT1, vT0)),
               I("v_add_u32 v%d, %d, v%d" % (22, CEX, vT0)), I("v_add_u32 v%d, %d, v%d" % (23, CEX, vT1))], by=conv_anchor(143))
    hc1, hc2 = check("H", [ldH[0]], ["v_cmp_ne_u32 vcc, s%d, v%d" % (sTAG, vHp)], ["pollH"])
    nh = 0
    if Cfg.hcheck < 144:
        sM.add([hc1, hc2] + stamp("hok"), at=conv_anchor(Cfg.hcheck), by=conv_anchor(Cfg.hcheck))
        while nh < 12 and Cfg.hcheck + 6 + 4 * nh < 143:
            sM.add(hload(LF[nh]), by=conv_anchor(143), at=conv_anchor(109) if nh >= 8 else None); nh += 1

    for st in (sP, sE, sQ, sG_):
        if st.name in Cfg.drop:
            for it in st.items:
                a = it["atom"]
                if isinstance(a, Op) and a.kind == "i" and a.text.startswith(("v_mul_f32", "v_fmac", "v_cvt", "v_and_b32 v6", "v_lshlrev_b32 v6", "v_and_b32 v7", "v_lshlrev_b32 v7", "v_mov", "v_align", "v_xor", "v_or")):
                    it["atom"] = []; it["cost"] = 0
                elif isinstance(a, Op) and a.kind == "ds" and "ds_write_b128" in a.text:
                    it["atom"] = DS("ds_read_b32 v9, v%d" % vL16, a.tag); it["cost"] = 1
    for it in sD.items[:nplain]: it["plan"] = False
    Cfg._vmtab = plan_vm([sL_, sP, sE, sQ, sK, sG_, sD, sM], list(range(0, A_CONV, 2)) + list(range(A_CONV, A_CONV + 144)), Cfg.vs_at, Cfg.vs2)
    SC = Sched([sF, sL_, sQ, sK, sD, sE, sC_, sG_, sM, sR, sP, sS, sN])
    usage = []
    def emit_gap(now, budget, pre=0.0):
        if now in Cfg.tr_ticks and len(SC.streams) > 6: P.append(RAW("TSTAMP t%d" % now))
        if now in Cfg.tr_anch and len(SC.streams) <= 6: P.append(RAW("TSTAMP a%d" % now))
        o, u = SC.fill(now, budget - pre)
        P.append(o); usage.append(u + pre)
    def barrier(w, wd):
        o = [WVM(*w)] if w else []
        if wd: o.append(WDS(*wd))
        o.append(I("s_barrier"))
        return o
    def barrier_i(i):
        w = [("W", i)]; wd = []
        if SQC[i][1] == 0: w.append(("X", SQC[i][0]))
        if i == B_kvst: w.append("kvst")
        if i == B_psw: wd.append("psw")
        if i <= 14 - RQ: wd += [("FA", k) for k, f in enumerate(frs) if f[0] == i - 1]
        if SQC[i - 1][1] == 0: wd.append(("FX", 4 * SQC[i - 1][0] + 3))
        return barrier(w, wd)
    def mf32(a, A_, B_, first): return "v_mfma_f32_32x32x16_bf16 %s, %s, %s, %s" % (vr(a, 16), A_, B_, "0" if first else vr(a, 16))
    tb_at = {t: c for c, t in TB.items()}
    for n, e in enumerate(seq):
        now = 2 * n; pre = 0.0
        if e[0] == "m":
            c, s4, jj = frs[e[1]]; nt = e[2]; ks = 4 * SQC[c][0] + s4
            if nt == 0:
                P.append(WDS(("FA", e[1]), ("FX", ks)))
                if first[c] == now and c in Cfg.stamps_k: P.append(stamp("c%d" % c))
            else: pre = 1.0
            P.append(mf32(ACC + (4 * SQC[c][1] + 2 * jj + nt) * 16, vr(AF + 4 * (e[1] & 7), 4), ar(8 * ks + 4 * nt, 4), ks == 0))
        else:
            P.append(mf32(ACC + e[1] * 16, vr(CSF + (e[1] >> 1) * 4, 4), vr(MB + (e[1] & 1) * 4, 4), False))
        if now in tb_at: P.append(barrier_i(tb_at[now])); pre += 2
        if now == T_BC: P.append(barrier([], ["kvw", ("FA", 111)])); pre += 2
        emit_gap(now, Cfg.b1 if now < Cfg.b1_until else Cfg.b32, pre)
    P.append(stamp("g1end"))
    gi = 0
    for dd in range(4):
        seen = set()
        for i, (r, m) in enumerate(pairs):
            if first_use[max(r, m)] == i: P.append(WDS(("C", dd, max(r, m))))
            a = CACC + (r + m) * 4
            P.append("v_mfma_f32_16x16x32_bf16 %s, %s, %s, %s" % (vr(a, 4), vr(cA(dd, r), 4), vr(cB(dd, m), 4), "0" if (dd == 0 and (r + m) not in seen) else vr(a, 4)))
            seen.add(r + m)
            if conv_anchor(gi) == T_BW: P.append(barrier([("WD", u) for u in range(7)], [("C", 3, 7)]))
            emit_gap(conv_anchor(gi), Cfg.b16)
            gi += 1
    assert SC.done(), SC.left()
    Cfg._usage1 = usage; Cfg._log1 = SC.log
    P.append(stamp("convend"))

    for k in range(4): P.append("v_mov_b32 v%d, s%d\nv_mov_b32 v%d, s%d" % (ZG + 4 * k + 2, sTAG, ZG + 4 * k + 3, sTAG))
    P.append(L("s_cmp_eq_u32 s%d, 0\ns_cbranch_scc0 L_cx1", sWM))
    for k in range(4):
        P.append(DS("ds_write_b128 v22, %s offset:%d" % (vr(CACC + 16 + 4 * k, 4), 1024 * k), "cxw"))
        for r in range(4): P.append("v_fma_f32 v%d, v%d, v0, v%d" % (CM + 4 * k + r, KD + 4 * k + r, CACC + 4 * k + r))
    P.append(RAW("s_branch L_cx2\nL_cx1:"))
    for k in range(4):
        P.append(RAW("ds_write_b128 v22, %s offset:%d" % (vr(CACC + 4 * k, 4), 1024 * k)))
        for r in range(4): P.append(RAW("v_fma_f32 v%d, v%d, v0, v%d" % (CM + 4 * k + r, KD + 4 * k + r, CACC + 16 + 4 * k + r)))
    P.append(RAW("L_cx2:"))
    P.append(unstash(vT2, aZst))
    P.append([WDS("cxw"), I("s_barrier")])
    for k in range(4): P.append(DS("ds_read_b128 %s, v23 offset:%d" % (vr(CP + 4 * k, 4), 1024 * k), ("cxr", k)))
    ep = []
    for k in range(4):
        ad = [I("v_add_f32 v%d, v%d, v%d" % (CM + 4 * k + r, CM + 4 * k + r, CP + 4 * k + r)) for r in range(4)]
        ad[0] = [WDS(("cxr", k)), ad[0]]
        ep += ad + [I("v_cvt_pk_bf16_f32 v%d, v%d, v%d" % (ZG + 4 * k + w, CM + 4 * k + 2 * w, CM + 4 * k + 2 * w + 1)) for w in range(2)]
        ep.append(VM("buffer_store_dwordx4 %s, v%d, %s, s%d offen offset:%d sc1" % (vr(ZG + 4 * k, 4), vT2, srd(SRD_WS), sZst, 1024 * k), "zst"))
    if Cfg.hcheck >= 144:
        P.append([hc1, hc2]); P.append(stamp("hok"))
        while nh < Cfg.nfirst: P.append(hload(LF[nh])); nh += 1
    if Cfg.hflag1 >= 144: ep.insert(0, hflag(2, [("hst", 2)]))
    if Cfg.h2_early: P.append(VM(ldH[1], "pollH2"))
    if not Cfg.ep_shadow: P.append(ep)
    P.append(stamp("zst"))

    ACA, ACB, ZV, XF, ST = 192, 224, 32, 48, 22
    vZp, vZo, vSo, vRr = 14, 15, 16, 17
    GR = ACA + 16
    assert not Cfg.ep_shadow or Cfg.st_at > Cfg.zs_at + 3 * Cfg.zs_gap + 2
    sV = Stream("ep")
    if Cfg.ep_shadow:
        sV.addall([x for x in ep if not (isinstance(x, Op) and x.kind == "vm")], by=Cfg.ep_by)
        for k, x in enumerate([x for x in ep if isinstance(x, Op) and x.kind == "vm"]): sV.add(x, at=Cfg.zs_at + Cfg.zs_gap * k)
        assert Cfg.zs_at + 3 * Cfg.zs_gap + 4 < Cfg.zpoll and Cfg.zs_at > Cfg.ep_by
    sH = Stream("hload")
    g1, g2_ = check("H2", [ldH[1]], ["v_cmp_ne_u32 vcc, s%d, v%d" % (sTAG, vHp)], ["pollH2"])
    if not Cfg.h2_early: sH.add(VM(ldH[1], "pollH2"), at=Cfg.h2poll)
    hpace = -Cfg.hsp
    for li in range(nh, 48):
        f = LF[li]
        if f == 15: sH.add([g1, g2_], at=Cfg.h2check, by=2 * f - 10)
        ea = 2 * LF[li - NP] + 2 if li >= NP else 0
        hpace = max(hpace + Cfg.hsp, ea, Cfg.h2check + 1 if f == 15 else 0)
        sH.add(hload(f), at=int(hpace), by=max(2 * f - 4, int(hpace) + 1))
    A_BAR = 56 + Cfg.bar_a
    sX = Stream("x")
    sX.addall([unp(XF + i, XE + (i >> 1), i & 1) for i in range(16)], at=Cfg.ep_by + 2 if Cfg.ep_shadow else 2, key="xf")
    sX.add(unstash(vRr, aRr))
    sX.addall([I("v_add_u32 v%d, %d, v%d" % (vT0, REDA, vRr)), I("v_add_u32 v%d, %d, v%d" % (25, REDA, vT1))])
    sX.addall([DS("ds_write_b128 v25, %s offset:%d" % (vr(ACA + 16 + rq * 4, 4), rq * 1024), "rwa") for rq in range(4)], at=58, space=2, by=A_BAR - 1)
    def swaps(acc): return [I("v_permlane32_swap_b32 v%d, v%d" % (acc + 8 * kk + i, acc + 8 * kk + 4 + i)) for kk in range(2) for i in range(4)]
    sX.addall([DS("ds_read_b128 %s, v%d offset:%d" % (vr(ACA + 16 + kk * 8 + hs * 4, 4), vT0, kk * 2048 + hs * 512), "rra") for kk in range(2) for hs in range(2)], at=A_BAR, by=A_BAR + 1)
    sX.addall(swaps(ACA))
    def gpos(b, w): return b + (w // 3) * 4 + (w % 3)
    for i in range(16):
        op = I("v_add_f32 v%d, v%d, v%d" % (ACA + i, ACA + i, ACA + 16 + i))
        if i == 0: sX.add([WDS("rra"), op], space=2)
        else: sX.add(op)
    for w in range(8):
        sX.add(I("v_cvt_pk_bf16_f32 v%d, v%d, v%d" % (gpos(GR, w), ACA + 2 * w, ACA + 2 * w + 1)))
        if w % 3 == 2 or w == 7:
            k = w // 3
            sX.add(I("v_mov_b32 v%d, s%d" % (GR + 4 * k + 3, sTAG)))
            sX.add(VM("buffer_store_dwordx4 %s, v%d, %s, s%d offen offset:%d sc1" % (vr(GR + 4 * k, 4), vL16, srd(SRD_WS), sPst, k * 1024), "pst"), by=A_BAR + 20, key=("pst", k))
    ldP = ["buffer_load_dwordx4 %s, v%d, %s, s%d offen offset:%d sc1" % (vr(ACA + 4 * k, 4), vL16, srd(SRD_WS), sPld, k * 1024) for k in range(3)]
    sX.addall([VM(x, "pld") for x in ldP], at=Cfg.pld, by=111)
    sZ = Stream("z")
    sZq = [sZld, sZt0, sZt1, sZt2]
    ldZ = ["buffer_load_dwordx4 %s, v%d, %s, s%d offen sc1" % (vr(ZG + 4 * i, 4), vZo, srd(SRD_WS), sZq[i]) for i in range(4)]
    ldS = "buffer_load_dwordx3 %s, v%d, %s, s%d offen sc1" % (vr(ST, 3), vSo, srd(SRD_WS), sSt2)
    sZ.addall([I("v_and_b32 v%d, 511, v%d" % (vSo, vL16)), VM(ldS, "sld")], at=Cfg.st_at)
    sZ.addall([unstash(vZo, aZld)] + [I("s_add_u32 s%d, s%d, %d" % (sZq[i], sZld, i * 65536)) for i in range(1, 4)])
    c1, c2 = check("S", [ldS], ["v_cmp_ne_u32 vcc, s%d, v%d" % (sTAG, ST + 2)], ["sld"])
    sZ.add([c1, c2], at=Cfg.st_at + Cfg.st_lag, after=("xf", 0))
    sZ.addall([I("v_mul_f32 v%d, v%d, v%d" % (ST, ST, ST + 1)), I("v_mul_f32 v%d, v%d, v%d" % (ST + 2, ST + 1, ST + 1))])
    sZ.addall([I("v_fma_f32 v%d, v%d, v%d, -v%d" % (ZV + i, XF + i, ST + 1, ST)) for i in range(16)])
    sZ.add([I("v_lshrrev_b32 v%d, 1, v%d" % (vZp, vL16)), I("v_add_u32 v%d, s%d, v%d" % (vZp, sZfl, vZp))])
    sZ.addall([VM(x, "zld") for x in ldZ], at=Cfg.zpoll)
    cmp_ops = ["v_xor_b32 v%d, s%d, v%d" % (ZG + 4 * i + 3, sTAG, ZG + 4 * i + 2) for i in range(4)] + [
               "v_or3_b32 v%d, v%d, v%d, v%d" % (ZG + 3, ZG + 3, ZG + 7, ZG + 11), "v_or_b32 v%d, v%d, v%d" % (ZG + 3, ZG + 3, ZG + 15), "v_cmp_ne_u32 vcc, 0, v%d" % (ZG + 3)]
    c1, c2 = check("Z", ldZ, cmp_ops, ["zld"])
    zt = list(c1) + [c2]
    zt += [DS("ds_write_b64 v%d, %s offset:%d" % (vZp, vr(ZG + 4 * i, 2), 512 * i), "zw") for i in range(4)]
    zt += [unstash(vSo, aPollZ)]
    rd = [DS("ds_read_b64_tr_b16 %s, v%d offset:%d" % (vr(XE + 2 * q, 2), vSo, (q >> 1) * 1024 + (q & 1) * 256), "zr") for q in range(4)]
    rd[0] = [WDS("zw"), rd[0]]
    zt += rd
    for i in range(16):
        u = unp((12, 0)[i & 1], XE + (i >> 1), i & 1)
        zt.append([WDS("zr"), u] if i == 0 else u)
        zt.append(I("v_fma_f32 v%d, v%d, v%d, v%d" % (ZV + i, ZV + i, (12, 0)[i & 1], XF + i)))
    assert Cfg.zpoll + Cfg.zlag > A_BAR
    sZ.addall(zt, at=Cfg.zpoll + Cfg.zlag)
    sW = Stream("wr", cap=2)
    for f in range(Cfg.wr_pre, 28): sW.addall(wd_reads(f % 7, f // 7), by=max(2 * f - 5, 0))
    if Cfg.plan2: Cfg._vmtab2 = plan_vm([sH, sV, sX, sZ], list(range(112)), 0, 0.25, lead_div=Cfg.ld2, lead_mul=1)
    SC = Sched([sW, sH, sV, sX, sZ])
    usage = []
    for f in range(56):
        jt, jj, j = fidx(f)
        if j: P.append(WVM(("H", f)))
        if jt == 0: P.append(WDS(("WR", j, jj)))
        if f in Cfg.stamps_f: P.append(stamp("f%d" % f))
        for jd in range(2):
            a = (ACB if jt else ACA) + jd * 16
            P.append(mf32(a, ar(8 * (4 * j + jj) + 4 * jd, 4), hreg(f), f % 28 == 0))
            now = 2 * f + jd
            if now == A_BAR: P.append([WDS("rwa"), I("s_barrier")])
            emit_gap(now, Cfg.b2, 1.0 if jd else 0.0)
    for s_ in (sW, sH, sV, sX): assert s_.pos == len(s_.items), s_.name
    rest = [it["atom"] for it in sZ.items[sZ.pos:]]
    Cfg._usage2 = usage; Cfg._rest = len(rest)
    P.append(stamp("g2end"))
    P.append("s_nop 7\ns_nop 3")
    for rq in range(4): P.append(DS("ds_write_b128 v%d, %s offset:%d" % (vT1, vr(ACB + 16 + rq * 4, 4), REDB + rq * 1024), "rwb"))
    P.append(swaps(ACB))
    P.append([WDS("rwb"), I("s_barrier")])
    for kk in range(2):
        for hs in range(2):
            P.append(DS("ds_read_b128 %s, v%d offset:%d" % (vr(64 + kk * 8 + hs * 4, 4), vRr, REDB + kk * 2048 + hs * 512), "rrb"))
    P.append(rest)
    cmp_ops = ["v_xor_b32 v%d, s%d, v%d" % (ACA + 4 * k + 3, sTAG, ACA + 4 * k + 3) for k in range(3)]
    cmp_ops += ["v_or3_b32 v%d, v%d, v%d, v%d" % (ACA + 3, ACA + 3, ACA + 7, ACA + 11), "v_cmp_ne_u32 vcc, 0, v%d" % (ACA + 3)]
    c1, c2 = check("P", ldP, cmp_ops, ["pld"])
    P.append(WDS("rrb"))
    for i in range(16): P.append("v_add_f32 v%d, v%d, v%d" % (ACB + i, ACB + i, 64 + i))
    P.append([c1, c2])
    for kk in range(2):
        for i in range(8 * kk, 8 * kk + 8):
            P.append(unp(ACA + 16 + i, gpos(ACA, i >> 1), i & 1))
            P.append("v_add_f32 v%d, v%d, v%d" % (ACB + i, ACB + i, ACA + 16 + i))
            P.append("v_fma_f32 v%d, v%d, v%d, v%d" % (ACB + i, ACB + i, ST + 2, ZV + i))
        for w in range(4): P.append("v_cvt_pk_bf16_f32 v%d, v%d, v%d" % (80 + 4 * kk + w, ACB + 8 * kk + 2 * w, ACB + 8 * kk + 2 * w + 1))
        P.append(VM("buffer_store_dwordx4 %s, v%d, %s, 0 offen offset:%d %s" % (vr(80 + 4 * kk, 4), vOo, srd(SRD_OUT), 32 * kk, Cfg.opol), "out"))
    P.append(diag_tail(True))
    P.append("s_endpgm")
    return P
Cfg.ep_shadow = False; Cfg.ep_by = 20; Cfg.opol = ""
Cfg.order = [("X", 1), ("W", 2), ("X", 2), ("W", 3), ("X", 3), ("W", 4), ("X", 4), ("W", 5), ("X", 5), ("W", 6), ("X", 6), ("W", 7), ("W", 8), ("W", 9), ("W", 10),
             ("W", 11), ("W", 12), ("W", 13), ("D", 0), ("D", 1), ("D", 2), ("D", 3), ("D", 4), ("D", 5), ("D", 6)]
Cfg.t_at = 232; Cfg.hc_at = 270; Cfg.hc_by = 420; Cfg.cs_chk = 30; Cfg.w_min = {9: 176, 10: 216, 11: 244, 12: 262, 13: 280}
Cfg.vs1 = 0; Cfg.vs2 = 1.0; Cfg.vs3 = 0.0; Cfg.vs_at = 128; Cfg.hprio = True; Cfg.b2 = 5; Cfg.b1 = 6.5; Cfg.tr_ticks = (); Cfg.rq = 2; Cfg.c1 = 9; Cfg.blead = 14; Cfg.hs_gap = 22
Cfg.minlead = 10; Cfg.prep_lag = 40; Cfg.htouch = False; Cfg.hcheck = 84; Cfg.pld = 104; Cfg.nws = 6
Cfg.q_pro = 999; Cfg.b11 = 8; Cfg.bc = 20; Cfg.bw = 116; Cfg.cs_at = 210; Cfg.hflag0 = 426; Cfg.hflag1 = 120; Cfg.xe_at = 44
Cfg.h2_early = True; Cfg.h2poll = 0; Cfg.h2check = 4
Cfg.epi_prio = True; Cfg.stamps_f = (); Cfg.b_psw = 6; Cfg.kv_ack = 2; Cfg.epi_by = 18; Cfg.hcheck_early = True; Cfg.hsp = 1.5; Cfg.bar_a = 10

def gen_helper():
    stamp_n[0] = 0
    P = [WDS0()]
    if Cfg.diag: P.append("s_mov_b32 s89, s88")
    P.append(build_srd(SRD_X, 4, S * D * 2)); P.append(build_srd(SRD_WS, 28, WS_SIZE))
    P.append(L("s_and_b32 s%d, s2, 7\ns_lshr_b32 s%d, s2, 3", sA, sB))
    P.append(L("s_lshl_b32 s%d, s%d, 2\ns_add_u32 s%d, s%d, s%d", sT, sA, sT, sT, sB))
    P.append(L("s_lshr_b32 s%d, s%d, 1\ns_lshl_b32 s%d, s%d, 2\ns_add_u32 s%d, s%d, s%d", sC2, sA, sC2, sC2, sC2, sC2, sB))
    P.append(L("s_and_b32 s%d, s%d, 1\ns_mul_i32 s%d, s%d, 7\ns_add_u32 s%d, s%d, s%d", sA, sA, sFT, sA, sFT, sFT, sC2))
    P.append(L("s_cmp_ge_u32 s%d, 7\ns_cselect_b32 s%d, s20, s18\ns_cselect_b32 s%d, s21, s19", sC2, SRD_W1, SRD_W1 + 1))
    P.append(L("s_cselect_b32 s%d, 1, 0\ns_cselect_b32 s%d, 7, 0\ns_sub_u32 s%d, s%d, s%d", sMT, sA, sFT, sFT, sA))
    P.append(L("s_mov_b32 s%d, %d\ns_mov_b32 s%d, 0x00020000", SRD_W1 + 2, D * F * 2, SRD_W1 + 3))
    sNO, sONE, sLO, sHI, sSTO = sWL, sXL, sWo, sXo, sDo
    if Cfg.gpref: P.append(gpref(9, 10))
    P.append(L("s_cmp_ge_u32 s%d, 14\ns_cselect_b32 s%d, 0x40000000, 0", sC2, sNO))
    V0, V1, V2, V3, V4, V5 = 2, 3, 4, 5, 6, 7
    P.append(L("s_lshl_b32 s%d, s%d, 2\ns_add_u32 s%d, s%d, s%d\ns_mul_i32 s%d, s%d, %d\ns_add_u32 s%d, s%d, %d", sA, sT, sA, sA, sWV, sA, sA, 16 * 896, sB, sA, 8 * 896))
    P.append(L("v_lshrrev_b32 v%d, 3, v%d\nv_mul_u32_u24 v%d, 896, v%d\nv_and_b32 v%d, 7, v%d\nv_lshl_add_u32 v%d, v%d, 4, v%d", V0, vL, V0, V0, V1, vL, V0, V1, V0))
    P.append(L("s_getpc_b64 s[%d:%d]", sC, sC + 1))
    P.append(RAW("L_touch_base2:"))
    P.append(L("s_sub_u32 s%d, s%d, L_touch_base2-L_main\ns_subb_u32 s%d, s%d, 0", sC, sC, sC + 1, sC + 1))
    P.append(L("s_lshr_b32 s%d, s2, 3\ns_lshl_b32 s%d, s%d, 13\nv_lshrrev_b32 v%d, 2, v0\nv_lshlrev_b32 v%d, 7, v%d\nv_add_u32 v%d, s%d, v%d", sZt0, sZt0, sZt0, V4, V4, V4, V4, sZt0, V4))
    P.append(L("v_min_u32 v%d, L_end_of_code-L_main-4, v%d", V4, V4))
    P.append(VM("global_load_dword v%d, v%d, s[%d:%d]" % (8, V4, sC, sC + 1), "touch"))
    P.append(L("s_mov_b32 s%d, %d\nv_mov_b32 v%d, 0", sZt0, EP_OFF, V4))
    P.append(VM("buffer_load_dword v%d, v%d, %s, s%d offen sc1" % (V5, V4, srd(SRD_WS), sZt0), "ep"))
    P.append(L("v_lshrrev_b32 v%d, 3, v0\nv_mul_u32_u24 v%d, 3584, v%d\nv_and_b32 v%d, 7, v0\nv_lshl_add_u32 v%d, v%d, 4, v%d", V2, V2, V2, V3, V2, V3, V2))
    P.append(L("s_lshl_b32 s%d, s%d, 8\ns_add_u32 s%d, s%d, s%d", sD_, sFT, sD_, sD_, sNO))
    P.append(build_srd(SRD_WD, 22, D * F * 2))
    def wl(i):
        return ["s_add_u32 s%d, s%d, %d" % (sZt2, sD_, 32 * (i % 14) * 3584 + 128 * (i // 14)),
                VM("buffer_load_dwordx4 %s, v%d, %s, s%d offen %s" % (vr(128 + 4 * i, 4), V2, srd(SRD_W1), sZt2, Cfg.nt_w), ("hw", i))]
    def xl(grp, i): return VM("buffer_load_dwordx4 %s, v%d, %s, s%d offen offset:%d %s" % (vr(32 + (grp * 7 + i) * 4, 4), V0, srd(SRD_X), sB if grp else sA, 128 * i, Cfg.nt_x), ("hx", grp))
    def red8(v):
        return ["s_nop 1", "v_add_f32_dpp v%d, v%d, v%d quad_perm:[1,0,3,2] row_mask:0xf bank_mask:0xf" % (v, v, v), "s_nop 1",
                "v_add_f32_dpp v%d, v%d, v%d quad_perm:[2,3,0,1] row_mask:0xf bank_mask:0xf" % (v, v, v), "s_nop 1",
                "v_add_f32_dpp v%d, v%d, v%d row_half_mirror row_mask:0xf bank_mask:0xf" % (v, v, v)]
    INV448 = 0x3b124925
    P.append(L("s_mov_b32 s%d, 0x3f803f80\ns_mov_b32 s%d, 0x00003f80\ns_mov_b32 s%d, 0x3f800000", sONE, sLO, sHI))
    U0, U1 = 88, 89
    MEAN = [90, 91]; G = [92, 96]
    vSo, vSo2 = 100, 101
    CSUM = 108
    vCw, vCr, vCs, sCo = 10, 11, 12, 87
    if Cfg.h_delay: P.append(WVM("ep"))
    for k in range(14): P.append(wl(k))
    P.append(L("v_lshlrev_b32 v%d, 5, v0\nv_lshlrev_b32 v%d, 2, v%d", vCw, vCr, vL))
    P.append(L("v_lshrrev_b32 v%d, 4, v%d\nv_lshlrev_b32 v%d, 9, v%d\nv_and_b32 v%d, 15, v%d\nv_lshl_add_u32 v%d, v%d, 4, v%d", vCs, vL, vCs, vCs, V3, vL, vCs, V3, vCs))
    P.append(L("s_lshl_b32 s%d, s%d, 12\ns_lshl_b32 s%d, s%d, 8\ns_add_u32 s%d, s%d, s%d\ns_add_u32 s%d, s%d, %d", sCo, sFT, sZt0, sMT, sCo, sCo, sZt0, sCo, sCo, CS_OFF))
    P.append(L("s_cmp_eq_u32 s%d, 0\ns_cselect_b32 s%d, s%d, 0x40000000\ns_add_u32 s%d, s%d, s%d", sWV, sZt0, sNO, sCo, sCo, sZt0))
    def colsum(half, fill):
        o = ["v_mov_b32 v%d, 0" % (CSUM + e) for e in range(8)]
        for i in range(14 * half, 14 * half + 14):
            if fill: o.append(fill.pop(0))
            o.append(WVM(("hw", i)))
            for w in range(4):
                src = 128 + 4 * i + w
                o.append("v_dot2c_f32_bf16 v%d, s%d, v%d\nv_dot2c_f32_bf16 v%d, s%d, v%d" % (CSUM + 2 * w, sLO, src, CSUM + 2 * w + 1, sHI, src))
        if half == 0: o.append(tag_from_epoch(V5))
        o.append("s_nop 2")
        o.append(RAW("ds_write_b128 v%d, v[108:111] offset:%d\nds_write_b128 v%d, v[112:115] offset:%d" % (vCw, 8192 * half, vCw, 8192 * half + 16)))
        o += [WDS0(), "s_barrier"]
        for rg in range(0, 32, 2): o.append(RAW("ds_read2st64_b32 %s, v%d offset0:%d offset1:%d" % (vr(128 + rg, 2), vCr, 32 * half + rg, 32 * half + rg + 1)))
        o.append(WDS0())
        for st in (1, 2, 4, 8, 16):
            for rg in range(0, 32, 2 * st): o.append("v_add_f32 v%d, v%d, v%d" % (128 + rg, 128 + rg, 128 + rg + st))
        o.append("v_cvt_pk_bf16_f32 v116, v128, v128\nv_lshlrev_b32 v117, 16, v116\nv_sub_f32 v128, v128, v117")
        o.append("v_cvt_pk_bf16_f32 v118, v128, v128\nv_lshlrev_b32 v117, 16, v118\nv_sub_f32 v128, v128, v117")
        o.append("v_and_b32 v116, 0xffff, v116\nv_or_b32 v116, v116, v117")
        o.append(L("v_cvt_pk_bf16_f32 v117, v128, v128\nv_and_b32 v117, 0xffff, v117\nv_mov_b32 v118, 0\nv_mov_b32 v119, s%d", sTAG))
        o.append(VM("buffer_store_dwordx4 v[116:119], v%d, %s, s%d offen offset:%d sc1" % (vCs, srd(SRD_WS), sCo, 2048 * half), "cst"))
        return o
    P.append(colsum(0, [xl(grp, i) for grp in range(2) for i in range(7)]))
    P.append(stamp("cs"))
    P.append(L("v_and_b32 v%d, 7, v%d\nv_cmp_eq_u32 vcc, 0, v%d\nv_mov_b32 v%d, %s\nv_lshlrev_b32 v%d, 1, v%d\nv_cndmask_b32 v%d, v%d, v%d, vcc\nv_cndmask_b32 v%d, v%d, v%d, vcc",
               V0, vL, V0, V1, OOB, V3, vL, vSo, V1, vL, vSo2, V1, V3))
    P.append(L("s_lshl_b32 s%d, s%d, 2\ns_add_u32 s%d, s%d, s%d\ns_lshl_b32 s%d, s%d, 7\ns_add_u32 s%d, s%d, %d", sA, sT, sA, sA, sWV, sA, sA, sSTO, sA, ST_OFF))
    P.append(L("s_lshl_b32 s%d, s%d, 1\ns_add_u32 s%d, s%d, %d", sA, sA, sZt1, sA, ST2_OFF))
    var = []; vi = 0
    for grp in range(2):
        SQ = 102 + 2 * grp; base = 32 + grp * 28
        var.append(L("v_mov_b32 v%d, 0\nv_mov_b32 v%d, 0", SQ, SQ + 1))
        for r in range(28):
            var.append(L("v_lshlrev_b32 v%d, 16, v%d\nv_and_b32 v%d, 0xffff0000, v%d\nv_sub_f32 v%d, v%d, v%d\nv_sub_f32 v%d, v%d, v%d\nv_fmac_f32 v%d, v%d, v%d\nv_fmac_f32 v%d, v%d, v%d",
                         U0, base + r, U1, base + r, U0, U0, MEAN[grp], U1, U1, MEAN[grp], SQ, U0, U0, SQ + 1, U1, U1))
    for grp in range(2):
        base = 32 + grp * 28
        P.append(L("v_mov_b32 v%d, 0\nv_mov_b32 v%d, 0", U0, U1))
        P.append(WVM(("hx", grp)))
        for r in range(28): P.append("v_dot2c_f32_bf16 v%d, s%d, v%d" % (U1 if r & 1 else U0, sONE, base + r))
        P.append(L("s_nop 2\nv_add_f32 v%d, v%d, v%d", MEAN[grp], U0, U1))
        P.append(red8(MEAN[grp]))
        P.append(L("v_mul_f32 v%d, 0x%x, v%d", MEAN[grp], INV448, MEAN[grp]))
        P.append(L("v_cvt_pk_bf16_f32 v%d, v%d, v%d\nv_lshlrev_b32 v%d, 16, v%d\nv_mov_b32 v%d, s%d", G[grp], MEAN[grp], MEAN[grp], G[grp], G[grp], G[grp] + 1, sTAG))
        P.append(VM("buffer_store_dwordx2 %s, v%d, %s, s%d offen offset:%d sc1" % (vr(G[grp], 2), vSo, srd(SRD_WS), sSTO, 64 * grp), "mst"))
    P.append(stamp("mean"))
    def job_mall():
        return [L("s_lshl_b32 s%d, s2, 2\ns_add_u32 s%d, s%d, s%d\ns_mul_i32 s%d, s%d, %d\ns_add_u32 s%d, s%d, %d\nv_min_u32 v13, 48, v%d\nv_lshlrev_b32 v13, 7, v13", sA, sA, sA, sWV, sA, sA, 98 * 128, sB, sA, 49 * 128, vL),
                VM("buffer_load_dword v250, v13, %s, s%d offen" % (srd(SRD_WD), sA), "wdt"), VM("buffer_load_dword v251, v13, %s, s%d offen" % (srd(SRD_WD), sB), "wdt")]
    def job_cs1(): return [[wl(k) for k in range(14, 28)], colsum(1, None)]
    def job_hk():
        return [build_srd(SRD_HK, 12, D * S * 2),
                L("s_lshr_b32 s%d, s2, 3\ns_lshl_b32 s%d, s%d, 2\ns_add_u32 s%d, s%d, s%d\ns_lshl_b32 s%d, s%d, 3\ns_and_b32 s%d, s2, 7\ns_add_u32 s%d, s%d, s%d\ns_lshl_b32 s%d, s%d, 13",
                  sA, sA, sA, sA, sA, sWV, sA, sA, sB, sA, sA, sB, sA, sA),
                L("s_add_u32 s%d, s%d, %d\nv_lshlrev_b32 v13, 7, v%d", sB, sA, 128 * 8192, vL),
                VM("buffer_load_dword v126, v13, %s, s%d offen nt" % (srd(SRD_HK), sA), "wdt"), VM("buffer_load_dword v127, v13, %s, s%d offen nt" % (srd(SRD_HK), sB), "wdt")]
    sWb = sC2
    def job_wd(j):
        o = []
        if j == 0:
            o.append(L("s_and_b32 s%d, s2, 1\ns_mul_i32 s%d, s%d, 896\ns_lshr_b32 s%d, s2, 3\ns_lshl_b32 s%d, s%d, 2\ns_add_u32 s%d, s%d, s%d\ns_lshl_b32 s%d, s%d, 3\ns_add_u32 s%d, s%d, s%d\ns_mul_i32 s%d, s%d, 896",
                       sA, sA, sA, sB, sB, sB, sB, sB, sWV, sB, sB, sA, sA, sB, sWb, sA))
            o.append(L("v_and_b32 v14, 7, v%d\nv_min_u32 v14, 6, v14\nv_lshrrev_b32 v15, 3, v%d\nv_mul_u32_u24 v15, 896, v15\nv_lshl_add_u32 v15, v14, 7, v15\nv_mul_u32_u24 v14, %d, v14", vL, vL, 128 * 896))
        else: o.append(L("v_add_u32 v14, %d, v14\nv_subrev_u32 v16, %d, v14\nv_min_u32 v14, v14, v16", 128 * 896, 7 * 128 * 896))
        o.append("v_add_u32 v16, v14, v15")
        o.append(VM("buffer_load_dword v%d, v16, %s, s%d offen" % (240 + j, srd(SRD_WD), sWb), "wdt"))
        return o
    def job_lin(i):
        o = []
        if i == 0:
            o.append(L("s_and_b32 s%d, s2, 1\ns_mul_i32 s%d, s%d, 6272\ns_lshr_b32 s%d, s2, 3\ns_lshl_b32 s%d, s%d, 2\ns_add_u32 s%d, s%d, s%d\ns_mul_i32 s%d, s%d, 392\ns_add_u32 s%d, s%d, s%d\ns_lshl_b32 s%d, s%d, 7",
                       sA, sA, sA, sB, sB, sB, sB, sB, sWV, sB, sB, sA, sA, sB, sWb, sA))
            o.append(L("v_min_u32 v14, 55, v%d\nv_lshlrev_b32 v14, 7, v14\ns_bfe_u32 s%d, s2, 0x20001\ns_mul_i32 s%d, s%d, %d", vL, sDT, sDT, sDT, 2 * 56 * 128))
        o.append(L("s_add_u32 s%d, s%d, s%d", sB, sWb, sDT)); o.append(advance(sDT, 56 * 128, 7 * 56 * 128))
        o.append(VM("buffer_load_dword v%d, v14, %s, s%d offen" % (240 + i, srd(SRD_WD), sB), "wdt"))
        return o
    for job in Cfg.h_jobs:
        if isinstance(job, str) and job[0] == "L": P.append(job_lin(int(job[1:])))
        elif job == "mall": P.append(job_mall())
        elif job == "cs1": P.append(job_cs1())
        elif job == "hk": P.append(job_hk())
        elif job == "var": P.append(var[vi:vi + 15]); vi = min(vi + 15, len(var))
        else: P.append(job_wd(job))
    P.append(var[vi:])
    for grp in range(2):
        SQ = 102 + 2 * grp
        P.append(L("v_add_f32 v%d, v%d, v%d", SQ, SQ, SQ + 1))
        P.append(red8(SQ))
        P.append(L("v_mul_f32 v%d, 0x%x, v%d", SQ, INV448, SQ))
        P.append(L("v_cvt_pk_bf16_f32 v%d, v%d, v%d\nv_lshlrev_b32 v%d, 16, v%d", SQ, SQ, SQ, SQ, SQ))
        P.append(L("v_add_f32 v%d, 0x3727c5ac, v%d", SQ, SQ))
        P.append(L("v_cvt_pk_bf16_f32 v%d, v%d, v%d\nv_lshlrev_b32 v%d, 16, v%d", SQ, SQ, SQ, SQ, SQ))
        P.append(L("v_sqrt_f32 v%d, v%d\ns_nop 0", SQ, SQ))
        P.append(L("v_cvt_pk_bf16_f32 v%d, v%d, v%d\nv_lshlrev_b32 v%d, 16, v%d", SQ, SQ, SQ, SQ, SQ))
        P.append(L("v_rcp_f32 v%d, v%d\nv_mov_b32 v%d, s%d\nv_mov_b32 v%d, 0", G[grp] + 1, SQ, G[grp] + 2, sTAG, G[grp] + 3))
        P.append(VM("buffer_store_dwordx4 %s, v%d, %s, s%d offen offset:%d sc1" % (vr(G[grp], 4), vSo2, srd(SRD_WS), sZt1, 128 * grp), "rst"))
    P.append(stamp("rstd"))
    P.append(L("s_cmp_lg_u32 s2, 0\ns_cbranch_scc1 L_h_end\ns_cmp_lg_u32 s%d, 0\ns_cbranch_scc1 L_h_end", sWV))
    P.append(L("v_lshlrev_b32 v%d, 7, v%d\nv_and_b32 v%d, 31, v%d\nv_lshlrev_b32 v%d, 7, v%d\ns_mov_b32 s%d, 0", V0, vL, V1, vL, V1, V1, sSPIN))
    P.append(RAW("L_ep_spin:"))
    for i in range(3):
        P.append("s_mov_b32 s%d, %d" % (sA, KF_OFF + 8192 * i))
        P.append(RAW("buffer_load_dword v%d, v%d, %s, s%d offen sc1" % (32 + i, V0, srd(SRD_WS), sA)))
    P.append("s_mov_b32 s%d, %d" % (sA, KF_OFF + 8192 * 3))
    P.append(RAW("buffer_load_dword v35, v%d, %s, s%d offen sc1" % (V1, srd(SRD_WS), sA)))
    for i in range(2):
        P.append("s_mov_b32 s%d, %d" % (sA, ST_OFF + 8192 * i + 4))
        P.append(RAW("buffer_load_dword v%d, v%d, %s, s%d offen sc1" % (36 + i, V0, srd(SRD_WS), sA)))
    P.append(WVM0())
    for i in range(6): P.append("v_xor_b32 v%d, s%d, v%d" % (32 + i, sTAG, 32 + i))
    for i in range(1, 6): P.append("v_or_b32 v32, v32, v%d" % (32 + i))
    P.append("v_cmp_ne_u32 vcc, 0, v32")
    P.append(L("s_add_u32 s%d, s%d, 1\ns_cmp_lt_u32 s%d, %d\ns_cbranch_scc0 L_ep_go", sSPIN, sSPIN, sSPIN, Cfg.spin))
    P.append("s_cbranch_vccz L_ep_go\ns_sleep 32\ns_branch L_ep_spin")
    P.append(RAW("L_ep_go:"))
    P.append("s_mov_b32 s%d, %d" % (sA, EP_OFF))
    P.append(RAW("buffer_store_dword a%d, v%d, %s, s%d offen sc1" % (aTag, vFlag0, srd(SRD_WS), sA)))
    P.append(RAW("L_h_end:"))
    P.append(diag_tail())
    P.append("s_endpgm")
    return P
Cfg.qstamps = False; Cfg.x_nost = False; Cfg.hpol = "sc1"; Cfg.kpos = 2; Cfg.hk_early = False; Cfg.loadtest = False; Cfg.wr_pre = 4; Cfg.tr_only = []; Cfg.zld_by = 110; Cfg.dprio = True; Cfg.sp3 = 4; Cfg.wd_min = [300, 340, 384, 404, 446, 0, 0]; Cfg.setup_by = 150; Cfg.m_touch = 0; Cfg.h_jobs = ['cs1', 'hk', 'L0', 'L1', 'L2', 'L3', 'var', 'L4', 'var', 'L5', 'var', 'L6']; Cfg.ws_base = 0; Cfg.h_delay = False; Cfg.h_mall = False; Cfg.ld2 = 4; Cfg.st3 = False; Cfg.tr_anch = (); Cfg.kv_alt = False; Cfg.lead = 999; Cfg.hsp0 = 1.5; Cfg.zs_at = 12; Cfg.zs_gap = 6; Cfg.drop = (); Cfg.lag = 7; Cfg.plan_from = 7; Cfg.b1_until = 224; Cfg.d_order = range(7); Cfg.x1_pro = 1; Cfg.h_rot = True; Cfg.h_order = 0; Cfg.cs2_at = 344; Cfg.abl = (); Cfg.sleeps = {}; Cfg.hflagm = 118; Cfg.h3poll_f = 15; Cfg.h3check = 22; Cfg.st_at = 8; Cfg.st_lag = 30; Cfg.plan2 = True; Cfg.h_hk = True; Cfg.h_wd = True; Cfg.gpref = 0; Cfg.amp = None; Cfg.ctouch = False; Cfg.ptouch = 0; Cfg.dbg = 0; Cfg.scramble = False; Cfg.h_var = 1; Cfg.trace = False

def generate(diag=False):
    Cfg.diag = diag
    stamp_n[0] = 0
    del slow_paths[:]; del stamp_names[:]
    ref = open("cdna_kernels/%s.s.ref" % NAME).read().split("\n")
    head = [l for l in ref if l.startswith(";") and "@launch" not in l]
    out = head + ["; @launch grid=(256,1,1) block=(256,1,1) lds=%d" % LDS_SIZE]
    out += ['.amdgcn_target "amdgcn-amd-amdhsa--gfx950"', ".text", ".globl %s_kernel" % NAME, ".p2align 8",
            ".type %s_kernel,@function" % NAME, "%s_kernel:" % NAME]
    pro, _ = resolve([prologue_common(), "s_cmp_lt_u32 s2, 32", "s_cbranch_scc1 L_helper"])
    del TRACE['names'][:]
    TRACE['only'] = Cfg.tr_only
    m, mx = resolve(gen_main(), trace=Cfg.trace)
    h, _ = resolve([RAW("L_helper:"), gen_helper()])
    body = pro + m + "\n".join(slow_paths).split("\n") + ["L_end_of_main:"] + h + ["L_exit:", "s_endpgm", "L_end_of_code:"]
    body = "\n".join(body).split("\n")
    if Cfg.abl:
        nb = []; inmain = True; seen_end = False; nvm = 0
        for l in body:
            drop = False
            if "hst" in Cfg.abl and l.startswith("buffer_store_dwordx4") and (" s%d offen" % sHst0 in l or " s%d offen" % sHst1 in l): drop = True
            if "zst" in Cfg.abl and l.startswith("buffer_store_dwordx4") and " s%d offen" % sZst in l: drop = True
            if "pst" in Cfg.abl and l.startswith("buffer_store_dwordx4") and " s%d offen" % sPst in l: drop = True
            if "kst" in Cfg.abl and l.startswith("buffer_store_dwordx4") and (" s%d offen" % sKst0 in l or " s%d offen" % sKst1 in l): drop = True
            if drop: l = l.replace("buffer_store_dwordx4 v[", "buffer_store_dword v").replace(l[l.index(":"):l.index("]") + 1], "", 1); import re as _re; l = _re.sub(r"^(buffer_store_dword v\d+), v\d+,", r"\1, v%d," % vFlag0, l)
            if "wd" in Cfg.abl and srd(SRD_WD) in l and " lds" in l: l = "buffer_load_dword v12, v%d, %s, 0 offen" % (vFlag0, srd(SRD_WD))
            if "mfma" in Cfg.abl and l.startswith("v_mfma"): continue
            if "m16" in Cfg.abl and l.startswith("v_mfma_f32_32x32x16"):
                import re as _r
                mm = _r.match(r"v_mfma_f32_32x32x16_bf16 v\[(\d+):\d+\], (\S+), (\S+), (\S+)", l)
                d = int(mm.group(1)); tog = 8 * (len(nb) & 1)
                for o in (0, 4, 8, 12) if mm.group(4) == "0" else (tog, tog + 4):
                    nb.append("v_mfma_f32_16x16x32_bf16 %s, %s, %s, %s" % (vr(d + o, 4), mm.group(2), mm.group(3), "0" if mm.group(4) == "0" else vr(d + o, 4)))
                continue
            if "ds" in Cfg.abl and l.startswith("ds_read") and inmain: continue
            if "valu" in Cfg.abl and inmain and l.startswith(("v_mul_f32", "v_fma", "v_cvt_pk", "v_add_f32", "v_align", "v_permlane")): continue
            if "vm" in Cfg.abl and inmain and (" lds" in l or (l.startswith("buffer_load_dwordx4") and "sc1" in l)): l = "buffer_load_dword v9, v%d, %s, 0 offen" % (vFlag0, srd(SRD_X))
            if "nowait" in Cfg.abl and inmain and not seen_end:
                if l.startswith("s_waitcnt vmcnt") and "(0)" not in l: l = "s_waitcnt vmcnt(36)"
                if l == "s_barrier" or l.startswith("ds_write"): continue
                if l.startswith("buffer_load") and nvm % 8 == 7: nb.append("s_waitcnt vmcnt(36)")
                if l.startswith("buffer_"): nvm += 1
            if l == "s_endpgm" and len(nb) > 50: seen_end = True
            if l.startswith("L_end_of_main"): inmain = False
            if "own" in Cfg.abl and inmain and l.startswith("buffer_load_dwordx4") and " s%d offen" % sG[0] in l: l = "buffer_load_dword v12, v%d, %s, 0 offen" % (vFlag0, srd(SRD_X))
            if "zhalf" in Cfg.abl and inmain and l.startswith("buffer_store_dwordx4") and " s%d offen" % sZst in l and ("offset:2048" in l or "offset:3072" in l): l = "buffer_load_dword v12, v%d, %s, 0 offen" % (vFlag0, srd(SRD_X))
            if "chk" in Cfg.abl and l.startswith("s_cbranch_vccnz L_slow"): l = "s_nop 0"
            nb.append(l)
        body = nb
    bad = lintmod.lint(body)
    for b in ([] if Cfg.abl else bad): print("HAZARD", b)
    for l in body: out.append(l if l.endswith(":") else "    " + l)
    out += ['.section .rodata,"a"', ".p2align 6", ".amdhsa_kernel %s_kernel" % NAME,
            "  .amdhsa_next_free_vgpr 512", "  .amdhsa_next_free_sgpr 102", "  .amdhsa_accum_offset 256",
            "  .amdhsa_group_segment_fixed_size 0", "  .amdhsa_kernarg_size 104", "  .amdhsa_user_sgpr_count 2",
            "  .amdhsa_user_sgpr_kernarg_segment_ptr 1", "  .amdhsa_system_sgpr_workgroup_id_x 1",
            "  .amdhsa_float_denorm_mode_32 3", ".end_amdhsa_kernel"]
    return "\n".join(out) + "\n", mx

if __name__ == "__main__":
    diag = "--diag" in sys.argv
    for a in sys.argv[1:]:
        if a.startswith("--") and "=" in a:
            k, v = a[2:].split("=", 1)
            assert hasattr(Cfg, k), k
            setattr(Cfg, k, eval(v))
    txt, mx = generate(diag)
    path = sys.argv[1] if len(sys.argv) > 1 and not sys.argv[1].startswith("--") else "cdna_kernels/%s.s" % NAME
    open(path, "w").write(txt)
    if diag: print("stamps:", stamp_names)
    if Cfg.trace: open(path + ".names", "w").write("\n".join(TRACE["names"]))
    if "--usage" in sys.argv:
        import numpy as np
        np.set_printoptions(linewidth=200)
        u = np.array(Cfg._usage1)
        print(u[:232].reshape(29, 8)); print(u[232:].reshape(4, 36)); print(np.array(Cfg._usage2).reshape(14, 8))
        for k, v in Cfg._log1.items(): print(k, v[0], v[-1], len(v))
        print("vm", sorted(Cfg._vmtab)); print("vm2", sorted(getattr(Cfg, "_vmtab2", []))); print("rest", Cfg._rest)
    print("wrote", path, "lines", txt.count("\n"), "max outstanding vm", mx)
```

```python
import sys
from dsl import *
import lint as lintmod

NAME = "parallel_sum__ssm_conv_h3__glu_gated_bilinear__prompt"
S, D, F = 2048, 448, 1792

H_OFF   = 0x000000
KVT_OFF = 0x700000
Z_OFF   = 0x8C0000
ST_OFF  = 0xC40000
CS_OFF  = 0xC44000
ST2_OFF = 0xC54000
HF_OFF  = 0xC60000
KF_OFF  = 0xC80000
ZF_OFF  = 0xC90000
EP_OFF  = 0xCB8000
DG_OFF  = 0xCC0000
PX_OFF  = 0xD00000
TR_OFF  = 0x1100000
WS_SIZE = 0x1280000

WR = 0
XB = 98304
XS = 16640
KVR = 148224
CEX = XB + XS
REDA, REDB = XB + 2 * XS, 0
ZL = 16384
LDS_SIZE = 163840

SRD_X, SRD_K, SRD_V, SRD_SK, SRD_HK, SRD_DD, SRD_W1, SRD_WD, SRD_OUT, SRD_WS = [32 + 4 * i for i in range(10)]
def srd(b): return "s[%d:%d]" % (b, b + 3)
sWV, sMT, sFT, sT, sDT, sC2, sTAG, sWM, sWN = 72, 73, 74, 75, 76, 77, 78, 79, 80
sWL, sXL, sWo, sXo, sDo, sSPIN = 81, 82, 83, 84, 85, 86
sA, sB, sC, sD_ = 90, 91, 92, 93
sZt0, sZt1, sZt2 = 94, 95, 96
(sHst0, sHst1, sHfl, sKst0, sKst1, sKfl, sKld0, sKld1, sCs, sMn, sHL, sHS, sZst, sZfl, sZld, sSt2,
 sHcur, sHbase, sHlim, sPst, sPld, sHA, sHB, sKF, sHF, sZF) = range(4, 30)
sG = list(range(36, 43))
s4r = 30
sFG0 = 31

vL = 1
vA = [2, 3, 4, 5]; vA2 = [6, 7, 8, 9]; vB = [10, 11, 12, 13]
vW = [14, 15, 16, 17]; vX = [18, 19, 20, 21]; vWd = [22, 23, 24, 25]
vWdA = [26, 27]; vWdA2 = [28, 29]
vL16, vFlag0 = 30, 31
BF, AF, ACC = 80, 96, 128
T0, T1, T2, T3, T4, T5, T6, T7 = range(60, 68)
(aTag, aHsrc, aPsw, aPsr, aKst, aPollK, aCA0, aCA1, aCB, aCD, aOo, aPollH, aZst, aPollZ, aZld, aRr) = range(224, 240)
aStamp = 240
def vr(b, n): return "v[%d:%d]" % (b, b + n - 1)
def ar(b, n): return "a[%d:%d]" % (b, b + n - 1)
OOB = "0x80000000"
def stash(a, v): return "v_accvgpr_write_b32 a%d, v%d" % (a, v)
def unstash(v, a): return I("v_accvgpr_read_b32 v%d, a%d" % (v, a))

class Cfg:
    diag = False
    spin = 100000
    rot1 = "d"
    rot2 = True
    nt_kv = "nt"; nt_hk = ""; nt_w = ""; nt_x = ""; nt_wd = ""
    sleep = 4
    sp1 = 2; kx = 12; sp2 = 4
    prep_at = 16
    polls_at = 340
    polls_lag = 36
    kv_lag = 60
    wd_lag = 40
    nws = 4
    wd_after = {5: 1, 8: 1, 11: 1, 14: 1, 16: 1}
    hdma_u = 6
    hflag = 30
    hpoll = 60
    nfirst = 8
    zflag = 16; zpoll = 60; zlag = 30
    stamps_k = (2, 4, 7, 9, 12)
    b32 = 5; b16 = 1.5

slow_paths = []
def check(name, loads, cmp_ops, tags):
    sl = ["L_slow_%s:" % name, "s_mov_b32 s%d, 0" % sSPIN, "L_spin_%s:" % name, "s_sleep %d" % Cfg.sleeps.get(name, Cfg.sleep)]
    sl += loads + ["s_add_u32 s%d, s%d, 1" % (sSPIN, sSPIN), "s_waitcnt vmcnt(0)"] + cmp_ops
    sl += ["s_cmp_lt_u32 s%d, %d" % (sSPIN, Cfg.spin), "s_cbranch_scc0 L_res_%s" % name,
           "s_cbranch_vccnz L_spin_%s" % name, "s_branch L_res_%s" % name]
    slow_paths.append("\n".join(sl))
    return [WVM(*tags)] + [I(c) for c in cmp_ops[:-1]], [I(cmp_ops[-1]), I("s_cbranch_vccnz L_slow_%s" % name), RAW("L_res_%s:" % name)]
def flag_store(sreg, wait_tags):
    ops = [WVM(*wait_tags)] if wait_tags else []
    ops.append(VM("buffer_store_dword a%d, v%d, %s, s%d offen sc1" % (aTag, vFlag0, srd(SRD_WS), sreg), "flag"))
    return ops

stamp_n = [0]; stamp_names = []
def stamp(name=""):
    if Cfg.amp and name == Cfg.amp[0]: return [I("s_memrealtime s[88:89]"), WDS0()]
    if not Cfg.diag or (Cfg.trace and name not in ("b0", "end", "mean", "cs", "rstd")): return []
    n = stamp_n[0]; stamp_n[0] += 1
    assert n < (6 if Cfg.trace else 14)
    stamp_names.append(name)
    return [I("s_memtime s[98:99]"), WDS0(), I("v_accvgpr_write_b32 a%d, s98" % (aStamp + 2 + n))]
def diag_tail(main=False):
    if Cfg.amp and main:
        p = [WVM0(), stamp("end"), "s_memrealtime s[98:99]", WDS0()]
        p.append("s_sub_u32 s%d, s88, s100\ns_mul_i32 s%d, s%d, %d\ns_min_u32 s%d, s%d, 20000" % (sA, sA, sA, Cfg.amp[1], sA, sA))
        p.append(RAW("L_amp:"))
        p.append("s_memrealtime s[88:89]\ns_waitcnt lgkmcnt(0)\ns_sub_u32 s%d, s88, s98\ns_cmp_lt_u32 s%d, s%d\ns_cbranch_scc1 L_amp" % (sB, sB, sA))
        return p
    if not Cfg.diag: return []
    p = [WVM0(), stamp("end"), "s_memrealtime s[98:99]", WDS0()]
    p.append("v_accvgpr_write_b32 a%d, s88\nv_accvgpr_write_b32 a%d, s89" % (aStamp, aStamp + 1))
    p.append("v_mov_b32 v32, s100\nv_mov_b32 v33, s98")
    p.append("s_lshl_b32 s%d, s2, 2\ns_add_u32 s%d, s%d, s%d\ns_lshl_b32 s%d, s%d, 7\ns_add_u32 s%d, s%d, %d" % (sA, sA, sA, sWV, sA, sA, sA, sA, DG_OFF))
    for i in range(4): p.append(VM("buffer_store_dwordx4 %s, v%d, %s, s%d offen offset:%d" % (ar(aStamp + 4 * i, 4), vFlag0, srd(SRD_WS), sA, 16 * i)))
    p.append(VM("buffer_store_dwordx2 v[32:33], v%d, %s, s%d offen offset:%d" % (vFlag0, srd(SRD_WS), sA, 104)))
    if Cfg.dbg:
        p.append("s_load_dwordx2 s[44:45], s[0:1], 88\ns_waitcnt lgkmcnt(0)\ns_mov_b32 s46, 256\ns_mov_b32 s47, 0x00020000")
        p.append("s_lshl_b32 s%d, s2, 2\ns_add_u32 s%d, s%d, s%d\ns_cmp_eq_u32 s%d, %d\ns_cselect_b32 s%d, 0, 0x40000000" % (sA, sA, sA, sWV, sA, Cfg.dbg * 4, sA))
        p.append("s_sub_u32 s%d, s98, s100\nv_accvgpr_write_b32 a%d, s%d\ns_nop 1" % (sB, aStamp + 1, sB))
        for i in range(4): p.append(VM("buffer_store_dwordx4 %s, v%d, s[44:47], s%d offen offset:%d" % (ar(aStamp + 4 * i, 4), vFlag0, sA, 16 * i)))
    if Cfg.trace:
        p.append("s_lshl_b32 s%d, s2, 2\ns_add_u32 s%d, s%d, s%d\ns_mul_i32 s%d, s%d, 768\ns_add_u32 s%d, s%d, %d" % (sA, sA, sA, sWV, sA, sA, sA, sA, TR_OFF))
        p.append("v_lshlrev_b32 v32, 2, v%d" % vL)
        for i in range(3): p.append(VM("buffer_store_dword a%d, v32, %s, s%d offen offset:%d" % (248 + i, srd(SRD_WS), sA, 256 * i)))
    p.append(WVM0())
    return p

def build_srd(b, ptr, size):
    if b == SRD_WS and Cfg.ws_base:
        return ["s_add_u32 s%d, s%d, %d" % (b, ptr, Cfg.ws_base), "s_addc_u32 s%d, s%d, 0" % (b + 1, ptr + 1),
                "s_mov_b32 s%d, %d" % (b + 2, size), "s_mov_b32 s%d, 0x00020000" % (b + 3)]
    return ["s_mov_b32 s%d, s%d" % (b, ptr), "s_mov_b32 s%d, s%d" % (b + 1, ptr + 1),
            "s_mov_b32 s%d, %d" % (b + 2, size), "s_mov_b32 s%d, 0x00020000" % (b + 3)]
def tag_from_epoch(vE):
    return [I("v_readfirstlane_b32 s%d, v%d" % (sTAG, vE)), I("s_nop 3"),
            I("s_mul_i32 s%d, s%d, 1664525" % (sTAG, sTAG)), I("s_add_u32 s%d, s%d, 1013904223" % (sTAG, sTAG)),
            I("v_accvgpr_write_b32 a%d, s%d" % (aTag, sTAG))]
def advance(sreg, step, limit, base=0):
    return [I("s_add_u32 s%d, s%d, %d" % (sreg, sreg, step)),
            [I("s_cmp_eq_u32 s%d, %d" % (sreg, limit + base)), I("s_cselect_b32 s%d, %d, s%d" % (sreg, base, sreg))]]
def seqc():
    l = [(k, k, 0) for k in range(7)] + [(k + Cfg.lag - 0.5, k, 1) for k in range(7)]
    return [(k, p) for _, k, p in sorted(l)]
sWo1 = 87

def L(fmt, *a): return fmt % a

def gpref(tmpv, dst, pol=""):
    p = [L("s_cmp_eq_u32 s%d, 1\ns_cselect_b32 s%d, s20, s18\ns_cselect_b32 s%d, s21, s19", sWV, sC, sC + 1),
         L("s_cmp_eq_u32 s%d, 3\ns_cselect_b32 s%d, s22, s%d\ns_cselect_b32 s%d, s23, s%d", sWV, sC, sC, sC + 1, sC + 1),
         L("s_cmp_eq_u32 s%d, 2\ns_cselect_b32 s%d, s4, s%d\ns_cselect_b32 s%d, s5, s%d\ns_cselect_b32 s%d, 56, 49", sWV, sC, sC, sC + 1, sC + 1, sA),
         L("s_mul_i32 s%d, s2, s%d\ns_sub_u32 s%d, s%d, 1\nv_min_u32 v%d, s%d, v%d\nv_add_lshl_u32 v%d, v%d, s%d, 7", sB, sA, sA, sA, tmpv, sA, vL, tmpv, tmpv, sB),
         VM("global_load_dword v%d, v%d, s[%d:%d] %s" % (dst, tmpv, sC, sC + 1, pol), "prep")]
    return p

def prologue_common():
    p = ["s_cmp_ge_u32 s2, 256\ns_cbranch_scc1 L_exit"]
    if Cfg.diag: p.append("s_memrealtime s[100:101]\ns_memtime s[88:89]")
    elif Cfg.amp: p.append("s_memrealtime s[100:101]")
    p.append("s_load_dwordx16 s[4:19], s[0:1], 0\ns_load_dwordx8 s[20:27], s[0:1], 64\ns_load_dwordx2 s[28:29], s[0:1], 96")
    p.append(L("v_and_b32 v%d, 63, v0\nv_lshrrev_b32 v%d, 6, v0\nv_lshlrev_b32 v%d, 4, v%d", vL, T0, vL16, vL))
    p.append(L("v_readfirstlane_b32 s%d, v%d", sWV, T0))
    p.append(L("v_cmp_eq_u32 vcc, 0, v%d\nv_mov_b32 v%d, %s\nv_mov_b32 v%d, 0\nv_cndmask_b32 v%d, v%d, v%d, vcc", vL, T1, OOB, T2, vFlag0, T1, T2))
    return p

def dma_group(sL, ldsconst, vs, srd_b, sOff, tag, pol, adv):
    at = [I("s_add_u32 m0, s%d, %d" % (sL, ldsconst))]
    for q in range(4):
        op = VM("buffer_load_dwordx4 v%d, %s, s%d offen offset:%d %s lds" % (vs[q], srd(srd_b), sOff, q * 1024, pol), tag)
        at.append([I("s_nop 0"), op] if q == 0 else op)
    return at, advance(sOff, *adv)
def w_group(c):
    p = seqc()[c][1]
    return dma_group(sWL, WR + (c % 6) * 16384, vW, SRD_W1, sWo1 if p else sWo, ("W", c), Cfg.nt_w, (64 * 3584, 448 * 3584, 128 * p))
def x_group(c): return dma_group(sXL, (c % 3) * XS, vX, SRD_X, sXo, ("X", c), Cfg.nt_x, (128, 896))
WD_BASE = [XB + 256, 32768, 49152, 65536, 81920, 0, 16384]
def wd_group(u): return dma_group(sWL, WD_BASE[u], vWd, SRD_WD, sDo, ("WD", u), Cfg.nt_wd, (128 * 896, 896 * 896))
def wd_reads(u, n4):
    at = []
    for jd in range(2):
        for p in range(2):
            off = WD_BASE[u] + (n4 >> 1) * 8192 + (n4 & 1) * 2048 + p * 1024
            base = vWdA[jd]
            if off >= 0x10000: base = vWdA2[jd]; off -= 0x10000
            at.append(DS("ds_read_b64_tr_b16 %s, v%d offset:%d" % (ar(8 * (4 * u + n4) + 4 * jd + 2 * p, 2), base, off), ("WR", u, n4)))
    return at

KR, VR_, vEp, SKR, TAP, KFv, R0, R1, VF, OLO, OHI = 33, 44, 32, 52, 56, 60, 71, 72, 73, 76, 32
KQ, KHL = 81920, 157440

def gen_main():
    P = [RAW("L_main:")]
    if Cfg.scramble:
        P.append(L("s_lshr_b32 s%d, s2, 3\ns_lshr_b32 s%d, s2, 5\ns_lshl_b32 s%d, s%d, 1\ns_xor_b32 s%d, s%d, s%d\ns_and_b32 s%d, s%d, 7\ns_xor_b32 s2, s2, s%d", sA, sB, sA, sA, sA, sA, sB, sA, sA, sA))
    P.append(L("s_sub_u32 s%d, s2, 32\ns_and_b32 s%d, s2, 7\ns_lshr_b32 s%d, s%d, 3", sC2, sA, sB, sC2))
    P.append(L("s_lshr_b32 s%d, s%d, 2\ns_and_b32 s%d, s%d, 3", sDT, sB, sB, sB))
    P.append(L("s_lshl_b32 s%d, s%d, 2\ns_add_u32 s%d, s%d, s%d", sT, sA, sT, sT, sB))
    P.append(L("s_lshr_b32 s%d, s%d, 1\ns_lshl_b32 s%d, s%d, 2\ns_add_u32 s%d, s%d, s%d", sMT, sA, sMT, sMT, sMT, sMT, sB))
    P.append(L("s_and_b32 s%d, s%d, 1\ns_mul_i32 s%d, s%d, 7\ns_add_u32 s%d, s%d, s%d", sFG0, sA, sFT, sFG0, sFT, sFT, sDT))
    P.append(L("s_and_b32 s%d, s%d, 1\ns_lshr_b32 s%d, s%d, 1", sWM, sWV, sWN, sWV))
    P.append(L("s_lshl_b32 s%d, s%d, 12\ns_add_u32 s%d, s%d, %d", sWL, sWV, sXL, sWL, XB + 256))
    if Cfg.rot1 == "0": P.append(L("s_mov_b32 s%d, 0", sA))
    elif Cfg.rot1 == "2": P.append(L("s_xor_b32 s%d, s%d, s%d\ns_and_b32 s%d, s%d, 1\ns_lshl_b32 s%d, s%d, 2", sA, sMT, sFT, sA, sA, sA, sA))
    elif Cfg.rot1 == "d": P.append(L("s_add_u32 s%d, s%d, 1\ns_sub_u32 s%d, s%d, 7\ns_min_u32 s%d, s%d, s%d", sA, sDT, sC, sA, sA, sA, sC))
    elif Cfg.rot1 == "3":
        P.append(L("s_add_u32 s%d, s%d, s%d\ns_mul_i32 s%d, s%d, 3\ns_mov_b32 s%d, 0x%x\ns_lshr_b32 s%d, s%d, s%d\ns_and_b32 s%d, s%d, 7",
                   sA, sB, sDT, sA, sA, sC, sum(((0, 2, 5)[i % 3]) << (3 * i) for i in range(10)), sA, sC, sA, sA, sA))
    else:
        P.append(L("s_lshl_b32 s%d, s%d, 1\ns_add_u32 s%d, s%d, s%d\ns_sub_u32 s%d, s%d, 7\ns_min_u32 s%d, s%d, s%d", sA, sB, sA, sA, sDT, sC, sA, sA, sA, sC))
    P.append(L("s_mul_i32 s%d, s%d, %d\ns_lshl_b32 s%d, s%d, 7", sWo, sA, 64 * 3584, sXo, sA))
    P.append(L("s_add_u32 s%d, s%d, 128", sWo1, sWo))
    P.append(L("v_lshrrev_b32 v%d, 4, v%d", T0, vL))
    P.append(L("s_mul_i32 s%d, s%d, %d\ns_lshl_b32 s%d, s%d, 8\ns_add_u32 s%d, s%d, s%d", sA, sWM, 32 * 3584, sB, sFT, sA, sA, sB))
    P.append(L("v_lshrrev_b32 v%d, 3, v%d\nv_mul_u32_u24 v%d, 3584, v%d\ns_lshl_b32 s%d, s%d, 2", T1, vL, T1, T1, sB, sWN))
    P.append(L("v_and_b32 v%d, 1, v%d\nv_lshlrev_b32 v%d, 1, v%d\nv_or_b32 v%d, s%d, v%d\nv_and_b32 v%d, 7, v%d", T2, T0, T2, T2, T2, sB, T2, T3, vL))
    P.append(L("v_xor_b32 v%d, v%d, v%d\nv_lshlrev_b32 v%d, 4, v%d\nv_add3_u32 v%d, v%d, v%d, s%d", T2, T2, T3, T2, T2, vW[0], T1, T2, sA))
    for q in range(1, 4): P.append(L("v_add_u32 v%d, %d, v%d", vW[q], q * (8 * 3584 - 1024), vW[0]))
    P.append(L("s_lshl_b32 s%d, s%d, 2\ns_add_u32 s%d, s%d, s%d\ns_xor_b32 s%d, s%d, s%d\ns_xor_b32 s%d, s%d, 1\ns_mul_i32 s%d, s%d, %d", sA, sMT, sA, sA, sWV, sA, sA, sFG0, sA, sA, sA, sA, 32 * 896))
    P.append(L("v_lshrrev_b32 v%d, 3, v%d\nv_mul_u32_u24 v%d, 896, v%d\nv_and_b32 v%d, 7, v%d", T1, vL, T1, T1, T3, vL))
    P.append(L("v_xor_b32 v%d, v%d, v%d\nv_lshlrev_b32 v%d, 4, v%d\nv_add3_u32 v%d, v%d, v%d, s%d", T2, T3, T0, T2, T2, vX[0], T1, T2, sA))
    P.append(L("v_xor_b32 v%d, 64, v%d", T2, vX[0]))
    for q in range(1, 4): P.append(L("v_add_u32 v%d, %d, v%d", vX[q], q * (8 * 896 - 1024), T2 if q & 1 else vX[0]))
    P.append(WDS0())
    if Cfg.diag: P.append([I("s_memtime s[98:99]"), WDS0(), I("s_mov_b32 s89, s98")])
    P.append(L("s_cmp_ge_u32 s%d, 2\ns_cselect_b32 s%d, s20, s18\ns_cselect_b32 s%d, s21, s19", sWV, SRD_W1, SRD_W1 + 1))
    P.append(L("s_mov_b32 s%d, %d\ns_mov_b32 s%d, 0x00020000", SRD_W1 + 2, D * F * 2, SRD_W1 + 3))
    P.append(build_srd(SRD_X, 4, S * D * 2))
    if Cfg.gpref == 2: P.append(gpref(T4, 79))
    P.append(w_group(0)); P.append(x_group(0))
    if Cfg.gpref == 1: P.append(gpref(T4, 79))
    P.append(w_group(1))
    for b, ptr, size in ((SRD_K, 6, S * D * 2), (SRD_V, 8, S * D * 2), (SRD_SK, 10, D * 8), (SRD_HK, 12, D * S * 2 + 64), (SRD_DD, 14, D * 2),
                         (SRD_WD, 22, D * F * 2), (SRD_OUT, 24, S * D * 2), (SRD_WS, 28, WS_SIZE)):
        P.append(build_srd(b, ptr, size))
    P.append(L("s_mov_b32 s%d, %d\nv_mov_b32 v%d, 0", sA, EP_OFF, T4))
    P.append(VM("buffer_load_dword v%d, v%d, %s, s%d offen sc1" % (vEp, T4, srd(SRD_WS), sA), "prep"))
    if Cfg.ctouch:
        P.append(L("s_getpc_b64 s[%d:%d]\nv_lshlrev_b32 v%d, 7, v0\nv_min_u32 v%d, L_end_of_main-L_touch_base-4, v%d", sC, sC + 1, T4, T4, T4))
        P.append(RAW("L_touch_base:"))
        P.append(VM("global_load_dword v%d, v%d, s[%d:%d]" % (79, T4, sC, sC + 1), "prep"))
    if Cfg.ptouch:
        P.append(L("v_mul_u32_u24 v%d, %d, v0\nv_lshlrev_b32 v%d, 8, v%d", T4, Cfg.ptouch >> 8, T4, T4))
        P.append(VM("buffer_load_dword v%d, v%d, %s, 0 offen" % (79, T4, srd(SRD_WS)), "prep"))
        for sd in (SRD_OUT, SRD_WD, SRD_HK, SRD_DD, SRD_K, SRD_V):
            P.append(VM("buffer_load_dword v%d, v%d, %s, 0 offen" % (79, T4, srd(sd)), "prep"))
    P.append(L("s_mul_i32 s%d, s%d, %d\ns_lshl_b32 s%d, s%d, 7\ns_add_u32 s%d, s%d, s%d", sA, sFG0, 896 * 896, sB, sDT, sA, sA, sB))
    P.append(L("s_mul_i32 s%d, s%d, %d\ns_add_u32 s%d, s%d, s%d", sB, sWV, 32 * 896, sA, sA, sB))
    P.append(L("v_and_b32 v%d, 1, v%d\nv_lshlrev_b32 v%d, 2, v%d\nv_xor_b32 v%d, v%d, v%d\nv_lshlrev_b32 v%d, 4, v%d", T2, T0, T2, T2, T2, T2, T3, T2, T2))
    P.append(L("v_add3_u32 v%d, v%d, v%d, s%d", vWd[0], T1, T2, sA))
    for q in range(1, 4): P.append(L("v_add_u32 v%d, %d, v%d", vWd[q], q * (8 * 896 - 1024), vWd[0]))
    P.append(L("v_bfe_u32 v%d, v%d, 2, 2\nv_bfe_u32 v%d, v%d, 4, 1\nv_lshrrev_b32 v%d, 5, v%d", T0, vL, T1, vL, T2, vL))
    P.append(L("v_and_b32 v%d, 3, v%d\nv_lshlrev_b32 v%d, 3, v%d", T3, vL, T3, T3))
    P.append(L("v_lshl_add_u32 v%d, v%d, 3, v%d\nv_lshlrev_b32 v%d, 7, v%d\nv_lshl_add_u32 v%d, v%d, 13, v%d\nv_add_u32 v%d, v%d, v%d", T4, T2, T0, T4, T4, T4, T1, T4, T4, T4, T3))
    P.append(L("v_lshrrev_b32 v%d, 1, v%d\nv_lshl_or_b32 v%d, v%d, 1, v%d\ns_lshl_b32 s%d, s%d, 1\nv_xor_b32 v%d, s%d, v%d", T5, T0, T5, T1, T5, sA, sWM, T5, sA, T5))
    for jj in range(2):
        P.append(L("v_xor_b32 v%d, %d, v%d\nv_lshl_add_u32 v%d, v%d, 5, v%d\nv_add_u32 v%d, %d, v%d", vA[jj], jj, T5, vA[jj], vA[jj], T4, vA2[jj], 49152, vA[jj]))
    P.append(L("v_lshl_add_u32 v%d, v%d, 2, v%d\nv_lshlrev_b32 v%d, 7, v%d\ns_lshl_b32 s%d, s%d, 12", T4, T2, T0, T4, T4, sA, sWM))
    P.append(L("v_lshl_add_u32 v%d, v%d, 5, v%d\nv_add3_u32 v%d, v%d, v%d, s%d", T4, T1, T4, T4, T4, T3, sA))
    P.append(L("v_lshrrev_b32 v%d, 1, v%d\nv_xor_b32 v%d, s%d, v%d\nv_lshl_add_u32 v%d, v%d, 6, v%d", T5, T0, T5, sWM, T5, vWdA[0], T5, T4))
    P.append(L("v_xor_b32 v%d, 64, v%d\nv_add_u32 v%d, 0x10000, v%d\nv_add_u32 v%d, 0x10000, v%d", vWdA[1], vWdA[0], vWdA2[0], vWdA[0], vWdA2[1], vWdA[1]))
    P.append(L("v_and_b32 v%d, 31, v%d\nv_bfe_u32 v%d, v%d, 1, 3\nv_xor_b32 v%d, v%d, v%d", T6, vL, T1, vL, T1, T1, T2))
    P.append(L("s_lshl_b32 s%d, s%d, 13\ns_add_u32 s%d, s%d, %d\nv_lshlrev_b32 v%d, 7, v%d\nv_add_u32 v%d, s%d, v%d", sA, sWN, sA, sA, XB + 256, T0, T6, T0, sA, T0))
    for sp in range(4): P.append(L("v_xor_b32 v%d, %d, v%d\nv_lshl_add_u32 v%d, v%d, 4, v%d", vB[sp], 2 * sp, T1, vB[sp], vB[sp], T0))
    vKa, vKv, vKh = 68, 69, 70
    P.append(L("s_lshl_b32 s%d, s%d, 2\ns_add_u32 s%d, s%d, s%d\ns_mul_i32 s%d, s%d, %d\ns_lshl_b32 s%d, s%d, 7\ns_add_u32 s%d, s%d, s%d",
               sA, sT, sA, sA, sWV, sC, sA, 16 * 896, sB, sDT, s4r, sC, sB))
    P.append(L("s_add_u32 s%d, s%d, %d\ns_sub_u32 s%d, s%d, %d\ns_cmp_eq_u32 s%d, 0\ns_cselect_b32 s%d, 0x40000000, s%d", sZt1, s4r, 8 * 896 - 1024, sZt2, s4r, 8 * 896, sA, sZt2, sZt2))
    P.append(L("v_lshrrev_b32 v%d, 3, v%d\nv_mul_u32_u24 v%d, 896, v%d\nv_and_b32 v%d, 7, v%d\nv_lshl_add_u32 v%d, v%d, 4, v%d", T0, vL, R0, T0, T1, vL, R0, T1, R0))
    P.append(L("v_cmp_gt_u32 vcc, 40, v%d\nv_mov_b32 v%d, %s\ns_lshr_b32 s%d, s%d, 2\nv_cndmask_b32 v%d, v%d, v%d, vcc", vL, T0, OOB, sZt0, sWL, VF, R0, T0))
    P.append(L("s_lshl_b32 s%d, s%d, 9\nv_lshlrev_b32 v%d, 4, v%d", sD_, sDT, R1, T6))
    P.append(L("s_add_u32 s%d, s%d, %d\nv_lshl_add_u32 v%d, v%d, 2, s%d\nv_lshl_add_u32 v%d, v%d, 10, v%d\nv_add_u32 v%d, 2048, v%d", sA, sWL, KQ, T0, T6, sA, vKa, T2, T0, vKv, vKa))
    P.append(L("s_add_u32 s%d, s%d, %d\nv_lshl_add_u32 v%d, v%d, 2, s%d\nv_cmp_gt_u32 vcc, 32, v%d\ns_nop 1\nv_cndmask_b32 v%d, v%d, v%d, vcc\nv_add_u32 v%d, 640, v%d", sA, sZt0, KHL, T1, T6, sA, vL, vKh, T0, T1, vKh, vKh))
    def kd(srd_b, v, so, imm): return VM("buffer_load_dwordx4 v%d, %s, s%d offen offset:%d %s lds" % (v, srd(srd_b), so, imm, Cfg.nt_kv), "prep")
    kvl = [I("s_add_u32 m0, s%d, %d" % (sWL, KQ)), [I("s_nop 0"), kd(SRD_K, R0, s4r, 0)], kd(SRD_K, R0, sZt1, 1024),
           I("s_add_u32 m0, s%d, %d" % (sWL, KQ + 2048)), [I("s_nop 0"), kd(SRD_V, R0, s4r, 0)], kd(SRD_V, R0, sZt1, 1024),
           I("s_add_u32 m0, s%d, %d" % (sZt0, KHL)), [I("s_nop 0"), kd(SRD_K, VF, sZt2, 0)],
           VM("buffer_load_dwordx4 %s, v%d, %s, s%d offen" % (vr(SKR, 4), R1, srd(SRD_SK), sD_), "prep")]
    P.append(L("s_lshl_b32 s%d, s%d, 1\ns_add_u32 s%d, s%d, s%d\ns_lshl_b32 s%d, s%d, 12", sHS, sC2, sHS, sHS, sWN, sHS, sHS))
    P.append(L("v_and_b32 v%d, 15, v%d", T7, vL))
    P.append(L("s_lshl_b32 s%d, s%d, 18\ns_lshl_b32 s%d, s%d, 7\ns_sub_u32 s%d, s%d, s%d\ns_add_u32 s%d, s%d, %d\ns_add_u32 s%d, s%d, %d",
               sKst0, sDT, sA, sT, sKst0, sKst0, sA, sKst0, sKst0, KVT_OFF + 3968, sKst1, sKst0, 32 * 4096))
    P.append(L("s_lshl_b32 s%d, s%d, 5\ns_add_u32 s%d, s%d, s%d\ns_lshl_b32 s%d, s%d, 7\ns_add_u32 s%d, s%d, %d\ns_cmp_eq_u32 s%d, 0\ns_cselect_b32 s%d, s%d, 0x40000000",
               sA, sDT, sA, sA, sT, sA, sA, sA, sA, KF_OFF, sWV, sKfl, sA))
    P.append(L("s_lshl_b32 s%d, s%d, 1\ns_sub_u32 s%d, 7, s%d\nv_sub_u32 v%d, s%d, v%d\nv_and_b32 v%d, 7, v%d\nv_xor_b32 v%d, v%d, v%d", sA, sWV, sA, sA, T0, sA, T2, T1, vL, T0, T0, T1))
    P.append(L("v_lshlrev_b32 v%d, 4, v%d\nv_lshl_add_u32 v%d, v%d, 8, v%d\nv_lshrrev_b32 v%d, 4, v%d\nv_mul_u32_u24 v%d, 4608, v%d", T0, T0, T0, T7, T0, T3, T6, T3, T3))
    P.append(L("v_add_u32 v%d, v%d, v%d\nv_add_u32 v%d, %d, v%d", T0, T0, T3, T0, KVR, T0) + "\n" + stash(aPsw, T0))
    P.append(L("v_lshrrev_b32 v%d, 3, v0\nv_bfe_u32 v%d, v0, 4, 3\nv_xor_b32 v%d, v%d, v%d\nv_lshlrev_b32 v%d, 4, v%d", T0, T3, T3, T3, T1, T3, T3))
    P.append(L("v_lshl_add_u32 v%d, v%d, 7, v%d\nv_add_u32 v%d, %d, v%d", T3, T0, T3, T3, KVR, T3) + "\n" + stash(aPsr, T3))
    P.append(L("v_lshlrev_b32 v%d, 12, v%d\nv_lshl_add_u32 v%d, v%d, 4, v%d", T0, T0, T0, T1, T0) + "\n" + stash(aKst, T0))
    U0, U1, U2, U3, U4, U5, U6, U7 = range(88, 96)
    Q = []
    Q.append(L("v_lshrrev_b32 v%d, 5, v%d\nv_lshrrev_b32 v%d, 4, v%d\nv_and_b32 v%d, 31, v%d\nv_and_b32 v%d, 15, v%d", U2, vL, U5, vL, U6, vL, U7, vL))
    Q.append(L("s_mov_b32 s%d, s%d", sA, sDT))
    Q.append(L("s_mul_i32 s%d, s%d, %d\ns_lshl_b32 s%d, s%d, 13", sDo, sA, 128 * 896, sHcur, sA))
    Q.append(L("s_lshl_b32 s%d, s%d, 1\ns_add_u32 s%d, s%d, s%d", sA, sMT, sA, sA, sWN))
    Q.append(L("s_lshl_b32 s%d, s%d, 1\ns_add_u32 s%d, s%d, s%d", sB, sFT, sB, sB, sWM))
    Q.append(L("s_lshl_b32 s%d, s%d, 9\ns_add_u32 s%d, s%d, %d", sMn, sA, sMn, sMn, ST_OFF))
    Q.append(L("s_lshl_b32 s%d, s%d, 8\ns_add_u32 s%d, s%d, s%d\ns_xor_b32 s%d, s%d, 256", sC, sFG0, sZF, sMn, sC, sMn, sZF))
    Q.append(L("s_lshl_b32 s%d, s%d, 2\ns_add_u32 s%d, s%d, s%d\ns_lshl_b32 s%d, s%d, 10\ns_add_u32 s%d, s%d, %d", sCs, sFT, sCs, sCs, sWM, sCs, sCs, sCs, sCs, CS_OFF))
    Q.append(L("s_mul_i32 s%d, s%d, 224\ns_lshl_b32 s%d, s%d, 2\ns_add_u32 s%d, s%d, s%d\ns_lshl_b32 s%d, s%d, 10\ns_add_u32 s%d, s%d, %d",
               sHst0, sA, sC, sB, sHst0, sHst0, sC, sHst1, sHst0, sHst0, sHst1, 112 * 1024))
    Q.append(L("s_mul_i32 s%d, s%d, %d\ns_sub_u32 s%d, s%d, s%d\ns_add_u32 s%d, s%d, s%d", sC, sFG0, 112 * 1024, sHst0, sHst0, sC, sHst1, sHst1, sC))
    Q.append(L("s_lshl_b32 s%d, s%d, 5\ns_add_u32 s%d, s%d, s%d\ns_lshl_b32 s%d, s%d, 7\ns_add_u32 s%d, s%d, %d", sHfl, sA, sHfl, sHfl, sB, sHfl, sHfl, sHfl, sHfl, HF_OFF))
    Q.append(L("s_mov_b32 s%d, %d\ns_and_b32 s%d, s%d, 0xffffffe0\nv_add_lshl_u32 v%d, v%d, s%d, 7", sKF, KF_OFF, sA, sC2, U0, U6, sA) + "\n" + stash(aPollK, U0))
    Q.append(L("s_lshl_b32 s%d, s%d, 13\ns_add_u32 s%d, s%d, %d\ns_add_u32 s%d, s%d, 4096", sKld0, sC2, sKld0, sKld0, KVT_OFF, sKld1, sKld0))
    Q.append(L("s_mul_i32 s%d, s%d, %d\ns_add_u32 s%d, s%d, %d", sHL, sWN, XS, sHL, sHL, XB + XS))
    Q.append(("mark", "q1"))
    Q.append(L("v_lshrrev_b32 v%d, 7, v0\nv_mul_u32_u24 v%d, 4608, v%d\nv_and_b32 v%d, 127, v0\nv_lshl_add_u32 v%d, v%d, 2, v%d\nv_add_u32 v%d, %d, v%d\nv_mov_b32 v%d, 0", U3, U3, U3, U4, U3, U4, U3, U3, KVR + 4096, U3, U4))
    Q.append(DS("ds_write_b32 v%d, v%d" % (U3, U4), "kvw"))
    Q.append(L("v_and_b32 v%d, 3, v%d\nv_mul_u32_u24 v%d, 4160, v%d\nv_lshrrev_b32 v%d, 2, v%d\nv_lshl_add_u32 v%d, v%d, 3, v%d\nv_lshl_add_u32 v%d, v%d, 4, v%d", U3, U7, U3, U3, U0, U7, U3, U0, U3, U3, U5, U3))
    Q.append(L("s_lshl_b32 s%d, s%d, 8\ns_add_u32 s%d, s%d, s%d\nv_add_u32 v%d, s%d, v%d", sC, sWM, sC, sC, sHL, U3, sC, U3) + "\n" + stash(aCA0, U3))
    Q.append(L("v_mul_u32_u24 v%d, 4160, v%d\nv_lshl_add_u32 v%d, v%d, 2, v%d\nv_add_u32 v%d, s%d, v%d", U3, U5, U3, U7, U3, U3, sHL, U3) + "\n" + stash(aCA1, U3))
    Q.append(L("s_mul_i32 s%d, s%d, 4608\ns_add_u32 s%d, s%d, %d\ns_lshl_b32 s%d, s%d, 8\ns_add_u32 s%d, s%d, s%d\ns_add_u32 s%d, s%d, 480", sA, sWN, sA, sA, KVR, sC, sWM, sB, sA, sC, sB, sB))
    Q.append(L("v_lshlrev_b32 v%d, 5, v%d\nv_sub_u32 v%d, s%d, v%d\nv_lshl_add_u32 v%d, v%d, 4, v%d", U4, U7, U0, sB, U4, U0, U5, U0) + "\n" + stash(aCB, U0))
    Q.append(L("s_lshl_b32 s%d, s%d, 3\ns_sub_u32 s%d, s%d, s%d\ns_add_u32 s%d, s%d, %d", sC, sC, sB, sA, sC, sB, sB, 4088 - 1536))
    Q.append(L("v_sub_u32 v%d, s%d, v%d\nv_lshlrev_b32 v%d, 3, v%d\nv_sub_u32 v%d, v%d, v%d", U0, sB, U4, U4, U5, U0, U0, U4) + "\n" + stash(aCD, U0))
    Q.append(("mark", "q2"))
    Q.append(L("v_lshlrev_b32 v%d, 6, v%d\nv_lshl_add_u32 v%d, v%d, 4, v%d", U0, U7, U0, U5, U0) + "\n" + stash(aZst, U0))
    Q.append(L("s_lshl_b32 s%d, s%d, 1\ns_lshl_b32 s%d, s%d, 12\ns_add_u32 s%d, s%d, s%d\ns_add_u32 s%d, s%d, %d", sZst, sHS, sA, sWM, sZst, sZst, sA, sZst, sZst, Z_OFF))
    Q.append(L("s_lshl_b32 s%d, s%d, 1\ns_add_u32 s%d, s%d, s%d\ns_lshl_b32 s%d, s%d, 1\ns_add_u32 s%d, s%d, s%d", sA, sMT, sA, sA, sWN, sA, sA, sA, sA, sFG0))
    Q.append(L("s_lshl_b32 s%d, s%d, 1\ns_add_u32 s%d, s%d, s%d", sB, sDT, sB, sB, sWM))
    Q.append(L("s_lshl_b32 s%d, s%d, 18\ns_lshl_b32 s%d, s%d, 7\ns_add_u32 s%d, s%d, s%d\ns_add_u32 s%d, s%d, %d", sZld, sB, sC, sA, sZld, sZld, sC, sZld, sZld, Z_OFF))
    Q.append(L("s_lshl_b32 s%d, s%d, 9\ns_add_u32 s%d, s%d, %d", sSt2, sA, sSt2, sSt2, ST2_OFF))
    Q.append(L("s_and_b32 s%d, s%d, 0xfffffffe\ns_mul_i32 s%d, s%d, %d\ns_mul_i32 s%d, s%d, %d\ns_sub_u32 s%d, %d, s%d", sC, sA, sHbase, sC, 112 * 1024, sHB, sFG0, 112 * 1024, sHA, 112 * 1024, sHB))
    Q.append(L("s_mul_i32 s%d, s%d, %d\ns_lshl_b32 s%d, s%d, 6\ns_add_u32 s%d, s%d, s%d", sA, sA, 32 * 896, sC, sB, sA, sA, sC))
    Q.append(L("v_mul_u32_u24 v%d, 896, v%d\nv_lshlrev_b32 v%d, 4, v%d\nv_add3_u32 v%d, v%d, v%d, s%d", U0, U6, U1, U2, U0, U0, U1, sA) + "\n" + stash(aOo, U0))
    Q.append(L("v_lshrrev_b32 v%d, 2, v%d\nv_lshl_add_u32 v%d, v%d, 3, v%d\nv_lshlrev_b32 v%d, 6, v%d\nv_and_b32 v%d, 1, v%d\nv_lshl_add_u32 v%d, v%d, 5, v%d", U0, U7, U0, U2, U0, U0, U0, U1, U5, U0, U1, U0))
    Q.append(L("v_and_b32 v%d, 3, v%d\nv_lshl_add_u32 v%d, v%d, 3, v%d\ns_lshr_b32 s%d, s%d, 1\ns_add_u32 s%d, s%d, %d\nv_add_u32 v%d, s%d, v%d", U1, U7, U0, U1, U0, sZfl, sWL, sZfl, sZfl, ZL, U0, sZfl, U0) + "\n" + stash(aPollZ, U0))
    Q.append(L("v_lshrrev_b32 v%d, 3, v%d\nv_lshlrev_b32 v%d, 13, v%d\nv_and_b32 v%d, 7, v%d\nv_lshl_add_u32 v%d, v%d, 4, v%d", U0, vL, U0, U0, U1, vL, U0, U1, U0) + "\n" + stash(aZld, U0))
    Q.append(L("v_lshlrev_b32 v%d, 10, v%d\nv_lshl_add_u32 v%d, v%d, 4, v%d\nv_add_u32 v%d, s%d, v%d", U0, U2, U0, U6, U0, U0, sWL, U0) + "\n" + stash(aRr, U0))
    Q.append(L("s_lshl_b32 s%d, s%d, 2\ns_add_u32 s%d, s%d, s%d\ns_mul_i32 s%d, s%d, 3072\ns_add_u32 s%d, s%d, %d", sA, sC2, sA, sA, sWV, sPld, sA, sPld, sPld, PX_OFF))
    Q.append(L("s_xor_b32 s%d, s%d, 4\ns_mul_i32 s%d, s%d, 3072\ns_add_u32 s%d, s%d, %d", sA, sA, sPst, sA, sPst, sPst, PX_OFF))
    Q.append(L("s_mov_b32 s%d, %d", sHF, HF_OFF))
    Q.append(L("s_mul_i32 s%d, s%d, 14\ns_add_u32 s%d, s%d, s%d", sB, sFG0, sB, sB, sWM))
    Q.append(L("s_lshl_b32 s%d, s%d, 12\ns_add_u32 s%d, s%d, s%d\ns_add_u32 s%d, s%d, %d\ns_add_u32 s%d, s%d, s%d",
               sC, sB, sHbase, sHbase, sC, sHlim, sHbase, 56 * 1024, sHcur, sHbase, sHcur))
    Q.append(L("s_lshl_b32 s%d, s%d, 1\ns_add_u32 s%d, s%d, s%d\ns_lshl_b32 s%d, s%d, 5\ns_add_u32 s%d, s%d, s%d", sC, sMT, sC, sC, sWN, sC, sC, sA, sB, sC))
    Q.append(L("v_min_u32 v%d, 6, v%d\nv_lshlrev_b32 v%d, 1, v%d\nv_add_lshl_u32 v%d, v%d, s%d, 7", U0, vL, U0, U0, U0, U0, sA) + "\n" + stash(aPollH, U0))
    qparts = [[]]
    for it in Q:
        if isinstance(it, tuple): qparts.append([])
        else: flatten(it, qparts[-1])
    RQ = Cfg.rq
    SQC = seqc(); posa = {k: c for c, (k, p) in enumerate(SQC) if p == 0}
    C1 = max(Cfg.c1, posa[6] + 1)
    frs = []
    seq = []
    def addfrag(c, s4, jj):
        frs.append((c, s4, jj)); seq.extend([("m", len(frs) - 1, 0), ("m", len(frs) - 1, 1)])
    for c in range(14 - RQ):
        if c == C1: seq.extend(("c", t) for t in range(4))
        for s4 in range(4):
            for jj in range(2): addfrag(c, s4, jj)
    for jj in range(2):
        for c in range(14 - RQ, 14):
            for s4 in range(4): addfrag(c, s4, jj)
        seq.extend([("c", 4 + 2 * jj), ("c", 5 + 2 * jj)])
    assert len(seq) == 232 and C1 < 14 - RQ, (C1, RQ)
    use = {}; ctick = {}
    for n, e in enumerate(seq):
        if e[0] == "m": use.setdefault(e[1], 2 * n)
        else: ctick[e[1]] = 2 * n
    first = {}
    for i, (c, s4, jj) in enumerate(frs): first.setdefault(c, use[i])
    TB = {c: first[c] - Cfg.blead - (8 if c == C1 else 0) for c in range(1, 14)}
    A_CONV = 2 * 232
    def barr(i): return TB[i]
    def conv_anchor(g): return A_CONV + g
    T_BC = A_CONV - Cfg.bc; T_BW = conv_anchor(Cfg.bw)
    def xread(ks, nt): return DS("ds_read_b128 %s, v%d offset:%d" % (ar(8 * ks + 4 * nt, 4), vB[ks & 3], ((ks >> 2) % 3) * XS + nt * 4096), ("FX", ks))
    def aread(i):
        c, s4, jj = frs[i]; slot = c % 6
        base = vA[jj] if slot < 3 else vA2[jj]
        return [DS("ds_read_b64_tr_b16 %s, v%d offset:%d" % (vr(AF + 4 * (i & 7) + 2 * p, 2), base, (slot % 3) * 16384 + s4 * 2048 + p * 512), ("FA", i)) for p in range(2)]
    def freads(i):
        c, s4, jj = frs[i]
        k, p = SQC[c]
        return ([xread(4 * k + s4, 0), xread(4 * k + s4, 1)] if (p == 0 and jj == 0) else []) + aread(i)
    qall = qparts[0] + qparts[1] + qparts[2]
    P.append(qall[:Cfg.q_pro])
    if Cfg.x1_pro: P.append(x_group(1))
    P.append([WVM(("W", 0), ("X", 0)), I("s_barrier")])
    P.append(freads(0) + freads(1))
    P.append(stamp("b0"))
    sS = Stream("setup")
    sS.addall(qall[Cfg.q_pro:] + [I("s_nop 0")], by=Cfg.setup_by, key="setup")
    cur = []
    for j in range(7):
        cur.append(I("s_mov_b32 s%d, s%d" % (sG[j], sHcur)))
        if j < 6: cur += [I("s_add_u32 s%d, s%d, 8192" % (sHcur, sHcur)), [I("s_cmp_eq_u32 s%d, s%d" % (sHcur, sHlim)), I("s_cselect_b32 s%d, s%d, s%d" % (sHcur, sHbase, sHcur))]]
    sS.addall(cur, after=("kvl", 2), by=200)
    sF = Stream("frag", cap=2)
    for i in range(2, 112):
        c = frs[i][0]
        ea = max(TB.get(c, 0), use[i - 8] + 4 if i >= 8 else 0)
        by = use[i] - 6
        if c + 1 <= 14 - RQ: by = min(by, TB[c + 1] - 2)
        by = min(by, T_BC - 2)
        assert ea <= by, (i, ea, by)
        sF.addall(freads(i), at=ea, by=by)
    sD = Stream("dma")
    def addgrp(g, at, sp, key=None, by=None):
        at_, adv = g
        if key == ("w", 5): sD.add(WDS("kr"), after=("kread", 2))
        sps = sp if isinstance(sp, tuple) else (sp,) * 4
        sD.add(at_[0], at=at, space=max(sps[0] - 2, 0)); sD.add(at_[1])
        for i, a in enumerate(at_[2:]): sD.add(a, space=sps[i + 1], key=key if i == 2 else None, by=by)
        for a in adv: sD.add(a)
    sR = Stream("wdread", cap=2)
    vHs = vX[0]
    WD_AT = [barr(posa[6] + 1)] + [barr(c + 1) if c + 1 <= 14 - RQ else T_BC for c in range(8, 14)]
    srt = sorted(zip(WD_AT, [XB + 256, 32768, 49152, 65536, 81920, 0, 16384]), key=lambda z: z[0])
    WD_AT = [z[0] for z in srt]; WD_BASE[:] = [z[1] for z in srt]
    order = []
    for c in range(1, 14):
        k, p = SQC[c]
        if p == 0 and not (k == 1 and Cfg.x1_pro): order.append(("X", k))
        if c >= 2: order.append(("W", c))
    order.insert(Cfg.kpos, ("K", 0))
    KX = order.index(("W", Cfg.plan_from)) if Cfg.plan_from < 14 else len(order)
    order += [("D", u) for u in Cfg.d_order]
    for n, (kind, i) in enumerate(order):
        sp = (Cfg.sp1 if n < Cfg.kx else Cfg.sp2) if n < KX else 0
        if n == KX: nplain = len(sD.items)
        if kind == "W": addgrp(w_group(i), max(barr(i - 5) if i >= 6 else 0, Cfg.w_min.get(i, 0), barr(i) - Cfg.lead), sp, key=("w", i), by=barr(i) - Cfg.minlead)
        elif kind == "X": addgrp(x_group(i), max(barr(posa[i - 3] + 1) if i >= 3 else 0, barr(posa[i]) - Cfg.lead - 16), sp, by=barr(posa[i]) - Cfg.minlead)
        elif kind == "K": sD.addall(kvl, key="kvl")
        elif kind == "H": pass
        else:
            addgrp(wd_group(i), max(WD_AT[i], Cfg.wd_min[i]), 0, by=T_BW - 2 * Cfg.minlead)
    for f in range(Cfg.wr_pre): sR.addall(wd_reads(f % 7, f // 7), at=T_BW, by=conv_anchor(143))
    sP = Stream("prep")
    def unp(dst, src, hi): return I("v_and_b32 v%d, 0xffff0000, v%d" % (dst, src)) if hi else I("v_lshlrev_b32 v%d, 16, v%d" % (dst, src))
    rd = [DS("ds_read_b32 v%d, v%d" % (KR, vKh), "kr"), DS("ds_read2_b32 %s, v%d offset0:32 offset1:64" % (vr(KR + 1, 2), vKh), "kr")]
    rd += [DS("ds_read2_b32 %s, v%d offset0:%d offset1:%d" % (vr(KR + 3 + o, 2), vKa, 32 * o, 32 * o + 32), "kr") for o in range(0, 8, 2)]
    rd += [DS("ds_read2_b32 %s, v%d offset0:%d offset1:%d" % (vr(VR_ + o, 2), vKv, 32 * o, 32 * o + 32), "kr") for o in range(0, 8, 2)]
    sP.addall([[WVM("prep"), rd[0]]] + rd[1:], after=("kvl", Cfg.prep_lag), key="kread", by=barr(5) - Cfg.minlead - 12)
    at = tag_from_epoch(vEp)
    for b in range(2):
        for i in range(4): at.append(unp(TAP + i, SKR + 2 * b + (i >> 1), i & 1))
        for a in range(11): at.append([WDS("kr"), unp(KFv + a, KR + a, b)] if (a, b) == (0, 0) else unp(KFv + a, KR + a, b))
        out = OHI if b else OLO
        for w in range(4):
            for (o, R) in ((7 - 2 * w, R0), (6 - 2 * w, R1)):
                at.append(I("v_mul_f32 v%d, v%d, v%d" % (R, KFv + o, TAP + 3)))
                for i in (2, 1, 0): at.append(I("v_fmac_f32 v%d, v%d, v%d" % (R, KFv + o + 3 - i, TAP + i)))
                at.append(unp(VF, VR_ + o, b))
                at.append(I("v_mul_f32 v%d, v%d, v%d" % (R, R, VF)))
            at.append(I("v_cvt_pk_bf16_f32 v%d, v%d, v%d" % (out + w, R0, R1)))
    at.append(unstash(R0, aPsw))
    at.append(DS("ds_write_b128 v%d, %s" % (R0, vr(OLO, 4)), "psw"))
    at.append(DS("ds_write_b128 v%d, %s offset:128" % (R0, vr(OHI, 4)), "psw"))
    B_psw = Cfg.b_psw
    sP.addall(at, by=barr(B_psw) - 2)
    at = [unstash(R1, aPsr), DS("ds_read_b128 %s, v%d" % (vr(36, 4), R1), "psr"), DS("ds_read_b128 %s, v%d offset:4608" % (vr(40, 4), R1), "psr"),
          unstash(R0, aKst)]
    sP.addall(at, at=barr(B_psw), by=barr(B_psw) + 4)
    sP.add([WDS("psr"), VM("buffer_store_dwordx4 %s, v%d, %s, s%d offen sc1" % (vr(36, 4), R0, srd(SRD_WS), sKst0), "kvst")], at=barr(B_psw) + 10, by=barr(B_psw) + 16)
    sP.add(VM("buffer_store_dwordx4 %s, v%d, %s, s%d offen sc1" % (vr(40, 4), R0, srd(SRD_WS), sKst1), "kvst"), by=barr(B_psw) + 20, key="prepdone")
    B_kvst = B_psw + Cfg.kv_ack
    sP.add(flag_store(sKfl, []), at=barr(B_kvst), by=barr(B_kvst))
    CSF, MB, vPk, vPo, vCo, vMo, KV, vKw, vU0, vU1, vU2 = 32, 48, 56, 57, 58, 59, 14, 60, 4, 5, 8
    assert min(Cfg.cs_at, Cfg.polls_at, Cfg.t_at) > barr(B_psw) + 22
    sQ = Stream("cs")
    ldC = ["buffer_load_dwordx4 %s, v%d, %s, s%d offen offset:%d sc1" % (vr(CSF + 4 * jj, 4), vCo, srd(SRD_WS), sCs, 2048 * (jj >> 1) + 512 * (jj & 1)) for jj in range(4)]
    ldM = ["buffer_load_dwordx2 %s, v%d, %s, s%d offen sc1" % (vr(MB + 4 * nt, 2), vMo, srd(SRD_WS), sZF if nt else sMn) for nt in range(2)]
    sQ.addall([I("v_and_b32 v%d, 511, v%d" % (vCo, vL16)), I("v_lshrrev_b32 v%d, 1, v%d" % (vMo, vCo))] + [VM(x, "cs") for x in ldC[:2] + ldM], at=Cfg.cs_at - 2, by=Cfg.cs_at + 60)
    cmp_ops = ["v_xor_b32 v%d, s%d, v%d" % (vU0, sTAG, CSF + 3), "v_xor_b32 v%d, s%d, v%d" % (vU1, sTAG, CSF + 7), "v_xor_b32 v%d, s%d, v%d" % (vU2, sTAG, MB + 1),
               "v_or3_b32 v%d, v%d, v%d, v%d" % (vU0, vU0, vU1, vU2), "v_xor_b32 v%d, s%d, v%d" % (vU1, sTAG, MB + 5), "v_or_b32 v%d, v%d, v%d" % (vU0, vU0, vU1),
               "v_cmp_ne_u32 vcc, 0, v%d" % vU0]
    c1, c2 = check("C", ldC[:2] + ldM, cmp_ops, ["cs"])
    T_CORR = ctick[0]
    sQ.addall(c1, at=T_CORR - Cfg.cs_chk, by=T_CORR - 14)
    sQ.add(c2, by=T_CORR - 14)
    at = [I("v_mov_b32 v%d, 0" % (CSF + 4 * jj + 3)) for jj in range(2)]
    for nt in range(2):
        b = MB + 4 * nt
        at.append(I("v_xor_b32 v%d, 0x80000000, v%d" % (b, b)))
        at.append([I("v_cmp_gt_u32 vcc, 32, v%d" % vL), I("v_mov_b32 v%d, 0" % (b + 2)), I("v_mov_b32 v%d, 0" % (b + 3)), I("v_cndmask_b32 v%d, 0, v%d, vcc" % (b, b))])
        at.append(I("v_lshrrev_b32 v%d, 16, v%d" % (b + 1, b)))
        at.append(I("v_or_b32 v%d, v%d, v%d" % (b, b, b + 1)))
    sQ.addall(at, by=T_CORR - 6)
    sQ.addall([VM(x, "cs2") for x in ldC[2:]], at=Cfg.cs2_at, by=Cfg.cs2_at + 24)
    cmp_ops = ["v_xor_b32 v%d, s%d, v%d" % (vU0, sTAG, CSF + 11), "v_xor_b32 v%d, s%d, v%d" % (vU1, sTAG, CSF + 15), "v_or_b32 v%d, v%d, v%d" % (vU0, vU0, vU1), "v_cmp_ne_u32 vcc, 0, v%d" % vU0]
    c1, c2 = check("C2", ldC[2:], cmp_ops, ["cs2"])
    sQ.addall(c1, at=ctick[4] - 14, by=ctick[4] - 10)
    sQ.add(c2, by=ctick[4] - 10)
    sQ.addall([I("v_mov_b32 v%d, 0" % (CSF + 4 * jj + 3)) for jj in range(2, 4)], by=ctick[4] - 6)
    sK = Stream("kv")
    if Cfg.m_touch:
        sK.addall([[I("s_lshl_b32 s%d, s%d, 2" % (sZt1, sC2)), I("s_add_u32 s%d, s%d, s%d" % (sZt1, sZt1, sWV)), I("s_mul_i32 s%d, s%d, %d" % (sZt1, sZt1, 14 * 128))],
                   I("v_min_u32 v%d, 13, v%d" % (vPk, vL)), I("v_lshlrev_b32 v%d, 7, v%d" % (vPk, vPk)),
                   VM("buffer_load_dword v%d, v%d, %s, s%d offen" % (vPk, vPk, srd(SRD_WD), sZt1), "mt")], at=Cfg.m_touch, by=Cfg.m_touch + 12)
    if Cfg.kv_alt: KV = 10 - 10 + 62
    ldK = "buffer_load_dword v%d, v%d, %s, s%d offen sc1" % (vPk, vPo, srd(SRD_WS), sKF)
    sK.addall([unstash(vPo, aPollK), VM(ldK, "pollK")], at=Cfg.polls_at - 2, by=Cfg.polls_at + 8)
    c1, c2 = check("K", [ldK], ["v_cmp_ne_u32 vcc, s%d, v%d" % (sTAG, vPk)], ["pollK"])
    pc = Cfg.polls_at + Cfg.polls_lag
    sK.add([c1, c2], at=pc, by=pc)
    sK.add(I("v_lshlrev_b32 v%d, 4, v0" % vKw), after=("hcdone" if Cfg.kv_alt else ("w", 13), 4 if Cfg.kv_alt else 0))
    sK.add(VM("buffer_load_dwordx4 %s, v%d, %s, s%d offen sc1" % (vr(KV, 4), vKw, srd(SRD_WS), sKld0), "kvld"))
    sK.add(VM("buffer_load_dwordx4 %s, v%d, %s, s%d offen sc1" % (vr(KV + 4, 4), vKw, srd(SRD_WS), sKld1), "kvld"), by=pc + 24)
    sK.add(I("v_add_u32 v%d, %d, v%d" % (vKw, KVR, vKw)))
    sK.add([WVM("kvld"), DS("ds_write_b128 v%d, %s" % (vKw, vr(KV, 4)), "kvw")], at=min(pc + Cfg.kv_lag, T_BC - 14), by=T_BC - 12)
    sK.add(DS("ds_write_b128 v%d, %s offset:4608" % (vKw, vr(KV + 4, 4)), "kvw"), by=T_BC - 8, space=4)
    RV, SA_, SB_, vHw = 70, 62, 88, 61
    sG_ = Stream("hc")
    sG_.add([I("s_lshl_b32 s%d, s%d, 11" % (sZt0, sWM)), I("v_lshl_add_u32 v%d, v%d, 1, s%d" % (vHw, vL16, sZt0))], after=("prepdone", 4), at=Cfg.t_at)
    sG_.addall([VM("buffer_load_dwordx4 %s, v%d, %s, s%d offen %s" % (vr(RV, 4), vHw, srd(SRD_HK), sHS, Cfg.nt_hk), "hkl"),
                VM("buffer_load_dwordx4 %s, v%d, %s, s%d offen offset:16 %s" % (vr(RV + 4, 4), vHw, srd(SRD_HK), sHS, Cfg.nt_hk), "hkl"),
                VM("buffer_load_dwordx2 %s, v%d, %s, s%d offen offset:32 %s" % (vr(RV + 8, 2), vHw, srd(SRD_HK), sHS, Cfg.nt_hk), "hkl")], by=Cfg.t_at + 60)
    sG_.addall([I("v_and_b32 v9, 15, v%d" % vL), I("v_lshrrev_b32 v69, 4, v%d" % vL), I("v_lshl_add_u32 v9, v9, 1, v69"), I("v_subrev_u32 v9, 15, v9"),
                I("v_lshlrev_b32 v9, 1, v9"), I("v_add_u32 v69, 2, v9"),
                VM("buffer_load_ushort v9, v9, %s, s%d offen" % (srd(SRD_HK), sHS), "hkl"), VM("buffer_load_ushort v69, v69, %s, s%d offen" % (srd(SRD_HK), sHS), "hkl")])
    sG_.add(I("v_add_u32 v%d, s%d, v%d" % (vHw, sHL, vHw)), after=("setup", 2))
    def hw(c, base, tag="kvw"): return [DS("ds_write_b128 v%d, %s offset:%d" % (vHw, vr(base + 4 * q, 4), 4160 * c + 32 + 16 * q), tag) for q in range(2)]
    def al(dst, k): return I("v_alignbyte_b32 v%d, v%d, v%d, 2" % (dst, RV + k + 1, RV + k))
    mv = [I("v_mov_b32 v%d, v%d" % (SB_ + k, RV + 1 + k)) for k in range(8)]
    w1, w3, w0, w2 = hw(1, SB_, "hw1"), hw(3, RV + 2), hw(0, SA_), hw(2, SB_)
    at = [[WVM("hkl"), I("v_lshl_or_b32 v9, v69, 16, v9")]] + mv[0:4] + [w1[0]] + mv[4:] + [w1[1]] + [al(SA_ + k, k) for k in range(4)] + [w3[0]] + [al(SA_ + k, k) for k in range(4, 8)] + [w3[1], w0[0]]
    at += [[WDS("hw1"), al(SB_, 1)]] + [al(SB_ + k, k + 1) for k in range(1, 4)] + [w0[1]] + [al(SB_ + k, k + 1) for k in range(4, 8)] + w2
    at += [unstash(vHw, aCA1), DS("ds_write_b32 v%d, v9" % vHw, "kvw")]
    HC_AT = max(Cfg.hc_at, barr(posa[5] + 1))
    prevw = False
    for i, x in enumerate(at):
        isw = isinstance(x, Op) and x.kind == "ds" and "b128" in x.text
        sG_.add(x, at=HC_AT if i == 0 else None, space=4 if (isw and prevw) else 0, by=Cfg.hc_by, key="hcdone" if i == len(at) - 1 else None)
        prevw = isw
    sE = Stream("epi")
    vCA0, vCA1, vCB, vCD, vOo, vDv, vHo, vHp, vHt, vHA, vHB = 14, 15, 16, 17, 19, 20, 21, 13, 18, 10, 11
    KEEP = [136, 152, 128, 132, 140, 144, 148, 156]
    def hflag(word, tags):
        return [WVM(*tags), VM("buffer_store_dword a%d, v%d, %s, s%d offen offset:%d sc1" % (aTag, vFlag0, srd(SRD_WS), sHfl, 4 * word), "flag")]
    for tl in range(8):
        jj, nt = tl >> 1, tl & 1
        a = ACC + tl * 16
        at = [I("v_mul_f32 v%d, v%d, v%d" % (a + r, a + r, a + r + 8)) for r in range(8)]
        at += [I("v_cvt_pk_bf16_f32 v%d, v%d, v%d" % (KEEP[tl] + w, a + 2 * w, a + 2 * w + 1)) for w in range(4)]
        at.append(VM("buffer_store_dwordx4 %s, v%d, %s, s%d offen offset:%d %s" % (vr(KEEP[tl], 4), vL16, srd(SRD_WS), sHst1 if nt else sHst0, jj * 1024, Cfg.hpol), ("hst", 0 if tl < 4 else (tl >> 1) - 1)))
        ea = ctick[tl] + 4 + (Cfg.hs_gap * tl if tl < 4 else 0)
        if ea >= A_CONV: ea += 1
        sE.addall(at, at=ea, by=ea + 20 if tl < 6 else conv_anchor(Cfg.epi_by), key=("epi", tl))
    sL_ = Stream("flags")
    sL_.add(hflag(0, [("hst", 0)]), at=Cfg.hflag0, by=Cfg.hflag0, after=(("epi", 3), 1))
    if Cfg.st3: sE.add(hflag(1, [("hst", 1)]), at=conv_anchor(Cfg.hflagm), by=conv_anchor(Cfg.hflagm))
    if Cfg.hflag1 < 144: sE.add(hflag(2, [("hst", 2)]), at=conv_anchor(Cfg.hflag1), by=conv_anchor(Cfg.hflag1))
    CACC = 32
    def cA(dd, r): return 192 + 8 * r if dd & 1 else (160 + 8 * r if r < 4 else 96 + 8 * (r - 4))
    def cB(dd, m): return cA(dd, m) + 4
    def conv_reads(dd, r):
        at = [DS("ds_read_b64 %s, v%d offset:%d" % (vr(cA(dd, r) + half * 2, 2), vCA0, 64 * dd + 512 * r + 8 * half), ("C", dd, r)) for half in range(2)]
        at.append(DS("ds_read_b128 %s, v%d offset:%d" % (vr(cB(dd, r), 4), vCB, 3584 - 512 * r + 64 * dd), ("C", dd, r)))
        return at
    pairs = sorted([(r, m) for r in range(8) for m in range(8 - r)], key=lambda p: (max(p), p))
    first_use = {}
    for i, p in enumerate(pairs): first_use.setdefault(max(p), i)
    sC_ = Stream("convrd", cap=3)
    sC_.addall([unstash(vCA0, aCA0), unstash(vCB, aCB), unstash(vCD, aCD)], at=T_BC)
    for r in range(8): sC_.addall(conv_reads(0, r), at=T_BC if r < 4 else max(T_BC, use[104 + 2 * (r - 4) + 1] + 4), after=(("epi", 3), 1), by=conv_anchor(first_use[r] - 6))
    for r in range(8): sC_.addall(conv_reads(1, r), after=(("epi", 4 + (r >> 1)), 1), by=conv_anchor(36 + first_use[r] - 8))
    for dd in (2, 3):
        for r in range(8): sC_.addall(conv_reads(dd, r), at=conv_anchor(36 * (dd - 1)), by=min(conv_anchor(36 * dd + first_use[r] - 8), T_BW - 3))
    XE = 2; vXA = 19
    sM = Stream("misc")
    if Cfg.rot1 == "d":
        sM.addall([[I("s_lshl_b32 s%d, s%d, 6" % (sZt2, sWM)), I("v_xor_b32 v%d, s%d, v%d" % (vXA, sZt2, vB[0]))],
                   DS("ds_read_b128 %s, v%d offset:4096" % (vr(BF, 4), vXA), ("FX", 27)), I("v_xor_b32 v%d, 32, v%d" % (vXA, vXA)),
                   DS("ds_read_b128 %s, v%d offset:4096" % (vr(BF + 4, 4), vXA), ("FX", 27))], at=barr(posa[6]), by=barr(posa[6] + 1) - 4)
        sM.addall([I("v_mov_b32 v%d, v%d" % (XE + i, BF + i)) for i in range(8)], at=T_BC + 2)
        sM.add(unstash(vOo, aOo), at=conv_anchor(Cfg.xe_at))
    else:
        sM.add(unstash(vOo, aOo), at=conv_anchor(Cfg.xe_at))
        sM.add(VM("buffer_load_dwordx4 %s, v%d, %s, 0 offen" % (vr(XE, 4), vOo, srd(SRD_X)), "xe"))
        sM.add(VM("buffer_load_dwordx4 %s, v%d, %s, 0 offen offset:32" % (vr(XE + 4, 4), vOo, srd(SRD_X)), "xe"), space=2)
    sM.add([I("s_lshr_b32 s%d, s%d, 11" % (sZt1, sHS)), I("v_mov_b32 v%d, 0" % vHo)])
    sM.add(VM("buffer_load_ushort v%d, v%d, %s, s%d offen" % (0, vHo, srd(SRD_DD), sZt1), "xe"), space=2)
    sM.addall([unstash(vHo, aPollH), I("v_add_u32 v%d, s%d, v%d" % (vHA, sHA, vL16)), I("v_add_u32 v%d, s%d, v%d" % (vHB, sHB, vL16))])
    ldH = ["buffer_load_dword v%d, v%d, %s, s%d offen offset:%d sc1" % (vHp, vHo, srd(SRD_WS), sHF, 4 * w) for w in ((0, 1, 2) if Cfg.st3 else (0, 2))]
    sM.add(VM(ldH[0], "pollH"), at=conv_anchor(Cfg.hpoll), by=conv_anchor(Cfg.hpoll))
    POOL = [64 + 4 * i for i in range(16)] + [160 + 4 * i for i in range(4)]
    NP = len(POOL)
    LF = [f for f in range(56) if f % 7]
    def hreg(f):
        if f % 7 == 0: return vr(KEEP[2 * ((f % 28) // 7) + f // 28], 4)
        return vr(POOL[LF.index(f) % NP], 4)
    def fidx(f): return f // 28, (f % 28) // 7, f % 7
    def hload(f):
        jt, jj, j = fidx(f)
        return VM("buffer_load_dwordx4 %s, v%d, %s, s%d offen offset:%d sc1" % (hreg(f), vHB if jt else vHA, srd(SRD_WS), sG[j], jj * 1024), ("H", f))
    CM, CP, CK, KD, ZG, vT0, vT1, vT2 = 224, 240, 176, 160, 176, 0, 0, 24
    vT0, vT1 = 18, 20
    sN = Stream("kd")
    sN.addall([DS("ds_read_b64 %s, v%d offset:%d" % (vr(CK + 2 * k, 2), vCD, 512 * (3 - k)), "cxk") for k in range(4)], at=conv_anchor(109))
    sN.add([WVM("xe"), I("v_lshlrev_b32 v0, 16, v0")])
    for k in range(4):
        lo, hi = CK + 2 * k, CK + 1 + 2 * k
        for r, (src, h) in enumerate(((hi, 1), (hi, 0), (lo, 1), (lo, 0))):
            u = unp(KD + 4 * k + r, src, h)
            sN.add([WDS("cxk"), u] if (k, r) == (0, 0) else u, by=conv_anchor(143))
    sN.addall([I("v_add_u32 v%d, s%d, v%d" % (vT0, sWL, vL16)), I("v_xor_b32 v%d, 4096, v%d" % (vT1, vT0)),
               I("v_add_u32 v%d, %d, v%d" % (22, CEX, vT0)), I("v_add_u32 v%d, %d, v%d" % (23, CEX, vT1))], by=conv_anchor(143))
    hc1, hc2 = check("H", [ldH[0]], ["v_cmp_ne_u32 vcc, s%d, v%d" % (sTAG, vHp)], ["pollH"])
    nh = 0
    if Cfg.hcheck < 144:
        sM.add([hc1, hc2] + stamp("hok"), at=conv_anchor(Cfg.hcheck), by=conv_anchor(Cfg.hcheck))
        while nh < 12 and Cfg.hcheck + 6 + 4 * nh < 143:
            sM.add(hload(LF[nh]), by=conv_anchor(143), at=conv_anchor(109) if nh >= 8 else None); nh += 1

    for st in (sP, sE, sQ, sG_):
        if st.name in Cfg.drop:
            for it in st.items:
                a = it["atom"]
                if isinstance(a, Op) and a.kind == "i" and a.text.startswith(("v_mul_f32", "v_fmac", "v_cvt", "v_and_b32 v6", "v_lshlrev_b32 v6", "v_and_b32 v7", "v_lshlrev_b32 v7", "v_mov", "v_align", "v_xor", "v_or")):
                    it["atom"] = []; it["cost"] = 0
                elif isinstance(a, Op) and a.kind == "ds" and "ds_write_b128" in a.text:
                    it["atom"] = DS("ds_read_b32 v9, v%d" % vL16, a.tag); it["cost"] = 1
    for it in sD.items[:nplain]: it["plan"] = False
    Cfg._vmtab = plan_vm([sL_, sP, sE, sQ, sK, sG_, sD, sM], list(range(0, A_CONV, 2)) + list(range(A_CONV, A_CONV + 144)), Cfg.vs_at, Cfg.vs2)
    SC = Sched([sF, sL_, sQ, sK, sD, sE, sC_, sG_, sM, sR, sP, sS, sN])
    usage = []
    def emit_gap(now, budget, pre=0.0):
        if now in Cfg.tr_ticks and len(SC.streams) > 6: P.append(RAW("TSTAMP t%d" % now))
        if now in Cfg.tr_anch and len(SC.streams) <= 6: P.append(RAW("TSTAMP a%d" % now))
        o, u = SC.fill(now, budget - pre)
        P.append(o); usage.append(u + pre)
    def barrier(w, wd):
        o = [WVM(*w)] if w else []
        if wd: o.append(WDS(*wd))
        o.append(I("s_barrier"))
        return o
    def barrier_i(i):
        w = [("W", i)]; wd = []
        if SQC[i][1] == 0: w.append(("X", SQC[i][0]))
        if i == B_kvst: w.append("kvst")
        if i == B_psw: wd.append("psw")
        if i <= 14 - RQ: wd += [("FA", k) for k, f in enumerate(frs) if f[0] == i - 1]
        if SQC[i - 1][1] == 0: wd.append(("FX", 4 * SQC[i - 1][0] + 3))
        return barrier(w, wd)
    def mf32(a, A_, B_, first): return "v_mfma_f32_32x32x16_bf16 %s, %s, %s, %s" % (vr(a, 16), A_, B_, "0" if first else vr(a, 16))
    tb_at = {t: c for c, t in TB.items()}
    for n, e in enumerate(seq):
        now = 2 * n; pre = 0.0
        if e[0] == "m":
            c, s4, jj = frs[e[1]]; nt = e[2]; ks = 4 * SQC[c][0] + s4
            if nt == 0:
                P.append(WDS(("FA", e[1]), ("FX", ks)))
                if first[c] == now and c in Cfg.stamps_k: P.append(stamp("c%d" % c))
            else: pre = 1.0
            P.append(mf32(ACC + (4 * SQC[c][1] + 2 * jj + nt) * 16, vr(AF + 4 * (e[1] & 7), 4), ar(8 * ks + 4 * nt, 4), ks == 0))
        else:
            P.append(mf32(ACC + e[1] * 16, vr(CSF + (e[1] >> 1) * 4, 4), vr(MB + (e[1] & 1) * 4, 4), False))
        if now in tb_at: P.append(barrier_i(tb_at[now])); pre += 2
        if now == T_BC: P.append(barrier([], ["kvw", ("FA", 111)])); pre += 2
        emit_gap(now, Cfg.b1 if now < Cfg.b1_until else Cfg.b32, pre)
    P.append(stamp("g1end"))
    gi = 0
    for dd in range(4):
        seen = set()
        for i, (r, m) in enumerate(pairs):
            if first_use[max(r, m)] == i: P.append(WDS(("C", dd, max(r, m))))
            a = CACC + (r + m) * 4
            P.append("v_mfma_f32_16x16x32_bf16 %s, %s, %s, %s" % (vr(a, 4), vr(cA(dd, r), 4), vr(cB(dd, m), 4), "0" if (dd == 0 and (r + m) not in seen) else vr(a, 4)))
            seen.add(r + m)
            if conv_anchor(gi) == T_BW: P.append(barrier([("WD", u) for u in range(7)], [("C", 3, 7)]))
            emit_gap(conv_anchor(gi), Cfg.b16)
            gi += 1
    assert SC.done(), SC.left()
    Cfg._usage1 = usage; Cfg._log1 = SC.log
    P.append(stamp("convend"))

    for k in range(4): P.append("v_mov_b32 v%d, s%d\nv_mov_b32 v%d, s%d" % (ZG + 4 * k + 2, sTAG, ZG + 4 * k + 3, sTAG))
    P.append(L("s_cmp_eq_u32 s%d, 0\ns_cbranch_scc0 L_cx1", sWM))
    for k in range(4):
        P.append(DS("ds_write_b128 v22, %s offset:%d" % (vr(CACC + 16 + 4 * k, 4), 1024 * k), "cxw"))
        for r in range(4): P.append("v_fma_f32 v%d, v%d, v0, v%d" % (CM + 4 * k + r, KD + 4 * k + r, CACC + 4 * k + r))
    P.append(RAW("s_branch L_cx2\nL_cx1:"))
    for k in range(4):
        P.append(RAW("ds_write_b128 v22, %s offset:%d" % (vr(CACC + 4 * k, 4), 1024 * k)))
        for r in range(4): P.append(RAW("v_fma_f32 v%d, v%d, v0, v%d" % (CM + 4 * k + r, KD + 4 * k + r, CACC + 16 + 4 * k + r)))
    P.append(RAW("L_cx2:"))
    P.append(unstash(vT2, aZst))
    P.append([WDS("cxw"), I("s_barrier")])
    for k in range(4): P.append(DS("ds_read_b128 %s, v23 offset:%d" % (vr(CP + 4 * k, 4), 1024 * k), ("cxr", k)))
    ep = []
    for k in range(4):
        ad = [I("v_add_f32 v%d, v%d, v%d" % (CM + 4 * k + r, CM + 4 * k + r, CP + 4 * k + r)) for r in range(4)]
        ad[0] = [WDS(("cxr", k)), ad[0]]
        ep += ad + [I("v_cvt_pk_bf16_f32 v%d, v%d, v%d" % (ZG + 4 * k + w, CM + 4 * k + 2 * w, CM + 4 * k + 2 * w + 1)) for w in range(2)]
        ep.append(VM("buffer_store_dwordx4 %s, v%d, %s, s%d offen offset:%d sc1" % (vr(ZG + 4 * k, 4), vT2, srd(SRD_WS), sZst, 1024 * k), "zst"))
    if Cfg.hcheck >= 144:
        P.append([hc1, hc2]); P.append(stamp("hok"))
        while nh < Cfg.nfirst: P.append(hload(LF[nh])); nh += 1
    if Cfg.hflag1 >= 144: ep.insert(0, hflag(2, [("hst", 2)]))
    if Cfg.h2_early: P.append(VM(ldH[1], "pollH2"))
    if not Cfg.ep_shadow: P.append(ep)
    P.append(stamp("zst"))

    ACA, ACB, ZV, XF, ST = 192, 224, 32, 48, 22
    vZp, vZo, vSo, vRr = 14, 15, 16, 17
    GR = ACA + 16
    assert not Cfg.ep_shadow or Cfg.st_at > Cfg.zs_at + 3 * Cfg.zs_gap + 2
    sV = Stream("ep")
    if Cfg.ep_shadow:
        sV.addall([x for x in ep if not (isinstance(x, Op) and x.kind == "vm")], by=Cfg.ep_by)
        for k, x in enumerate([x for x in ep if isinstance(x, Op) and x.kind == "vm"]): sV.add(x, at=Cfg.zs_at + Cfg.zs_gap * k)
        assert Cfg.zs_at + 3 * Cfg.zs_gap + 4 < Cfg.zpoll and Cfg.zs_at > Cfg.ep_by
    sH = Stream("hload")
    g1, g2_ = check("H2", [ldH[1]], ["v_cmp_ne_u32 vcc, s%d, v%d" % (sTAG, vHp)], ["pollH2"])
    if not Cfg.h2_early: sH.add(VM(ldH[1], "pollH2"), at=Cfg.h2poll)
    hpace = -Cfg.hsp
    for li in range(nh, 48):
        f = LF[li]
        if f == 15: sH.add([g1, g2_], at=Cfg.h2check, by=2 * f - 10)
        ea = 2 * LF[li - NP] + 2 if li >= NP else 0
        hpace = max(hpace + Cfg.hsp, ea, Cfg.h2check + 1 if f == 15 else 0)
        sH.add(hload(f), at=int(hpace), by=max(2 * f - 4, int(hpace) + 1))
    A_BAR = 56 + Cfg.bar_a
    sX = Stream("x")
    sX.addall([unp(XF + i, XE + (i >> 1), i & 1) for i in range(16)], at=Cfg.ep_by + 2 if Cfg.ep_shadow else 2, key="xf")
    sX.add(unstash(vRr, aRr))
    sX.addall([I("v_add_u32 v%d, %d, v%d" % (vT0, REDA, vRr)), I("v_add_u32 v%d, %d, v%d" % (25, REDA, vT1))])
    sX.addall([DS("ds_write_b128 v25, %s offset:%d" % (vr(ACA + 16 + rq * 4, 4), rq * 1024), "rwa") for rq in range(4)], at=58, space=2, by=A_BAR - 1)
    def swaps(acc): return [I("v_permlane32_swap_b32 v%d, v%d" % (acc + 8 * kk + i, acc + 8 * kk + 4 + i)) for kk in range(2) for i in range(4)]
    sX.addall([DS("ds_read_b128 %s, v%d offset:%d" % (vr(ACA + 16 + kk * 8 + hs * 4, 4), vT0, kk * 2048 + hs * 512), "rra") for kk in range(2) for hs in range(2)], at=A_BAR, by=A_BAR + 1)
    sX.addall(swaps(ACA))
    def gpos(b, w): return b + (w // 3) * 4 + (w % 3)
    for i in range(16):
        op = I("v_add_f32 v%d, v%d, v%d" % (ACA + i, ACA + i, ACA + 16 + i))
        if i == 0: sX.add([WDS("rra"), op], space=2)
        else: sX.add(op)
    for w in range(8):
        sX.add(I("v_cvt_pk_bf16_f32 v%d, v%d, v%d" % (gpos(GR, w), ACA + 2 * w, ACA + 2 * w + 1)))
        if w % 3 == 2 or w == 7:
            k = w // 3
            sX.add(I("v_mov_b32 v%d, s%d" % (GR + 4 * k + 3, sTAG)))
            sX.add(VM("buffer_store_dwordx4 %s, v%d, %s, s%d offen offset:%d sc1" % (vr(GR + 4 * k, 4), vL16, srd(SRD_WS), sPst, k * 1024), "pst"), by=A_BAR + 20, key=("pst", k))
    ldP = ["buffer_load_dwordx4 %s, v%d, %s, s%d offen offset:%d sc1" % (vr(ACA + 4 * k, 4), vL16, srd(SRD_WS), sPld, k * 1024) for k in range(3)]
    sX.addall([VM(x, "pld") for x in ldP], at=Cfg.pld, by=111)
    sZ = Stream("z")
    sZq = [sZld, sZt0, sZt1, sZt2]
    ldZ = ["buffer_load_dwordx4 %s, v%d, %s, s%d offen sc1" % (vr(ZG + 4 * i, 4), vZo, srd(SRD_WS), sZq[i]) for i in range(4)]
    ldS = "buffer_load_dwordx3 %s, v%d, %s, s%d offen sc1" % (vr(ST, 3), vSo, srd(SRD_WS), sSt2)
    sZ.addall([I("v_and_b32 v%d, 511, v%d" % (vSo, vL16)), VM(ldS, "sld")], at=Cfg.st_at)
    sZ.addall([unstash(vZo, aZld)] + [I("s_add_u32 s%d, s%d, %d" % (sZq[i], sZld, i * 65536)) for i in range(1, 4)])
    c1, c2 = check("S", [ldS], ["v_cmp_ne_u32 vcc, s%d, v%d" % (sTAG, ST + 2)], ["sld"])
    sZ.add([c1, c2], at=Cfg.st_at + Cfg.st_lag, after=("xf", 0))
    sZ.addall([I("v_mul_f32 v%d, v%d, v%d" % (ST, ST, ST + 1)), I("v_mul_f32 v%d, v%d, v%d" % (ST + 2, ST + 1, ST + 1))])
    sZ.addall([I("v_fma_f32 v%d, v%d, v%d, -v%d" % (ZV + i, XF + i, ST + 1, ST)) for i in range(16)])
    sZ.add([I("v_lshrrev_b32 v%d, 1, v%d" % (vZp, vL16)), I("v_add_u32 v%d, s%d, v%d" % (vZp, sZfl, vZp))])
    sZ.addall([VM(x, "zld") for x in ldZ], at=Cfg.zpoll)
    cmp_ops = ["v_xor_b32 v%d, s%d, v%d" % (ZG + 4 * i + 3, sTAG, ZG + 4 * i + 2) for i in range(4)] + [
               "v_or3_b32 v%d, v%d, v%d, v%d" % (ZG + 3, ZG + 3, ZG + 7, ZG + 11), "v_or_b32 v%d, v%d, v%d" % (ZG + 3, ZG + 3, ZG + 15), "v_cmp_ne_u32 vcc, 0, v%d" % (ZG + 3)]
    c1, c2 = check("Z", ldZ, cmp_ops, ["zld"])
    zt = list(c1) + [c2]
    zt += [DS("ds_write_b64 v%d, %s offset:%d" % (vZp, vr(ZG + 4 * i, 2), 512 * i), "zw") for i in range(4)]
    zt += [unstash(vSo, aPollZ)]
    rd = [DS("ds_read_b64_tr_b16 %s, v%d offset:%d" % (vr(XE + 2 * q, 2), vSo, (q >> 1) * 1024 + (q & 1) * 256), "zr") for q in range(4)]
    rd[0] = [WDS("zw"), rd[0]]
    zt += rd
    for i in range(16):
        u = unp((12, 0)[i & 1], XE + (i >> 1), i & 1)
        zt.append([WDS("zr"), u] if i == 0 else u)
        zt.append(I("v_fma_f32 v%d, v%d, v%d, v%d" % (ZV + i, ZV + i, (12, 0)[i & 1], XF + i)))
    assert Cfg.zpoll + Cfg.zlag > A_BAR
    sZ.addall(zt, at=Cfg.zpoll + Cfg.zlag)
    sW = Stream("wr", cap=2)
    for f in range(Cfg.wr_pre, 28): sW.addall(wd_reads(f % 7, f // 7), by=max(2 * f - 5, 0))
    if Cfg.plan2: Cfg._vmtab2 = plan_vm([sH, sV, sX, sZ], list(range(112)), 0, 0.25, lead_div=Cfg.ld2, lead_mul=1)
    SC = Sched([sW, sH, sV, sX, sZ])
    usage = []
    for f in range(56):
        jt, jj, j = fidx(f)
        if j: P.append(WVM(("H", f)))
        if jt == 0: P.append(WDS(("WR", j, jj)))
        if f in Cfg.stamps_f: P.append(stamp("f%d" % f))
        for jd in range(2):
            a = (ACB if jt else ACA) + jd * 16
            P.append(mf32(a, ar(8 * (4 * j + jj) + 4 * jd, 4), hreg(f), f % 28 == 0))
            now = 2 * f + jd
            if now == A_BAR: P.append([WDS("rwa"), I("s_barrier")])
            emit_gap(now, Cfg.b2, 1.0 if jd else 0.0)
    for s_ in (sW, sH, sV, sX): assert s_.pos == len(s_.items), s_.name
    rest = [it["atom"] for it in sZ.items[sZ.pos:]]
    Cfg._usage2 = usage; Cfg._rest = len(rest)
    P.append(stamp("g2end"))
    P.append("s_nop 7\ns_nop 3")
    for rq in range(4): P.append(DS("ds_write_b128 v%d, %s offset:%d" % (vT1, vr(ACB + 16 + rq * 4, 4), REDB + rq * 1024), "rwb"))
    P.append(swaps(ACB))
    P.append([WDS("rwb"), I("s_barrier")])
    for kk in range(2):
        for hs in range(2):
            P.append(DS("ds_read_b128 %s, v%d offset:%d" % (vr(64 + kk * 8 + hs * 4, 4), vRr, REDB + kk * 2048 + hs * 512), "rrb"))
    P.append(rest)
    cmp_ops = ["v_xor_b32 v%d, s%d, v%d" % (ACA + 4 * k + 3, sTAG, ACA + 4 * k + 3) for k in range(3)]
    cmp_ops += ["v_or3_b32 v%d, v%d, v%d, v%d" % (ACA + 3, ACA + 3, ACA + 7, ACA + 11), "v_cmp_ne_u32 vcc, 0, v%d" % (ACA + 3)]
    c1, c2 = check("P", ldP, cmp_ops, ["pld"])
    P.append(WDS("rrb"))
    for i in range(16): P.append("v_add_f32 v%d, v%d, v%d" % (ACB + i, ACB + i, 64 + i))
    P.append([c1, c2])
    for kk in range(2):
        for i in range(8 * kk, 8 * kk + 8):
            P.append(unp(ACA + 16 + i, gpos(ACA, i >> 1), i & 1))
            P.append("v_add_f32 v%d, v%d, v%d" % (ACB + i, ACB + i, ACA + 16 + i))
            P.append("v_fma_f32 v%d, v%d, v%d, v%d" % (ACB + i, ACB + i, ST + 2, ZV + i))
        for w in range(4): P.append("v_cvt_pk_bf16_f32 v%d, v%d, v%d" % (80 + 4 * kk + w, ACB + 8 * kk + 2 * w, ACB + 8 * kk + 2 * w + 1))
        P.append(VM("buffer_store_dwordx4 %s, v%d, %s, 0 offen offset:%d %s" % (vr(80 + 4 * kk, 4), vOo, srd(SRD_OUT), 32 * kk, Cfg.opol), "out"))
    P.append(diag_tail(True))
    P.append("s_endpgm")
    return P
Cfg.ep_shadow = False; Cfg.ep_by = 20; Cfg.opol = ""
Cfg.order = [("X", 1), ("W", 2), ("X", 2), ("W", 3), ("X", 3), ("W", 4), ("X", 4), ("W", 5), ("X", 5), ("W", 6), ("X", 6), ("W", 7), ("W", 8), ("W", 9), ("W", 10),
             ("W", 11), ("W", 12), ("W", 13), ("D", 0), ("D", 1), ("D", 2), ("D", 3), ("D", 4), ("D", 5), ("D", 6)]
Cfg.t_at = 232; Cfg.hc_at = 270; Cfg.hc_by = 420; Cfg.cs_chk = 30; Cfg.w_min = {9: 176, 10: 216, 11: 244, 12: 262, 13: 280}
Cfg.vs1 = 0; Cfg.vs2 = 1.0; Cfg.vs3 = 0.0; Cfg.vs_at = 128; Cfg.hprio = True; Cfg.b2 = 5; Cfg.b1 = 6.5; Cfg.tr_ticks = (); Cfg.rq = 2; Cfg.c1 = 9; Cfg.blead = 14; Cfg.hs_gap = 22
Cfg.minlead = 10; Cfg.prep_lag = 40; Cfg.htouch = False; Cfg.hcheck = 90; Cfg.pld = 104; Cfg.nws = 6
Cfg.q_pro = 999; Cfg.b11 = 8; Cfg.bc = 20; Cfg.bw = 116; Cfg.cs_at = 210; Cfg.hflag0 = 426; Cfg.hflag1 = 120; Cfg.xe_at = 44
Cfg.h2_early = True; Cfg.h2poll = 0; Cfg.h2check = 4
Cfg.epi_prio = True; Cfg.stamps_f = (); Cfg.b_psw = 6; Cfg.kv_ack = 2; Cfg.epi_by = 18; Cfg.hcheck_early = True; Cfg.hsp = 1.75; Cfg.bar_a = 10

def gen_helper():
    stamp_n[0] = 0
    P = [WDS0()]
    if Cfg.diag: P.append("s_mov_b32 s89, s88")
    P.append(build_srd(SRD_X, 4, S * D * 2)); P.append(build_srd(SRD_WS, 28, WS_SIZE))
    P.append(L("s_and_b32 s%d, s2, 7\ns_lshr_b32 s%d, s2, 3", sA, sB))
    P.append(L("s_lshl_b32 s%d, s%d, 2\ns_add_u32 s%d, s%d, s%d", sT, sA, sT, sT, sB))
    P.append(L("s_lshr_b32 s%d, s%d, 1\ns_lshl_b32 s%d, s%d, 2\ns_add_u32 s%d, s%d, s%d", sC2, sA, sC2, sC2, sC2, sC2, sB))
    P.append(L("s_and_b32 s%d, s%d, 1\ns_mul_i32 s%d, s%d, 7\ns_add_u32 s%d, s%d, s%d", sA, sA, sFT, sA, sFT, sFT, sC2))
    P.append(L("s_cmp_ge_u32 s%d, 7\ns_cselect_b32 s%d, s20, s18\ns_cselect_b32 s%d, s21, s19", sC2, SRD_W1, SRD_W1 + 1))
    P.append(L("s_cselect_b32 s%d, 1, 0\ns_cselect_b32 s%d, 7, 0\ns_sub_u32 s%d, s%d, s%d", sMT, sA, sFT, sFT, sA))
    P.append(L("s_mov_b32 s%d, %d\ns_mov_b32 s%d, 0x00020000", SRD_W1 + 2, D * F * 2, SRD_W1 + 3))
    sNO, sONE, sLO, sHI, sSTO = sWL, sXL, sWo, sXo, sDo
    if Cfg.gpref: P.append(gpref(9, 10))
    P.append(L("s_cmp_ge_u32 s%d, 14\ns_cselect_b32 s%d, 0x40000000, 0", sC2, sNO))
    V0, V1, V2, V3, V4, V5 = 2, 3, 4, 5, 6, 7
    P.append(L("s_lshl_b32 s%d, s%d, 2\ns_add_u32 s%d, s%d, s%d\ns_mul_i32 s%d, s%d, %d\ns_add_u32 s%d, s%d, %d", sA, sT, sA, sA, sWV, sA, sA, 16 * 896, sB, sA, 8 * 896))
    P.append(L("v_lshrrev_b32 v%d, 3, v%d\nv_mul_u32_u24 v%d, 896, v%d\nv_and_b32 v%d, 7, v%d\nv_lshl_add_u32 v%d, v%d, 4, v%d", V0, vL, V0, V0, V1, vL, V0, V1, V0))
    P.append(L("s_getpc_b64 s[%d:%d]", sC, sC + 1))
    P.append(RAW("L_touch_base2:"))
    P.append(L("s_sub_u32 s%d, s%d, L_touch_base2-L_main\ns_subb_u32 s%d, s%d, 0", sC, sC, sC + 1, sC + 1))
    P.append(L("s_lshr_b32 s%d, s2, 3\ns_lshl_b32 s%d, s%d, 13\nv_lshrrev_b32 v%d, 2, v0\nv_lshlrev_b32 v%d, 7, v%d\nv_add_u32 v%d, s%d, v%d", sZt0, sZt0, sZt0, V4, V4, V4, V4, sZt0, V4))
    P.append(L("v_min_u32 v%d, L_end_of_code-L_main-4, v%d", V4, V4))
    P.append(VM("global_load_dword v%d, v%d, s[%d:%d]" % (8, V4, sC, sC + 1), "touch"))
    P.append(L("s_mov_b32 s%d, %d\nv_mov_b32 v%d, 0", sZt0, EP_OFF, V4))
    P.append(VM("buffer_load_dword v%d, v%d, %s, s%d offen sc1" % (V5, V4, srd(SRD_WS), sZt0), "ep"))
    P.append(L("v_lshrrev_b32 v%d, 3, v0\nv_mul_u32_u24 v%d, 3584, v%d\nv_and_b32 v%d, 7, v0\nv_lshl_add_u32 v%d, v%d, 4, v%d", V2, V2, V2, V3, V2, V3, V2))
    P.append(L("s_lshl_b32 s%d, s%d, 8\ns_add_u32 s%d, s%d, s%d", sD_, sFT, sD_, sD_, sNO))
    P.append(build_srd(SRD_WD, 22, D * F * 2))
    def wl(i):
        return ["s_add_u32 s%d, s%d, %d" % (sZt2, sD_, 32 * (i % 14) * 3584 + 128 * (i // 14)),
                VM("buffer_load_dwordx4 %s, v%d, %s, s%d offen %s" % (vr(128 + 4 * i, 4), V2, srd(SRD_W1), sZt2, Cfg.nt_w), ("hw", i))]
    def xl(grp, i): return VM("buffer_load_dwordx4 %s, v%d, %s, s%d offen offset:%d %s" % (vr(32 + (grp * 7 + i) * 4, 4), V0, srd(SRD_X), sB if grp else sA, 128 * i, Cfg.nt_x), ("hx", grp))
    def red8(v):
        return ["s_nop 1", "v_add_f32_dpp v%d, v%d, v%d quad_perm:[1,0,3,2] row_mask:0xf bank_mask:0xf" % (v, v, v), "s_nop 1",
                "v_add_f32_dpp v%d, v%d, v%d quad_perm:[2,3,0,1] row_mask:0xf bank_mask:0xf" % (v, v, v), "s_nop 1",
                "v_add_f32_dpp v%d, v%d, v%d row_half_mirror row_mask:0xf bank_mask:0xf" % (v, v, v)]
    INV448 = 0x3b124925
    P.append(L("s_mov_b32 s%d, 0x3f803f80\ns_mov_b32 s%d, 0x00003f80\ns_mov_b32 s%d, 0x3f800000", sONE, sLO, sHI))
    U0, U1 = 88, 89
    MEAN = [90, 91]; G = [92, 96]
    vSo, vSo2 = 100, 101
    CSUM = 108
    vCw, vCr, vCs, sCo = 10, 11, 12, 87
    if Cfg.h_delay: P.append(WVM("ep"))
    if Cfg.h_kv:
        P.append(build_srd(SRD_K, 6, S * D * 2)); P.append(build_srd(SRD_V, 8, S * D * 2))
        P.append(L("v_min_u32 v13, 55, v%d\nv_lshlrev_b32 v13, 7, v13", vL))
        for k in range(Cfg.h_kv - 1): P.append(wl(k))
        for i, (sd, so) in enumerate(((SRD_K, sA), (SRD_K, sB), (SRD_V, sA), (SRD_V, sB))):
            P.append(VM("buffer_load_dword v%d, v13, %s, s%d offen nt" % (248 + i, srd(sd), so), "kvt"))
    for k in range(max(Cfg.h_kv - 1, 0), 14): P.append(wl(k))
    P.append(L("v_lshlrev_b32 v%d, 5, v0\nv_lshlrev_b32 v%d, 2, v%d", vCw, vCr, vL))
    P.append(L("v_lshrrev_b32 v%d, 4, v%d\nv_lshlrev_b32 v%d, 9, v%d\nv_and_b32 v%d, 15, v%d\nv_lshl_add_u32 v%d, v%d, 4, v%d", vCs, vL, vCs, vCs, V3, vL, vCs, V3, vCs))
    P.append(L("s_lshl_b32 s%d, s%d, 12\ns_lshl_b32 s%d, s%d, 8\ns_add_u32 s%d, s%d, s%d\ns_add_u32 s%d, s%d, %d", sCo, sFT, sZt0, sMT, sCo, sCo, sZt0, sCo, sCo, CS_OFF))
    P.append(L("s_cmp_eq_u32 s%d, 0\ns_cselect_b32 s%d, s%d, 0x40000000\ns_add_u32 s%d, s%d, s%d", sWV, sZt0, sNO, sCo, sCo, sZt0))
    def colsum(half, fill):
        o = ["v_mov_b32 v%d, 0" % (CSUM + e) for e in range(8)]
        for i in range(14 * half, 14 * half + 14):
            if fill: o.append(fill.pop(0))
            o.append(WVM(("hw", i)))
            for w in range(4):
                src = 128 + 4 * i + w
                o.append("v_dot2c_f32_bf16 v%d, s%d, v%d\nv_dot2c_f32_bf16 v%d, s%d, v%d" % (CSUM + 2 * w, sLO, src, CSUM + 2 * w + 1, sHI, src))
        if half == 0: o.append(tag_from_epoch(V5))
        o.append("s_nop 2")
        o.append(RAW("ds_write_b128 v%d, v[108:111] offset:%d\nds_write_b128 v%d, v[112:115] offset:%d" % (vCw, 8192 * half, vCw, 8192 * half + 16)))
        o += [WDS0(), "s_barrier"]
        for rg in range(0, 32, 2): o.append(RAW("ds_read2st64_b32 %s, v%d offset0:%d offset1:%d" % (vr(128 + rg, 2), vCr, 32 * half + rg, 32 * half + rg + 1)))
        o.append(WDS0())
        for st in (1, 2, 4, 8, 16):
            for rg in range(0, 32, 2 * st): o.append("v_add_f32 v%d, v%d, v%d" % (128 + rg, 128 + rg, 128 + rg + st))
        o.append("v_cvt_pk_bf16_f32 v116, v128, v128\nv_lshlrev_b32 v117, 16, v116\nv_sub_f32 v128, v128, v117")
        o.append("v_cvt_pk_bf16_f32 v118, v128, v128\nv_lshlrev_b32 v117, 16, v118\nv_sub_f32 v128, v128, v117")
        o.append("v_and_b32 v116, 0xffff, v116\nv_or_b32 v116, v116, v117")
        o.append(L("v_cvt_pk_bf16_f32 v117, v128, v128\nv_and_b32 v117, 0xffff, v117\nv_mov_b32 v118, 0\nv_mov_b32 v119, s%d", sTAG))
        o.append(VM("buffer_store_dwordx4 v[116:119], v%d, %s, s%d offen offset:%d sc1" % (vCs, srd(SRD_WS), sCo, 2048 * half), "cst"))
        return o
    xls = [xl(grp, i) for grp in range(2) for i in range(7)]
    if Cfg.h_fill == "x": P.append(colsum(0, xls))
    elif Cfg.h_fill == "w":
        P.append(colsum(0, [wl(k) for k in range(14, 28)]))
        P.append(colsum(1, xls))
    else:
        P.append(colsum(0, [[xls[k], wl(14 + k)] for k in range(14)]))
    P.append(stamp("cs"))
    P.append(L("v_and_b32 v%d, 7, v%d\nv_cmp_eq_u32 vcc, 0, v%d\nv_mov_b32 v%d, %s\nv_lshlrev_b32 v%d, 1, v%d\nv_cndmask_b32 v%d, v%d, v%d, vcc\nv_cndmask_b32 v%d, v%d, v%d, vcc",
               V0, vL, V0, V1, OOB, V3, vL, vSo, V1, vL, vSo2, V1, V3))
    P.append(L("s_lshl_b32 s%d, s%d, 2\ns_add_u32 s%d, s%d, s%d\ns_lshl_b32 s%d, s%d, 7\ns_add_u32 s%d, s%d, %d", sA, sT, sA, sA, sWV, sA, sA, sSTO, sA, ST_OFF))
    P.append(L("s_lshl_b32 s%d, s%d, 1\ns_add_u32 s%d, s%d, %d", sA, sA, sZt1, sA, ST2_OFF))
    var = []; vi = 0
    for grp in range(2):
        SQ = 102 + 2 * grp; base = 32 + grp * 28
        var.append(L("v_mov_b32 v%d, 0\nv_mov_b32 v%d, 0", SQ, SQ + 1))
        for r in range(28):
            var.append(L("v_lshlrev_b32 v%d, 16, v%d\nv_and_b32 v%d, 0xffff0000, v%d\nv_sub_f32 v%d, v%d, v%d\nv_sub_f32 v%d, v%d, v%d\nv_fmac_f32 v%d, v%d, v%d\nv_fmac_f32 v%d, v%d, v%d",
                         U0, base + r, U1, base + r, U0, U0, MEAN[grp], U1, U1, MEAN[grp], SQ, U0, U0, SQ + 1, U1, U1))
    for grp in range(2):
        base = 32 + grp * 28
        P.append(L("v_mov_b32 v%d, 0\nv_mov_b32 v%d, 0", U0, U1))
        P.append(WVM(("hx", grp)))
        for r in range(28): P.append("v_dot2c_f32_bf16 v%d, s%d, v%d" % (U1 if r & 1 else U0, sONE, base + r))
        P.append(L("s_nop 2\nv_add_f32 v%d, v%d, v%d", MEAN[grp], U0, U1))
        P.append(red8(MEAN[grp]))
        P.append(L("v_mul_f32 v%d, 0x%x, v%d", MEAN[grp], INV448, MEAN[grp]))
        P.append(L("v_cvt_pk_bf16_f32 v%d, v%d, v%d\nv_lshlrev_b32 v%d, 16, v%d\nv_mov_b32 v%d, s%d", G[grp], MEAN[grp], MEAN[grp], G[grp], G[grp], G[grp] + 1, sTAG))
        P.append(VM("buffer_store_dwordx2 %s, v%d, %s, s%d offen offset:%d sc1" % (vr(G[grp], 2), vSo, srd(SRD_WS), sSTO, 64 * grp), "mst"))
    P.append(stamp("mean"))
    def job_mall():
        return [L("s_lshl_b32 s%d, s2, 2\ns_add_u32 s%d, s%d, s%d\ns_mul_i32 s%d, s%d, %d\ns_add_u32 s%d, s%d, %d\nv_min_u32 v13, 48, v%d\nv_lshlrev_b32 v13, 7, v13", sA, sA, sA, sWV, sA, sA, 98 * 128, sB, sA, 49 * 128, vL),
                VM("buffer_load_dword v250, v13, %s, s%d offen" % (srd(SRD_WD), sA), "wdt"), VM("buffer_load_dword v251, v13, %s, s%d offen" % (srd(SRD_WD), sB), "wdt")]
    def job_cs1(): return {"x": lambda: [[wl(k) for k in range(14, 28)], colsum(1, None)], "w": lambda: [], "b": lambda: [colsum(1, None)]}[Cfg.h_fill]()
    def job_hk():
        return [build_srd(SRD_HK, 12, D * S * 2),
                L("s_lshr_b32 s%d, s2, 3\ns_lshl_b32 s%d, s%d, 2\ns_add_u32 s%d, s%d, s%d\ns_lshl_b32 s%d, s%d, 3\ns_and_b32 s%d, s2, 7\ns_add_u32 s%d, s%d, s%d\ns_lshl_b32 s%d, s%d, 13",
                  sA, sA, sA, sA, sA, sWV, sA, sA, sB, sA, sA, sB, sA, sA),
                L("s_add_u32 s%d, s%d, %d\nv_lshlrev_b32 v13, 7, v%d", sB, sA, 128 * 8192, vL),
                VM("buffer_load_dword v126, v13, %s, s%d offen nt" % (srd(SRD_HK), sA), "wdt"), VM("buffer_load_dword v127, v13, %s, s%d offen nt" % (srd(SRD_HK), sB), "wdt")]
    sWb = sC2
    def job_wd(j):
        o = []
        if j == 0:
            o.append(L("s_and_b32 s%d, s2, 1\ns_mul_i32 s%d, s%d, 896\ns_lshr_b32 s%d, s2, 3\ns_lshl_b32 s%d, s%d, 2\ns_add_u32 s%d, s%d, s%d\ns_lshl_b32 s%d, s%d, 3\ns_add_u32 s%d, s%d, s%d\ns_mul_i32 s%d, s%d, 896",
                       sA, sA, sA, sB, sB, sB, sB, sB, sWV, sB, sB, sA, sA, sB, sWb, sA))
            o.append(L("v_and_b32 v14, 7, v%d\nv_min_u32 v14, 6, v14\nv_lshrrev_b32 v15, 3, v%d\nv_mul_u32_u24 v15, 896, v15\nv_lshl_add_u32 v15, v14, 7, v15\nv_mul_u32_u24 v14, %d, v14", vL, vL, 128 * 896))
        else: o.append(L("v_add_u32 v14, %d, v14\nv_subrev_u32 v16, %d, v14\nv_min_u32 v14, v14, v16", 128 * 896, 7 * 128 * 896))
        o.append("v_add_u32 v16, v14, v15")
        o.append(VM("buffer_load_dword v%d, v16, %s, s%d offen" % (240 + j, srd(SRD_WD), sWb), "wdt"))
        return o
    def job_lin(i):
        o = []
        if i == 0:
            o.append(L("s_and_b32 s%d, s2, 1\ns_mul_i32 s%d, s%d, 6272\ns_lshr_b32 s%d, s2, 3\ns_lshl_b32 s%d, s%d, 2\ns_add_u32 s%d, s%d, s%d\ns_mul_i32 s%d, s%d, 392\ns_add_u32 s%d, s%d, s%d\ns_lshl_b32 s%d, s%d, 7",
                       sA, sA, sA, sB, sB, sB, sB, sB, sWV, sB, sB, sA, sA, sB, sWb, sA))
            o.append(L("v_min_u32 v14, 55, v%d\nv_lshlrev_b32 v14, 7, v14\ns_bfe_u32 s%d, s2, 0x20001\ns_mul_i32 s%d, s%d, %d", vL, sDT, sDT, sDT, 2 * 56 * 128))
        o.append(L("s_add_u32 s%d, s%d, s%d", sB, sWb, sDT)); o.append(advance(sDT, 56 * 128, 7 * 56 * 128))
        o.append(VM("buffer_load_dword v%d, v14, %s, s%d offen" % (240 + i, srd(SRD_WD), sB), "wdt"))
        return o
    for job in Cfg.h_jobs:
        if isinstance(job, str) and job[0] == "L": P.append(job_lin(int(job[1:])))
        elif job == "mall": P.append(job_mall())
        elif job == "cs1": P.append(job_cs1())
        elif job == "hk": P.append(job_hk())
        elif job == "var": P.append(var[vi:vi + 15]); vi = min(vi + 15, len(var))
        else: P.append(job_wd(job))
    P.append(var[vi:])
    for grp in range(2):
        SQ = 102 + 2 * grp
        P.append(L("v_add_f32 v%d, v%d, v%d", SQ, SQ, SQ + 1))
        P.append(red8(SQ))
        P.append(L("v_mul_f32 v%d, 0x%x, v%d", SQ, INV448, SQ))
        P.append(L("v_cvt_pk_bf16_f32 v%d, v%d, v%d\nv_lshlrev_b32 v%d, 16, v%d", SQ, SQ, SQ, SQ, SQ))
        P.append(L("v_add_f32 v%d, 0x3727c5ac, v%d", SQ, SQ))
        P.append(L("v_cvt_pk_bf16_f32 v%d, v%d, v%d\nv_lshlrev_b32 v%d, 16, v%d", SQ, SQ, SQ, SQ, SQ))
        P.append(L("v_sqrt_f32 v%d, v%d\ns_nop 0", SQ, SQ))
        P.append(L("v_cvt_pk_bf16_f32 v%d, v%d, v%d\nv_lshlrev_b32 v%d, 16, v%d", SQ, SQ, SQ, SQ, SQ))
        P.append(L("v_rcp_f32 v%d, v%d\nv_mov_b32 v%d, s%d\nv_mov_b32 v%d, 0", G[grp] + 1, SQ, G[grp] + 2, sTAG, G[grp] + 3))
        P.append(VM("buffer_store_dwordx4 %s, v%d, %s, s%d offen offset:%d sc1" % (vr(G[grp], 4), vSo2, srd(SRD_WS), sZt1, 128 * grp), "rst"))
    P.append(stamp("rstd"))
    P.append(L("s_cmp_lg_u32 s2, 0\ns_cbranch_scc1 L_h_end\ns_cmp_lg_u32 s%d, 0\ns_cbranch_scc1 L_h_end", sWV))
    P.append(L("v_lshlrev_b32 v%d, 7, v%d\nv_and_b32 v%d, 31, v%d\nv_lshlrev_b32 v%d, 7, v%d\ns_mov_b32 s%d, 0", V0, vL, V1, vL, V1, V1, sSPIN))
    P.append(RAW("L_ep_spin:"))
    for i in range(3):
        P.append("s_mov_b32 s%d, %d" % (sA, KF_OFF + 8192 * i))
        P.append(RAW("buffer_load_dword v%d, v%d, %s, s%d offen sc1" % (32 + i, V0, srd(SRD_WS), sA)))
    P.append("s_mov_b32 s%d, %d" % (sA, KF_OFF + 8192 * 3))
    P.append(RAW("buffer_load_dword v35, v%d, %s, s%d offen sc1" % (V1, srd(SRD_WS), sA)))
    for i in range(2):
        P.append("s_mov_b32 s%d, %d" % (sA, ST_OFF + 8192 * i + 4))
        P.append(RAW("buffer_load_dword v%d, v%d, %s, s%d offen sc1" % (36 + i, V0, srd(SRD_WS), sA)))
    P.append(WVM0())
    for i in range(6): P.append("v_xor_b32 v%d, s%d, v%d" % (32 + i, sTAG, 32 + i))
    for i in range(1, 6): P.append("v_or_b32 v32, v32, v%d" % (32 + i))
    P.append("v_cmp_ne_u32 vcc, 0, v32")
    P.append(L("s_add_u32 s%d, s%d, 1\ns_cmp_lt_u32 s%d, %d\ns_cbranch_scc0 L_ep_go", sSPIN, sSPIN, sSPIN, Cfg.spin))
    P.append("s_cbranch_vccz L_ep_go\ns_sleep 32\ns_branch L_ep_spin")
    P.append(RAW("L_ep_go:"))
    P.append("s_mov_b32 s%d, %d" % (sA, EP_OFF))
    P.append(RAW("buffer_store_dword a%d, v%d, %s, s%d offen sc1" % (aTag, vFlag0, srd(SRD_WS), sA)))
    P.append(RAW("L_h_end:"))
    P.append(diag_tail())
    P.append("s_endpgm")
    return P
Cfg.qstamps = False; Cfg.x_nost = False; Cfg.hpol = "sc1"; Cfg.kpos = 2; Cfg.hk_early = False; Cfg.loadtest = False; Cfg.wr_pre = 4; Cfg.tr_only = []; Cfg.zld_by = 110; Cfg.dprio = True; Cfg.sp3 = 4; Cfg.wd_min = [300, 340, 384, 404, 446, 0, 0]; Cfg.setup_by = 150; Cfg.h_fill = "x"; Cfg.h_kv = 0; Cfg.m_touch = 0; Cfg.h_jobs = ['cs1', 'hk', 'L0', 'L1', 'L2', 'L3', 'var', 'L4', 'var', 'L5', 'var', 'L6']; Cfg.ws_base = 0; Cfg.h_delay = False; Cfg.h_mall = False; Cfg.ld2 = 4; Cfg.st3 = False; Cfg.tr_anch = (); Cfg.kv_alt = False; Cfg.lead = 999; Cfg.hsp0 = 1.5; Cfg.zs_at = 12; Cfg.zs_gap = 6; Cfg.drop = (); Cfg.lag = 7; Cfg.plan_from = 7; Cfg.b1_until = 224; Cfg.d_order = range(7); Cfg.x1_pro = 1; Cfg.h_rot = True; Cfg.h_order = 0; Cfg.cs2_at = 344; Cfg.abl = (); Cfg.sleeps = {}; Cfg.hflagm = 118; Cfg.h3poll_f = 15; Cfg.h3check = 22; Cfg.st_at = 8; Cfg.st_lag = 30; Cfg.plan2 = True; Cfg.h_hk = True; Cfg.h_wd = True; Cfg.gpref = 0; Cfg.amp = None; Cfg.ctouch = False; Cfg.ptouch = 0; Cfg.dbg = 0; Cfg.scramble = False; Cfg.h_var = 1; Cfg.trace = False

def generate(diag=False):
    Cfg.diag = diag
    stamp_n[0] = 0
    del slow_paths[:]; del stamp_names[:]
    ref = open("cdna_kernels/%s.s.ref" % NAME).read().split("\n")
    head = [l for l in ref if l.startswith(";") and "@launch" not in l]
    out = head + ["; @launch grid=(256,1,1) block=(256,1,1) lds=%d" % LDS_SIZE]
    out += ['.amdgcn_target "amdgcn-amd-amdhsa--gfx950"', ".text", ".globl %s_kernel" % NAME, ".p2align 8",
            ".type %s_kernel,@function" % NAME, "%s_kernel:" % NAME]
    pro, _ = resolve([prologue_common(), "s_cmp_lt_u32 s2, 32", "s_cbranch_scc1 L_helper"])
    del TRACE['names'][:]
    TRACE['only'] = Cfg.tr_only
    m, mx = resolve(gen_main(), trace=Cfg.trace)
    h, _ = resolve([RAW("L_helper:"), gen_helper()])
    body = pro + m + "\n".join(slow_paths).split("\n") + ["L_end_of_main:"] + h + ["L_exit:", "s_endpgm", "L_end_of_code:"]
    body = "\n".join(body).split("\n")
    if Cfg.abl:
        nb = []; inmain = True; seen_end = False; nvm = 0
        for l in body:
            drop = False
            if "hst" in Cfg.abl and l.startswith("buffer_store_dwordx4") and (" s%d offen" % sHst0 in l or " s%d offen" % sHst1 in l): drop = True
            if "zst" in Cfg.abl and l.startswith("buffer_store_dwordx4") and " s%d offen" % sZst in l: drop = True
            if "pst" in Cfg.abl and l.startswith("buffer_store_dwordx4") and " s%d offen" % sPst in l: drop = True
            if "kst" in Cfg.abl and l.startswith("buffer_store_dwordx4") and (" s%d offen" % sKst0 in l or " s%d offen" % sKst1 in l): drop = True
            if drop: l = l.replace("buffer_store_dwordx4 v[", "buffer_store_dword v").replace(l[l.index(":"):l.index("]") + 1], "", 1); import re as _re; l = _re.sub(r"^(buffer_store_dword v\d+), v\d+,", r"\1, v%d," % vFlag0, l)
            if "wd" in Cfg.abl and srd(SRD_WD) in l and " lds" in l: l = "buffer_load_dword v12, v%d, %s, 0 offen" % (vFlag0, srd(SRD_WD))
            if "mfma" in Cfg.abl and l.startswith("v_mfma"): continue
            if "m16" in Cfg.abl and l.startswith("v_mfma_f32_32x32x16"):
                import re as _r
                mm = _r.match(r"v_mfma_f32_32x32x16_bf16 v\[(\d+):\d+\], (\S+), (\S+), (\S+)", l)
                d = int(mm.group(1)); tog = 8 * (len(nb) & 1)
                for o in (0, 4, 8, 12) if mm.group(4) == "0" else (tog, tog + 4):
                    nb.append("v_mfma_f32_16x16x32_bf16 %s, %s, %s, %s" % (vr(d + o, 4), mm.group(2), mm.group(3), "0" if mm.group(4) == "0" else vr(d + o, 4)))
                continue
            if "ds" in Cfg.abl and l.startswith("ds_read") and inmain: continue
            if "valu" in Cfg.abl and inmain and l.startswith(("v_mul_f32", "v_fma", "v_cvt_pk", "v_add_f32", "v_align", "v_permlane")): continue
            if "vm" in Cfg.abl and inmain and (" lds" in l or (l.startswith("buffer_load_dwordx4") and "sc1" in l)): l = "buffer_load_dword v9, v%d, %s, 0 offen" % (vFlag0, srd(SRD_X))
            if "nowait" in Cfg.abl and inmain and not seen_end:
                if l.startswith("s_waitcnt vmcnt") and "(0)" not in l: l = "s_waitcnt vmcnt(36)"
                if l == "s_barrier" or l.startswith("ds_write"): continue
                if l.startswith("buffer_load") and nvm % 8 == 7: nb.append("s_waitcnt vmcnt(36)")
                if l.startswith("buffer_"): nvm += 1
            if l == "s_endpgm" and len(nb) > 50: seen_end = True
            if l.startswith("L_end_of_main"): inmain = False
            if "own" in Cfg.abl and inmain and l.startswith("buffer_load_dwordx4") and " s%d offen" % sG[0] in l: l = "buffer_load_dword v12, v%d, %s, 0 offen" % (vFlag0, srd(SRD_X))
            if "zhalf" in Cfg.abl and inmain and l.startswith("buffer_store_dwordx4") and " s%d offen" % sZst in l and ("offset:2048" in l or "offset:3072" in l): l = "buffer_load_dword v12, v%d, %s, 0 offen" % (vFlag0, srd(SRD_X))
            if "chk" in Cfg.abl and l.startswith("s_cbranch_vccnz L_slow"): l = "s_nop 0"
            nb.append(l)
        body = nb
    bad = lintmod.lint(body)
    for b in ([] if Cfg.abl else bad): print("HAZARD", b)
    for l in body: out.append(l if l.endswith(":") else "    " + l)
    out += ['.section .rodata,"a"', ".p2align 6", ".amdhsa_kernel %s_kernel" % NAME,
            "  .amdhsa_next_free_vgpr 512", "  .amdhsa_next_free_sgpr 102", "  .amdhsa_accum_offset 256",
            "  .amdhsa_group_segment_fixed_size 0", "  .amdhsa_kernarg_size 104", "  .amdhsa_user_sgpr_count 2",
            "  .amdhsa_user_sgpr_kernarg_segment_ptr 1", "  .amdhsa_system_sgpr_workgroup_id_x 1",
            "  .amdhsa_float_denorm_mode_32 3", ".end_amdhsa_kernel"]
    return "\n".join(out) + "\n", mx

if __name__ == "__main__":
    diag = "--diag" in sys.argv
    for a in sys.argv[1:]:
        if a.startswith("--") and "=" in a:
            k, v = a[2:].split("=", 1)
            assert hasattr(Cfg, k), k
            setattr(Cfg, k, eval(v))
    txt, mx = generate(diag)
    path = sys.argv[1] if len(sys.argv) > 1 and not sys.argv[1].startswith("--") else "cdna_kernels/%s.s" % NAME
    open(path, "w").write(txt)
    if diag: print("stamps:", stamp_names)
    if Cfg.trace: open(path + ".names", "w").write("\n".join(TRACE["names"]))
    if "--usage" in sys.argv:
        import numpy as np
        np.set_printoptions(linewidth=200)
        u = np.array(Cfg._usage1)
        print(u[:232].reshape(29, 8)); print(u[232:].reshape(4, 36)); print(np.array(Cfg._usage2).reshape(14, 8))
        for k, v in Cfg._log1.items(): print(k, v[0], v[-1], len(v))
        print("vm", sorted(Cfg._vmtab)); print("vm2", sorted(getattr(Cfg, "_vmtab2", []))); print("rest", Cfg._rest)
    print("wrote", path, "lines", txt.count("\n"), "max outstanding vm", mx)
```

```python
import sys
from dsl import *
import lint as lintmod

NAME = "parallel_sum__ssm_conv_h3__glu_gated_bilinear__prompt"
S, D, F = 2048, 448, 1792

H_OFF   = 0x000000
KVT_OFF = 0x700000
Z_OFF   = 0x8C0000
ST_OFF  = 0xC40000
CS_OFF  = 0xC44000
ST2_OFF = 0xC54000
HF_OFF  = 0xC60000
KF_OFF  = 0xC80000
ZF_OFF  = 0xC90000
EP_OFF  = 0xCB8000
DG_OFF  = 0xCC0000
PX_OFF  = 0xD00000
TR_OFF  = 0x1100000
WS_SIZE = 0x1280000

WR = 0
XB = 98304
XS = 16640
KVR = 148224
CEX = XB + XS
REDA, REDB = XB + 2 * XS, 0
ZL = 16384
LDS_SIZE = 163840

SRD_X, SRD_K, SRD_V, SRD_SK, SRD_HK, SRD_DD, SRD_W1, SRD_WD, SRD_OUT, SRD_WS = [32 + 4 * i for i in range(10)]
def srd(b): return "s[%d:%d]" % (b, b + 3)
sWV, sMT, sFT, sT, sDT, sC2, sTAG, sWM, sWN = 72, 73, 74, 75, 76, 77, 78, 79, 80
sWL, sXL, sWo, sXo, sDo, sSPIN = 81, 82, 83, 84, 85, 86
sA, sB, sC, sD_ = 90, 91, 92, 93
sZt0, sZt1, sZt2 = 94, 95, 96
(sHst0, sHst1, sHfl, sKst0, sKst1, sKfl, sKld0, sKld1, sCs, sMn, sHL, sHS, sZst, sZfl, sZld, sSt2,
 sHcur, sHbase, sHlim, sPst, sPld, sHA, sHB, sKF, sHF, sZF) = range(4, 30)
sG = list(range(36, 43))
s4r = 30
sFG0 = 31

vL = 1
vA = [2, 3, 4, 5]; vA2 = [6, 7, 8, 9]; vB = [10, 11, 12, 13]
vW = [14, 15, 16, 17]; vX = [18, 19, 20, 21]; vWd = [22, 23, 24, 25]
vWdA = [26, 27]; vWdA2 = [28, 29]
vL16, vFlag0 = 30, 31
BF, AF, ACC = 80, 96, 128
T0, T1, T2, T3, T4, T5, T6, T7 = range(60, 68)
(aTag, aHsrc, aPsw, aPsr, aKst, aPollK, aCA0, aCA1, aCB, aCD, aOo, aPollH, aZst, aPollZ, aZld, aRr) = range(224, 240)
aStamp = 240
def vr(b, n): return "v[%d:%d]" % (b, b + n - 1)
def ar(b, n): return "a[%d:%d]" % (b, b + n - 1)
OOB = "0x80000000"
def stash(a, v): return "v_accvgpr_write_b32 a%d, v%d" % (a, v)
def unstash(v, a): return I("v_accvgpr_read_b32 v%d, a%d" % (v, a))

class Cfg:
    diag = False
    spin = 100000
    rot1 = "d"
    rot2 = True
    nt_kv = "nt"; nt_hk = "nt"; nt_w = ""; nt_x = ""; nt_wd = ""
    sleep = 4
    sp1 = 2; kx = 12; sp2 = 4
    prep_at = 16
    polls_at = 340
    polls_lag = 36
    kv_lag = 60
    wd_lag = 40
    nws = 4
    wd_after = {5: 1, 8: 1, 11: 1, 14: 1, 16: 1}
    hdma_u = 6
    hflag = 30
    hpoll = 60
    nfirst = 8
    zflag = 16; zpoll = 60; zlag = 30
    stamps_k = (2, 4, 7, 9, 12)
    b32 = 5; b16 = 1.5

slow_paths = []
def check(name, loads, cmp_ops, tags):
    sl = ["L_slow_%s:" % name, "s_mov_b32 s%d, 0" % sSPIN, "L_spin_%s:" % name, "s_sleep %d" % Cfg.sleeps.get(name, Cfg.sleep)]
    sl += loads + ["s_add_u32 s%d, s%d, 1" % (sSPIN, sSPIN), "s_waitcnt vmcnt(0)"] + cmp_ops
    sl += ["s_cmp_lt_u32 s%d, %d" % (sSPIN, Cfg.spin), "s_cbranch_scc0 L_res_%s" % name,
           "s_cbranch_vccnz L_spin_%s" % name, "s_branch L_res_%s" % name]
    slow_paths.append("\n".join(sl))
    return [WVM(*tags)] + [I(c) for c in cmp_ops[:-1]], [I(cmp_ops[-1]), I("s_cbranch_vccnz L_slow_%s" % name), RAW("L_res_%s:" % name)]
def flag_store(sreg, wait_tags):
    ops = [WVM(*wait_tags)] if wait_tags else []
    ops.append(VM("buffer_store_dword a%d, v%d, %s, s%d offen sc1" % (aTag, vFlag0, srd(SRD_WS), sreg), "flag"))
    return ops

stamp_n = [0]; stamp_names = []
def stamp(name=""):
    if Cfg.amp and name == Cfg.amp[0]: return [I("s_memrealtime s[88:89]"), WDS0()]
    if not Cfg.diag or (Cfg.trace and name not in ("b0", "end", "mean", "cs", "rstd")): return []
    n = stamp_n[0]; stamp_n[0] += 1
    assert n < (6 if Cfg.trace else 14)
    stamp_names.append(name)
    return [I("s_memtime s[98:99]"), WDS0(), I("v_accvgpr_write_b32 a%d, s98" % (aStamp + 2 + n))]
def diag_tail(main=False):
    if Cfg.amp and main:
        p = [WVM0(), stamp("end"), "s_memrealtime s[98:99]", WDS0()]
        p.append("s_sub_u32 s%d, s88, s100\ns_mul_i32 s%d, s%d, %d\ns_min_u32 s%d, s%d, 20000" % (sA, sA, sA, Cfg.amp[1], sA, sA))
        p.append(RAW("L_amp:"))
        p.append("s_memrealtime s[88:89]\ns_waitcnt lgkmcnt(0)\ns_sub_u32 s%d, s88, s98\ns_cmp_lt_u32 s%d, s%d\ns_cbranch_scc1 L_amp" % (sB, sB, sA))
        return p
    if not Cfg.diag: return []
    p = [WVM0(), stamp("end"), "s_memrealtime s[98:99]", WDS0()]
    p.append("v_accvgpr_write_b32 a%d, s88\nv_accvgpr_write_b32 a%d, s89" % (aStamp, aStamp + 1))
    p.append("v_mov_b32 v32, s100\nv_mov_b32 v33, s98")
    p.append("s_lshl_b32 s%d, s2, 2\ns_add_u32 s%d, s%d, s%d\ns_lshl_b32 s%d, s%d, 7\ns_add_u32 s%d, s%d, %d" % (sA, sA, sA, sWV, sA, sA, sA, sA, DG_OFF))
    for i in range(4): p.append(VM("buffer_store_dwordx4 %s, v%d, %s, s%d offen offset:%d" % (ar(aStamp + 4 * i, 4), vFlag0, srd(SRD_WS), sA, 16 * i)))
    p.append(VM("buffer_store_dwordx2 v[32:33], v%d, %s, s%d offen offset:%d" % (vFlag0, srd(SRD_WS), sA, 104)))
    if Cfg.dbg:
        p.append("s_load_dwordx2 s[44:45], s[0:1], 88\ns_waitcnt lgkmcnt(0)\ns_mov_b32 s46, 256\ns_mov_b32 s47, 0x00020000")
        p.append("s_lshl_b32 s%d, s2, 2\ns_add_u32 s%d, s%d, s%d\ns_cmp_eq_u32 s%d, %d\ns_cselect_b32 s%d, 0, 0x40000000" % (sA, sA, sA, sWV, sA, Cfg.dbg * 4, sA))
        p.append("s_sub_u32 s%d, s98, s100\nv_accvgpr_write_b32 a%d, s%d\ns_nop 1" % (sB, aStamp + 1, sB))
        for i in range(4): p.append(VM("buffer_store_dwordx4 %s, v%d, s[44:47], s%d offen offset:%d" % (ar(aStamp + 4 * i, 4), vFlag0, sA, 16 * i)))
    if Cfg.trace:
        p.append("s_lshl_b32 s%d, s2, 2\ns_add_u32 s%d, s%d, s%d\ns_mul_i32 s%d, s%d, 768\ns_add_u32 s%d, s%d, %d" % (sA, sA, sA, sWV, sA, sA, sA, sA, TR_OFF))
        p.append("v_lshlrev_b32 v32, 2, v%d" % vL)
        for i in range(3): p.append(VM("buffer_store_dword a%d, v32, %s, s%d offen offset:%d" % (248 + i, srd(SRD_WS), sA, 256 * i)))
    p.append(WVM0())
    return p

def build_srd(b, ptr, size):
    if b == SRD_WS and Cfg.ws_base:
        return ["s_add_u32 s%d, s%d, %d" % (b, ptr, Cfg.ws_base), "s_addc_u32 s%d, s%d, 0" % (b + 1, ptr + 1),
                "s_mov_b32 s%d, %d" % (b + 2, size), "s_mov_b32 s%d, 0x00020000" % (b + 3)]
    return ["s_mov_b32 s%d, s%d" % (b, ptr), "s_mov_b32 s%d, s%d" % (b + 1, ptr + 1),
            "s_mov_b32 s%d, %d" % (b + 2, size), "s_mov_b32 s%d, 0x00020000" % (b + 3)]
def tag_from_epoch(vE):
    return [I("v_readfirstlane_b32 s%d, v%d" % (sTAG, vE)), I("s_nop 3"),
            I("s_mul_i32 s%d, s%d, 1664525" % (sTAG, sTAG)), I("s_add_u32 s%d, s%d, 1013904223" % (sTAG, sTAG)),
            I("v_accvgpr_write_b32 a%d, s%d" % (aTag, sTAG))]
def advance(sreg, step, limit, base=0):
    return [I("s_add_u32 s%d, s%d, %d" % (sreg, sreg, step)),
            [I("s_cmp_eq_u32 s%d, %d" % (sreg, limit + base)), I("s_cselect_b32 s%d, %d, s%d" % (sreg, base, sreg))]]
def seqc():
    l = [(k, k, 0) for k in range(7)] + [(k + Cfg.lag - 0.5, k, 1) for k in range(7)]
    return [(k, p) for _, k, p in sorted(l)]
sWo1 = 87

def L(fmt, *a): return fmt % a

def gpref(tmpv, dst, pol=""):
    p = [L("s_cmp_eq_u32 s%d, 1\ns_cselect_b32 s%d, s20, s18\ns_cselect_b32 s%d, s21, s19", sWV, sC, sC + 1),
         L("s_cmp_eq_u32 s%d, 3\ns_cselect_b32 s%d, s22, s%d\ns_cselect_b32 s%d, s23, s%d", sWV, sC, sC, sC + 1, sC + 1),
         L("s_cmp_eq_u32 s%d, 2\ns_cselect_b32 s%d, s4, s%d\ns_cselect_b32 s%d, s5, s%d\ns_cselect_b32 s%d, 56, 49", sWV, sC, sC, sC + 1, sC + 1, sA),
         L("s_mul_i32 s%d, s2, s%d\ns_sub_u32 s%d, s%d, 1\nv_min_u32 v%d, s%d, v%d\nv_add_lshl_u32 v%d, v%d, s%d, 7", sB, sA, sA, sA, tmpv, sA, vL, tmpv, tmpv, sB),
         VM("global_load_dword v%d, v%d, s[%d:%d] %s" % (dst, tmpv, sC, sC + 1, pol), "prep")]
    return p

def prologue_common():
    p = ["s_cmp_ge_u32 s2, 256\ns_cbranch_scc1 L_exit"]
    if Cfg.diag: p.append("s_memrealtime s[100:101]\ns_memtime s[88:89]")
    elif Cfg.amp: p.append("s_memrealtime s[100:101]")
    p.append("s_load_dwordx16 s[4:19], s[0:1], 0\ns_load_dwordx8 s[20:27], s[0:1], 64\ns_load_dwordx2 s[28:29], s[0:1], 96")
    p.append(L("v_and_b32 v%d, 63, v0\nv_lshrrev_b32 v%d, 6, v0\nv_lshlrev_b32 v%d, 4, v%d", vL, T0, vL16, vL))
    p.append(L("v_readfirstlane_b32 s%d, v%d", sWV, T0))
    p.append(L("v_cmp_eq_u32 vcc, 0, v%d\nv_mov_b32 v%d, %s\nv_mov_b32 v%d, 0\nv_cndmask_b32 v%d, v%d, v%d, vcc", vL, T1, OOB, T2, vFlag0, T1, T2))
    return p

def dma_group(sL, ldsconst, vs, srd_b, sOff, tag, pol, adv):
    at = [I("s_add_u32 m0, s%d, %d" % (sL, ldsconst))]
    for q in range(4):
        op = VM("buffer_load_dwordx4 v%d, %s, s%d offen offset:%d %s lds" % (vs[q], srd(srd_b), sOff, q * 1024, pol), tag)
        at.append([I("s_nop 0"), op] if q == 0 else op)
    return at, advance(sOff, *adv)
def w_group(c):
    p = seqc()[c][1]
    return dma_group(sWL, WR + (c % 6) * 16384, vW, SRD_W1, sWo1 if p else sWo, ("W", c), Cfg.nt_w, (64 * 3584, 448 * 3584, 128 * p))
def x_group(c): return dma_group(sXL, (c % 3) * XS, vX, SRD_X, sXo, ("X", c), Cfg.nt_x, (128, 896))
WD_BASE = [XB + 256, 32768, 49152, 65536, 81920, 0, 16384]
def wd_group(u): return dma_group(sWL, WD_BASE[u], vWd, SRD_WD, sDo, ("WD", u), Cfg.nt_wd, (128 * 896, 896 * 896))
def wd_reads(u, n4):
    at = []
    for jd in range(2):
        for p in range(2):
            off = WD_BASE[u] + (n4 >> 1) * 8192 + (n4 & 1) * 2048 + p * 1024
            base = vWdA[jd]
            if off >= 0x10000: base = vWdA2[jd]; off -= 0x10000
            at.append(DS("ds_read_b64_tr_b16 %s, v%d offset:%d" % (ar(8 * (4 * u + n4) + 4 * jd + 2 * p, 2), base, off), ("WR", u, n4)))
    return at

KR, VR_, vEp, SKR, TAP, KFv, R0, R1, VF, OLO, OHI = 33, 44, 32, 52, 56, 60, 71, 72, 73, 76, 32
KQ, KHL = 81920, 157440

def gen_main():
    P = [RAW("L_main:")]
    if Cfg.scramble:
        P.append(L("s_lshr_b32 s%d, s2, 3\ns_lshr_b32 s%d, s2, 5\ns_lshl_b32 s%d, s%d, 1\ns_xor_b32 s%d, s%d, s%d\ns_and_b32 s%d, s%d, 7\ns_xor_b32 s2, s2, s%d", sA, sB, sA, sA, sA, sA, sB, sA, sA, sA))
    P.append(L("s_sub_u32 s%d, s2, 32\ns_and_b32 s%d, s2, 7\ns_lshr_b32 s%d, s%d, 3", sC2, sA, sB, sC2))
    P.append(L("s_lshr_b32 s%d, s%d, 2\ns_and_b32 s%d, s%d, 3", sDT, sB, sB, sB))
    P.append(L("s_lshl_b32 s%d, s%d, 2\ns_add_u32 s%d, s%d, s%d", sT, sA, sT, sT, sB))
    P.append(L("s_lshr_b32 s%d, s%d, 1\ns_lshl_b32 s%d, s%d, 2\ns_add_u32 s%d, s%d, s%d", sMT, sA, sMT, sMT, sMT, sMT, sB))
    P.append(L("s_and_b32 s%d, s%d, 1\ns_mul_i32 s%d, s%d, 7\ns_add_u32 s%d, s%d, s%d", sFG0, sA, sFT, sFG0, sFT, sFT, sDT))
    P.append(L("s_and_b32 s%d, s%d, 1\ns_lshr_b32 s%d, s%d, 1", sWM, sWV, sWN, sWV))
    P.append(L("s_lshl_b32 s%d, s%d, 12\ns_add_u32 s%d, s%d, %d", sWL, sWV, sXL, sWL, XB + 256))
    if Cfg.rot1 == "0": P.append(L("s_mov_b32 s%d, 0", sA))
    elif Cfg.rot1 == "2": P.append(L("s_xor_b32 s%d, s%d, s%d\ns_and_b32 s%d, s%d, 1\ns_lshl_b32 s%d, s%d, 2", sA, sMT, sFT, sA, sA, sA, sA))
    elif Cfg.rot1 == "d": P.append(L("s_add_u32 s%d, s%d, 1\ns_sub_u32 s%d, s%d, 7\ns_min_u32 s%d, s%d, s%d", sA, sDT, sC, sA, sA, sA, sC))
    elif Cfg.rot1 == "3":
        P.append(L("s_add_u32 s%d, s%d, s%d\ns_mul_i32 s%d, s%d, 3\ns_mov_b32 s%d, 0x%x\ns_lshr_b32 s%d, s%d, s%d\ns_and_b32 s%d, s%d, 7",
                   sA, sB, sDT, sA, sA, sC, sum(((0, 2, 5)[i % 3]) << (3 * i) for i in range(10)), sA, sC, sA, sA, sA))
    else:
        P.append(L("s_lshl_b32 s%d, s%d, 1\ns_add_u32 s%d, s%d, s%d\ns_sub_u32 s%d, s%d, 7\ns_min_u32 s%d, s%d, s%d", sA, sB, sA, sA, sDT, sC, sA, sA, sA, sC))
    P.append(L("s_mul_i32 s%d, s%d, %d\ns_lshl_b32 s%d, s%d, 7", sWo, sA, 64 * 3584, sXo, sA))
    P.append(L("s_add_u32 s%d, s%d, 128", sWo1, sWo))
    P.append(L("v_lshrrev_b32 v%d, 4, v%d", T0, vL))
    P.append(L("s_mul_i32 s%d, s%d, %d\ns_lshl_b32 s%d, s%d, 8\ns_add_u32 s%d, s%d, s%d", sA, sWM, 32 * 3584, sB, sFT, sA, sA, sB))
    P.append(L("v_lshrrev_b32 v%d, 3, v%d\nv_mul_u32_u24 v%d, 3584, v%d\ns_lshl_b32 s%d, s%d, 2", T1, vL, T1, T1, sB, sWN))
    P.append(L("v_and_b32 v%d, 1, v%d\nv_lshlrev_b32 v%d, 1, v%d\nv_or_b32 v%d, s%d, v%d\nv_and_b32 v%d, 7, v%d", T2, T0, T2, T2, T2, sB, T2, T3, vL))
    P.append(L("v_xor_b32 v%d, v%d, v%d\nv_lshlrev_b32 v%d, 4, v%d\nv_add3_u32 v%d, v%d, v%d, s%d", T2, T2, T3, T2, T2, vW[0], T1, T2, sA))
    for q in range(1, 4): P.append(L("v_add_u32 v%d, %d, v%d", vW[q], q * (8 * 3584 - 1024), vW[0]))
    P.append(L("s_lshl_b32 s%d, s%d, 2\ns_add_u32 s%d, s%d, s%d\ns_xor_b32 s%d, s%d, s%d\ns_xor_b32 s%d, s%d, 1\ns_mul_i32 s%d, s%d, %d", sA, sMT, sA, sA, sWV, sA, sA, sFG0, sA, sA, sA, sA, 32 * 896))
    P.append(L("v_lshrrev_b32 v%d, 3, v%d\nv_mul_u32_u24 v%d, 896, v%d\nv_and_b32 v%d, 7, v%d", T1, vL, T1, T1, T3, vL))
    P.append(L("v_xor_b32 v%d, v%d, v%d\nv_lshlrev_b32 v%d, 4, v%d\nv_add3_u32 v%d, v%d, v%d, s%d", T2, T3, T0, T2, T2, vX[0], T1, T2, sA))
    P.append(L("v_xor_b32 v%d, 64, v%d", T2, vX[0]))
    for q in range(1, 4): P.append(L("v_add_u32 v%d, %d, v%d", vX[q], q * (8 * 896 - 1024), T2 if q & 1 else vX[0]))
    P.append(WDS0())
    if Cfg.diag: P.append([I("s_memtime s[98:99]"), WDS0(), I("s_mov_b32 s89, s98")])
    P.append(L("s_cmp_ge_u32 s%d, 2\ns_cselect_b32 s%d, s20, s18\ns_cselect_b32 s%d, s21, s19", sWV, SRD_W1, SRD_W1 + 1))
    P.append(L("s_mov_b32 s%d, %d\ns_mov_b32 s%d, 0x00020000", SRD_W1 + 2, D * F * 2, SRD_W1 + 3))
    P.append(build_srd(SRD_X, 4, S * D * 2))
    if Cfg.gpref == 2: P.append(gpref(T4, 79))
    P.append(w_group(0)); P.append(x_group(0))
    if Cfg.gpref == 1: P.append(gpref(T4, 79))
    P.append(w_group(1))
    for b, ptr, size in ((SRD_K, 6, S * D * 2), (SRD_V, 8, S * D * 2), (SRD_SK, 10, D * 8), (SRD_HK, 12, D * S * 2), (SRD_DD, 14, D * 2),
                         (SRD_WD, 22, D * F * 2), (SRD_OUT, 24, S * D * 2), (SRD_WS, 28, WS_SIZE)):
        P.append(build_srd(b, ptr, size))
    P.append(L("s_mov_b32 s%d, %d\nv_mov_b32 v%d, 0", sA, EP_OFF, T4))
    P.append(VM("buffer_load_dword v%d, v%d, %s, s%d offen sc1" % (vEp, T4, srd(SRD_WS), sA), "prep"))
    if Cfg.ctouch:
        P.append(L("s_getpc_b64 s[%d:%d]\nv_lshlrev_b32 v%d, 7, v0\nv_min_u32 v%d, L_end_of_main-L_touch_base-4, v%d", sC, sC + 1, T4, T4, T4))
        P.append(RAW("L_touch_base:"))
        P.append(VM("global_load_dword v%d, v%d, s[%d:%d]" % (79, T4, sC, sC + 1), "prep"))
    if Cfg.ptouch:
        P.append(L("v_mul_u32_u24 v%d, %d, v0\nv_lshlrev_b32 v%d, 8, v%d", T4, Cfg.ptouch >> 8, T4, T4))
        P.append(VM("buffer_load_dword v%d, v%d, %s, 0 offen" % (79, T4, srd(SRD_WS)), "prep"))
        for sd in (SRD_OUT, SRD_WD, SRD_HK, SRD_DD, SRD_K, SRD_V):
            P.append(VM("buffer_load_dword v%d, v%d, %s, 0 offen" % (79, T4, srd(sd)), "prep"))
    P.append(L("s_mul_i32 s%d, s%d, %d\ns_lshl_b32 s%d, s%d, 7\ns_add_u32 s%d, s%d, s%d", sA, sFG0, 896 * 896, sB, sDT, sA, sA, sB))
    P.append(L("s_mul_i32 s%d, s%d, %d\ns_add_u32 s%d, s%d, s%d", sB, sWV, 32 * 896, sA, sA, sB))
    P.append(L("v_and_b32 v%d, 1, v%d\nv_lshlrev_b32 v%d, 2, v%d\nv_xor_b32 v%d, v%d, v%d\nv_lshlrev_b32 v%d, 4, v%d", T2, T0, T2, T2, T2, T2, T3, T2, T2))
    P.append(L("v_add3_u32 v%d, v%d, v%d, s%d", vWd[0], T1, T2, sA))
    for q in range(1, 4): P.append(L("v_add_u32 v%d, %d, v%d", vWd[q], q * (8 * 896 - 1024), vWd[0]))
    P.append(L("v_bfe_u32 v%d, v%d, 2, 2\nv_bfe_u32 v%d, v%d, 4, 1\nv_lshrrev_b32 v%d, 5, v%d", T0, vL, T1, vL, T2, vL))
    P.append(L("v_and_b32 v%d, 3, v%d\nv_lshlrev_b32 v%d, 3, v%d", T3, vL, T3, T3))
    P.append(L("v_lshl_add_u32 v%d, v%d, 3, v%d\nv_lshlrev_b32 v%d, 7, v%d\nv_lshl_add_u32 v%d, v%d, 13, v%d\nv_add_u32 v%d, v%d, v%d", T4, T2, T0, T4, T4, T4, T1, T4, T4, T4, T3))
    P.append(L("v_lshrrev_b32 v%d, 1, v%d\nv_lshl_or_b32 v%d, v%d, 1, v%d\ns_lshl_b32 s%d, s%d, 1\nv_xor_b32 v%d, s%d, v%d", T5, T0, T5, T1, T5, sA, sWM, T5, sA, T5))
    for jj in range(2):
        P.append(L("v_xor_b32 v%d, %d, v%d\nv_lshl_add_u32 v%d, v%d, 5, v%d\nv_add_u32 v%d, %d, v%d", vA[jj], jj, T5, vA[jj], vA[jj], T4, vA2[jj], 49152, vA[jj]))
    P.append(L("v_lshl_add_u32 v%d, v%d, 2, v%d\nv_lshlrev_b32 v%d, 7, v%d\ns_lshl_b32 s%d, s%d, 12", T4, T2, T0, T4, T4, sA, sWM))
    P.append(L("v_lshl_add_u32 v%d, v%d, 5, v%d\nv_add3_u32 v%d, v%d, v%d, s%d", T4, T1, T4, T4, T4, T3, sA))
    P.append(L("v_lshrrev_b32 v%d, 1, v%d\nv_xor_b32 v%d, s%d, v%d\nv_lshl_add_u32 v%d, v%d, 6, v%d", T5, T0, T5, sWM, T5, vWdA[0], T5, T4))
    P.append(L("v_xor_b32 v%d, 64, v%d\nv_add_u32 v%d, 0x10000, v%d\nv_add_u32 v%d, 0x10000, v%d", vWdA[1], vWdA[0], vWdA2[0], vWdA[0], vWdA2[1], vWdA[1]))
    P.append(L("v_and_b32 v%d, 31, v%d\nv_bfe_u32 v%d, v%d, 1, 3\nv_xor_b32 v%d, v%d, v%d", T6, vL, T1, vL, T1, T1, T2))
    P.append(L("s_lshl_b32 s%d, s%d, 13\ns_add_u32 s%d, s%d, %d\nv_lshlrev_b32 v%d, 7, v%d\nv_add_u32 v%d, s%d, v%d", sA, sWN, sA, sA, XB + 256, T0, T6, T0, sA, T0))
    for sp in range(4): P.append(L("v_xor_b32 v%d, %d, v%d\nv_lshl_add_u32 v%d, v%d, 4, v%d", vB[sp], 2 * sp, T1, vB[sp], vB[sp], T0))
    vKa, vKv, vKh = 68, 69, 70
    P.append(L("s_lshl_b32 s%d, s%d, 2\ns_add_u32 s%d, s%d, s%d\ns_mul_i32 s%d, s%d, %d\ns_lshl_b32 s%d, s%d, 7\ns_add_u32 s%d, s%d, s%d",
               sA, sT, sA, sA, sWV, sC, sA, 16 * 896, sB, sDT, s4r, sC, sB))
    P.append(L("s_add_u32 s%d, s%d, %d\ns_sub_u32 s%d, s%d, %d\ns_cmp_eq_u32 s%d, 0\ns_cselect_b32 s%d, 0x40000000, s%d", sZt1, s4r, 8 * 896 - 1024, sZt2, s4r, 8 * 896, sA, sZt2, sZt2))
    P.append(L("v_lshrrev_b32 v%d, 3, v%d\nv_mul_u32_u24 v%d, 896, v%d\nv_and_b32 v%d, 7, v%d\nv_lshl_add_u32 v%d, v%d, 4, v%d", T0, vL, R0, T0, T1, vL, R0, T1, R0))
    P.append(L("v_cmp_gt_u32 vcc, 40, v%d\nv_mov_b32 v%d, %s\ns_lshr_b32 s%d, s%d, 2\nv_cndmask_b32 v%d, v%d, v%d, vcc", vL, T0, OOB, sZt0, sWL, VF, R0, T0))
    P.append(L("s_lshl_b32 s%d, s%d, 9\nv_lshlrev_b32 v%d, 4, v%d", sD_, sDT, R1, T6))
    P.append(L("s_add_u32 s%d, s%d, %d\nv_lshl_add_u32 v%d, v%d, 2, s%d\nv_lshl_add_u32 v%d, v%d, 10, v%d\nv_add_u32 v%d, 2048, v%d", sA, sWL, KQ, T0, T6, sA, vKa, T2, T0, vKv, vKa))
    P.append(L("s_add_u32 s%d, s%d, %d\nv_lshl_add_u32 v%d, v%d, 2, s%d\nv_cmp_gt_u32 vcc, 32, v%d\ns_nop 1\nv_cndmask_b32 v%d, v%d, v%d, vcc\nv_add_u32 v%d, 640, v%d", sA, sZt0, KHL, T1, T6, sA, vL, vKh, T0, T1, vKh, vKh))
    def kd(srd_b, v, so, imm): return VM("buffer_load_dwordx4 v%d, %s, s%d offen offset:%d %s lds" % (v, srd(srd_b), so, imm, Cfg.nt_kv), "prep")
    kvl = [I("s_add_u32 m0, s%d, %d" % (sWL, KQ)), [I("s_nop 0"), kd(SRD_K, R0, s4r, 0)], kd(SRD_K, R0, sZt1, 1024),
           I("s_add_u32 m0, s%d, %d" % (sWL, KQ + 2048)), [I("s_nop 0"), kd(SRD_V, R0, s4r, 0)], kd(SRD_V, R0, sZt1, 1024),
           I("s_add_u32 m0, s%d, %d" % (sZt0, KHL)), [I("s_nop 0"), kd(SRD_K, VF, sZt2, 0)],
           VM("buffer_load_dwordx4 %s, v%d, %s, s%d offen" % (vr(SKR, 4), R1, srd(SRD_SK), sD_), "prep")]
    P.append(L("s_lshl_b32 s%d, s%d, 1\ns_add_u32 s%d, s%d, s%d\ns_lshl_b32 s%d, s%d, 12", sHS, sC2, sHS, sHS, sWN, sHS, sHS))
    P.append(L("v_and_b32 v%d, 15, v%d", T7, vL))
    P.append(L("s_lshl_b32 s%d, s%d, 18\ns_lshl_b32 s%d, s%d, 7\ns_sub_u32 s%d, s%d, s%d\ns_add_u32 s%d, s%d, %d\ns_add_u32 s%d, s%d, %d",
               sKst0, sDT, sA, sT, sKst0, sKst0, sA, sKst0, sKst0, KVT_OFF + 3968, sKst1, sKst0, 32 * 4096))
    P.append(L("s_lshl_b32 s%d, s%d, 5\ns_add_u32 s%d, s%d, s%d\ns_lshl_b32 s%d, s%d, 7\ns_add_u32 s%d, s%d, %d\ns_cmp_eq_u32 s%d, 0\ns_cselect_b32 s%d, s%d, 0x40000000",
               sA, sDT, sA, sA, sT, sA, sA, sA, sA, KF_OFF, sWV, sKfl, sA))
    P.append(L("s_lshl_b32 s%d, s%d, 1\ns_sub_u32 s%d, 7, s%d\nv_sub_u32 v%d, s%d, v%d\nv_and_b32 v%d, 7, v%d\nv_xor_b32 v%d, v%d, v%d", sA, sWV, sA, sA, T0, sA, T2, T1, vL, T0, T0, T1))
    P.append(L("v_lshlrev_b32 v%d, 4, v%d\nv_lshl_add_u32 v%d, v%d, 8, v%d\nv_lshrrev_b32 v%d, 4, v%d\nv_mul_u32_u24 v%d, 4608, v%d", T0, T0, T0, T7, T0, T3, T6, T3, T3))
    P.append(L("v_add_u32 v%d, v%d, v%d\nv_add_u32 v%d, %d, v%d", T0, T0, T3, T0, KVR, T0) + "\n" + stash(aPsw, T0))
    P.append(L("v_lshrrev_b32 v%d, 3, v0\nv_bfe_u32 v%d, v0, 4, 3\nv_xor_b32 v%d, v%d, v%d\nv_lshlrev_b32 v%d, 4, v%d", T0, T3, T3, T3, T1, T3, T3))
    P.append(L("v_lshl_add_u32 v%d, v%d, 7, v%d\nv_add_u32 v%d, %d, v%d", T3, T0, T3, T3, KVR, T3) + "\n" + stash(aPsr, T3))
    P.append(L("v_lshlrev_b32 v%d, 12, v%d\nv_lshl_add_u32 v%d, v%d, 4, v%d", T0, T0, T0, T1, T0) + "\n" + stash(aKst, T0))
    U0, U1, U2, U3, U4, U5, U6, U7 = range(88, 96)
    Q = []
    Q.append(L("v_lshrrev_b32 v%d, 5, v%d\nv_lshrrev_b32 v%d, 4, v%d\nv_and_b32 v%d, 31, v%d\nv_and_b32 v%d, 15, v%d", U2, vL, U5, vL, U6, vL, U7, vL))
    Q.append(L("s_mov_b32 s%d, s%d", sA, sDT))
    Q.append(L("s_mul_i32 s%d, s%d, %d\ns_lshl_b32 s%d, s%d, 13", sDo, sA, 128 * 896, sHcur, sA))
    Q.append(L("s_lshl_b32 s%d, s%d, 1\ns_add_u32 s%d, s%d, s%d", sA, sMT, sA, sA, sWN))
    Q.append(L("s_lshl_b32 s%d, s%d, 1\ns_add_u32 s%d, s%d, s%d", sB, sFT, sB, sB, sWM))
    Q.append(L("s_lshl_b32 s%d, s%d, 9\ns_add_u32 s%d, s%d, %d", sMn, sA, sMn, sMn, ST_OFF))
    Q.append(L("s_lshl_b32 s%d, s%d, 8\ns_add_u32 s%d, s%d, s%d\ns_xor_b32 s%d, s%d, 256", sC, sFG0, sZF, sMn, sC, sMn, sZF))
    Q.append(L("s_lshl_b32 s%d, s%d, 2\ns_add_u32 s%d, s%d, s%d\ns_lshl_b32 s%d, s%d, 10\ns_add_u32 s%d, s%d, %d", sCs, sFT, sCs, sCs, sWM, sCs, sCs, sCs, sCs, CS_OFF))
    Q.append(L("s_mul_i32 s%d, s%d, 224\ns_lshl_b32 s%d, s%d, 2\ns_add_u32 s%d, s%d, s%d\ns_lshl_b32 s%d, s%d, 10\ns_add_u32 s%d, s%d, %d",
               sHst0, sA, sC, sB, sHst0, sHst0, sC, sHst1, sHst0, sHst0, sHst1, 112 * 1024))
    Q.append(L("s_mul_i32 s%d, s%d, %d\ns_sub_u32 s%d, s%d, s%d\ns_add_u32 s%d, s%d, s%d", sC, sFG0, 112 * 1024, sHst0, sHst0, sC, sHst1, sHst1, sC))
    Q.append(L("s_lshl_b32 s%d, s%d, 5\ns_add_u32 s%d, s%d, s%d\ns_lshl_b32 s%d, s%d, 7\ns_add_u32 s%d, s%d, %d", sHfl, sA, sHfl, sHfl, sB, sHfl, sHfl, sHfl, sHfl, HF_OFF))
    Q.append(L("s_mov_b32 s%d, %d\ns_and_b32 s%d, s%d, 0xffffffe0\nv_add_lshl_u32 v%d, v%d, s%d, 7", sKF, KF_OFF, sA, sC2, U0, U6, sA) + "\n" + stash(aPollK, U0))
    Q.append(L("s_lshl_b32 s%d, s%d, 13\ns_add_u32 s%d, s%d, %d\ns_add_u32 s%d, s%d, 4096", sKld0, sC2, sKld0, sKld0, KVT_OFF, sKld1, sKld0))
    Q.append(L("s_mul_i32 s%d, s%d, %d\ns_add_u32 s%d, s%d, %d", sHL, sWN, XS, sHL, sHL, XB + XS))
    Q.append(("mark", "q1"))
    Q.append(L("v_lshrrev_b32 v%d, 7, v0\nv_mul_u32_u24 v%d, 4608, v%d\nv_and_b32 v%d, 127, v0\nv_lshl_add_u32 v%d, v%d, 2, v%d\nv_add_u32 v%d, %d, v%d\nv_mov_b32 v%d, 0", U3, U3, U3, U4, U3, U4, U3, U3, KVR + 4096, U3, U4))
    Q.append(DS("ds_write_b32 v%d, v%d" % (U3, U4), "kvw"))
    Q.append(L("v_and_b32 v%d, 3, v%d\nv_mul_u32_u24 v%d, 4160, v%d\nv_lshrrev_b32 v%d, 2, v%d\nv_lshl_add_u32 v%d, v%d, 3, v%d\nv_lshl_add_u32 v%d, v%d, 4, v%d", U3, U7, U3, U3, U0, U7, U3, U0, U3, U3, U5, U3))
    Q.append(L("s_lshl_b32 s%d, s%d, 8\ns_add_u32 s%d, s%d, s%d\nv_add_u32 v%d, s%d, v%d", sC, sWM, sC, sC, sHL, U3, sC, U3) + "\n" + stash(aCA0, U3))
    Q.append(L("v_mul_u32_u24 v%d, 4160, v%d\nv_lshl_add_u32 v%d, v%d, 2, v%d\nv_add_u32 v%d, s%d, v%d", U3, U5, U3, U7, U3, U3, sHL, U3) + "\n" + stash(aCA1, U3))
    Q.append(L("s_mul_i32 s%d, s%d, 4608\ns_add_u32 s%d, s%d, %d\ns_lshl_b32 s%d, s%d, 8\ns_add_u32 s%d, s%d, s%d\ns_add_u32 s%d, s%d, 480", sA, sWN, sA, sA, KVR, sC, sWM, sB, sA, sC, sB, sB))
    Q.append(L("v_lshlrev_b32 v%d, 5, v%d\nv_sub_u32 v%d, s%d, v%d\nv_lshl_add_u32 v%d, v%d, 4, v%d", U4, U7, U0, sB, U4, U0, U5, U0) + "\n" + stash(aCB, U0))
    Q.append(L("s_lshl_b32 s%d, s%d, 3\ns_sub_u32 s%d, s%d, s%d\ns_add_u32 s%d, s%d, %d", sC, sC, sB, sA, sC, sB, sB, 4088 - 1536))
    Q.append(L("v_sub_u32 v%d, s%d, v%d\nv_lshlrev_b32 v%d, 3, v%d\nv_sub_u32 v%d, v%d, v%d", U0, sB, U4, U4, U5, U0, U0, U4) + "\n" + stash(aCD, U0))
    Q.append(("mark", "q2"))
    Q.append(L("v_lshlrev_b32 v%d, 6, v%d\nv_lshl_add_u32 v%d, v%d, 4, v%d", U0, U7, U0, U5, U0) + "\n" + stash(aZst, U0))
    Q.append(L("s_lshl_b32 s%d, s%d, 1\ns_lshl_b32 s%d, s%d, 12\ns_add_u32 s%d, s%d, s%d\ns_add_u32 s%d, s%d, %d", sZst, sHS, sA, sWM, sZst, sZst, sA, sZst, sZst, Z_OFF))
    Q.append(L("s_lshl_b32 s%d, s%d, 1\ns_add_u32 s%d, s%d, s%d\ns_lshl_b32 s%d, s%d, 1\ns_add_u32 s%d, s%d, s%d", sA, sMT, sA, sA, sWN, sA, sA, sA, sA, sFG0))
    Q.append(L("s_lshl_b32 s%d, s%d, 1\ns_add_u32 s%d, s%d, s%d", sB, sDT, sB, sB, sWM))
    Q.append(L("s_lshl_b32 s%d, s%d, 18\ns_lshl_b32 s%d, s%d, 7\ns_add_u32 s%d, s%d, s%d\ns_add_u32 s%d, s%d, %d", sZld, sB, sC, sA, sZld, sZld, sC, sZld, sZld, Z_OFF))
    Q.append(L("s_lshl_b32 s%d, s%d, 9\ns_add_u32 s%d, s%d, %d", sSt2, sA, sSt2, sSt2, ST2_OFF))
    Q.append(L("s_and_b32 s%d, s%d, 0xfffffffe\ns_mul_i32 s%d, s%d, %d\ns_mul_i32 s%d, s%d, %d\ns_sub_u32 s%d, %d, s%d", sC, sA, sHbase, sC, 112 * 1024, sHB, sFG0, 112 * 1024, sHA, 112 * 1024, sHB))
    Q.append(L("s_mul_i32 s%d, s%d, %d\ns_lshl_b32 s%d, s%d, 6\ns_add_u32 s%d, s%d, s%d", sA, sA, 32 * 896, sC, sB, sA, sA, sC))
    Q.append(L("v_mul_u32_u24 v%d, 896, v%d\nv_lshlrev_b32 v%d, 4, v%d\nv_add3_u32 v%d, v%d, v%d, s%d", U0, U6, U1, U2, U0, U0, U1, sA) + "\n" + stash(aOo, U0))
    Q.append(L("v_lshrrev_b32 v%d, 2, v%d\nv_lshl_add_u32 v%d, v%d, 3, v%d\nv_lshlrev_b32 v%d, 6, v%d\nv_and_b32 v%d, 1, v%d\nv_lshl_add_u32 v%d, v%d, 5, v%d", U0, U7, U0, U2, U0, U0, U0, U1, U5, U0, U1, U0))
    Q.append(L("v_and_b32 v%d, 3, v%d\nv_lshl_add_u32 v%d, v%d, 3, v%d\ns_lshr_b32 s%d, s%d, 1\ns_add_u32 s%d, s%d, %d\nv_add_u32 v%d, s%d, v%d", U1, U7, U0, U1, U0, sZfl, sWL, sZfl, sZfl, ZL, U0, sZfl, U0) + "\n" + stash(aPollZ, U0))
    Q.append(L("v_lshrrev_b32 v%d, 3, v%d\nv_lshlrev_b32 v%d, 13, v%d\nv_and_b32 v%d, 7, v%d\nv_lshl_add_u32 v%d, v%d, 4, v%d", U0, vL, U0, U0, U1, vL, U0, U1, U0) + "\n" + stash(aZld, U0))
    Q.append(L("v_lshlrev_b32 v%d, 10, v%d\nv_lshl_add_u32 v%d, v%d, 4, v%d\nv_add_u32 v%d, s%d, v%d", U0, U2, U0, U6, U0, U0, sWL, U0) + "\n" + stash(aRr, U0))
    Q.append(L("s_lshl_b32 s%d, s%d, 2\ns_add_u32 s%d, s%d, s%d\ns_mul_i32 s%d, s%d, 3072\ns_add_u32 s%d, s%d, %d", sA, sC2, sA, sA, sWV, sPld, sA, sPld, sPld, PX_OFF))
    Q.append(L("s_xor_b32 s%d, s%d, 4\ns_mul_i32 s%d, s%d, 3072\ns_add_u32 s%d, s%d, %d", sA, sA, sPst, sA, sPst, sPst, PX_OFF))
    Q.append(L("s_mov_b32 s%d, %d", sHF, HF_OFF))
    Q.append(L("s_mul_i32 s%d, s%d, 14\ns_add_u32 s%d, s%d, s%d", sB, sFG0, sB, sB, sWM))
    Q.append(L("s_lshl_b32 s%d, s%d, 12\ns_add_u32 s%d, s%d, s%d\ns_add_u32 s%d, s%d, %d\ns_add_u32 s%d, s%d, s%d",
               sC, sB, sHbase, sHbase, sC, sHlim, sHbase, 56 * 1024, sHcur, sHbase, sHcur))
    Q.append(L("s_lshl_b32 s%d, s%d, 1\ns_add_u32 s%d, s%d, s%d\ns_lshl_b32 s%d, s%d, 5\ns_add_u32 s%d, s%d, s%d", sC, sMT, sC, sC, sWN, sC, sC, sA, sB, sC))
    Q.append(L("v_min_u32 v%d, 6, v%d\nv_lshlrev_b32 v%d, 1, v%d\nv_add_lshl_u32 v%d, v%d, s%d, 7", U0, vL, U0, U0, U0, U0, sA) + "\n" + stash(aPollH, U0))
    qparts = [[]]
    for it in Q:
        if isinstance(it, tuple): qparts.append([])
        else: flatten(it, qparts[-1])
    RQ = Cfg.rq
    SQC = seqc(); posa = {k: c for c, (k, p) in enumerate(SQC) if p == 0}
    C1 = max(Cfg.c1, posa[6] + 1)
    frs = []
    seq = []
    def addfrag(c, s4, jj):
        frs.append((c, s4, jj)); seq.extend([("m", len(frs) - 1, 0), ("m", len(frs) - 1, 1)])
    for c in range(14 - RQ):
        if c == C1: seq.extend(("c", t) for t in range(4))
        for s4 in range(4):
            for jj in range(2): addfrag(c, s4, jj)
    for jj in range(2):
        for c in range(14 - RQ, 14):
            for s4 in range(4): addfrag(c, s4, jj)
        seq.extend([("c", 4 + 2 * jj), ("c", 5 + 2 * jj)])
    assert len(seq) == 232 and C1 < 14 - RQ, (C1, RQ)
    use = {}; ctick = {}
    for n, e in enumerate(seq):
        if e[0] == "m": use.setdefault(e[1], 2 * n)
        else: ctick[e[1]] = 2 * n
    first = {}
    for i, (c, s4, jj) in enumerate(frs): first.setdefault(c, use[i])
    TB = {c: first[c] - Cfg.blead - (8 if c == C1 else 0) for c in range(1, 14)}
    A_CONV = 2 * 232
    def barr(i): return TB[i]
    def conv_anchor(g): return A_CONV + g
    T_BC = A_CONV - Cfg.bc; T_BW = conv_anchor(Cfg.bw)
    def xread(ks, nt): return DS("ds_read_b128 %s, v%d offset:%d" % (ar(8 * ks + 4 * nt, 4), vB[ks & 3], ((ks >> 2) % 3) * XS + nt * 4096), ("FX", ks))
    def aread(i):
        c, s4, jj = frs[i]; slot = c % 6
        base = vA[jj] if slot < 3 else vA2[jj]
        return [DS("ds_read_b64_tr_b16 %s, v%d offset:%d" % (vr(AF + 4 * (i & 7) + 2 * p, 2), base, (slot % 3) * 16384 + s4 * 2048 + p * 512), ("FA", i)) for p in range(2)]
    def freads(i):
        c, s4, jj = frs[i]
        k, p = SQC[c]
        return ([xread(4 * k + s4, 0), xread(4 * k + s4, 1)] if (p == 0 and jj == 0) else []) + aread(i)
    qall = qparts[0] + qparts[1] + qparts[2]
    P.append(qall[:Cfg.q_pro])
    if Cfg.x1_pro: P.append(x_group(1))
    P.append([WVM(("W", 0), ("X", 0)), I("s_barrier")])
    P.append(freads(0) + freads(1))
    P.append(stamp("b0"))
    sS = Stream("setup")
    sS.addall(qall[Cfg.q_pro:] + [I("s_nop 0")], by=Cfg.setup_by, key="setup")
    cur = []
    for j in range(7):
        cur.append(I("s_mov_b32 s%d, s%d" % (sG[j], sHcur)))
        if j < 6: cur += [I("s_add_u32 s%d, s%d, 8192" % (sHcur, sHcur)), [I("s_cmp_eq_u32 s%d, s%d" % (sHcur, sHlim)), I("s_cselect_b32 s%d, s%d, s%d" % (sHcur, sHbase, sHcur))]]
    sS.addall(cur, after=("kvl", 2), by=200)
    sF = Stream("frag", cap=2)
    for i in range(2, 112):
        c = frs[i][0]
        ea = max(TB.get(c, 0), use[i - 8] + 4 if i >= 8 else 0)
        by = use[i] - 6
        if c + 1 <= 14 - RQ: by = min(by, TB[c + 1] - 2)
        by = min(by, T_BC - 2)
        assert ea <= by, (i, ea, by)
        sF.addall(freads(i), at=ea, by=by)
    sD = Stream("dma")
    def addgrp(g, at, sp, key=None, by=None):
        at_, adv = g
        if key == ("w", 5): sD.add(WDS("kr"), after=("kread", 2))
        sps = sp if isinstance(sp, tuple) else (sp,) * 4
        sD.add(at_[0], at=at, space=max(sps[0] - 2, 0)); sD.add(at_[1])
        for i, a in enumerate(at_[2:]): sD.add(a, space=sps[i + 1], key=key if i == 2 else None, by=by)
        for a in adv: sD.add(a)
    sR = Stream("wdread", cap=2)
    vHs = vX[0]
    WD_AT = [barr(posa[6] + 1)] + [barr(c + 1) if c + 1 <= 14 - RQ else T_BC for c in range(8, 14)]
    srt = sorted(zip(WD_AT, [XB + 256, 32768, 49152, 65536, 81920, 0, 16384]), key=lambda z: z[0])
    WD_AT = [z[0] for z in srt]; WD_BASE[:] = [z[1] for z in srt]
    order = []
    for c in range(1, 14):
        k, p = SQC[c]
        if p == 0 and not (k == 1 and Cfg.x1_pro): order.append(("X", k))
        if c >= 2: order.append(("W", c))
    order.insert(Cfg.kpos, ("K", 0))
    KX = order.index(("W", Cfg.plan_from)) if Cfg.plan_from < 14 else len(order)
    order += [("D", u) for u in Cfg.d_order]
    for n, (kind, i) in enumerate(order):
        sp = (Cfg.sp1 if n < Cfg.kx else Cfg.sp2) if n < KX else 0
        if n == KX: nplain = len(sD.items)
        if kind == "W": addgrp(w_group(i), max(barr(i - 5) if i >= 6 else 0, Cfg.w_min.get(i, 0), barr(i) - Cfg.lead), sp, key=("w", i), by=barr(i) - Cfg.minlead)
        elif kind == "X": addgrp(x_group(i), max(barr(posa[i - 3] + 1) if i >= 3 else 0, barr(posa[i]) - Cfg.lead - 16), sp, by=barr(posa[i]) - Cfg.minlead)
        elif kind == "K": sD.addall(kvl, key="kvl")
        elif kind == "H": pass
        else:
            addgrp(wd_group(i), max(WD_AT[i], Cfg.wd_min[i]), 0, by=T_BW - 2 * Cfg.minlead)
    for f in range(Cfg.wr_pre): sR.addall(wd_reads(f % 7, f // 7), at=T_BW, by=conv_anchor(143))
    sP = Stream("prep")
    def unp(dst, src, hi): return I("v_and_b32 v%d, 0xffff0000, v%d" % (dst, src)) if hi else I("v_lshlrev_b32 v%d, 16, v%d" % (dst, src))
    rd = [DS("ds_read_b32 v%d, v%d" % (KR, vKh), "kr"), DS("ds_read2_b32 %s, v%d offset0:32 offset1:64" % (vr(KR + 1, 2), vKh), "kr")]
    rd += [DS("ds_read2_b32 %s, v%d offset0:%d offset1:%d" % (vr(KR + 3 + o, 2), vKa, 32 * o, 32 * o + 32), "kr") for o in range(0, 8, 2)]
    rd += [DS("ds_read2_b32 %s, v%d offset0:%d offset1:%d" % (vr(VR_ + o, 2), vKv, 32 * o, 32 * o + 32), "kr") for o in range(0, 8, 2)]
    sP.addall([[WVM("prep"), rd[0]]] + rd[1:], after=("kvl", Cfg.prep_lag), key="kread", by=barr(5) - Cfg.minlead - 12)
    at = tag_from_epoch(vEp)
    for b in range(2):
        for i in range(4): at.append(unp(TAP + i, SKR + 2 * b + (i >> 1), i & 1))
        for a in range(11): at.append([WDS("kr"), unp(KFv + a, KR + a, b)] if (a, b) == (0, 0) else unp(KFv + a, KR + a, b))
        out = OHI if b else OLO
        for w in range(4):
            for (o, R) in ((7 - 2 * w, R0), (6 - 2 * w, R1)):
                at.append(I("v_mul_f32 v%d, v%d, v%d" % (R, KFv + o, TAP + 3)))
                for i in (2, 1, 0): at.append(I("v_fmac_f32 v%d, v%d, v%d" % (R, KFv + o + 3 - i, TAP + i)))
                at.append(unp(VF, VR_ + o, b))
                at.append(I("v_mul_f32 v%d, v%d, v%d" % (R, R, VF)))
            at.append(I("v_cvt_pk_bf16_f32 v%d, v%d, v%d" % (out + w, R0, R1)))
    at.append(unstash(R0, aPsw))
    at.append(DS("ds_write_b128 v%d, %s" % (R0, vr(OLO, 4)), "psw"))
    at.append(DS("ds_write_b128 v%d, %s offset:128" % (R0, vr(OHI, 4)), "psw"))
    B_psw = Cfg.b_psw
    sP.addall(at, by=barr(B_psw) - 2)
    at = [unstash(R1, aPsr), DS("ds_read_b128 %s, v%d" % (vr(36, 4), R1), "psr"), DS("ds_read_b128 %s, v%d offset:4608" % (vr(40, 4), R1), "psr"),
          unstash(R0, aKst)]
    sP.addall(at, at=barr(B_psw), by=barr(B_psw) + 4)
    sP.add([WDS("psr"), VM("buffer_store_dwordx4 %s, v%d, %s, s%d offen sc1" % (vr(36, 4), R0, srd(SRD_WS), sKst0), "kvst")], at=barr(B_psw) + 10, by=barr(B_psw) + 16)
    sP.add(VM("buffer_store_dwordx4 %s, v%d, %s, s%d offen sc1" % (vr(40, 4), R0, srd(SRD_WS), sKst1), "kvst"), by=barr(B_psw) + 20, key="prepdone")
    B_kvst = B_psw + Cfg.kv_ack
    sP.add(flag_store(sKfl, []), at=barr(B_kvst), by=barr(B_kvst))
    CSF, MB, vPk, vPo, vCo, vMo, KV, vKw, vU0, vU1, vU2 = 32, 48, 56, 57, 58, 59, 14, 60, 4, 5, 8
    assert min(Cfg.cs_at, Cfg.polls_at, Cfg.t_at) > barr(B_psw) + 22
    sQ = Stream("cs")
    ldC = ["buffer_load_dwordx4 %s, v%d, %s, s%d offen offset:%d sc1" % (vr(CSF + 4 * jj, 4), vCo, srd(SRD_WS), sCs, 2048 * (jj >> 1) + 512 * (jj & 1)) for jj in range(4)]
    ldM = ["buffer_load_dwordx2 %s, v%d, %s, s%d offen sc1" % (vr(MB + 4 * nt, 2), vMo, srd(SRD_WS), sZF if nt else sMn) for nt in range(2)]
    sQ.addall([I("v_and_b32 v%d, 511, v%d" % (vCo, vL16)), I("v_lshrrev_b32 v%d, 1, v%d" % (vMo, vCo))] + [VM(x, "cs") for x in ldC[:2] + ldM], at=Cfg.cs_at - 2, by=Cfg.cs_at + 60)
    cmp_ops = ["v_xor_b32 v%d, s%d, v%d" % (vU0, sTAG, CSF + 3), "v_xor_b32 v%d, s%d, v%d" % (vU1, sTAG, CSF + 7), "v_xor_b32 v%d, s%d, v%d" % (vU2, sTAG, MB + 1),
               "v_or3_b32 v%d, v%d, v%d, v%d" % (vU0, vU0, vU1, vU2), "v_xor_b32 v%d, s%d, v%d" % (vU1, sTAG, MB + 5), "v_or_b32 v%d, v%d, v%d" % (vU0, vU0, vU1),
               "v_cmp_ne_u32 vcc, 0, v%d" % vU0]
    c1, c2 = check("C", ldC[:2] + ldM, cmp_ops, ["cs"])
    T_CORR = ctick[0]
    sQ.addall(c1, at=T_CORR - Cfg.cs_chk, by=T_CORR - 14)
    sQ.add(c2, by=T_CORR - 14)
    at = [I("v_mov_b32 v%d, 0" % (CSF + 4 * jj + 3)) for jj in range(2)]
    for nt in range(2):
        b = MB + 4 * nt
        at.append(I("v_xor_b32 v%d, 0x80000000, v%d" % (b, b)))
        at.append([I("v_cmp_gt_u32 vcc, 32, v%d" % vL), I("v_mov_b32 v%d, 0" % (b + 2)), I("v_mov_b32 v%d, 0" % (b + 3)), I("v_cndmask_b32 v%d, 0, v%d, vcc" % (b, b))])
        at.append(I("v_lshrrev_b32 v%d, 16, v%d" % (b + 1, b)))
        at.append(I("v_or_b32 v%d, v%d, v%d" % (b, b, b + 1)))
    sQ.addall(at, by=T_CORR - 6)
    sQ.addall([VM(x, "cs2") for x in ldC[2:]], at=Cfg.cs2_at, by=Cfg.cs2_at + 24)
    cmp_ops = ["v_xor_b32 v%d, s%d, v%d" % (vU0, sTAG, CSF + 11), "v_xor_b32 v%d, s%d, v%d" % (vU1, sTAG, CSF + 15), "v_or_b32 v%d, v%d, v%d" % (vU0, vU0, vU1), "v_cmp_ne_u32 vcc, 0, v%d" % vU0]
    c1, c2 = check("C2", ldC[2:], cmp_ops, ["cs2"])
    sQ.addall(c1, at=ctick[4] - 14, by=ctick[4] - 10)
    sQ.add(c2, by=ctick[4] - 10)
    sQ.addall([I("v_mov_b32 v%d, 0" % (CSF + 4 * jj + 3)) for jj in range(2, 4)], by=ctick[4] - 6)
    sK = Stream("kv")
    if Cfg.m_touch:
        sK.addall([[I("s_lshl_b32 s%d, s%d, 2" % (sZt1, sC2)), I("s_add_u32 s%d, s%d, s%d" % (sZt1, sZt1, sWV)), I("s_mul_i32 s%d, s%d, %d" % (sZt1, sZt1, 14 * 128))],
                   I("v_min_u32 v%d, 13, v%d" % (vPk, vL)), I("v_lshlrev_b32 v%d, 7, v%d" % (vPk, vPk)),
                   VM("buffer_load_dword v%d, v%d, %s, s%d offen" % (vPk, vPk, srd(SRD_WD), sZt1), "mt")], at=Cfg.m_touch, by=Cfg.m_touch + 12)
    if Cfg.kv_alt: KV = 10 - 10 + 62
    ldK = "buffer_load_dword v%d, v%d, %s, s%d offen sc1" % (vPk, vPo, srd(SRD_WS), sKF)
    sK.addall([unstash(vPo, aPollK), VM(ldK, "pollK")], at=Cfg.polls_at - 2, by=Cfg.polls_at + 8)
    c1, c2 = check("K", [ldK], ["v_cmp_ne_u32 vcc, s%d, v%d" % (sTAG, vPk)], ["pollK"])
    pc = Cfg.polls_at + Cfg.polls_lag
    sK.add([c1, c2], at=pc, by=pc)
    sK.add(I("v_lshlrev_b32 v%d, 4, v0" % vKw), after=("hcdone" if Cfg.kv_alt else ("w", 13), 4 if Cfg.kv_alt else 0))
    sK.add(VM("buffer_load_dwordx4 %s, v%d, %s, s%d offen sc1" % (vr(KV, 4), vKw, srd(SRD_WS), sKld0), "kvld"))
    sK.add(VM("buffer_load_dwordx4 %s, v%d, %s, s%d offen sc1" % (vr(KV + 4, 4), vKw, srd(SRD_WS), sKld1), "kvld"), by=pc + 24)
    sK.add(I("v_add_u32 v%d, %d, v%d" % (vKw, KVR, vKw)))
    sK.add([WVM("kvld"), DS("ds_write_b128 v%d, %s" % (vKw, vr(KV, 4)), "kvw")], at=min(pc + Cfg.kv_lag, T_BC - 14), by=T_BC - 12)
    sK.add(DS("ds_write_b128 v%d, %s offset:4608" % (vKw, vr(KV + 4, 4)), "kvw"), by=T_BC - 8, space=4)
    RV, SA_, SB_, vHw = 70, 62, 88, 61
    sG_ = Stream("hc")
    sG_.add([I("s_lshl_b32 s%d, s%d, 11" % (sZt0, sWM)), I("v_lshl_add_u32 v%d, v%d, 1, s%d" % (vHw, vL16, sZt0))], after=("prepdone", 4), at=Cfg.t_at)
    sG_.addall([VM("buffer_load_dwordx4 %s, v%d, %s, s%d offen %s" % (vr(RV, 4), vHw, srd(SRD_HK), sHS, Cfg.nt_hk), "hkl"),
                VM("buffer_load_dwordx4 %s, v%d, %s, s%d offen offset:16 %s" % (vr(RV + 4, 4), vHw, srd(SRD_HK), sHS, Cfg.nt_hk), "hkl"),
                VM("buffer_load_dwordx2 %s, v%d, %s, s%d offen offset:32 %s" % (vr(RV + 8, 2), vHw, srd(SRD_HK), sHS, Cfg.nt_hk), "hkl")], by=Cfg.t_at + 60)
    sG_.addall([I("v_and_b32 v9, 15, v%d" % vL), I("v_lshrrev_b32 v69, 4, v%d" % vL), I("v_lshl_add_u32 v9, v9, 1, v69"), I("v_subrev_u32 v9, 15, v9"),
                I("v_lshlrev_b32 v9, 1, v9"), I("v_add_u32 v69, 2, v9"),
                VM("buffer_load_ushort v9, v9, %s, s%d offen" % (srd(SRD_HK), sHS), "hkl"), VM("buffer_load_ushort v69, v69, %s, s%d offen" % (srd(SRD_HK), sHS), "hkl")])
    sG_.add(I("v_add_u32 v%d, s%d, v%d" % (vHw, sHL, vHw)), after=("setup", 2))
    def hw(c, base, tag="kvw"): return [DS("ds_write_b128 v%d, %s offset:%d" % (vHw, vr(base + 4 * q, 4), 4160 * c + 32 + 16 * q), tag) for q in range(2)]
    def al(dst, k): return I("v_alignbyte_b32 v%d, v%d, v%d, 2" % (dst, RV + k + 1, RV + k))
    mv = [I("v_mov_b32 v%d, v%d" % (SB_ + k, RV + 1 + k)) for k in range(8)]
    w1, w3, w0, w2 = hw(1, SB_, "hw1"), hw(3, RV + 2), hw(0, SA_), hw(2, SB_)
    at = [[WVM("hkl"), I("v_lshl_or_b32 v9, v69, 16, v9")]] + mv[0:4] + [w1[0]] + mv[4:] + [w1[1]] + [al(SA_ + k, k) for k in range(4)] + [w3[0]] + [al(SA_ + k, k) for k in range(4, 8)] + [w3[1], w0[0]]
    at += [[WDS("hw1"), al(SB_, 1)]] + [al(SB_ + k, k + 1) for k in range(1, 4)] + [w0[1]] + [al(SB_ + k, k + 1) for k in range(4, 8)] + w2
    at += [unstash(vHw, aCA1), DS("ds_write_b32 v%d, v9" % vHw, "kvw")]
    HC_AT = max(Cfg.hc_at, barr(posa[5] + 1))
    prevw = False
    for i, x in enumerate(at):
        isw = isinstance(x, Op) and x.kind == "ds" and "b128" in x.text
        sG_.add(x, at=HC_AT if i == 0 else None, space=4 if (isw and prevw) else 0, by=Cfg.hc_by, key="hcdone" if i == len(at) - 1 else None)
        prevw = isw
    sE = Stream("epi")
    vCA0, vCA1, vCB, vCD, vOo, vDv, vHo, vHp, vHt, vHA, vHB = 14, 15, 16, 17, 19, 20, 21, 13, 18, 10, 11
    KEEP = [136, 152, 128, 132, 140, 144, 148, 156]
    def hflag(word, tags):
        return [WVM(*tags), VM("buffer_store_dword a%d, v%d, %s, s%d offen offset:%d sc1" % (aTag, vFlag0, srd(SRD_WS), sHfl, 4 * word), "flag")]
    for tl in range(8):
        jj, nt = tl >> 1, tl & 1
        a = ACC + tl * 16
        at = [I("v_mul_f32 v%d, v%d, v%d" % (a + r, a + r, a + r + 8)) for r in range(8)]
        at += [I("v_cvt_pk_bf16_f32 v%d, v%d, v%d" % (KEEP[tl] + w, a + 2 * w, a + 2 * w + 1)) for w in range(4)]
        at.append(VM("buffer_store_dwordx4 %s, v%d, %s, s%d offen offset:%d %s" % (vr(KEEP[tl], 4), vL16, srd(SRD_WS), sHst1 if nt else sHst0, jj * 1024, Cfg.hpol), ("hst", 0 if tl < 4 else (tl >> 1) - 1)))
        ea = ctick[tl] + 4 + (Cfg.hs_gap * tl if tl < 4 else 0)
        if ea >= A_CONV: ea += 1
        sE.addall(at, at=ea, by=ea + 20 if tl < 6 else conv_anchor(Cfg.epi_by), key=("epi", tl))
    sL_ = Stream("flags")
    sL_.add(hflag(0, [("hst", 0)]), at=Cfg.hflag0, by=Cfg.hflag0, after=(("epi", 3), 1))
    if Cfg.st3: sE.add(hflag(1, [("hst", 1)]), at=conv_anchor(Cfg.hflagm), by=conv_anchor(Cfg.hflagm))
    if Cfg.hflag1 < 144: sE.add(hflag(2, [("hst", 2)]), at=conv_anchor(Cfg.hflag1), by=conv_anchor(Cfg.hflag1))
    CACC = 32
    def cA(dd, r): return 192 + 8 * r if dd & 1 else (160 + 8 * r if r < 4 else 96 + 8 * (r - 4))
    def cB(dd, m): return cA(dd, m) + 4
    def conv_reads(dd, r):
        at = [DS("ds_read_b64 %s, v%d offset:%d" % (vr(cA(dd, r) + half * 2, 2), vCA0, 64 * dd + 512 * r + 8 * half), ("C", dd, r)) for half in range(2)]
        at.append(DS("ds_read_b128 %s, v%d offset:%d" % (vr(cB(dd, r), 4), vCB, 3584 - 512 * r + 64 * dd), ("C", dd, r)))
        return at
    pairs = sorted([(r, m) for r in range(8) for m in range(8 - r)], key=lambda p: (max(p), p))
    first_use = {}
    for i, p in enumerate(pairs): first_use.setdefault(max(p), i)
    sC_ = Stream("convrd", cap=3)
    sC_.addall([unstash(vCA0, aCA0), unstash(vCB, aCB), unstash(vCD, aCD)], at=T_BC)
    for r in range(8): sC_.addall(conv_reads(0, r), at=T_BC if r < 4 else max(T_BC, use[104 + 2 * (r - 4) + 1] + 4), after=(("epi", 3), 1), by=conv_anchor(first_use[r] - 6))
    for r in range(8): sC_.addall(conv_reads(1, r), after=(("epi", 4 + (r >> 1)), 1), by=conv_anchor(36 + first_use[r] - 8))
    for dd in (2, 3):
        for r in range(8): sC_.addall(conv_reads(dd, r), at=conv_anchor(36 * (dd - 1)), by=min(conv_anchor(36 * dd + first_use[r] - 8), T_BW - 3))
    XE = 2; vXA = 19
    sM = Stream("misc")
    if Cfg.rot1 == "d":
        sM.addall([[I("s_lshl_b32 s%d, s%d, 6" % (sZt2, sWM)), I("v_xor_b32 v%d, s%d, v%d" % (vXA, sZt2, vB[0]))],
                   DS("ds_read_b128 %s, v%d offset:4096" % (vr(BF, 4), vXA), ("FX", 27)), I("v_xor_b32 v%d, 32, v%d" % (vXA, vXA)),
                   DS("ds_read_b128 %s, v%d offset:4096" % (vr(BF + 4, 4), vXA), ("FX", 27))], at=barr(posa[6]), by=barr(posa[6] + 1) - 4)
        sM.addall([I("v_mov_b32 v%d, v%d" % (XE + i, BF + i)) for i in range(8)], at=T_BC + 2)
        sM.add(unstash(vOo, aOo), at=conv_anchor(Cfg.xe_at))
    else:
        sM.add(unstash(vOo, aOo), at=conv_anchor(Cfg.xe_at))
        sM.add(VM("buffer_load_dwordx4 %s, v%d, %s, 0 offen" % (vr(XE, 4), vOo, srd(SRD_X)), "xe"))
        sM.add(VM("buffer_load_dwordx4 %s, v%d, %s, 0 offen offset:32" % (vr(XE + 4, 4), vOo, srd(SRD_X)), "xe"), space=2)
    sM.add([I("s_lshr_b32 s%d, s%d, 11" % (sZt1, sHS)), I("v_mov_b32 v%d, 0" % vHo)])
    sM.add(VM("buffer_load_ushort v%d, v%d, %s, s%d offen" % (0, vHo, srd(SRD_DD), sZt1), "xe"), space=2)
    sM.addall([unstash(vHo, aPollH), I("v_add_u32 v%d, s%d, v%d" % (vHA, sHA, vL16)), I("v_add_u32 v%d, s%d, v%d" % (vHB, sHB, vL16))])
    ldH = ["buffer_load_dword v%d, v%d, %s, s%d offen offset:%d sc1" % (vHp, vHo, srd(SRD_WS), sHF, 4 * w) for w in ((0, 1, 2) if Cfg.st3 else (0, 2))]
    sM.add(VM(ldH[0], "pollH"), at=conv_anchor(Cfg.hpoll), by=conv_anchor(Cfg.hpoll))
    POOL = [64 + 4 * i for i in range(16)] + [160 + 4 * i for i in range(4)]
    NP = len(POOL)
    LF = [f for f in range(56) if f % 7]
    def hreg(f):
        if f % 7 == 0: return vr(KEEP[2 * ((f % 28) // 7) + f // 28], 4)
        return vr(POOL[LF.index(f) % NP], 4)
    def fidx(f): return f // 28, (f % 28) // 7, f % 7
    def hload(f):
        jt, jj, j = fidx(f)
        return VM("buffer_load_dwordx4 %s, v%d, %s, s%d offen offset:%d sc1" % (hreg(f), vHB if jt else vHA, srd(SRD_WS), sG[j], jj * 1024), ("H", f))
    CM, CP, CK, KD, ZG, vT0, vT1, vT2 = 224, 240, 176, 160, 176, 0, 0, 24
    vT0, vT1 = 18, 20
    sN = Stream("kd")
    sN.addall([DS("ds_read_b64 %s, v%d offset:%d" % (vr(CK + 2 * k, 2), vCD, 512 * (3 - k)), "cxk") for k in range(4)], at=conv_anchor(109))
    sN.add([WVM("xe"), I("v_lshlrev_b32 v0, 16, v0")])
    for k in range(4):
        lo, hi = CK + 2 * k, CK + 1 + 2 * k
        for r, (src, h) in enumerate(((hi, 1), (hi, 0), (lo, 1), (lo, 0))):
            u = unp(KD + 4 * k + r, src, h)
            sN.add([WDS("cxk"), u] if (k, r) == (0, 0) else u, by=conv_anchor(143))
    sN.addall([I("v_add_u32 v%d, s%d, v%d" % (vT0, sWL, vL16)), I("v_xor_b32 v%d, 4096, v%d" % (vT1, vT0)),
               I("v_add_u32 v%d, %d, v%d" % (22, CEX, vT0)), I("v_add_u32 v%d, %d, v%d" % (23, CEX, vT1))], by=conv_anchor(143))
    hc1, hc2 = check("H", [ldH[0]], ["v_cmp_ne_u32 vcc, s%d, v%d" % (sTAG, vHp)], ["pollH"])
    nh = 0
    if Cfg.hcheck < 144:
        sM.add([hc1, hc2] + stamp("hok"), at=conv_anchor(Cfg.hcheck), by=conv_anchor(Cfg.hcheck))
        while nh < 12 and Cfg.hcheck + 6 + 4 * nh < 143:
            sM.add(hload(LF[nh]), by=conv_anchor(143), at=conv_anchor(109) if nh >= 8 else None); nh += 1

    for st in (sP, sE, sQ, sG_):
        if st.name in Cfg.drop:
            for it in st.items:
                a = it["atom"]
                if isinstance(a, Op) and a.kind == "i" and a.text.startswith(("v_mul_f32", "v_fmac", "v_cvt", "v_and_b32 v6", "v_lshlrev_b32 v6", "v_and_b32 v7", "v_lshlrev_b32 v7", "v_mov", "v_align", "v_xor", "v_or")):
                    it["atom"] = []; it["cost"] = 0
                elif isinstance(a, Op) and a.kind == "ds" and "ds_write_b128" in a.text:
                    it["atom"] = DS("ds_read_b32 v9, v%d" % vL16, a.tag); it["cost"] = 1
    for it in sD.items[:nplain]: it["plan"] = False
    Cfg._vmtab = plan_vm([sL_, sP, sE, sQ, sK, sG_, sD, sM], list(range(0, A_CONV, 2)) + list(range(A_CONV, A_CONV + 144)), Cfg.vs_at, Cfg.vs2)
    SC = Sched([sF, sL_, sQ, sK, sD, sE, sC_, sG_, sM, sR, sP, sS, sN])
    usage = []
    def emit_gap(now, budget, pre=0.0):
        if now in Cfg.tr_ticks and len(SC.streams) > 6: P.append(RAW("TSTAMP t%d" % now))
        if now in Cfg.tr_anch and len(SC.streams) <= 6: P.append(RAW("TSTAMP a%d" % now))
        o, u = SC.fill(now, budget - pre)
        P.append(o); usage.append(u + pre)
    def barrier(w, wd):
        o = [WVM(*w)] if w else []
        if wd: o.append(WDS(*wd))
        o.append(I("s_barrier"))
        return o
    def barrier_i(i):
        w = [("W", i)]; wd = []
        if SQC[i][1] == 0: w.append(("X", SQC[i][0]))
        if i == B_kvst: w.append("kvst")
        if i == B_psw: wd.append("psw")
        if i <= 14 - RQ: wd += [("FA", k) for k, f in enumerate(frs) if f[0] == i - 1]
        if SQC[i - 1][1] == 0: wd.append(("FX", 4 * SQC[i - 1][0] + 3))
        return barrier(w, wd)
    def mf32(a, A_, B_, first): return "v_mfma_f32_32x32x16_bf16 %s, %s, %s, %s" % (vr(a, 16), A_, B_, "0" if first else vr(a, 16))
    tb_at = {t: c for c, t in TB.items()}
    for n, e in enumerate(seq):
        now = 2 * n; pre = 0.0
        if e[0] == "m":
            c, s4, jj = frs[e[1]]; nt = e[2]; ks = 4 * SQC[c][0] + s4
            if nt == 0:
                P.append(WDS(("FA", e[1]), ("FX", ks)))
                if first[c] == now and c in Cfg.stamps_k: P.append(stamp("c%d" % c))
            else: pre = 1.0
            P.append(mf32(ACC + (4 * SQC[c][1] + 2 * jj + nt) * 16, vr(AF + 4 * (e[1] & 7), 4), ar(8 * ks + 4 * nt, 4), ks == 0))
        else:
            P.append(mf32(ACC + e[1] * 16, vr(CSF + (e[1] >> 1) * 4, 4), vr(MB + (e[1] & 1) * 4, 4), False))
        if now in tb_at: P.append(barrier_i(tb_at[now])); pre += 2
        if now == T_BC: P.append(barrier([], ["kvw", ("FA", 111)])); pre += 2
        emit_gap(now, Cfg.b1 if now < Cfg.b1_until else Cfg.b32, pre)
    P.append(stamp("g1end"))
    gi = 0
    for dd in range(4):
        seen = set()
        for i, (r, m) in enumerate(pairs):
            if first_use[max(r, m)] == i: P.append(WDS(("C", dd, max(r, m))))
            a = CACC + (r + m) * 4
            P.append("v_mfma_f32_16x16x32_bf16 %s, %s, %s, %s" % (vr(a, 4), vr(cA(dd, r), 4), vr(cB(dd, m), 4), "0" if (dd == 0 and (r + m) not in seen) else vr(a, 4)))
            seen.add(r + m)
            if conv_anchor(gi) == T_BW: P.append(barrier([("WD", u) for u in range(7)], [("C", 3, 7)]))
            emit_gap(conv_anchor(gi), Cfg.b16)
            gi += 1
    assert SC.done(), SC.left()
    Cfg._usage1 = usage; Cfg._log1 = SC.log
    P.append(stamp("convend"))

    for k in range(4): P.append("v_mov_b32 v%d, s%d\nv_mov_b32 v%d, s%d" % (ZG + 4 * k + 2, sTAG, ZG + 4 * k + 3, sTAG))
    P.append(L("s_cmp_eq_u32 s%d, 0\ns_cbranch_scc0 L_cx1", sWM))
    for k in range(4):
        P.append(DS("ds_write_b128 v22, %s offset:%d" % (vr(CACC + 16 + 4 * k, 4), 1024 * k), "cxw"))
        for r in range(4): P.append("v_fma_f32 v%d, v%d, v0, v%d" % (CM + 4 * k + r, KD + 4 * k + r, CACC + 4 * k + r))
    P.append(RAW("s_branch L_cx2\nL_cx1:"))
    for k in range(4):
        P.append(RAW("ds_write_b128 v22, %s offset:%d" % (vr(CACC + 4 * k, 4), 1024 * k)))
        for r in range(4): P.append(RAW("v_fma_f32 v%d, v%d, v0, v%d" % (CM + 4 * k + r, KD + 4 * k + r, CACC + 16 + 4 * k + r)))
    P.append(RAW("L_cx2:"))
    P.append(unstash(vT2, aZst))
    P.append([WDS("cxw"), I("s_barrier")])
    for k in range(4): P.append(DS("ds_read_b128 %s, v23 offset:%d" % (vr(CP + 4 * k, 4), 1024 * k), ("cxr", k)))
    ep = []
    for k in range(4):
        ad = [I("v_add_f32 v%d, v%d, v%d" % (CM + 4 * k + r, CM + 4 * k + r, CP + 4 * k + r)) for r in range(4)]
        ad[0] = [WDS(("cxr", k)), ad[0]]
        ep += ad + [I("v_cvt_pk_bf16_f32 v%d, v%d, v%d" % (ZG + 4 * k + w, CM + 4 * k + 2 * w, CM + 4 * k + 2 * w + 1)) for w in range(2)]
        ep.append(VM("buffer_store_dwordx4 %s, v%d, %s, s%d offen offset:%d sc1" % (vr(ZG + 4 * k, 4), vT2, srd(SRD_WS), sZst, 1024 * k), "zst"))
    if Cfg.hcheck >= 144:
        P.append([hc1, hc2]); P.append(stamp("hok"))
        while nh < Cfg.nfirst: P.append(hload(LF[nh])); nh += 1
    if Cfg.hflag1 >= 144: ep.insert(0, hflag(2, [("hst", 2)]))
    if Cfg.h2_early: P.append(VM(ldH[1], "pollH2"))
    if not Cfg.ep_shadow: P.append(ep)
    P.append(stamp("zst"))

    ACA, ACB, ZV, XF, ST = 192, 224, 32, 48, 22
    vZp, vZo, vSo, vRr = 14, 15, 16, 17
    GR = ACA + 16
    assert not Cfg.ep_shadow or Cfg.st_at > Cfg.zs_at + 3 * Cfg.zs_gap + 2
    sV = Stream("ep")
    if Cfg.ep_shadow:
        sV.addall([x for x in ep if not (isinstance(x, Op) and x.kind == "vm")], by=Cfg.ep_by)
        for k, x in enumerate([x for x in ep if isinstance(x, Op) and x.kind == "vm"]): sV.add(x, at=Cfg.zs_at + Cfg.zs_gap * k)
        assert Cfg.zs_at + 3 * Cfg.zs_gap + 4 < Cfg.zpoll and Cfg.zs_at > Cfg.ep_by
    sH = Stream("hload")
    g1, g2_ = check("H2", [ldH[1]], ["v_cmp_ne_u32 vcc, s%d, v%d" % (sTAG, vHp)], ["pollH2"])
    if not Cfg.h2_early: sH.add(VM(ldH[1], "pollH2"), at=Cfg.h2poll)
    hpace = -Cfg.hsp
    for li in range(nh, 48):
        f = LF[li]
        if f == 15: sH.add([g1, g2_], at=Cfg.h2check, by=2 * f - 10)
        ea = 2 * LF[li - NP] + 2 if li >= NP else 0
        hpace = max(hpace + Cfg.hsp, ea, Cfg.h2check + 1 if f == 15 else 0)
        sH.add(hload(f), at=int(hpace), by=max(2 * f - 4, int(hpace) + 1))
    A_BAR = 56 + Cfg.bar_a
    sX = Stream("x")
    sX.addall([unp(XF + i, XE + (i >> 1), i & 1) for i in range(16)], at=Cfg.ep_by + 2 if Cfg.ep_shadow else 2, key="xf")
    sX.add(unstash(vRr, aRr))
    sX.addall([I("v_add_u32 v%d, %d, v%d" % (vT0, REDA, vRr)), I("v_add_u32 v%d, %d, v%d" % (25, REDA, vT1))])
    sX.addall([DS("ds_write_b128 v25, %s offset:%d" % (vr(ACA + 16 + rq * 4, 4), rq * 1024), "rwa") for rq in range(4)], at=58, space=2, by=A_BAR - 1)
    def swaps(acc): return [I("v_permlane32_swap_b32 v%d, v%d" % (acc + 8 * kk + i, acc + 8 * kk + 4 + i)) for kk in range(2) for i in range(4)]
    sX.addall([DS("ds_read_b128 %s, v%d offset:%d" % (vr(ACA + 16 + kk * 8 + hs * 4, 4), vT0, kk * 2048 + hs * 512), "rra") for kk in range(2) for hs in range(2)], at=A_BAR, by=A_BAR + 1)
    sX.addall(swaps(ACA))
    def gpos(b, w): return b + (w // 3) * 4 + (w % 3)
    for i in range(16):
        op = I("v_add_f32 v%d, v%d, v%d" % (ACA + i, ACA + i, ACA + 16 + i))
        if i == 0: sX.add([WDS("rra"), op], space=2)
        else: sX.add(op)
    for w in range(8):
        sX.add(I("v_cvt_pk_bf16_f32 v%d, v%d, v%d" % (gpos(GR, w), ACA + 2 * w, ACA + 2 * w + 1)))
        if w % 3 == 2 or w == 7:
            k = w // 3
            sX.add(I("v_mov_b32 v%d, s%d" % (GR + 4 * k + 3, sTAG)))
            sX.add(VM("buffer_store_dwordx4 %s, v%d, %s, s%d offen offset:%d sc1" % (vr(GR + 4 * k, 4), vL16, srd(SRD_WS), sPst, k * 1024), "pst"), by=A_BAR + 20, key=("pst", k))
    ldP = ["buffer_load_dwordx4 %s, v%d, %s, s%d offen offset:%d sc1" % (vr(ACA + 4 * k, 4), vL16, srd(SRD_WS), sPld, k * 1024) for k in range(3)]
    sX.addall([VM(x, "pld") for x in ldP], at=Cfg.pld, by=111)
    sZ = Stream("z")
    sZq = [sZld, sZt0, sZt1, sZt2]
    ldZ = ["buffer_load_dwordx4 %s, v%d, %s, s%d offen sc1" % (vr(ZG + 4 * i, 4), vZo, srd(SRD_WS), sZq[i]) for i in range(4)]
    ldS = "buffer_load_dwordx3 %s, v%d, %s, s%d offen sc1" % (vr(ST, 3), vSo, srd(SRD_WS), sSt2)
    sZ.addall([I("v_and_b32 v%d, 511, v%d" % (vSo, vL16)), VM(ldS, "sld")], at=Cfg.st_at)
    sZ.addall([unstash(vZo, aZld)] + [I("s_add_u32 s%d, s%d, %d" % (sZq[i], sZld, i * 65536)) for i in range(1, 4)])
    c1, c2 = check("S", [ldS], ["v_cmp_ne_u32 vcc, s%d, v%d" % (sTAG, ST + 2)], ["sld"])
    sZ.add([c1, c2], at=Cfg.st_at + Cfg.st_lag, after=("xf", 0))
    sZ.addall([I("v_mul_f32 v%d, v%d, v%d" % (ST, ST, ST + 1)), I("v_mul_f32 v%d, v%d, v%d" % (ST + 2, ST + 1, ST + 1))])
    sZ.addall([I("v_fma_f32 v%d, v%d, v%d, -v%d" % (ZV + i, XF + i, ST + 1, ST)) for i in range(16)])
    sZ.add([I("v_lshrrev_b32 v%d, 1, v%d" % (vZp, vL16)), I("v_add_u32 v%d, s%d, v%d" % (vZp, sZfl, vZp))])
    sZ.addall([VM(x, "zld") for x in ldZ], at=Cfg.zpoll)
    cmp_ops = ["v_xor_b32 v%d, s%d, v%d" % (ZG + 4 * i + 3, sTAG, ZG + 4 * i + 2) for i in range(4)] + [
               "v_or3_b32 v%d, v%d, v%d, v%d" % (ZG + 3, ZG + 3, ZG + 7, ZG + 11), "v_or_b32 v%d, v%d, v%d" % (ZG + 3, ZG + 3, ZG + 15), "v_cmp_ne_u32 vcc, 0, v%d" % (ZG + 3)]
    c1, c2 = check("Z", ldZ, cmp_ops, ["zld"])
    zt = list(c1) + [c2]
    zt += [DS("ds_write_b64 v%d, %s offset:%d" % (vZp, vr(ZG + 4 * i, 2), 512 * i), "zw") for i in range(4)]
    zt += [unstash(vSo, aPollZ)]
    rd = [DS("ds_read_b64_tr_b16 %s, v%d offset:%d" % (vr(XE + 2 * q, 2), vSo, (q >> 1) * 1024 + (q & 1) * 256), "zr") for q in range(4)]
    rd[0] = [WDS("zw"), rd[0]]
    zt += rd
    for i in range(16):
        u = unp((12, 0)[i & 1], XE + (i >> 1), i & 1)
        zt.append([WDS("zr"), u] if i == 0 else u)
        zt.append(I("v_fma_f32 v%d, v%d, v%d, v%d" % (ZV + i, ZV + i, (12, 0)[i & 1], XF + i)))
    assert Cfg.zpoll + Cfg.zlag > A_BAR
    sZ.addall(zt, at=Cfg.zpoll + Cfg.zlag)
    sW = Stream("wr", cap=2)
    for f in range(Cfg.wr_pre, 28): sW.addall(wd_reads(f % 7, f // 7), by=max(2 * f - 5, 0))
    if Cfg.plan2: Cfg._vmtab2 = plan_vm([sH, sV, sX, sZ], list(range(112)), 0, 0.25, lead_div=Cfg.ld2, lead_mul=1)
    SC = Sched([sW, sH, sV, sX, sZ])
    usage = []
    for f in range(56):
        jt, jj, j = fidx(f)
        if j: P.append(WVM(("H", f)))
        if jt == 0: P.append(WDS(("WR", j, jj)))
        if f in Cfg.stamps_f: P.append(stamp("f%d" % f))
        for jd in range(2):
            a = (ACB if jt else ACA) + jd * 16
            P.append(mf32(a, ar(8 * (4 * j + jj) + 4 * jd, 4), hreg(f), f % 28 == 0))
            now = 2 * f + jd
            if now == A_BAR: P.append([WDS("rwa"), I("s_barrier")])
            emit_gap(now, Cfg.b2, 1.0 if jd else 0.0)
    for s_ in (sW, sH, sV, sX): assert s_.pos == len(s_.items), s_.name
    rest = [it["atom"] for it in sZ.items[sZ.pos:]]
    Cfg._usage2 = usage; Cfg._rest = len(rest)
    P.append(stamp("g2end"))
    P.append("s_nop 7\ns_nop 3")
    for rq in range(4): P.append(DS("ds_write_b128 v%d, %s offset:%d" % (vT1, vr(ACB + 16 + rq * 4, 4), REDB + rq * 1024), "rwb"))
    P.append(swaps(ACB))
    P.append([WDS("rwb"), I("s_barrier")])
    for kk in range(2):
        for hs in range(2):
            P.append(DS("ds_read_b128 %s, v%d offset:%d" % (vr(64 + kk * 8 + hs * 4, 4), vRr, REDB + kk * 2048 + hs * 512), "rrb"))
    P.append(rest)
    cmp_ops = ["v_xor_b32 v%d, s%d, v%d" % (ACA + 4 * k + 3, sTAG, ACA + 4 * k + 3) for k in range(3)]
    cmp_ops += ["v_or3_b32 v%d, v%d, v%d, v%d" % (ACA + 3, ACA + 3, ACA + 7, ACA + 11), "v_cmp_ne_u32 vcc, 0, v%d" % (ACA + 3)]
    c1, c2 = check("P", ldP, cmp_ops, ["pld"])
    P.append(WDS("rrb"))
    for i in range(16): P.append("v_add_f32 v%d, v%d, v%d" % (ACB + i, ACB + i, 64 + i))
    P.append([c1, c2])
    for kk in range(2):
        for i in range(8 * kk, 8 * kk + 8):
            P.append(unp(ACA + 16 + i, gpos(ACA, i >> 1), i & 1))
            P.append("v_add_f32 v%d, v%d, v%d" % (ACB + i, ACB + i, ACA + 16 + i))
            P.append("v_fma_f32 v%d, v%d, v%d, v%d" % (ACB + i, ACB + i, ST + 2, ZV + i))
        for w in range(4): P.append("v_cvt_pk_bf16_f32 v%d, v%d, v%d" % (80 + 4 * kk + w, ACB + 8 * kk + 2 * w, ACB + 8 * kk + 2 * w + 1))
        P.append(VM("buffer_store_dwordx4 %s, v%d, %s, 0 offen offset:%d %s" % (vr(80 + 4 * kk, 4), vOo, srd(SRD_OUT), 32 * kk, Cfg.opol), "out"))
    P.append(diag_tail(True))
    P.append("s_endpgm")
    return P
Cfg.ep_shadow = False; Cfg.ep_by = 20; Cfg.opol = ""
Cfg.order = [("X", 1), ("W", 2), ("X", 2), ("W", 3), ("X", 3), ("W", 4), ("X", 4), ("W", 5), ("X", 5), ("W", 6), ("X", 6), ("W", 7), ("W", 8), ("W", 9), ("W", 10),
             ("W", 11), ("W", 12), ("W", 13), ("D", 0), ("D", 1), ("D", 2), ("D", 3), ("D", 4), ("D", 5), ("D", 6)]
Cfg.t_at = 232; Cfg.hc_at = 270; Cfg.hc_by = 420; Cfg.cs_chk = 30; Cfg.w_min = {9: 176, 10: 216, 11: 244, 12: 262, 13: 280}
Cfg.vs1 = 0; Cfg.vs2 = 1.0; Cfg.vs3 = 0.0; Cfg.vs_at = 128; Cfg.hprio = True; Cfg.b2 = 5; Cfg.b1 = 6.5; Cfg.tr_ticks = (); Cfg.rq = 2; Cfg.c1 = 9; Cfg.blead = 14; Cfg.hs_gap = 22
Cfg.minlead = 10; Cfg.prep_lag = 40; Cfg.htouch = False; Cfg.hcheck = 90; Cfg.pld = 104; Cfg.nws = 6
Cfg.q_pro = 999; Cfg.b11 = 8; Cfg.bc = 20; Cfg.bw = 116; Cfg.cs_at = 210; Cfg.hflag0 = 426; Cfg.hflag1 = 96; Cfg.xe_at = 44
Cfg.h2_early = True; Cfg.h2poll = 0; Cfg.h2check = 4
Cfg.epi_prio = True; Cfg.stamps_f = (); Cfg.b_psw = 6; Cfg.kv_ack = 2; Cfg.epi_by = 18; Cfg.hcheck_early = True; Cfg.hsp = 1.75; Cfg.bar_a = 10

def gen_helper():
    stamp_n[0] = 0
    P = [WDS0()]
    if Cfg.diag: P.append("s_mov_b32 s89, s88")
    P.append(build_srd(SRD_X, 4, S * D * 2)); P.append(build_srd(SRD_WS, 28, WS_SIZE))
    P.append(L("s_and_b32 s%d, s2, 7\ns_lshr_b32 s%d, s2, 3", sA, sB))
    P.append(L("s_lshl_b32 s%d, s%d, 2\ns_add_u32 s%d, s%d, s%d", sT, sA, sT, sT, sB))
    P.append(L("s_lshr_b32 s%d, s%d, 1\ns_lshl_b32 s%d, s%d, 2\ns_add_u32 s%d, s%d, s%d", sC2, sA, sC2, sC2, sC2, sC2, sB))
    P.append(L("s_and_b32 s%d, s%d, 1\ns_mul_i32 s%d, s%d, 7\ns_add_u32 s%d, s%d, s%d", sA, sA, sFT, sA, sFT, sFT, sC2))
    P.append(L("s_cmp_ge_u32 s%d, 7\ns_cselect_b32 s%d, s20, s18\ns_cselect_b32 s%d, s21, s19", sC2, SRD_W1, SRD_W1 + 1))
    P.append(L("s_cselect_b32 s%d, 1, 0\ns_cselect_b32 s%d, 7, 0\ns_sub_u32 s%d, s%d, s%d", sMT, sA, sFT, sFT, sA))
    P.append(L("s_mov_b32 s%d, %d\ns_mov_b32 s%d, 0x00020000", SRD_W1 + 2, D * F * 2, SRD_W1 + 3))
    sNO, sONE, sLO, sHI, sSTO = sWL, sXL, sWo, sXo, sDo
    if Cfg.gpref: P.append(gpref(9, 10))
    P.append(L("s_cmp_ge_u32 s%d, 14\ns_cselect_b32 s%d, 0x40000000, 0", sC2, sNO))
    V0, V1, V2, V3, V4, V5 = 2, 3, 4, 5, 6, 7
    P.append(L("s_lshl_b32 s%d, s%d, 2\ns_add_u32 s%d, s%d, s%d\ns_mul_i32 s%d, s%d, %d\ns_add_u32 s%d, s%d, %d", sA, sT, sA, sA, sWV, sA, sA, 16 * 896, sB, sA, 8 * 896))
    P.append(L("v_lshrrev_b32 v%d, 3, v%d\nv_mul_u32_u24 v%d, 896, v%d\nv_and_b32 v%d, 7, v%d\nv_lshl_add_u32 v%d, v%d, 4, v%d", V0, vL, V0, V0, V1, vL, V0, V1, V0))
    P.append(L("s_getpc_b64 s[%d:%d]", sC, sC + 1))
    P.append(RAW("L_touch_base2:"))
    P.append(L("s_sub_u32 s%d, s%d, L_touch_base2-L_main\ns_subb_u32 s%d, s%d, 0", sC, sC, sC + 1, sC + 1))
    P.append(L("s_lshr_b32 s%d, s2, 3\ns_lshl_b32 s%d, s%d, 13\nv_lshrrev_b32 v%d, 2, v0\nv_lshlrev_b32 v%d, 7, v%d\nv_add_u32 v%d, s%d, v%d", sZt0, sZt0, sZt0, V4, V4, V4, V4, sZt0, V4))
    P.append(L("v_min_u32 v%d, L_end_of_code-L_main-4, v%d", V4, V4))
    P.append(VM("global_load_dword v%d, v%d, s[%d:%d]" % (8, V4, sC, sC + 1), "touch"))
    P.append(L("s_mov_b32 s%d, %d\nv_mov_b32 v%d, 0", sZt0, EP_OFF, V4))
    P.append(VM("buffer_load_dword v%d, v%d, %s, s%d offen sc1" % (V5, V4, srd(SRD_WS), sZt0), "ep"))
    P.append(L("v_lshrrev_b32 v%d, 3, v0\nv_mul_u32_u24 v%d, 3584, v%d\nv_and_b32 v%d, 7, v0\nv_lshl_add_u32 v%d, v%d, 4, v%d", V2, V2, V2, V3, V2, V3, V2))
    P.append(L("s_lshl_b32 s%d, s%d, 8\ns_add_u32 s%d, s%d, s%d", sD_, sFT, sD_, sD_, sNO))
    P.append(build_srd(SRD_WD, 22, D * F * 2))
    def wl(i):
        return ["s_add_u32 s%d, s%d, %d" % (sZt2, sD_, 32 * (i % 14) * 3584 + 128 * (i // 14)),
                VM("buffer_load_dwordx4 %s, v%d, %s, s%d offen %s" % (vr(128 + 4 * i, 4), V2, srd(SRD_W1), sZt2, Cfg.nt_w), ("hw", i))]
    def xl(grp, i): return VM("buffer_load_dwordx4 %s, v%d, %s, s%d offen offset:%d %s" % (vr(32 + (grp * 7 + i) * 4, 4), V0, srd(SRD_X), sB if grp else sA, 128 * i, Cfg.nt_x), ("hx", grp))
    def red8(v):
        return ["s_nop 1", "v_add_f32_dpp v%d, v%d, v%d quad_perm:[1,0,3,2] row_mask:0xf bank_mask:0xf" % (v, v, v), "s_nop 1",
                "v_add_f32_dpp v%d, v%d, v%d quad_perm:[2,3,0,1] row_mask:0xf bank_mask:0xf" % (v, v, v), "s_nop 1",
                "v_add_f32_dpp v%d, v%d, v%d row_half_mirror row_mask:0xf bank_mask:0xf" % (v, v, v)]
    INV448 = 0x3b124925
    P.append(L("s_mov_b32 s%d, 0x3f803f80\ns_mov_b32 s%d, 0x00003f80\ns_mov_b32 s%d, 0x3f800000", sONE, sLO, sHI))
    U0, U1 = 88, 89
    MEAN = [90, 91]; G = [92, 96]
    vSo, vSo2 = 100, 101
    CSUM = 108
    vCw, vCr, vCs, sCo = 10, 11, 12, 87
    if Cfg.h_delay: P.append(WVM("ep"))
    if Cfg.h_kv:
        P.append(build_srd(SRD_K, 6, S * D * 2)); P.append(build_srd(SRD_V, 8, S * D * 2))
        P.append(L("v_min_u32 v13, 55, v%d\nv_lshlrev_b32 v13, 7, v13", vL))
        for k in range(Cfg.h_kv - 1): P.append(wl(k))
        for i, (sd, so) in enumerate(((SRD_K, sA), (SRD_K, sB), (SRD_V, sA), (SRD_V, sB))):
            P.append(VM("buffer_load_dword v%d, v13, %s, s%d offen nt" % (248 + i, srd(sd), so), "kvt"))
    for k in range(max(Cfg.h_kv - 1, 0), 14): P.append(wl(k))
    P.append(L("v_lshlrev_b32 v%d, 5, v0\nv_lshlrev_b32 v%d, 2, v%d", vCw, vCr, vL))
    P.append(L("v_lshrrev_b32 v%d, 4, v%d\nv_lshlrev_b32 v%d, 9, v%d\nv_and_b32 v%d, 15, v%d\nv_lshl_add_u32 v%d, v%d, 4, v%d", vCs, vL, vCs, vCs, V3, vL, vCs, V3, vCs))
    P.append(L("s_lshl_b32 s%d, s%d, 12\ns_lshl_b32 s%d, s%d, 8\ns_add_u32 s%d, s%d, s%d\ns_add_u32 s%d, s%d, %d", sCo, sFT, sZt0, sMT, sCo, sCo, sZt0, sCo, sCo, CS_OFF))
    P.append(L("s_cmp_eq_u32 s%d, 0\ns_cselect_b32 s%d, s%d, 0x40000000\ns_add_u32 s%d, s%d, s%d", sWV, sZt0, sNO, sCo, sCo, sZt0))
    def colsum(half, fill):
        o = ["v_mov_b32 v%d, 0" % (CSUM + e) for e in range(8)]
        for i in range(14 * half, 14 * half + 14):
            if fill: o.append(fill.pop(0))
            o.append(WVM(("hw", i)))
            for w in range(4):
                src = 128 + 4 * i + w
                o.append("v_dot2c_f32_bf16 v%d, s%d, v%d\nv_dot2c_f32_bf16 v%d, s%d, v%d" % (CSUM + 2 * w, sLO, src, CSUM + 2 * w + 1, sHI, src))
        if half == 0: o.append(tag_from_epoch(V5))
        o.append("s_nop 2")
        o.append(RAW("ds_write_b128 v%d, v[108:111] offset:%d\nds_write_b128 v%d, v[112:115] offset:%d" % (vCw, 8192 * half, vCw, 8192 * half + 16)))
        o += [WDS0(), "s_barrier"]
        for rg in range(0, 32, 2): o.append(RAW("ds_read2st64_b32 %s, v%d offset0:%d offset1:%d" % (vr(128 + rg, 2), vCr, 32 * half + rg, 32 * half + rg + 1)))
        o.append(WDS0())
        for st in (1, 2, 4, 8, 16):
            for rg in range(0, 32, 2 * st): o.append("v_add_f32 v%d, v%d, v%d" % (128 + rg, 128 + rg, 128 + rg + st))
        o.append("v_cvt_pk_bf16_f32 v116, v128, v128\nv_lshlrev_b32 v117, 16, v116\nv_sub_f32 v128, v128, v117")
        o.append("v_cvt_pk_bf16_f32 v118, v128, v128\nv_lshlrev_b32 v117, 16, v118\nv_sub_f32 v128, v128, v117")
        o.append("v_and_b32 v116, 0xffff, v116\nv_or_b32 v116, v116, v117")
        o.append(L("v_cvt_pk_bf16_f32 v117, v128, v128\nv_and_b32 v117, 0xffff, v117\nv_mov_b32 v118, 0\nv_mov_b32 v119, s%d", sTAG))
        o.append(VM("buffer_store_dwordx4 v[116:119], v%d, %s, s%d offen offset:%d sc1" % (vCs, srd(SRD_WS), sCo, 2048 * half), "cst"))
        return o
    xls = [xl(grp, i) for grp in range(2) for i in range(7)]
    if Cfg.h_fill == "x": P.append(colsum(0, xls))
    elif Cfg.h_fill == "w":
        P.append(colsum(0, [wl(k) for k in range(14, 28)]))
        P.append(colsum(1, xls))
    else:
        P.append(colsum(0, [[xls[k], wl(14 + k)] for k in range(14)]))
    P.append(stamp("cs"))
    P.append(L("v_and_b32 v%d, 7, v%d\nv_cmp_eq_u32 vcc, 0, v%d\nv_mov_b32 v%d, %s\nv_lshlrev_b32 v%d, 1, v%d\nv_cndmask_b32 v%d, v%d, v%d, vcc\nv_cndmask_b32 v%d, v%d, v%d, vcc",
               V0, vL, V0, V1, OOB, V3, vL, vSo, V1, vL, vSo2, V1, V3))
    P.append(L("s_lshl_b32 s%d, s%d, 2\ns_add_u32 s%d, s%d, s%d\ns_lshl_b32 s%d, s%d, 7\ns_add_u32 s%d, s%d, %d", sA, sT, sA, sA, sWV, sA, sA, sSTO, sA, ST_OFF))
    P.append(L("s_lshl_b32 s%d, s%d, 1\ns_add_u32 s%d, s%d, %d", sA, sA, sZt1, sA, ST2_OFF))
    var = []; vi = 0
    for grp in range(2):
        SQ = 102 + 2 * grp; base = 32 + grp * 28
        var.append(L("v_mov_b32 v%d, 0\nv_mov_b32 v%d, 0", SQ, SQ + 1))
        for r in range(28):
            var.append(L("v_lshlrev_b32 v%d, 16, v%d\nv_and_b32 v%d, 0xffff0000, v%d\nv_sub_f32 v%d, v%d, v%d\nv_sub_f32 v%d, v%d, v%d\nv_fmac_f32 v%d, v%d, v%d\nv_fmac_f32 v%d, v%d, v%d",
                         U0, base + r, U1, base + r, U0, U0, MEAN[grp], U1, U1, MEAN[grp], SQ, U0, U0, SQ + 1, U1, U1))
    for grp in range(2):
        base = 32 + grp * 28
        P.append(L("v_mov_b32 v%d, 0\nv_mov_b32 v%d, 0", U0, U1))
        P.append(WVM(("hx", grp)))
        for r in range(28): P.append("v_dot2c_f32_bf16 v%d, s%d, v%d" % (U1 if r & 1 else U0, sONE, base + r))
        P.append(L("s_nop 2\nv_add_f32 v%d, v%d, v%d", MEAN[grp], U0, U1))
        P.append(red8(MEAN[grp]))
        P.append(L("v_mul_f32 v%d, 0x%x, v%d", MEAN[grp], INV448, MEAN[grp]))
        P.append(L("v_cvt_pk_bf16_f32 v%d, v%d, v%d\nv_lshlrev_b32 v%d, 16, v%d\nv_mov_b32 v%d, s%d", G[grp], MEAN[grp], MEAN[grp], G[grp], G[grp], G[grp] + 1, sTAG))
        P.append(VM("buffer_store_dwordx2 %s, v%d, %s, s%d offen offset:%d sc1" % (vr(G[grp], 2), vSo, srd(SRD_WS), sSTO, 64 * grp), "mst"))
    P.append(stamp("mean"))
    def job_mall():
        return [L("s_lshl_b32 s%d, s2, 2\ns_add_u32 s%d, s%d, s%d\ns_mul_i32 s%d, s%d, %d\ns_add_u32 s%d, s%d, %d\nv_min_u32 v13, 48, v%d\nv_lshlrev_b32 v13, 7, v13", sA, sA, sA, sWV, sA, sA, 98 * 128, sB, sA, 49 * 128, vL),
                VM("buffer_load_dword v250, v13, %s, s%d offen" % (srd(SRD_WD), sA), "wdt"), VM("buffer_load_dword v251, v13, %s, s%d offen" % (srd(SRD_WD), sB), "wdt")]
    def job_cs1(): return {"x": lambda: [[wl(k) for k in range(14, 28)], colsum(1, None)], "w": lambda: [], "b": lambda: [colsum(1, None)]}[Cfg.h_fill]()
    def job_hk():
        return [build_srd(SRD_HK, 12, D * S * 2),
                L("s_lshr_b32 s%d, s2, 3\ns_lshl_b32 s%d, s%d, 2\ns_add_u32 s%d, s%d, s%d\ns_lshl_b32 s%d, s%d, 3\ns_and_b32 s%d, s2, 7\ns_add_u32 s%d, s%d, s%d\ns_lshl_b32 s%d, s%d, 13",
                  sA, sA, sA, sA, sA, sWV, sA, sA, sB, sA, sA, sB, sA, sA),
                L("s_add_u32 s%d, s%d, %d\nv_lshlrev_b32 v13, 7, v%d", sB, sA, 128 * 8192, vL),
                VM("buffer_load_dword v126, v13, %s, s%d offen nt" % (srd(SRD_HK), sA), "wdt"), VM("buffer_load_dword v127, v13, %s, s%d offen nt" % (srd(SRD_HK), sB), "wdt")]
    sWb = sC2
    def job_wd(j):
        o = []
        if j == 0:
            o.append(L("s_and_b32 s%d, s2, 1\ns_mul_i32 s%d, s%d, 896\ns_lshr_b32 s%d, s2, 3\ns_lshl_b32 s%d, s%d, 2\ns_add_u32 s%d, s%d, s%d\ns_lshl_b32 s%d, s%d, 3\ns_add_u32 s%d, s%d, s%d\ns_mul_i32 s%d, s%d, 896",
                       sA, sA, sA, sB, sB, sB, sB, sB, sWV, sB, sB, sA, sA, sB, sWb, sA))
            o.append(L("v_and_b32 v14, 7, v%d\nv_min_u32 v14, 6, v14\nv_lshrrev_b32 v15, 3, v%d\nv_mul_u32_u24 v15, 896, v15\nv_lshl_add_u32 v15, v14, 7, v15\nv_mul_u32_u24 v14, %d, v14", vL, vL, 128 * 896))
        else: o.append(L("v_add_u32 v14, %d, v14\nv_subrev_u32 v16, %d, v14\nv_min_u32 v14, v14, v16", 128 * 896, 7 * 128 * 896))
        o.append("v_add_u32 v16, v14, v15")
        o.append(VM("buffer_load_dword v%d, v16, %s, s%d offen" % (240 + j, srd(SRD_WD), sWb), "wdt"))
        return o
    def job_lin(i):
        o = []
        if i == 0:
            o.append(L("s_and_b32 s%d, s2, 1\ns_mul_i32 s%d, s%d, 6272\ns_lshr_b32 s%d, s2, 3\ns_lshl_b32 s%d, s%d, 2\ns_add_u32 s%d, s%d, s%d\ns_mul_i32 s%d, s%d, 392\ns_add_u32 s%d, s%d, s%d\ns_lshl_b32 s%d, s%d, 7",
                       sA, sA, sA, sB, sB, sB, sB, sB, sWV, sB, sB, sA, sA, sB, sWb, sA))
            o.append(L("v_min_u32 v14, 55, v%d\nv_lshlrev_b32 v14, 7, v14\ns_bfe_u32 s%d, s2, 0x20001\ns_mul_i32 s%d, s%d, %d", vL, sDT, sDT, sDT, 2 * 56 * 128))
        o.append(L("s_add_u32 s%d, s%d, s%d", sB, sWb, sDT)); o.append(advance(sDT, 56 * 128, 7 * 56 * 128))
        o.append(VM("buffer_load_dword v%d, v14, %s, s%d offen" % (240 + i, srd(SRD_WD), sB), "wdt"))
        return o
    for job in Cfg.h_jobs:
        if isinstance(job, str) and job[0] == "L": P.append(job_lin(int(job[1:])))
        elif job == "mall": P.append(job_mall())
        elif job == "cs1": P.append(job_cs1())
        elif job == "hk": P.append(job_hk())
        elif job == "var": P.append(var[vi:vi + 15]); vi = min(vi + 15, len(var))
        else: P.append(job_wd(job))
    P.append(var[vi:])
    for grp in range(2):
        SQ = 102 + 2 * grp
        P.append(L("v_add_f32 v%d, v%d, v%d", SQ, SQ, SQ + 1))
        P.append(red8(SQ))
        P.append(L("v_mul_f32 v%d, 0x%x, v%d", SQ, INV448, SQ))
        P.append(L("v_cvt_pk_bf16_f32 v%d, v%d, v%d\nv_lshlrev_b32 v%d, 16, v%d", SQ, SQ, SQ, SQ, SQ))
        P.append(L("v_add_f32 v%d, 0x3727c5ac, v%d", SQ, SQ))
        P.append(L("v_cvt_pk_bf16_f32 v%d, v%d, v%d\nv_lshlrev_b32 v%d, 16, v%d", SQ, SQ, SQ, SQ, SQ))
        P.append(L("v_sqrt_f32 v%d, v%d\ns_nop 0", SQ, SQ))
        P.append(L("v_cvt_pk_bf16_f32 v%d, v%d, v%d\nv_lshlrev_b32 v%d, 16, v%d", SQ, SQ, SQ, SQ, SQ))
        P.append(L("v_rcp_f32 v%d, v%d\nv_mov_b32 v%d, s%d\nv_mov_b32 v%d, 0", G[grp] + 1, SQ, G[grp] + 2, sTAG, G[grp] + 3))
        P.append(VM("buffer_store_dwordx4 %s, v%d, %s, s%d offen offset:%d sc1" % (vr(G[grp], 4), vSo2, srd(SRD_WS), sZt1, 128 * grp), "rst"))
    P.append(stamp("rstd"))
    P.append(L("s_cmp_lg_u32 s2, 0\ns_cbranch_scc1 L_h_end\ns_cmp_lg_u32 s%d, 0\ns_cbranch_scc1 L_h_end", sWV))
    P.append(L("v_lshlrev_b32 v%d, 7, v%d\nv_and_b32 v%d, 31, v%d\nv_lshlrev_b32 v%d, 7, v%d\ns_mov_b32 s%d, 0", V0, vL, V1, vL, V1, V1, sSPIN))
    P.append(RAW("L_ep_spin:"))
    for i in range(3):
        P.append("s_mov_b32 s%d, %d" % (sA, KF_OFF + 8192 * i))
        P.append(RAW("buffer_load_dword v%d, v%d, %s, s%d offen sc1" % (32 + i, V0, srd(SRD_WS), sA)))
    P.append("s_mov_b32 s%d, %d" % (sA, KF_OFF + 8192 * 3))
    P.append(RAW("buffer_load_dword v35, v%d, %s, s%d offen sc1" % (V1, srd(SRD_WS), sA)))
    for i in range(2):
        P.append("s_mov_b32 s%d, %d" % (sA, ST_OFF + 8192 * i + 4))
        P.append(RAW("buffer_load_dword v%d, v%d, %s, s%d offen sc1" % (36 + i, V0, srd(SRD_WS), sA)))
    P.append(WVM0())
    for i in range(6): P.append("v_xor_b32 v%d, s%d, v%d" % (32 + i, sTAG, 32 + i))
    for i in range(1, 6): P.append("v_or_b32 v32, v32, v%d" % (32 + i))
    P.append("v_cmp_ne_u32 vcc, 0, v32")
    P.append(L("s_add_u32 s%d, s%d, 1\ns_cmp_lt_u32 s%d, %d\ns_cbranch_scc0 L_ep_go", sSPIN, sSPIN, sSPIN, Cfg.spin))
    P.append("s_cbranch_vccz L_ep_go\ns_sleep 32\ns_branch L_ep_spin")
    P.append(RAW("L_ep_go:"))
    P.append("s_mov_b32 s%d, %d" % (sA, EP_OFF))
    P.append(RAW("buffer_store_dword a%d, v%d, %s, s%d offen sc1" % (aTag, vFlag0, srd(SRD_WS), sA)))
    P.append(RAW("L_h_end:"))
    P.append(diag_tail())
    P.append("s_endpgm")
    return P
Cfg.qstamps = False; Cfg.x_nost = False; Cfg.hpol = "sc1"; Cfg.kpos = 2; Cfg.hk_early = False; Cfg.loadtest = False; Cfg.wr_pre = 4; Cfg.tr_only = []; Cfg.zld_by = 110; Cfg.dprio = True; Cfg.sp3 = 4; Cfg.wd_min = [300, 340, 384, 404, 446, 0, 0]; Cfg.setup_by = 150; Cfg.h_fill = "x"; Cfg.h_kv = 0; Cfg.m_touch = 0; Cfg.h_jobs = ['cs1', 'L0', 'L1', 'L2', 'L3', 'var', 'L4', 'var', 'L5', 'var', 'L6']; Cfg.ws_base = 0; Cfg.h_delay = False; Cfg.h_mall = False; Cfg.ld2 = 4; Cfg.st3 = False; Cfg.tr_anch = (); Cfg.kv_alt = False; Cfg.lead = 999; Cfg.hsp0 = 1.5; Cfg.zs_at = 12; Cfg.zs_gap = 6; Cfg.drop = (); Cfg.lag = 7; Cfg.plan_from = 7; Cfg.b1_until = 224; Cfg.d_order = range(7); Cfg.x1_pro = 1; Cfg.h_rot = True; Cfg.h_order = 0; Cfg.cs2_at = 344; Cfg.abl = (); Cfg.sleeps = {}; Cfg.hflagm = 118; Cfg.h3poll_f = 15; Cfg.h3check = 22; Cfg.st_at = 8; Cfg.st_lag = 30; Cfg.plan2 = True; Cfg.h_hk = True; Cfg.h_wd = True; Cfg.gpref = 0; Cfg.amp = None; Cfg.ctouch = False; Cfg.ptouch = 0; Cfg.dbg = 0; Cfg.scramble = False; Cfg.h_var = 1; Cfg.trace = False

DOC = """
One launch, 256 workgroups of 4 waves, one per CU (generated by a Python scheduler script).
 workgroups 0..31   helpers: column sums of Wg/Wu, row mean / rstd of x, L2 prefetch of Wd, epoch update
 workgroups 32..255 main:
   prep   kv = shiftconv(k)*v for a 64x64 tile, published time-reversed and transposed
   gemm1  [128 t x 128 f] (x Wg)(x Wu) in two column halves, x fragments resident in AGPRs; the LayerNorm mean is
          applied as one extra MFMA step (-mean x colsum, colsum split in 3 bf16 terms), rstd^2 is applied after gemm2
   conv   2 channels, causal long convolution as block-Toeplitz 16x16x32 MFMAs (4 shifted filter copies in LDS)
   gemm2  [128 t x 64 d] over half of K, partial of the partner's rows exchanged through the workspace
   out = x + xn*(y + kv*D) + rstd^2 * (h Wd)
Hand-offs between workgroups: sc1 stores + sc1 loads, guarded by tags derived from an epoch word in d_ws
(flags after vmcnt, or tags inside 8/16-byte granules); every spin is bounded.
"""

def generate(diag=False):
    Cfg.diag = diag
    stamp_n[0] = 0
    del slow_paths[:]; del stamp_names[:]
    ref = open("cdna_kernels/%s.s.ref" % NAME).read().split("\n")
    head = [l for l in ref if l.startswith(";") and "@launch" not in l]
    out = head + ["; @launch grid=(256,1,1) block=(256,1,1) lds=%d" % LDS_SIZE]
    out += ['.amdgcn_target "amdgcn-amd-amdhsa--gfx950"']
    out += ["; " + l for l in DOC.strip("\n").split("\n")]
    out += [".text", ".globl %s_kernel" % NAME, ".p2align 8",
            ".type %s_kernel,@function" % NAME, "%s_kernel:" % NAME]
    pro, _ = resolve([prologue_common(), "s_cmp_lt_u32 s2, 32", "s_cbranch_scc1 L_helper"])
    del TRACE['names'][:]
    TRACE['only'] = Cfg.tr_only
    m, mx = resolve(gen_main(), trace=Cfg.trace)
    h, _ = resolve([RAW("L_helper:"), gen_helper()])
    body = pro + m + "\n".join(slow_paths).split("\n") + ["L_end_of_main:"] + h + ["L_exit:", "s_endpgm", "L_end_of_code:"]
    body = "\n".join(body).split("\n")
    if Cfg.abl:
        nb = []; inmain = True; seen_end = False; nvm = 0
        for l in body:
            drop = False
            if "hst" in Cfg.abl and l.startswith("buffer_store_dwordx4") and (" s%d offen" % sHst0 in l or " s%d offen" % sHst1 in l): drop = True
            if "zst" in Cfg.abl and l.startswith("buffer_store_dwordx4") and " s%d offen" % sZst in l: drop = True
            if "pst" in Cfg.abl and l.startswith("buffer_store_dwordx4") and " s%d offen" % sPst in l: drop = True
            if "kst" in Cfg.abl and l.startswith("buffer_store_dwordx4") and (" s%d offen" % sKst0 in l or " s%d offen" % sKst1 in l): drop = True
            if drop: l = l.replace("buffer_store_dwordx4 v[", "buffer_store_dword v").replace(l[l.index(":"):l.index("]") + 1], "", 1); import re as _re; l = _re.sub(r"^(buffer_store_dword v\d+), v\d+,", r"\1, v%d," % vFlag0, l)
            if "wd" in Cfg.abl and srd(SRD_WD) in l and " lds" in l: l = "buffer_load_dword v12, v%d, %s, 0 offen" % (vFlag0, srd(SRD_WD))
            if "mfma" in Cfg.abl and l.startswith("v_mfma"): continue
            if "m16" in Cfg.abl and l.startswith("v_mfma_f32_32x32x16"):
                import re as _r
                mm = _r.match(r"v_mfma_f32_32x32x16_bf16 v\[(\d+):\d+\], (\S+), (\S+), (\S+)", l)
                d = int(mm.group(1)); tog = 8 * (len(nb) & 1)
                for o in (0, 4, 8, 12) if mm.group(4) == "0" else (tog, tog + 4):
                    nb.append("v_mfma_f32_16x16x32_bf16 %s, %s, %s, %s" % (vr(d + o, 4), mm.group(2), mm.group(3), "0" if mm.group(4) == "0" else vr(d + o, 4)))
                continue
            if "ds" in Cfg.abl and l.startswith("ds_read") and inmain: continue
            if "valu" in Cfg.abl and inmain and l.startswith(("v_mul_f32", "v_fma", "v_cvt_pk", "v_add_f32", "v_align", "v_permlane")): continue
            if "vm" in Cfg.abl and inmain and (" lds" in l or (l.startswith("buffer_load_dwordx4") and "sc1" in l)): l = "buffer_load_dword v9, v%d, %s, 0 offen" % (vFlag0, srd(SRD_X))
            if "nowait" in Cfg.abl and inmain and not seen_end:
                if l.startswith("s_waitcnt vmcnt") and "(0)" not in l: l = "s_waitcnt vmcnt(36)"
                if l == "s_barrier" or l.startswith("ds_write"): continue
                if l.startswith("buffer_load") and nvm % 8 == 7: nb.append("s_waitcnt vmcnt(36)")
                if l.startswith("buffer_"): nvm += 1
            if l == "s_endpgm" and len(nb) > 50: seen_end = True
            if l.startswith("L_end_of_main"): inmain = False
            if "own" in Cfg.abl and inmain and l.startswith("buffer_load_dwordx4") and " s%d offen" % sG[0] in l: l = "buffer_load_dword v12, v%d, %s, 0 offen" % (vFlag0, srd(SRD_X))
            if "zhalf" in Cfg.abl and inmain and l.startswith("buffer_store_dwordx4") and " s%d offen" % sZst in l and ("offset:2048" in l or "offset:3072" in l): l = "buffer_load_dword v12, v%d, %s, 0 offen" % (vFlag0, srd(SRD_X))
            if "chk" in Cfg.abl and l.startswith("s_cbranch_vccnz L_slow"): l = "s_nop 0"
            nb.append(l)
        body = nb
    if not Cfg.abl:
        body, nfix = lintmod.fix(body); print('padded', nfix)
    bad = lintmod.lint(body)
    for b in ([] if Cfg.abl else bad): print("HAZARD", b)
    for l in body: out.append(l if l.endswith(":") else "    " + l)
    out += ['.section .rodata,"a"', ".p2align 6", ".amdhsa_kernel %s_kernel" % NAME,
            "  .amdhsa_next_free_vgpr 512", "  .amdhsa_next_free_sgpr 102", "  .amdhsa_accum_offset 256",
            "  .amdhsa_group_segment_fixed_size 0", "  .amdhsa_kernarg_size 104", "  .amdhsa_user_sgpr_count 2",
            "  .amdhsa_user_sgpr_kernarg_segment_ptr 1", "  .amdhsa_system_sgpr_workgroup_id_x 1",
            "  .amdhsa_float_denorm_mode_32 3", ".end_amdhsa_kernel"]
    return "\n".join(out) + "\n", mx

if __name__ == "__main__":
    diag = "--diag" in sys.argv
    for a in sys.argv[1:]:
        if a.startswith("--") and "=" in a:
            k, v = a[2:].split("=", 1)
            assert hasattr(Cfg, k), k
            setattr(Cfg, k, eval(v))
    txt, mx = generate(diag)
    path = sys.argv[1] if len(sys.argv) > 1 and not sys.argv[1].startswith("--") else "cdna_kernels/%s.s" % NAME
    open(path, "w").write(txt)
    if diag: print("stamps:", stamp_names)
    if Cfg.trace: open(path + ".names", "w").write("\n".join(TRACE["names"]))
    if "--usage" in sys.argv:
        import numpy as np
        np.set_printoptions(linewidth=200)
        u = np.array(Cfg._usage1)
        print(u[:232].reshape(29, 8)); print(u[232:].reshape(4, 36)); print(np.array(Cfg._usage2).reshape(14, 8))
        for k, v in Cfg._log1.items(): print(k, v[0], v[-1], len(v))
        print("vm", sorted(Cfg._vmtab)); print("vm2", sorted(getattr(Cfg, "_vmtab2", []))); print("rest", Cfg._rest)
    print("wrote", path, "lines", txt.count("\n"), "max outstanding vm", mx)
```

```python
import re
REG = re.compile(r"\b([vas])(?:(\d+)|\[(\d+):(\d+)\])")
def regs(tok):
    out = set()
    for m in REG.finditer(tok):
        f = m.group(1)
        if m.group(2) is not None: out.add((f, int(m.group(2))))
        else:
            for i in range(int(m.group(3)), int(m.group(4)) + 1): out.add((f, i))
    if re.search(r"\bvcc\b", tok): out.add(("s", "vcc"))
    if re.search(r"\bm0\b", tok): out.add(("s", "m0"))
    return out
def parse(line):
    line = line.strip()
    if not line or line.endswith(":") or line.startswith(";") or line.startswith("."): return None
    parts = line.split(None, 1)
    mn = parts[0]; rest = parts[1] if len(parts) > 1 else ""
    ops = [o.strip() for o in re.split(r",(?![^\[]*\])", rest)]
    w, r = set(), set()
    if mn.startswith("v_mfma"):
        w = regs(ops[0]); r = regs(ops[1]) | regs(ops[2]); c = regs(ops[3])
        return dict(mn=mn, w=w, r=r, c=c, k="mfma", passes=8 if "32x32" in mn else 4)
    if mn.startswith("v_"):
        w = regs(ops[0]); r = set().union(*[regs(o) for o in ops[1:]]) if len(ops) > 1 else set()
        if mn.startswith(("v_fmac", "v_dot2c", "v_writelane")): r |= w
        if mn.startswith("v_permlane"): r |= w; w |= regs(ops[1])
        return dict(mn=mn, w=w, r=r, k="valu")
    if mn.startswith(("buffer_load", "global_load")):
        if " lds" in line: return dict(mn=mn, w=set(), r=regs(rest) | {("s", "m0")}, k="vmem")
        return dict(mn=mn, w=regs(ops[0]), r=set().union(*[regs(o) for o in ops[1:]]), k="vmem")
    if mn.startswith(("buffer_store", "global_store")):
        return dict(mn=mn, w=set(), r=regs(rest), data=regs(ops[0]), k="vmem")
    if mn.startswith("ds_read"): return dict(mn=mn, w=regs(ops[0]), r=regs(ops[1]), k="ds")
    if mn.startswith("ds_write"): return dict(mn=mn, w=set(), r=regs(rest), k="ds")
    if mn.startswith("s_"):
        w = regs(ops[0]) if ops and not mn.startswith(("s_cmp", "s_cbranch", "s_branch", "s_waitcnt", "s_nop", "s_barrier", "s_sleep", "s_endpgm")) else set()
        return dict(mn=mn, w=w, r=set().union(*[regs(o) for o in ops[1:]]) if len(ops) > 1 else set(), k="salu", nop=int(ops[0]) if mn == "s_nop" else None)
    return dict(mn=mn, w=set(), r=set(), k="other")
TRANS = ("v_exp", "v_log", "v_rcp", "v_rsq", "v_sqrt", "v_sin", "v_cos")
def lint(lines, strict=True, idx=False):
    pos = [i for i, l in enumerate(lines) if parse(l)]
    ins = [(lines[i], parse(lines[i])) for i in pos]
    bad = []
    for i, (l, p) in enumerate(ins):
        dist = 0; tdist = 0
        for j in range(i + 1, min(i + 24, len(ins))):
            l2, q = ins[j]
            need = 0; use_t = False
            if p["k"] == "mfma":
                n = 12 if p["passes"] == 8 else 8
                if q["k"] == "mfma":
                    if p["w"] & q["r"]: need = n; use_t = True
                    elif (p["w"] & q["c"]) and (p["w"] != q["c"] or p["passes"] != q["passes"]): need = n - 2; use_t = True
                elif p["w"] & (q["r"] | q["w"]): need = n; use_t = True
                elif q["k"] == "valu" and (p["c"] & q["w"]): need = 7 if p["passes"] == 8 else 3; use_t = True
            elif p["k"] == "valu":
                wv = {x for x in p["w"] if x[0] in "va"}; ws = {x for x in p["w"] if x[0] == "s"}
                if q["k"] == "mfma" and wv & (q["r"] | q["c"]): need = 2
                if q["mn"].startswith("v_permlane") and wv & q["r"]: need = 2
                if "dpp" in l2 and wv & q["r"]: need = 2
                if q["mn"].startswith(("v_readfirstlane", "v_readlane")) and wv & q["r"]: need = 1
                if p["mn"].startswith(TRANS) and q["k"] == "valu" and wv & q["r"]: need = max(need, 1)
                if p["mn"].startswith("v_dot") and q["mn"] != p["mn"] and wv & (q["r"] | q["w"]): need = 3
                if ws and q["k"] == "valu" and ws & q["r"]: need = max(need, 2)
                if ws and q["k"] == "vmem" and ws & q["r"]: need = 5
            elif p["k"] == "vmem" and "data" in p and len(p["data"]) >= 3:
                if q["k"] in ("valu", "mfma") and p["data"] & q["w"]: need = 2
            elif p["k"] == "salu" and ("s", "m0") in p["w"] and q["k"] == "vmem" and ("s", "m0") in q["r"]: need = 1
            have = tdist if use_t else dist
            if need > have: bad.append((need, have, l.strip(), l2.strip(), pos[j]) if idx else (need, have, l.strip(), l2.strip()))
            step = (q["nop"] + 1) if q.get("nop") is not None else 1
            dist += step
            tdist += (6 if q["passes"] == 8 else 3) if (q["k"] == "mfma" and not strict) else step
    return bad
def fix(lines):
    lines = list(lines); n = 0
    while True:
        b = lint(lines, True, True)
        if not b: return lines, n
        j = min(x[4] for x in b)
        short = max(x[0] - x[1] for x in b if x[4] == j)
        lines.insert(j, "s_nop %d" % (short - 1)); n += 1
if __name__ == "__main__":
    import sys
    b = lint(open(sys.argv[1]).read().split("\n"))
    for x in b: print(x)
    print(len(b), "potential hazards")
```
